```python
import torch

def _softmax(x, axis=-1):
    return torch.softmax(x, dim=axis)
def _gelu(x):
    return torch.nn.functional.gelu(x, approximate="tanh")
def _silu(x):
    return torch.nn.functional.silu(x)
def _sigmoid(x):
    return torch.sigmoid(x)
def _layernorm(x, axis=-1, eps=1e-5):
    m = x.mean(dim=axis, keepdim=True)
    v = x.var(dim=axis, keepdim=True, unbiased=False)
    return (x - m) / torch.sqrt(v + eps)
def _scatter_add(tgt, idx, src, axis=0):
    return tgt.clone().index_add_(axis, idx, src)
def _segment_sum(src, seg, n):
    out = torch.zeros((n,) + src.shape[1:], dtype=src.dtype)
    return out.index_add_(0, seg, src)
def _pad(x, pw):
    flat = tuple(v for pair in reversed(pw) for v in pair)
    return torch.nn.functional.pad(x, flat)

kernel_name = 'recurrent_scan__ssm_conv_s4d__moe_arch_mod__prompt'

def setup_inputs():

    _w = (lambda a: (lambda t: t.to(torch.bfloat16) if t.is_floating_point() else t)(torch.as_tensor(a)))
    def _A_setup():
        Bsz, L, D, N = 1, 2048, 1024, 128
        return {
            "u": _w((lambda *s: torch.randn(*s, dtype=torch.bfloat16) * 0.05)(Bsz, L, D)),
            "log_A_real": _w((lambda *s: torch.randn(*s, dtype=torch.bfloat16) * 6.4)(D, N) * 0.5),
            "A_imag": _w((lambda *s: torch.randn(*s, dtype=torch.bfloat16) * 0.05)(D, N) * 3.14),
            "C_real": _w((lambda *s: torch.randn(*s, dtype=torch.bfloat16) * 0.05)(D, N) / N ** 0.5),
            "C_imag": _w((lambda *s: torch.randn(*s, dtype=torch.bfloat16) * 0.05)(D, N) / N ** 0.5),
            "log_dt": _w((lambda *s: torch.randn(*s, dtype=torch.bfloat16) * 0.05)(D) * 0.5 - 4.0),
            "D_skip": _w((lambda *s: torch.randn(*s, dtype=torch.bfloat16) * 0.05)(D)),
        }
    _A_in = _A_setup()

    def _B_setup():
        B, S, D, F, C = 1, 2048, 1024, 3584, 2
        return {
            "x": _w((lambda *s: torch.randn(*s, dtype=torch.bfloat16) * 0.05)(B, S, D)),
            "w_r": _w((lambda *s: torch.randn(*s, dtype=torch.bfloat16) * 0.05)(D)),
            "w_gate": _w((lambda *s: torch.randn(*s, dtype=torch.bfloat16) * 0.05)(D, F)),
            "w_up": _w((lambda *s: torch.randn(*s, dtype=torch.bfloat16) * 0.05)(D, F)),
            "w_down": _w((lambda *s: torch.randn(*s, dtype=torch.bfloat16) * 0.05)(F, D)),
        }
    _B_in = _B_setup()

    return {
        "A_u": _A_in["u"],
        "A_log_A_real": _A_in["log_A_real"],
        "A_A_imag": _A_in["A_imag"],
        "A_C_real": _A_in["C_real"],
        "A_C_imag": _A_in["C_imag"],
        "A_log_dt": _A_in["log_dt"],
        "A_D_skip": _A_in["D_skip"],
        "B_x": _B_in["x"],
        "B_w_r": _B_in["w_r"],
        "B_w_gate": _B_in["w_gate"],
        "B_w_up": _B_in["w_up"],
        "B_w_down": _B_in["w_down"],
    }

def reference(A_u, A_log_A_real, A_A_imag, A_C_real, A_C_imag, A_log_dt, A_D_skip, B_x, B_w_r, B_w_gate, B_w_up, B_w_down):
    def _A_ref(u, log_A_real, A_imag, C_real, C_imag, log_dt, D_skip):
        L = u.shape[1]
        dt = torch.exp(log_dt)
        A = -torch.exp(log_A_real) + 1j * A_imag
        C = (C_real + 1j * C_imag) * dt[:, None]
        pos = (lambda x, dt: x.to(dt))(torch.arange(L), log_dt.dtype)
        P = torch.exp((A * dt[:, None])[:, :, None] * pos[None, None, :])
        K = 2.0 * torch.einsum("dn,dnl->dl", C, P).real
        L2 = 2 * L
        u_t = (lambda x, *d: x.permute(*d))(u, 0, 2, 1)
        Kf = (lambda x, *a, **k: torch.fft.rfft(x.float(), *a, **k))(K, L2)
        Uf = (lambda x, *a, **k: torch.fft.rfft(x.float(), *a, **k))(u_t, L2)
        y = (lambda x, *a, **k: torch.fft.irfft(x, *a, **k).to(torch.bfloat16))(Uf * Kf[None, :, :], L2)[:, :, :L]
        y = (lambda x, *d: x.permute(*d))(y, 0, 2, 1)
        return y + u * D_skip[None, None, :]

    def _B_ref(x, w_r, w_gate, w_up, w_down):
        B, S, D = x.shape
        C = 2
        r = x @ w_r
        idx = torch.argsort(-r, axis=-1)[:, :C]
        idx_e = (lambda x, n, axis: torch.repeat_interleave(x, n, dim=axis))(idx.reshape(B, C, 1), D, axis=2)
        x_sel = (lambda x, i, axis: torch.take_along_dim(x, i, dim=axis))(x, idx_e, axis=1)
        g = _silu(x_sel @ w_gate)
        u = x_sel @ w_up
        y = (g * u) @ w_down
        r_sel = _sigmoid((lambda x, i, axis: torch.take_along_dim(x, i, dim=axis))(r, idx, axis=1))
        y = y * r_sel.reshape(B, C, 1)
        b_off = (torch.arange(B) * S).reshape(B, 1)
        flat_idx = (idx + b_off).reshape(B * C)
        zero = (x * 0.0).reshape(B * S, D)
        upd = _scatter_add(zero, flat_idx, y.reshape(B * C, D), axis=0)
        return x + upd.reshape(B, S, D)

    x = A_u
    xn = _layernorm(x, axis=-1)
    s = _A_ref(xn, A_log_A_real, A_A_imag, A_C_real, A_C_imag, A_log_dt, A_D_skip)
    g = _silu(_B_ref(xn, B_w_r, B_w_gate, B_w_up, B_w_down))
    return x + s * g
```

```python
import re

TRANS = ("v_exp_f32", "v_log_f32", "v_rcp_f32", "v_rsq_f32", "v_sqrt_f32", "v_sin_f32", "v_cos_f32",
         "v_rcp_iflag_f32", "v_exp_f16", "v_rcp_f16")

def _regs(tok):
    tok = tok.strip()
    neg = tok.lstrip("-")
    m = re.fullmatch(r"(?:abs\(|\|)?([vsa])(\d+)[\)|]?", neg)
    if m:
        return {m.group(1) + m.group(2)}
    m = re.fullmatch(r"([vsa])\[(\d+):(\d+)\]", neg)
    if m:
        return {m.group(1) + str(i) for i in range(int(m.group(2)), int(m.group(3)) + 1)}
    if neg in ("vcc", "vcc_lo", "vcc_hi"):
        return {"vcc"}
    if neg in ("exec", "exec_lo", "exec_hi"):
        return {"exec"}
    if neg == "m0":
        return {"m0"}
    return set()

def _split_ops(s):
    out, depth, cur = [], 0, ""
    for ch in s:
        if ch in "[(":
            depth += 1
        if ch in "])":
            depth -= 1
        if ch == "," and depth == 0:
            out.append(cur); cur = ""
        else:
            cur += ch
    if cur.strip():
        out.append(cur)
    return [o.strip() for o in out]

class Ins:
    __slots__ = ("text", "op", "kind", "wr", "rd", "dpp", "srcc", "ab", "states", "wide_store_data", "lane_sel", "passes", "lds_dma", "opsel_dst")

def parse(text):
    I = Ins()
    I.text = text
    t = text.split(";")[0].strip()
    parts = t.split(None, 1)
    op = parts[0]
    rest = parts[1] if len(parts) > 1 else ""
    ops = _split_ops(rest)
    mods = ""
    if ops:
        last = ops[-1].split(None, 1)
        if len(last) > 1 and not last[0].endswith("("):
            ops[-1] = last[0]; mods = last[1]
    for suf in ("_e32", "_e64"):
        if op.endswith(suf):
            op = op[:-4]
    I.op = op; I.wr = set(); I.rd = set(); I.dpp = False; I.srcc = set(); I.ab = set(); I.states = 1
    I.wide_store_data = set(); I.lane_sel = set(); I.passes = 0; I.lds_dma = False; I.opsel_dst = False
    R = [_regs(o) for o in ops]
    if op == "s_nop":
        I.kind = "nop"; I.states = int(ops[0], 0) + 1
    elif op.startswith("v_mfma"):
        I.kind = "mfma"
        I.wr = R[0]; I.ab = R[1] | R[2]; I.srcc = R[3]; I.rd = I.ab | I.srcc
        I.passes = 8 if "32x32" in op else 4
    elif op.startswith("v_"):
        I.kind = "valu"
        I.dpp = op.endswith("_dpp") or "quad_perm" in mods or "row_" in mods or "wave_" in mods
        if op.startswith("v_cmpx"):
            I.wr = R[0] | {"exec"}; I.rd = set().union(*R[1:])
        elif op.startswith("v_cmp"):
            I.wr = R[0]; I.rd = set().union(*R[1:])
        elif op.startswith(("v_add_co", "v_sub_co", "v_subrev_co", "v_addc_co", "v_subb_co", "v_div_scale", "v_mad_u64")):
            I.wr = R[0] | R[1]; I.rd = set().union(*R[2:])
        elif op.startswith("v_permlane") and "swap" in op:
            I.wr = R[0] | R[1]; I.rd = R[0] | R[1]
        elif op.startswith(("v_readlane", "v_writelane")):
            I.wr = R[0]; I.rd = R[1] | R[2]; I.lane_sel = R[2]
            if op.startswith("v_writelane"):
                I.rd |= R[0]
        else:
            I.wr = R[0]; I.rd = set().union(*R[1:]) if len(R) > 1 else set()
            if op.startswith(("v_fmac", "v_dot2c", "v_pk_fmac", "v_mac")) or I.dpp or "UNUSED_PRESERVE" in mods:
                I.rd |= R[0]
            if ("dst_sel:WORD" in mods or "dst_sel:BYTE" in mods):
                I.opsel_dst = True
            if op.startswith("v_pk_") and op.endswith("_f32"):
                m = re.search(r"op_sel:\[(\d),(\d)", mods)
                assert not (m and m.group(2) == "1" and ops[2].lstrip("-").startswith("v")), "src1 op_sel=1 on packed f32: " + text
    elif op.startswith("ds_"):
        I.kind = "ds"
        if op.startswith(("ds_read", "ds_bpermute", "ds_permute", "ds_swizzle")) or "_rtn" in op:
            I.wr = R[0]; I.rd = set().union(*R[1:])
            if "d16" in op:
                I.rd |= R[0]
        else:
            I.rd = set().union(*R)
    elif op.startswith(("buffer_", "global_")):
        I.kind = "vmem"
        lds = re.search(r"\blds\b", mods) is not None or "load_lds" in op
        I.lds_dma = lds
        if op in ("buffer_wbl2", "buffer_inv"):
            pass
        elif "load" in op and not lds:
            I.wr = R[0]; I.rd = set().union(*R[1:])
            if "d16" in op:
                I.rd |= R[0]
        else:
            I.rd = set().union(*R) if R else set()
            if ("store" in op) and ("x3" in op or "x4" in op):
                I.wide_store_data = R[0] if op.startswith("buffer_") else R[1]
            if lds:
                I.rd |= {"m0"}
    elif op.startswith("s_"):
        I.kind = "salu"
        if op.startswith(("s_load", "s_buffer_load", "s_memtime", "s_memrealtime", "s_getreg")):
            I.kind = "smem"; I.wr = R[0]; I.rd = set().union(*R[1:]) if len(R) > 1 else set()
        elif op.startswith(("s_cmp", "s_cbranch", "s_branch", "s_waitcnt", "s_barrier", "s_endpgm", "s_setprio", "s_sleep", "s_bitcmp")):
            I.rd = set().union(*R) if R else set()
        else:
            I.wr = R[0]; I.rd = set().union(*R[1:]) if len(R) > 1 else set()
            if "saveexec" in op:
                I.wr |= {"exec"}
    else:
        raise ValueError("unknown instruction: " + text)
    return I

def is_s(r):
    return r[0] == "s" or r == "vcc"

def need(P, C):
    n = 0
    pv = {r for r in P.wr if r[0] in "va"}
    ps = {r for r in P.wr if is_s(r)}
    if P.kind == "valu":
        if C.kind == "valu":
            if C.dpp and (pv & C.rd): n = max(n, 2)
            if C.op.startswith(("v_readlane", "v_readfirstlane")) and (pv & C.rd): n = max(n, 1)
            if C.op.startswith("v_permlane") and (pv & C.rd): n = max(n, 2)
            if ps & C.lane_sel: n = max(n, 4)
            if ps & C.rd: n = max(n, 2)
            if C.op.startswith("v_div_fmas") and "vcc" in ps: n = max(n, 4)
            if P.op in TRANS and (pv & C.rd) and C.op not in TRANS: n = max(n, 1)
            if P.opsel_dst and (pv & (C.rd | C.wr)): n = max(n, 1)
            if "exec" in P.wr:
                n = max(n, 5 if C.dpp else 4 if C.op.startswith(("v_readlane", "v_readfirstlane", "v_writelane", "v_permlane")) else 0)
        if C.kind == "mfma":
            if pv & C.rd: n = max(n, 2)
            if "exec" in P.wr: n = max(n, 4)
        if C.kind == "vmem" and (ps & C.rd): n = max(n, 5)
        if C.kind in ("salu", "smem") and (ps & C.rd): n = max(n, 1)
        if C.kind in ("vmem", "ds") and (P.op in TRANS or P.opsel_dst) and (pv & C.rd): n = max(n, 1)
    if P.kind == "mfma":
        big = {4: 8, 8: 12}[P.passes]
        if C.kind == "mfma":
            if pv & C.ab: n = max(n, big)
            if (pv & C.srcc) and not (C.srcc == pv and C.passes == P.passes): n = max(n, big - 2)
            if (pv & C.wr) and not (C.srcc == pv and C.wr == pv and C.passes == P.passes) and not (pv & C.srcc):
                n = max(n, big)
        elif C.kind in ("valu", "ds", "vmem"):
            if pv & (C.rd | C.wr): n = max(n, big)
        if C.kind == "valu" and (P.srcc & C.wr): n = max(n, {4: 3, 8: 7}[P.passes])
    if P.kind == "vmem" and P.wide_store_data and (P.wide_store_data & C.wr) and C.kind in ("valu", "mfma", "ds", "vmem"):
        n = max(n, 2)
    if P.kind == "salu" and "m0" in P.wr and (C.lds_dma or "addtid" in C.op or C.op.startswith("s_movrel")):
        n = max(n, 1)
    return n

class Asm:
    def __init__(self):
        self.lines = []
        self.hist = []
        self.nops = 0
        self.labels = {}
    def raw(self, text):
        self.lines.append((text, None))
    def label(self, name):
        self.labels[name] = len(self.lines)
        self.lines.append((name + ":", None))
    def _required(self, hist, C):
        req = 0; dist = 0
        for P in reversed(hist):
            n = need(P, C)
            if n > dist:
                req = max(req, n - dist)
            dist += P.states
            if dist >= 20:
                break
        return req
    def __call__(self, text):
        for line in text.strip().split("\n"):
            line = line.strip()
            if not line or line.startswith(";"):
                continue
            if line.endswith(":"):
                self.label(line[:-1]); continue
            I = parse(line)
            req = self._required(self.hist, I)
            while req > 0:
                k = min(req, 16)
                N = parse(f"s_nop {k-1}")
                self.lines.append(("  " + N.text, N)); self.hist.append(N); self.nops += 1
                req -= k
            self.lines.append(("  " + line, I)); self.hist.append(I)
            m = re.match(r"s_(?:cbranch\w*|branch)\s+(\S+)", line)
            if m and m.group(1) in self.labels:
                self._check_edge(m.group(1))
            if m:
                self.fwd = getattr(self, "fwd", [])
                self.fwd.append((m.group(1), list(self.hist[-24:])))
    def _check_edge(self, label, hist=None):
        hist = list(self.hist[-24:]) if hist is None else list(hist)
        cnt = 0
        for text, I in self.lines[self.labels[label]:]:
            if I is None:
                continue
            req = self._required(hist, I)
            if req > 0:
                raise RuntimeError(f"hazard across branch to {label}: '{I.text}' needs {req} more wait states")
            hist.append(I); cnt += I.states
            if cnt > 20 or I.op in ("s_branch", "s_endpgm"):
                break
    def finish(self):
        for label, hist in getattr(self, "fwd", []):
            if label in self.labels:
                self._check_edge(label, hist)
        return "\n".join(t for t, _ in self.lines) + "\n"
```

```python
import sys, os
sys.path.insert(0, os.path.dirname(os.path.abspath(__file__)))
from asmlib import Asm

NF = 224
WBYTES = 1024 * 3584 * 2
WS_XT    = 0x000000
WS_STATS = 0x400000
WS_KEYS  = 0x404000
WS_BAND  = 0x408000
WS_CNT   = 0x410000
WS_CLAIM = 0x420000
WS_PART  = 0x500000
WS_EX    = WS_PART + 64 * NF * 128
WS_FLAG  = 0x430000
WS_EX2   = 0x440000
WS_STAMP = 0x700000
WS_CAND  = 0x800000
WS_REC   = 0x40c000
WS_TBL   = 0x900000
WS_SIZE  = 0xd00000

OPT = dict(dbg=0, xt_flags="sc1", sent_flags="sc1", dma_flags="nt", ld_flags="nt",
           pf=0, pfd=0, prio=1, skip=0, wd_early=2, badhint=0, dry=0, grp=0, fprio=3, kin=2, tbl_flags="sc1", rep=0, k1spin=0, k2spin=0, ppf=0, xfirst=1, epi_first=0, bsplit=2, single=1, b1=1, exp=0, cb=1, wdpos=2, eprio=3, lean=0, nprio=0, uprio=3, gpoll="sc0,sc1", gsleep=2, p1="sc1", e1="sc1", tagp=1, pre=1, upos=0, esleep=0, psleep=0, x8=0, xl="sc1", half=0, gat=0, gfl="", bpos=1, efirst=1)

L2E_HI, L2E_LO, LN2 = 0x3fb8aa3b, 0x32a57060, 0x3f317218
I2PI_LO = 0x31dc9c88
SY = 0
UA, UROW, UPAD = 768, 4640, 272
TB = UA + 4 * UROW
DELTA = 1986
R2B, R3B = 1120, 1632
BAND = TB + 16384
KG = BAND + 5120
KGC = 8704
F_XS = KG + 4 * KGC
F_W = F_XS + 1024
XR = F_W + 65536
XRS = 2064
XW = XR + 8 * XRS
K2_LDS = XW + 2048
K1_LDS = 256

def stamp(a, i, group=0):
    if OPT["dbg"] and (group == OPT["grp"] or i <= 2 and group == 0):
        a(("s_memtime" if OPT["dbg"] == 2 else "s_memrealtime") + f" s[{90+2*i}:{91+2*i}]")

def stamp_flush(a, kern, srd_, wave_s, add=0):
    if OPT["rep"]:
        if OPT["single"]:
            report(a, [(i, i + (8 if add else 0)) for i in range(6)], 0)
            return
        sl = {(0, 0): [(0, 0), (2, 1), (5, 2)], (0, 256): [(5, 3)], (1, 0): [(i, 4 + i) for i in range(6)],
              (1, 256): [(i, 9 + i) for i in range(1, 6)]}[kern, add]
        report(a, sl, 512 * (1 - kern))
        return
    if OPT["dbg"]:
        a(f"""s_mov_b64 exec, 1
              s_add_u32 s88, s2, {add}
              s_lshl_b32 s88, s88, 3
              s_add_u32 s88, s88, s{wave_s}
              s_lshl_b32 s88, s88, 5
              s_add_u32 s88, s88, {WS_STAMP + kern * 0x40000:#x}
              v_mov_b32 v2, 0
              s_getreg_b32 s87, hwreg(HW_REG_XCC_ID)
              s_waitcnt lgkmcnt(0)""")
        for i in range(6):
            a(f"v_mov_b32 v{4+i}, s{90+2*i}")
        a(f"""v_mov_b32 v10, s87
              s_getreg_b32 s87, hwreg(HW_REG_HW_ID)
              v_mov_b32 v11, s87
              buffer_store_dwordx4 v[4:7], v2, s[{srd_}:{srd_+3}], s88 offen
              buffer_store_dwordx4 v[8:11], v2, s[{srd_}:{srd_+3}], s88 offen offset:16""")

REPN = [0]
def report(a, slots, back):
    REPN[0] += 1
    a(f"""s_and_b32 s88, s2, 31
          s_cmp_lg_u32 s88, 5
          s_cbranch_scc1 REP_{REPN[0]}
          s_and_b32 s88, s30, 3
          s_cmp_lg_u32 s88, 0
          s_cbranch_scc1 REP_{REPN[0]}
          s_load_dwordx2 s[86:87], s[0:1], 104
          s_mov_b64 exec, 1
          s_waitcnt vmcnt(0) lgkmcnt(0)
          s_add_u32 s86, s86, {back}
          s_addc_u32 s87, s87, 0""")
    for i, slot in slots:
        a(f"""v_mov_b32 v2, {4*slot}
              v_mov_b32 v3, s{90+2*i}""")
        if slot in (0, 8): a("v_not_b32 v3, v3")
        a("global_atomic_umax v2, v3, s[86:87] sc1")
    a(f"REP_{REPN[0]}:")

def srd(a, d, lo, hi, size):
    a(f"""s_mov_b32 s{d}, s{lo}
          s_mov_b32 s{d+1}, s{hi}
          s_mov_b32 s{d+2}, {size:#x}
          s_mov_b32 s{d+3}, 0x00020000""")

def wave_reduce(a, op, regs):
    for mod in ("quad_perm:[1,0,3,2] row_mask:0xf", "quad_perm:[2,3,0,1] row_mask:0xf", "row_half_mirror row_mask:0xf",
                "row_mirror row_mask:0xf", "row_bcast:15 row_mask:0xa", "row_bcast:31 row_mask:0xc"):
        for r in regs:
            a(f"{op}_dpp v{r}, v{r}, v{r} {mod} bank_mask:0xf")

def rows_allreduce(a, regs, tmp):
    for sw in ("v_permlane16_swap_b32", "v_permlane32_swap_b32"):
        for i, r in enumerate(regs):
            a(f"v_mov_b32 v{tmp+i}, v{r}")
        for i, r in enumerate(regs):
            a(f"{sw} v{tmp+i}, v{r}")
        for i, r in enumerate(regs):
            a(f"v_add_f32 v{r}, v{r}, v{tmp+i}")

def desc(name, vgpr, sgpr):
    return f""".p2align 6
.amdhsa_kernel {name}
  .amdhsa_next_free_vgpr {vgpr}
  .amdhsa_next_free_sgpr {sgpr}
  .amdhsa_accum_offset {(vgpr + 3) // 4 * 4}
  .amdhsa_group_segment_fixed_size 0
  .amdhsa_kernarg_size 120
  .amdhsa_user_sgpr_count 2
  .amdhsa_user_sgpr_kernarg_segment_ptr 1
  .amdhsa_system_sgpr_workgroup_id_x 1
.end_amdhsa_kernel
"""

def top2(a, kv, t, sK0, sK1, sT):
    def merge(d, x, y):
        a(f"""v_min_u32 v{t}, v{x}, v{y}
              v_max_u32 v{d}, v{x}, v{y}
              v_max3_u32 v{d+1}, v{t}, v{x+1}, v{y+1}""")
    merge(kv, kv, kv + 2); merge(kv + 4, kv + 4, kv + 6); merge(kv, kv, kv + 4)
    for mod in ("quad_perm:[1,0,3,2]", "quad_perm:[2,3,0,1]", "row_half_mirror", "row_mirror"):
        a(f"""v_min_u32_dpp v{t}, v{kv}, v{kv} {mod} row_mask:0xf bank_mask:0xf
              v_max_u32_dpp v{kv+1}, v{kv+1}, v{kv+1} {mod} row_mask:0xf bank_mask:0xf
              v_max_u32_dpp v{kv}, v{kv}, v{kv} {mod} row_mask:0xf bank_mask:0xf
              v_max_u32 v{kv+1}, v{kv+1}, v{t}""")
    for r in range(4):
        a(f"v_readlane_b32 s{sT+2*r}, v{kv}, {16*r}")
    for r in range(4):
        a(f"v_readlane_b32 s{sT+2*r+1}, v{kv+1}, {16*r}")
    def smerge(d0, d1, x, y):
        a(f"""s_max_u32 s{x+1}, s{x+1}, s{y+1}
              s_min_u32 s{y+1}, s{x}, s{y}
              s_max_u32 s{d0}, s{x}, s{y}
              s_max_u32 s{d1}, s{x+1}, s{y+1}""")
    smerge(sT, sT + 1, sT, sT + 2); smerge(sT + 4, sT + 5, sT + 4, sT + 6); smerge(sK0, sK1, sT, sT + 4)

def exp_acc(a, d, x, t0, t1, sL2E, sL2ELO, sLN2):
    a(f"""v_mul_f32 v{t0}, s{sL2E}, v{x}
          v_fma_f32 v{t1}, v{x}, s{sL2E}, -v{t0}
          v_exp_f32 v{d}, v{t0}
          v_fmac_f32 v{t1}, s{sL2ELO}, v{x}
          v_mul_f32 v{t1}, s{sLN2}, v{t1}
          v_fmac_f32 v{d}, v{d}, v{t1}""")

def rbf(a, *regs):
    for r in regs:
        a(f"v_cvt_pk_bf16_f32 v{r}, v{r}, v{r}")
    for r in regs:
        a(f"v_lshlrev_b32 v{r}, 16, v{r}")

def unpack(a, d, s, sM):
    a(f"""v_lshlrev_b32 v{d}, 16, v{s}
          v_and_b32 v{d+1}, s{sM}, v{s}""")

def norm_pair(a, r, src, st, t, sM, keep_packed=None):
    unpack(a, r, src, sM)
    a(f"""v_pk_add_f32 v[{r}:{r+1}], v[{r}:{r+1}], v[{st}:{st+1}] op_sel_hi:[1,0] neg_lo:[0,1] neg_hi:[0,1]
          v_cvt_pk_bf16_f32 v{t}, v{r}, v{r+1}""")
    unpack(a, r, t, sM)
    a(f"""v_pk_mul_f32 v[{r}:{r+1}], v[{st}:{st+1}], v[{r}:{r+1}] op_sel:[1,0]
          v_cvt_pk_bf16_f32 v{t}, v{r}, v{r+1}""")

def cmul(a, d, x, y):
    a(f"""v_pk_mul_f32 v[{d}:{d+1}], v[{x}:{x+1}], v[{y}:{y+1}] op_sel:[1,0] op_sel_hi:[1,1]
          v_pk_fma_f32 v[{d}:{d+1}], v[{y}:{y+1}], v[{x}:{x+1}], v[{d}:{d+1}] op_sel:[1,0,0] op_sel_hi:[0,0,1] neg_hi:[1,0,0]""")

class Pipe:
    def __init__(self, a, maxfly=12):
        self.a = a; self.loads = []; self.steps = []; self.maxfly = maxfly
    def load(self, text, gate=-1):
        self.loads.append((text, gate)); return len(self.loads) - 1
    def step(self, text, need=()):
        self.steps.append((text, list(need))); return len(self.steps) - 1
    def last(self):
        return len(self.steps) - 1
    def run(self):
        a = self.a; issued = done = 0
        for i, (text, need) in enumerate(self.steps):
            while issued < len(self.loads) and self.loads[issued][1] < i and issued - done < self.maxfly:
                a(self.loads[issued][0]); issued += 1
            if need:
                lid = max(need)
                while issued <= lid:
                    assert self.loads[issued][1] < i, "load gated behind its own consumer"
                    if issued - done >= 15:
                        a("s_waitcnt lgkmcnt(8)"); done = issued - 8
                    a(self.loads[issued][0]); issued += 1
                if done <= lid:
                    a(f"s_waitcnt lgkmcnt({issued - lid - 1})"); done = lid + 1
            a(text)
        assert issued == len(self.loads)

def tile_scalars(a, sx, sq, st, srg, scb, sbase, wave):
    a(f"""s_mul_i32 s{srg}, s{sq}, 37
          s_lshr_b32 s{srg}, s{srg}, 8
          s_mul_i32 s{scb}, s{srg}, 7
          s_sub_u32 s{scb}, s{sq}, s{scb}
          s_mul_i32 s{st}, s{sx}, 7
          s_add_u32 s{scb}, s{scb}, s{st}
          s_lshl_b32 s{sbase}, s{srg}, 3
          s_add_u32 s{sbase}, s{sbase}, s{wave}
          s_mul_i32 s{sbase}, s{sbase}, {32 * 7168}
          s_lshl_b32 s{st}, s{scb}, 7
          s_add_u32 s{sbase}, s{sbase}, s{st}""")

DRY_ENTRIES = [("K2_D0", 0), ("K2_FFN", 1), ("K2_D1", 8), ("K2_D2", 0), ("K2F_NORM", 1), ("K2_D4", 0), ("K2_FAR", 4), ("K2_EPI", 1)]

def k1():
    a = Asm()
    a.raw(".p2align 8\n.globl k1_kernel\n.type k1_kernel,@function\nk1_kernel:")
    a("""s_cmp_ge_u32 s2, 256
         s_cbranch_scc1 K1_END""")
    stamp(a, 0)
    a(f"""s_load_dwordx2 s[4:5], s[0:1], 0
          s_load_dwordx8 s[40:47], s[0:1], 64
          s_load_dwordx4 s[24:27], s[0:1], 104
          v_lshrrev_b32 v2, 6, v0
          v_and_b32 v1, 63, v0
          s_mov_b32 s31, 0xffff0000
          v_readfirstlane_b32 s30, v2
          v_lshlrev_b32 v3, 4, v1
          v_mov_b32 v59, 0
          s_cmp_ge_u32 s30, 8
          s_cbranch_scc1 K1_AUX
          v_lshrrev_b32 v6, 2, v0
          v_and_b32 v7, 3, v0
          v_lshlrev_b32 v4, 3, v6
          v_lshl_add_u32 v4, v7, 12, v4
          v_lshlrev_b32 v5, 14, v6
          v_lshl_add_u32 v5, v7, 4, v5
          s_lshl_b32 s60, s2, 3
          s_add_u32 s60, s60, s30               ; row
          s_lshl_b32 s61, s60, 11
          s_lshl_b32 s62, s2, 14
          s_lshl_b32 s63, s2, 6
          s_add_u32 s64, s63, 0x200000
          s_mov_b32 s65, 0x3f803f80
          v_mov_b32 v30, 0x3a800000
          s_waitcnt lgkmcnt(0)""")
    stamp(a, 1)
    srd(a, 16, 4, 5, 0x400000)
    a("""buffer_load_dwordx4 v[8:11], v3, s[16:19], s61 offen nt
         buffer_load_dwordx4 v[12:15], v3, s[16:19], s61 offen offset:1024 nt""")
    srd(a, 20, 40, 41, 2048)
    a("""buffer_load_dwordx4 v[16:19], v3, s[20:23], 0 offen
         buffer_load_dwordx4 v[20:23], v3, s[20:23], 0 offen offset:1024
         buffer_load_dwordx2 v[48:49], v4, s[16:19], s62 offen nt
         buffer_load_dwordx2 v[50:51], v4, s[16:19], s62 offen offset:2048 nt
         buffer_load_dwordx2 v[52:53], v4, s[16:19], s62 offen offset:1024 nt
         buffer_load_dwordx2 v[54:55], v4, s[16:19], s62 offen offset:3072 nt
         s_mov_b32 s28, s26
         s_mov_b32 s29, s27""")
    srd(a, 24, 28, 29, WS_SIZE)
    F = 32
    a("""v_mov_b32 v56, 0
         v_mov_b32 v57, 0
         v_mov_b32 v58, 0
         s_barrier
         s_waitcnt vmcnt(6)""")
    stamp(a, 2)
    for i in range(8):
        unpack(a, F + 2*i, 8 + i, 31)
        a(f"v_dot2c_f32_bf16 v56, s65, v{8+i}")
    a("s_waitcnt vmcnt(4)")
    for i in range(8):
        a(f"""v_dot2c_f32_bf16 v57, v{8+i}, v{16+i}
              v_dot2c_f32_bf16 v58, s65, v{16+i}""")
    a("s_nop 2")
    wave_reduce(a, "v_add_f32", [56, 57, 58])
    a("""v_readlane_b32 s66, v56, 63
         v_mul_f32 v62, s66, v30
         v_cvt_pk_bf16_f32 v60, v62, v62
         v_lshlrev_b32 v60, 16, v60""")
    for i in range(8):
        a(f"v_pk_add_f32 v[{F+2*i}:{F+2*i+1}], v[{F+2*i}:{F+2*i+1}], v[62:63] op_sel_hi:[1,0] neg_lo:[0,1] neg_hi:[0,1]")
    a(f"""v_pk_mul_f32 v[16:17], v[{F}:{F+1}], v[{F}:{F+1}]
          v_pk_mul_f32 v[18:19], v[{F+2}:{F+3}], v[{F+2}:{F+3}]""")
    for i in range(2, 8):
        d = 16 + 2 * (i % 2)
        a(f"v_pk_fma_f32 v[{d}:{d+1}], v[{F+2*i}:{F+2*i+1}], v[{F+2*i}:{F+2*i+1}], v[{d}:{d+1}]")
    a("""v_pk_add_f32 v[16:17], v[16:17], v[18:19]
         v_fma_f32 v57, -v60, v58, v57
         v_add_f32 v56, v16, v17""")
    wave_reduce(a, "v_add_f32", [56])
    a("v_mul_f32 v58, v56, v30")
    rbf(a, 58)
    a("v_add_f32 v58, 0x3727c5ac, v58")
    rbf(a, 58)
    a("v_sqrt_f32 v58, v58")
    rbf(a, 58)
    a(f"""v_rcp_f32 v61, v58
          s_lshl_b32 s15, s60, 3
          s_add_u32 s15, s15, {WS_STATS:#x}
          v_fma_f32 v56, -v58, v61, 1.0
          v_fmac_f32 v61, v56, v61
          s_sub_u32 s14, 2047, s60
          s_lshl_b32 s14, s14, 1
          v_mul_f32 v56, v57, v61""")
    rbf(a, 56)
    a(f"""v_ashrrev_i32 v57, 31, v56
          v_or_b32 v57, 0x80000000, v57
          v_xor_b32 v56, v56, v57
          v_and_b32 v56, s31, v56
          v_or_b32 v56, s14, v56
          s_lshl_b32 s14, s30, 2
          v_mov_b32 v57, s14
          v_mov_b32 v58, 1
          s_mov_b32 exec_lo, 0
          s_mov_b32 exec_hi, 0x80000000
          ds_write_b32 v57, v56
          ds_add_u32 v59, v58 offset:32
          buffer_store_dwordx2 v[60:61], v59, s[24:27], s15 offen
          s_mov_b64 exec, -1
          v_readlane_b32 s66, v56, 63
          v_readlane_b32 s68, v61, 63
          s_waitcnt vmcnt(1)
          buffer_store_dwordx4 v[48:51], v5, s[24:27], s63 offen {OPT['xt_flags']}
          buffer_store_dwordx4 v[52:55], v5, s[24:27], s64 offen {OPT['xt_flags']}""")
    stamp(a, 3)
    a(f"""s_branch K1_KWB
        K1_KW:
          s_sleep 1
        K1_KWB:
          ds_read_b32 v58, v59 offset:32
          ds_read_b128 v[32:35], v59
          ds_read_b128 v[36:39], v59 offset:16
          s_waitcnt lgkmcnt(0)
          v_cmp_gt_u32 vcc, 8, v58
          s_cbranch_vccnz K1_KW""")
    for i in range(4):
        a(f"""v_max_u32 v{40+2*i}, v{32+2*i}, v{33+2*i}
              v_min_u32 v{41+2*i}, v{32+2*i}, v{33+2*i}""")
    for d, x, y in ((40, 40, 42), (44, 44, 46), (40, 40, 44)):
        a(f"""v_min_u32 v31, v{x}, v{y}
              v_max_u32 v{d}, v{x}, v{y}
              v_max3_u32 v{d+1}, v31, v{x+1}, v{y+1}""")
    a(f"""v_readfirstlane_b32 s70, v40
          v_readfirstlane_b32 s71, v41
          v_mov_b32 v61, s68
          s_lshl_b32 s72, s2, 12
          s_add_u32 s72, s72, {WS_CAND:#x}
          s_cmp_eq_u32 s66, s71
          s_cselect_b32 s73, 2048, 0
          s_cbranch_scc1 K1_CAND
          s_cmp_lg_u32 s66, s70
          s_cbranch_scc1 K1_NOCAND
          s_lshl_b32 s15, s2, 3
          s_add_u32 s15, s15, {WS_KEYS:#x}
          v_or_b32 v41, 1, v41
          s_mov_b64 exec, 1
          buffer_store_dwordx2 v[40:41], v59, s[24:27], s15 offen
          s_mov_b64 exec, -1
        K1_CAND:
          s_add_u32 s73, s73, s72""")
    for i in range(8):
        norm_pair(a, F + 2*(i % 2), 8 + i, 60, 8 + i, 31)
    a("""buffer_store_dwordx4 v[8:11], v3, s[24:27], s73 offen sc1
         buffer_store_dwordx4 v[12:15], v3, s[24:27], s73 offen offset:1024 sc1
       K1_NOCAND:""")
    stamp(a, 4)
    if OPT["dbg"]:
        a("s_waitcnt vmcnt(0)")
        stamp(a, 5)
        stamp_flush(a, 0, 24, 30)
    a("""K1_END:
         s_endpgm""")
    a.raw(".p2align 6")
    a("K1_AUX:")
    if OPT["k1spin"]:
        a(f"""s_memrealtime s[90:91]
              s_waitcnt lgkmcnt(0)
              s_add_u32 s90, s90, {OPT['k1spin']}""")
    a(f"""
          v_lshlrev_b32 v7, 2, v1
          ds_write_b32 v7, v59
          s_getreg_b32 s50, hwreg(HW_REG_XCC_ID)
          s_and_b32 s50, s50, 7
          s_sub_u32 s30, s30, 8
          v_lshrrev_b32 v6, 3, v1
          v_mul_u32_u24 v6, 7168, v6
          v_and_b32 v7, 7, v1
          v_lshl_add_u32 v6, v7, 4, v6
          v_and_b32 v0, 511, v0
          v_lshlrev_b32 v7, 4, v0
          v_mov_b32 v8, -1
          v_mov_b32 v9, -1
          v_mov_b32 v10, -1
          v_mov_b32 v11, -1
          v_mov_b32 v12, 0
          v_mov_b32 v13, 0
          v_mov_b32 v14, 0
          v_mov_b32 v15, 0
          s_lshl_b32 s59, s2, 13
          s_add_u32 s59, s59, {WS_PART:#x}
          s_lshl_b32 s60, s2, 8
          s_add_u32 s60, s60, {WS_CLAIM:#x}
          s_waitcnt lgkmcnt(0)
          s_mov_b32 s28, s26
          s_mov_b32 s29, s27""")
    stamp(a, 1)
    srd(a, 24, 28, 29, WS_SIZE)
    if OPT["pf"]:
        a("""s_getreg_b32 s52, hwreg(HW_REG_HW_ID, 13, 3)
             s_getreg_b32 s53, hwreg(HW_REG_HW_ID, 8, 4)
             s_and_b32 s52, s52, 3
             s_min_u32 s53, s53, 8
             s_mul_i32 s51, s30, 36
             s_mul_i32 s52, s52, 9
             s_add_u32 s52, s52, s53
             s_add_u32 s52, s52, s51
             s_mul_i32 s52, s52, 50973
             s_lshr_b32 s52, s52, 16
             s_and_b32 s56, s52, 7
             s_lshr_b32 s52, s52, 3""")
        tile_scalars(a, 50, 52, 51, 53, 54, 55, 56)
        srd(a, 32, 42, 43, WBYTES)
        srd(a, 36, 44, 45, WBYTES)
    if OPT["ppf"]:
        a("""s_load_dwordx8 s[4:11], s[0:1], 8
             s_getreg_b32 s52, hwreg(HW_REG_HW_ID, 13, 3)
             s_getreg_b32 s53, hwreg(HW_REG_HW_ID, 8, 4)
             s_and_b32 s52, s52, 3
             s_lshl_b32 s52, s52, 3
             s_lshr_b32 s51, s30, 2
             s_add_u32 s53, s53, s51
             s_and_b32 s53, s53, 7
             s_add_u32 s52, s52, s53
             s_lshl_b32 s52, s52, 10
             s_lshl_b32 s53, s50, 15
             s_add_u32 s52, s52, s53
             v_add_u32 v4, s52, v3
             s_and_b32 s51, s30, 3
             s_lshl_b32 s51, s51, 1
             s_waitcnt lgkmcnt(0)
             s_mov_b32 m0, s51
             s_movrels_b64 s[12:13], s[4:5]
             global_load_dwordx4 v[68:71], v4, s[12:13]""")
    a("s_barrier")
    stamp(a, 2)
    if OPT["pf"]:
        for i in range(OPT["pf"]):
            a(f"""buffer_load_dwordx4 v[{16+8*i}:{19+8*i}], v6, s[32:35], s55 offen nt
                  buffer_load_dwordx4 v[{20+8*i}:{23+8*i}], v6, s[36:39], s55 offen nt
                  s_add_u32 s55, s55, {8*7168}""")
        if OPT["pfd"]:
            srd(a, 32, 46, 47, WBYTES)
            a("""s_lshl_b32 s54, s54, 2
                 s_add_u32 s54, s54, s53
                 s_lshl_b32 s54, s54, 15
                 s_lshl_b32 s53, s56, 12
                 s_add_u32 s54, s54, s53""")
            for i in range(OPT["pfd"]):
                a(f"buffer_load_dwordx4 v[{48+4*i}:{51+4*i}], v3, s[32:35], s54 offen offset:{1024*i} nt")
    a(f"""buffer_store_dwordx4 v[8:11], v7, s[24:27], s59 offen {OPT['sent_flags']}
          s_cmp_lg_u32 s30, 7
          s_cbranch_scc1 K1_NOCLR
          s_mov_b64 exec, 0xffff
          buffer_store_dwordx4 v[12:15], v3, s[24:27], s60 offen
          s_mov_b64 exec, -1
        K1_NOCLR:
          s_cmp_lg_u32 s2, 0
          s_cbranch_scc1 K1_NOBAND
          s_cmp_gt_u32 s30, 4
          s_cbranch_scc1 K1_NOBAND
          s_lshl_b32 s70, s30, 2
          s_lshr_b32 s71, 0xabcda, s70
          s_and_b32 s71, s71, 15
          s_lshr_b32 s72, 0x66824, s70
          s_and_b32 s72, s72, 15
          v_lshrrev_b32 v4, 4, v1
          v_lshlrev_b32 v4, 3, v4
          v_and_b32 v5, 15, v1
          v_sub_u32 v4, v5, v4
          v_add_u32 v4, s71, v4
          v_mov_b32 v60, 0x3c00
          v_mov_b32 v61, 0x3c000000""")
    for jj in range(8):
        a(f"""v_subrev_u32 v5, {jj}, v4
              v_cmp_ge_u32 s[{74+2*jj}:{75+2*jj}], s72, v5""")
    for i in range(4):
        a(f"""v_cndmask_b32 v{64+i}, 0, v60, s[{74+4*i}:{75+4*i}]
              v_cndmask_b32 v5, 0, v61, s[{76+4*i}:{77+4*i}]
              v_or_b32 v{64+i}, v{64+i}, v5""")
    a(f"""s_lshl_b32 s70, s30, 10
          s_add_u32 s70, s70, {WS_BAND:#x}
          s_mov_b32 s71, {WS_CNT:#x}
          buffer_store_dwordx4 v[64:67], v3, s[24:27], s70 offen
          buffer_store_dwordx4 v[12:15], v3, s[24:27], s71 offen
        K1_NOBAND:""")
    stamp(a, 3)
    if OPT["dbg"]:
        stamp(a, 4)
        a("s_waitcnt vmcnt(0)")
        stamp(a, 5)
        stamp_flush(a, 0, 24, 30, 256)
    if OPT["k1spin"]:
        a("""K1_SPIN:
             s_memrealtime s[92:93]
             s_waitcnt lgkmcnt(0)
             s_sub_u32 s92, s92, s90
             s_cmp_lt_i32 s92, 0
             s_cbranch_scc1 K1_SPIN""")
    if OPT["dry"]:
        a(f"""s_load_dwordx8 s[4:11], s[0:1], 8
              s_load_dwordx4 s[12:15], s[0:1], 40
              s_load_dwordx8 s[20:27], s[0:1], 72
              s_mov_b32 s88, s30
              s_mov_b32 s89, 1
              s_mov_b64 vcc, 0
              s_mov_b32 s3, 0
              s_mov_b32 s50, 0
              s_mov_b32 s51, 0
              s_mov_b32 s52, 0
              s_mov_b32 s53, 0
              s_mov_b32 s57, 0
              s_mov_b32 s76, 0
              s_mov_b32 s77, 0
              s_waitcnt lgkmcnt(0)""")
        srd(a, 32, 28, 29, WS_SIZE)
        srd(a, 36, 26, 27, 0x400000)
        srd(a, 40, 22, 23, WBYTES)
        srd(a, 44, 24, 25, WBYTES)
        a("""s_setvskip -1, 0
             s_nop 1""")
        for w, (lab, s30) in enumerate(DRY_ENTRIES):
            a(f"""s_mov_b32 s30, {s30}
                  s_cmp_eq_u32 s88, {w}
                  s_cbranch_scc1 {lab}""")
    a("s_endpgm")
    return a.finish(), desc("k1_kernel", 128, 102 if OPT["dbg"] else 96)

def k1f():
    a = Asm()
    a.raw(".p2align 8\n.globl k1_kernel\n.type k1_kernel,@function\nk1_kernel:")
    a("""s_cmp_ge_u32 s2, 256
         s_cbranch_scc1 K1_END""")
    stamp(a, 0)
    a(f"""s_load_dwordx8 s[4:11], s[0:1], 8
          s_load_dwordx4 s[12:15], s[0:1], 40
          s_load_dwordx2 s[48:49], s[0:1], 0
          s_load_dwordx8 s[40:47], s[0:1], 64
          s_load_dwordx2 s[26:27], s[0:1], 112
          v_lshrrev_b32 v2, 6, v0
          v_and_b32 v1, 63, v0
          s_mov_b32 s31, 0xffff0000
          v_readfirstlane_b32 s30, v2
          v_mov_b32 v59, 0
          s_mov_b32 s3, s2
          s_cmp_ge_u32 s30, 8
          s_cbranch_scc1 K1_LN
          v_lshlrev_b32 v95, 2, v1
          ds_write_b32 v95, v59""")
    kgen_loads(a)
    a(f"""global_load_ushort v88, v10, s[14:15]
          s_barrier
          s_mov_b32 s58, {L2E_HI:#x}
          v_and_b32 v96, 15, v1
          v_lshrrev_b32 v97, 4, v1
          v_lshlrev_b32 v95, 4, v1
          v_mov_b32 v12, 0
          v_mov_b32 v13, 0
          v_mov_b32 v14, 0
          v_mov_b32 v15, 0
          v_mov_b32 v16, -1
          v_mov_b32 v17, -1
          v_mov_b32 v18, -1
          v_mov_b32 v19, -1
          v_lshlrev_b32 v98, 4, v0
          s_lshl_b32 s59, s2, 13
          s_add_u32 s59, s59, {WS_PART:#x}
          s_lshl_b32 s60, s2, 8
          s_add_u32 s60, s60, {WS_CLAIM:#x}""")
    srd(a, 32, 26, 27, WS_SIZE)
    kgen_setup(a)
    a("s_waitcnt vmcnt(0)")
    stamp(a, 1)
    a(f"""buffer_store_dwordx4 v[16:19], v98, s[32:35], s59 offen {OPT['sent_flags']}
          s_cmp_lg_u32 s30, 7
          s_cbranch_scc1 K1_NOCLR
          s_mov_b64 exec, 0xffff
          buffer_store_dwordx4 v[12:15], v95, s[32:35], s60 offen
          s_mov_b64 exec, -1
        K1_NOCLR:
          s_cmp_lg_u32 s2, 0
          s_cbranch_scc1 K1_NOBAND
          s_cmp_gt_u32 s30, 4
          s_cbranch_scc1 K1_NOBAND
          s_lshl_b32 s72, s30, 2
          s_lshr_b32 s73, 0xabcda, s72
          s_and_b32 s73, s73, 15
          s_lshr_b32 s72, 0x66824, s72
          s_and_b32 s72, s72, 15
          v_lshrrev_b32 v20, 4, v1
          v_lshlrev_b32 v20, 3, v20
          v_and_b32 v21, 15, v1
          v_sub_u32 v20, v21, v20
          v_add_u32 v20, s73, v20
          v_mov_b32 v22, 0x3c00
          v_mov_b32 v23, 0x3c000000""")
    for jj in range(8):
        a(f"""v_subrev_u32 v21, {jj}, v20
              v_cmp_ge_u32 s[{74+2*jj}:{75+2*jj}], s72, v21""")
    for i in range(4):
        a(f"""v_cndmask_b32 v{24+i}, 0, v22, s[{74+4*i}:{75+4*i}]
              v_cndmask_b32 v21, 0, v23, s[{76+4*i}:{77+4*i}]
              v_or_b32 v{24+i}, v{24+i}, v21""")
    a(f"""s_lshl_b32 s72, s30, 10
          s_add_u32 s72, s72, {WS_BAND:#x}
          s_mov_b32 s73, {WS_CNT:#x}
          buffer_store_dwordx4 v[24:27], v95, s[32:35], s72 offen
          buffer_store_dwordx4 v[12:15], v95, s[32:35], s73 offen
        K1_NOBAND:""")
    kgen_main(a)
    stamp(a, 2)
    a("""s_cmp_eq_u32 s53, 0
         s_cbranch_scc0 K1_FAR""")
    near_table(a, "K1")
    a("""s_branch K1_TOUT
       K1_FAR:""")
    far_table(a, "K1")
    a(f"""s_lshl_b32 s71, s3, 6
          s_lshl_b32 s72, s52, 2
          s_add_u32 s71, s71, s72
          s_add_u32 s71, s71, {WS_REC:#x}
          v_mov_b32 v87, s70
          v_mov_b32 v86, 0
          v_lshlrev_b32 v88, 16, v88
          s_mov_b64 exec, 1
          buffer_store_dword v87, v86, s[32:35], s71 offen
          buffer_store_dword v89, v86, s[32:35], s71 offen offset:16
          buffer_store_dword v88, v86, s[32:35], s71 offen offset:32
          s_mov_b64 exec, -1
        K1_TOUT:
          s_lshl_b32 s70, s3, 14
          s_add_u32 s70, s70, {WS_TBL - TB:#x}""")
    pair_sync(a, 2, "K1_PS3")
    a(f"""ds_read_b128 v[16:19], v90
          ds_read_b128 v[20:23], v90 offset:1024
          s_waitcnt lgkmcnt(1)
          buffer_store_dwordx4 v[16:19], v90, s[32:35], s70 offen {OPT['tbl_flags']}
          s_waitcnt lgkmcnt(0)
          buffer_store_dwordx4 v[20:23], v90, s[32:35], s70 offen offset:1024 {OPT['tbl_flags']}""")
    stamp(a, 3)
    if OPT["dbg"]:
        stamp(a, 4)
        a("s_waitcnt vmcnt(0)")
        stamp(a, 5)
        stamp_flush(a, 0, 32, 30, 256)
    a("""K1_END:
         s_endpgm""")
    a.raw(".p2align 6")
    a(f"""K1_LN:
          s_sub_u32 s30, s30, 8
          v_and_b32 v0, 511, v0
          v_lshlrev_b32 v3, 4, v1
          v_lshrrev_b32 v6, 2, v0
          v_and_b32 v7, 3, v0
          v_lshlrev_b32 v4, 3, v6
          v_lshl_add_u32 v4, v7, 12, v4
          v_lshlrev_b32 v5, 14, v6
          v_lshl_add_u32 v5, v7, 4, v5
          s_lshl_b32 s60, s2, 3
          s_add_u32 s60, s60, s30               ; row
          s_lshl_b32 s61, s60, 11
          s_lshl_b32 s62, s2, 14
          s_lshl_b32 s63, s2, 6
          s_add_u32 s64, s63, 0x200000
          s_mov_b32 s65, 0x3f803f80
          v_mov_b32 v30, 0x3a800000
          s_barrier
          s_waitcnt lgkmcnt(0)""")
    stamp(a, 1)
    srd(a, 16, 48, 49, 0x400000)
    a("""buffer_load_dwordx4 v[8:11], v3, s[16:19], s61 offen nt
         buffer_load_dwordx4 v[12:15], v3, s[16:19], s61 offen offset:1024 nt""")
    srd(a, 20, 40, 41, 2048)
    a("""buffer_load_dwordx4 v[16:19], v3, s[20:23], 0 offen
         buffer_load_dwordx4 v[20:23], v3, s[20:23], 0 offen offset:1024
         buffer_load_dwordx2 v[48:49], v4, s[16:19], s62 offen nt
         buffer_load_dwordx2 v[50:51], v4, s[16:19], s62 offen offset:2048 nt
         buffer_load_dwordx2 v[52:53], v4, s[16:19], s62 offen offset:1024 nt
         buffer_load_dwordx2 v[54:55], v4, s[16:19], s62 offen offset:3072 nt
         s_mov_b32 s28, s26
         s_mov_b32 s29, s27""")
    srd(a, 24, 28, 29, WS_SIZE)
    F = 32
    a("""v_mov_b32 v56, 0
         v_mov_b32 v57, 0
         v_mov_b32 v58, 0
         s_getreg_b32 s50, hwreg(HW_REG_XCC_ID)
         s_and_b32 s50, s50, 7
         v_lshrrev_b32 v6, 3, v1
         v_mul_u32_u24 v6, 7168, v6
         v_and_b32 v7, 7, v1
         v_lshl_add_u32 v6, v7, 4, v6""")
    if OPT["pf"]:
        a("""s_getreg_b32 s52, hwreg(HW_REG_HW_ID, 13, 3)
             s_getreg_b32 s53, hwreg(HW_REG_HW_ID, 8, 4)
             s_and_b32 s52, s52, 3
             s_min_u32 s53, s53, 8
             s_mul_i32 s51, s30, 36
             s_mul_i32 s52, s52, 9
             s_add_u32 s52, s52, s53
             s_add_u32 s52, s52, s51
             s_mul_i32 s52, s52, 50973
             s_lshr_b32 s52, s52, 16
             s_and_b32 s56, s52, 7
             s_lshr_b32 s52, s52, 3""")
        tile_scalars(a, 50, 52, 51, 53, 54, 55, 56)
        srd(a, 32, 42, 43, WBYTES)
        srd(a, 36, 44, 45, WBYTES)
    if OPT["pf"]:
        for i in range(OPT["pf"]):
            a(f"""buffer_load_dwordx4 v[{64+8*i}:{67+8*i}], v6, s[32:35], s55 offen nt
                  buffer_load_dwordx4 v[{68+8*i}:{71+8*i}], v6, s[36:39], s55 offen nt
                  s_add_u32 s55, s55, {8*7168}""")
        if OPT["pfd"]:
            srd(a, 32, 46, 47, WBYTES)
            a("""s_lshl_b32 s54, s54, 2
                 s_add_u32 s54, s54, s53
                 s_lshl_b32 s54, s54, 15
                 s_lshl_b32 s53, s56, 12
                 s_add_u32 s54, s54, s53""")
            for i in range(OPT["pfd"]):
                a(f"buffer_load_dwordx4 v[{96+4*i}:{99+4*i}], v3, s[32:35], s54 offen offset:{1024*i} nt")
    npf = (2 * OPT["pf"] + OPT["pfd"]) if OPT["pf"] else 0
    a(f"s_waitcnt vmcnt({6 + npf})")
    stamp(a, 2)
    for i in range(8):
        unpack(a, F + 2*i, 8 + i, 31)
        a(f"v_dot2c_f32_bf16 v56, s65, v{8+i}")
    a(f"s_waitcnt vmcnt({4 + npf})")
    for i in range(8):
        a(f"""v_dot2c_f32_bf16 v57, v{8+i}, v{16+i}
              v_dot2c_f32_bf16 v58, s65, v{16+i}""")
    a("s_nop 2")
    wave_reduce(a, "v_add_f32", [56, 57, 58])
    a("""v_readlane_b32 s66, v56, 63
         v_mul_f32 v62, s66, v30
         v_cvt_pk_bf16_f32 v60, v62, v62
         v_lshlrev_b32 v60, 16, v60""")
    for i in range(8):
        a(f"v_pk_add_f32 v[{F+2*i}:{F+2*i+1}], v[{F+2*i}:{F+2*i+1}], v[62:63] op_sel_hi:[1,0] neg_lo:[0,1] neg_hi:[0,1]")
    a(f"""v_pk_mul_f32 v[16:17], v[{F}:{F+1}], v[{F}:{F+1}]
          v_pk_mul_f32 v[18:19], v[{F+2}:{F+3}], v[{F+2}:{F+3}]""")
    for i in range(2, 8):
        d = 16 + 2 * (i % 2)
        a(f"v_pk_fma_f32 v[{d}:{d+1}], v[{F+2*i}:{F+2*i+1}], v[{F+2*i}:{F+2*i+1}], v[{d}:{d+1}]")
    a("""v_pk_add_f32 v[16:17], v[16:17], v[18:19]
         v_fma_f32 v57, -v60, v58, v57
         v_add_f32 v56, v16, v17""")
    wave_reduce(a, "v_add_f32", [56])
    a("v_mul_f32 v58, v56, v30")
    rbf(a, 58)
    a("v_add_f32 v58, 0x3727c5ac, v58")
    rbf(a, 58)
    a("v_sqrt_f32 v58, v58")
    rbf(a, 58)
    a(f"""v_rcp_f32 v61, v58
          s_lshl_b32 s15, s60, 3
          s_add_u32 s15, s15, {WS_STATS:#x}
          v_fma_f32 v56, -v58, v61, 1.0
          v_fmac_f32 v61, v56, v61
          s_sub_u32 s14, 2047, s60
          s_lshl_b32 s14, s14, 1
          v_mul_f32 v56, v57, v61""")
    rbf(a, 56)
    a(f"""v_ashrrev_i32 v57, 31, v56
          v_or_b32 v57, 0x80000000, v57
          v_xor_b32 v56, v56, v57
          v_and_b32 v56, s31, v56
          v_or_b32 v56, s14, v56
          s_lshl_b32 s14, s30, 2
          v_mov_b32 v57, s14
          v_mov_b32 v58, 1
          s_mov_b32 exec_lo, 0
          s_mov_b32 exec_hi, 0x80000000
          ds_write_b32 v57, v56 offset:96
          ds_add_u32 v59, v58 offset:128
          buffer_store_dwordx2 v[60:61], v59, s[24:27], s15 offen
          s_mov_b64 exec, -1
          v_readlane_b32 s66, v56, 63
          v_readlane_b32 s68, v61, 63
          s_waitcnt vmcnt({1 + npf})
          buffer_store_dwordx4 v[48:51], v5, s[24:27], s63 offen {OPT['xt_flags']}
          buffer_store_dwordx4 v[52:55], v5, s[24:27], s64 offen {OPT['xt_flags']}""")
    stamp(a, 3)
    a(f"""s_branch K1_KWB
        K1_KW:
          s_sleep 1
        K1_KWB:
          ds_read_b32 v58, v59 offset:128
          ds_read_b128 v[32:35], v59 offset:96
          ds_read_b128 v[36:39], v59 offset:112
          s_waitcnt lgkmcnt(0)
          v_cmp_gt_u32 vcc, 8, v58
          s_cbranch_vccnz K1_KW""")
    for i in range(4):
        a(f"""v_max_u32 v{40+2*i}, v{32+2*i}, v{33+2*i}
              v_min_u32 v{41+2*i}, v{32+2*i}, v{33+2*i}""")
    for d, x, y in ((40, 40, 42), (44, 44, 46), (40, 40, 44)):
        a(f"""v_min_u32 v31, v{x}, v{y}
              v_max_u32 v{d}, v{x}, v{y}
              v_max3_u32 v{d+1}, v31, v{x+1}, v{y+1}""")
    a(f"""v_readfirstlane_b32 s70, v40
          v_readfirstlane_b32 s71, v41
          v_mov_b32 v61, s68
          s_lshl_b32 s72, s2, 12
          s_add_u32 s72, s72, {WS_CAND:#x}
          s_cmp_eq_u32 s66, s71
          s_cselect_b32 s73, 2048, 0
          s_cbranch_scc1 K1_CAND
          s_cmp_lg_u32 s66, s70
          s_cbranch_scc1 K1_NOCAND
          s_lshl_b32 s15, s2, 3
          s_add_u32 s15, s15, {WS_KEYS:#x}
          v_or_b32 v41, 1, v41
          s_mov_b64 exec, 1
          buffer_store_dwordx2 v[40:41], v59, s[24:27], s15 offen
          s_mov_b64 exec, -1
        K1_CAND:
          s_add_u32 s73, s73, s72""")
    for i in range(8):
        norm_pair(a, F + 2*(i % 2), 8 + i, 60, 8 + i, 31)
    a("""buffer_store_dwordx4 v[8:11], v3, s[24:27], s73 offen sc1
         buffer_store_dwordx4 v[12:15], v3, s[24:27], s73 offen offset:1024 sc1
       K1_NOCAND:""")
    stamp(a, 4)
    if OPT["dbg"]:
        a("s_waitcnt vmcnt(0)")
        stamp(a, 5)
        stamp_flush(a, 0, 24, 30)
    a("s_endpgm")
    return a.finish(), desc("k1_kernel", 128, 102 if OPT["dbg"] else 96)

def k2():
    a = Asm()
    a.raw(".p2align 8\n.globl k2_kernel\n.type k2_kernel,@function\nk2_kernel:")
    a("""s_cmp_ge_u32 s2, 256
         s_cbranch_scc1 K2_END""")
    stamp(a, 0)
    if OPT["k2spin"]:
        a(f"""s_memrealtime s[90:91]
              s_waitcnt lgkmcnt(0)
              s_add_u32 s90, s90, {OPT['k2spin']}""")
    a(f"""s_mov_b32 s89, 0
        K2_D0:
          s_load_dwordx8 s[4:11], s[0:1], 8
          s_load_dwordx4 s[12:15], s[0:1], 40
          s_load_dwordx8 s[20:27], s[0:1], 72
          s_load_dwordx2 s[28:29], s[0:1], 112
          v_lshrrev_b32 v2, 6, v0
          v_and_b32 v1, 63, v0
          s_mov_b32 s31, 0xffff0000
          v_readfirstlane_b32 s30, v2
          v_lshlrev_b32 v3, 5, v1
          s_mov_b32 s58, {L2E_HI:#x}
          s_getreg_b32 s50, hwreg(HW_REG_XCC_ID)
          s_and_b32 s50, s50, 7
          v_mov_b32 v4, 0
          s_mov_b32 s56, {WS_KEYS:#x}
          s_lshl_b32 s51, s50, 7
          s_add_u32 s51, s51, {WS_CNT:#x}
          v_mov_b32 v5, 1
          v_mov_b32 v23, 1
          v_lshlrev_b32 v6, 2, v1
          s_waitcnt lgkmcnt(0)""")
    srd(a, 32, 28, 29, WS_SIZE)
    a(f"""s_cmp_lg_u32 s30, 0
          s_cbranch_scc1 K2_TWAIT
          s_mov_b64 exec, 1
          buffer_atomic_add v5, v4, s[32:35], s51 offen sc0
          s_mov_b32 exec_lo, -1
          ds_write_b32 v6, v4 offset:{SY}
          s_mov_b64 exec, -1
          buffer_load_dwordx4 v[24:27], v3, s[32:35], s56 offen
          buffer_load_dwordx4 v[28:31], v3, s[32:35], s56 offen offset:16
          s_lshl_b32 s50, s50, 6
          s_waitcnt vmcnt(2)
          v_readfirstlane_b32 s51, v5
          {"s_lshr_b32 s51, s51, 1" if OPT["badhint"] else ""}
          s_min_u32 s51, s51, 32
          s_add_u32 s50, s50, s51
          s_lshl_b32 s51, s50, 7
          s_add_u32 s51, s51, {WS_CLAIM:#x}
          s_mov_b64 exec, 1
          buffer_atomic_swap v23, v4, s[32:35], s51 offen sc0 sc1
          s_mov_b64 exec, -1
          s_waitcnt vmcnt(1)""")
    top2(a, 24, 7, 64, 65, 68)
    a(f"""v_mov_b32 v24, s50
          v_mov_b32 v25, s64
          v_mov_b32 v26, s65
          ds_write_b96 v4, v[24:26] offset:{SY}
          s_waitcnt lgkmcnt(0)
          s_cmp_lg_u32 s89, 0
          s_cbranch_scc1 K2_D5
        K2_TWAIT:
          s_barrier
          ds_read_b96 v[24:26], v4 offset:{SY}
          s_waitcnt lgkmcnt(0)
          v_readfirstlane_b32 s51, v24
          v_readfirstlane_b32 s76, v25
          v_readfirstlane_b32 s77, v26""")
    stamp(a, 1)
    a(f"""
          s_lshr_b32 s50, s51, 6
          s_and_b32 s51, s51, 63
          s_cmp_ge_u32 s51, 32
          s_cbranch_scc1 K2_RECOVER
          s_cmp_lt_u32 s30, 8
          s_cbranch_scc1 K2_FFN
          s_lshl_b32 s3, s50, 5
          s_add_u32 s3, s3, s51                 ; chblk
        K2_D1:""")
    k2_conv(a)
    a("""K2_END:
         s_endpgm""")
    a.raw(".p2align 6")
    a(f"K2_FFN:\ns_setprio {OPT['fprio']}")
    k2_ffn(a)
    a(f"""K2_RECOVER:
          s_setprio 0
          s_waitcnt vmcnt(0) lgkmcnt(0)
          s_load_dwordx8 s[4:11], s[0:1], 8
          s_load_dwordx4 s[12:15], s[0:1], 40
          v_lshrrev_b32 v2, 6, v0
          v_lshlrev_b32 v3, 5, v1
          v_mov_b32 v4, 0
          v_readfirstlane_b32 s30, v2
          s_mov_b32 s56, {WS_KEYS:#x}
          s_waitcnt lgkmcnt(0)
          s_barrier
          s_cmp_lg_u32 s30, 0
          s_cbranch_scc1 K2_TWAIT
          s_mov_b32 s50, 512
        K2_SCAN:
          s_sub_u32 s50, s50, 1
          s_cbranch_scc1 K2_NOSLOT
          s_and_b32 s51, s50, 63
          s_cmp_ge_u32 s51, 32
          s_cbranch_scc1 K2_SCAN
          s_lshl_b32 s51, s50, 7
          s_add_u32 s51, s51, {WS_CLAIM:#x}
          v_mov_b32 v23, 1
          s_mov_b64 exec, 1
          buffer_atomic_swap v23, v4, s[32:35], s51 offen sc0 sc1
          s_mov_b64 exec, -1
          s_waitcnt vmcnt(0)
          v_readfirstlane_b32 s51, v23
          s_cmp_lg_u32 s51, 0
          s_cbranch_scc1 K2_SCAN
          v_mov_b32 v5, s50
          ds_write_b32 v4, v5 offset:{SY}
          v_lshlrev_b32 v6, 2, v1
          s_mov_b32 exec_lo, 0x0fffffff
          s_mov_b32 exec_hi, 0
          ds_write_b32 v6, v4 offset:{SY + 16}
          s_mov_b64 exec, -1
          s_waitcnt vmcnt(0) lgkmcnt(0)
          s_branch K2_TWAIT
        K2_NOSLOT:
          s_endpgm""")
    return a.finish(), desc("k2_kernel", 128, 102 if OPT["dbg"] else 96)

def k2_ffn(a):
    xf = OPT["xfirst"]
    tile_scalars(a, 50, 51, 55, 52, 53, 54, 30)
    a(f"""s_lshl_b32 s48, s50, 5
          s_add_u32 s48, s48, s51               ; chblk
          s_lshl_b32 s80, s48, 3
          s_load_dwordx2 s[86:87], s[14:15], s80
          s_lshl_b32 s49, s48, 14
          s_mov_b32 s85, {WS_STATS:#x}
          s_lshl_b32 s3, s53, 2
          s_add_u32 s3, s3, s52
          v_lshrrev_b32 v4, 3, v1
          v_mul_u32_u24 v4, 7168, v4
          v_and_b32 v5, 7, v1
          v_lshrrev_b32 v6, 3, v1
          v_and_b32 v6, 2, v6
          v_xor_b32 v5, v5, v6
          v_lshl_add_u32 v4, v5, 4, v4
          v_xor_b32 v5, 64, v4
          v_add_u32 v5, {8 * 7168}, v5
          s_lshl_b32 s55, s30, 12
          s_add_u32 s84, s54, {16 * 7168}
          v_and_b32 v7, 15, v1
          v_lshrrev_b32 v16, 4, v1
          v_lshlrev_b32 v98, 7, v7
          v_lshl_add_u32 v98, v16, 5, v98
          s_lshl_b32 s63, s30, 11
          v_add_u32 v98, s63, v98               ; t0*8""")
    if OPT["dbg"]:
        a("s_mov_b32 s2, s48")
    srd(a, 36, 20, 21, WBYTES)
    srd(a, 40, 22, 23, WBYTES)
    srd(a, 44, 24, 25, WBYTES)
    def bulk(rng):
        for i in rng:
            for mat in range(2):
                a(f"""s_add_u32 m0, s55, {F_W + mat * 32768 + i * 1024}
                      buffer_load_dwordx4 v{4 + i % 2}, s[{36+4*mat}:{39+4*mat}], s{54 if i < 2 else 84} offen {OPT['dma_flags']} lds""")
    def xloads():
        a(f"""s_min_u32 s81, s30, 4
              s_lshl_b32 s81, s81, 10
              s_add_u32 m0, s81, {BAND}
              s_add_u32 s81, s81, {WS_BAND:#x}
              buffer_load_dwordx4 v20, s[32:35], s81 offen lds
              buffer_load_dwordx4 v[{PX}:{PX+3}], v98, s[32:35], s49 offen {OPT['ld_flags']}
              buffer_load_dwordx4 v[{PX+4}:{PX+7}], v98, s[32:35], s49 offen offset:16 {OPT['ld_flags']}
              buffer_load_dwordx4 v[{ST}:{ST+3}], v98, s[32:35], s85 offen
              buffer_load_dwordx4 v[{ST+4}:{ST+7}], v98, s[32:35], s85 offen offset:16""")
    WD = 80
    def wdown():
        for f in range(0, 16, 2):
            a(f"""buffer_load_dword v{WD+f}, v6, s[44:47], s57 offen nt
                  buffer_load_dword v{WD+f+1}, v6, s[44:47], s57 offen offset:2048 nt""")
            if f < 14:
                a("s_add_u32 s57, s57, 4096")
    a(f"""v_lshlrev_b32 v6, 2, v0
          s_lshl_b32 s57, s3, 15
          v_mov_b32 v22, 0
          v_lshlrev_b32 v19, 2, v1
          v_lshlrev_b32 v20, 4, v1
          v_lshrrev_b32 v21, 3, v0
          v_mul_u32_u24 v21, {NF * 128}, v21
          v_and_b32 v17, 7, v0
          v_lshl_add_u32 v21, v17, 4, v21
          s_cmp_ge_u32 s51, 28
          s_cbranch_scc0 K2F_TILE
          s_barrier""")
    xloads()
    a(f"""s_waitcnt vmcnt(0) lgkmcnt(0)
          s_branch K2F_NORM
        K2F_TILE:
          s_lshl_b32 s62, s52, 9
          s_lshl_b32 s63, s30, 6
          s_add_u32 s62, s62, s63
          s_add_u32 s62, s62, {WS_CAND:#x}
          s_andn2_b32 s82, 0xff0, s76
          s_andn2_b32 s83, 0xff0, s77
          s_lshl_b32 s82, s82, 8
          s_lshl_b32 s83, s83, 8
          s_and_b32 s76, s76, 1
          s_and_b32 s77, s77, 1
          s_lshl_b32 s76, s76, 11
          s_lshl_b32 s77, s77, 11
          s_add_u32 s82, s82, s76
          s_add_u32 s83, s83, s77
          s_add_u32 s82, s82, s62
          s_add_u32 s83, s83, s62
          s_load_dwordx16 s[64:79], s[28:29], s82
          s_load_dwordx16 s[4:19], s[28:29], s83
          s_cmp_lg_u32 s89, 0
          s_cbranch_scc1 K2F_P
          s_barrier
        K2F_P:""")
    xloads()
    bulk(range(OPT['bsplit']))
    a(f"""s_waitcnt vmcnt({2 * OPT['bsplit']})
        K2F_NORM:
          s_cmp_lg_u32 s30, 0
          s_cbranch_scc1 K2F_G2
          v_add_u32 v23, 1, v23
          s_mov_b64 exec, 1
          ds_write_b32 v22, v23 offset:{SY + 28}
          s_mov_b64 exec, -1
        K2F_G2:""")
    normalize(a)
    a(f"""v_mov_b32 v24, 1
          s_mov_b64 exec, 1
          ds_add_u32 v22, v24 offset:{SY + 16}
          s_mov_b64 exec, -1""")
    a("""s_cmp_ge_u32 s51, 28
         s_cbranch_scc1 K2F_G""")
    bulk(range(OPT['bsplit'], 4))
    a(f"""; tr-read address: (8g + r)*128 + ((ct ^ v)*32) + 8c + mat*32768
          v_bfe_u32 v17, v1, 2, 2
          v_lshl_add_u32 v18, v16, 3, v17
          v_lshlrev_b32 v18, 7, v18
          v_lshrrev_b32 v17, 1, v17
          v_and_b32 v12, 1, v16
          v_lshl_or_b32 v17, v12, 1, v17
          s_and_b32 s59, s30, 3
          v_xor_b32 v17, s59, v17
          v_lshl_add_u32 v18, v17, 5, v18
          v_and_b32 v17, 3, v1
          v_lshl_add_u32 v18, v17, 3, v18
          s_lshr_b32 s60, s30, 2
          s_lshl_b32 s61, s60, 15
          s_add_u32 s61, s61, {F_W}
          v_add_u32 v18, s61, v18
          v_and_b32 v17, 1, v1
          v_lshlrev_b32 v17, 9, v17
          v_lshl_add_u32 v17, v16, 4, v17
          v_add_u32 v17, {F_XS}, v17
          s_lshl_b32 s61, s53, 12
          s_add_u32 s61, s61, {WS_EX:#x}
          s_lshl_b32 s62, s59, 10
          s_add_u32 s62, s62, s61
          s_lshl_b32 s63, s52, 8
          s_add_u32 s62, s62, s63
          s_lshl_b32 s63, s60, 7
          s_add_u32 s62, s62, s63
          s_lshl_b32 s63, s52, 10
          s_add_u32 s61, s61, s63
          s_lshl_b32 s53, s3, 7
          s_add_u32 s53, s53, {WS_PART:#x}
          s_mov_b32 s59, 0x05040100
          s_mov_b32 s60, 0x07060302
          v_cmp_gt_u32 s[82:83], 16, v1
          v_lshlrev_b32 v7, 2, v7
          v_lshl_add_u32 v7, v16, 9, v7
          s_lshl_b32 s63, s30, 6
          s_add_u32 s63, s63, {F_XS}
          v_add_u32 v7, s63, v7
          s_waitcnt lgkmcnt(0)""")
    stamp(a, 2)
    for i in range(16):
        a(f"""v_writelane_b32 v12, s{64+i}, {i}
              v_writelane_b32 v12, s{4+i}, {16+i}""")
    a(f"""s_mov_b32 exec_hi, 0
          ds_write_b32 v7, v12
          s_mov_b32 exec_hi, -1
          """)
    a(f"""K2F_G:
          v_mov_b32 v24, 1
          s_waitcnt vmcnt(0)
          s_mov_b64 exec, 1
          ds_add_u32 v22, v24 offset:{SY + 24}
          s_mov_b64 exec, -1
          s_branch K2F_GWB
        K2F_GW:
          s_sleep 1
        K2F_GWB:
          ds_read_b64 v[24:25], v22 offset:{SY + 24}
          s_waitcnt lgkmcnt(0)
          v_cmp_gt_u32 vcc, 8, v24
          s_cbranch_vccnz K2F_GW
          v_cmp_ne_u32 vcc, 1, v25
          s_cbranch_vccnz K2_RECOVER
          s_cmp_ge_u32 s51, 28
          s_cbranch_scc0 K2_D5""")
    udg(a, 24)
    a("s_branch K2_EPI")
    a(f"K2_D5:\ns_setprio {OPT['fprio']}")
    stamp(a, 3)
    BF, AF = 32, 64
    P = Pipe(a, maxfly=15)
    for k in range(8):
        P.load(f"ds_read_b128 v[{AF+4*k}:{AF+4*k+3}], v17 offset:{64*k}")
        P.load(f"ds_read_b64_tr_b16 v[{BF+4*k}:{BF+4*k+1}], v18 offset:{4096*k}")
        lid = P.load(f"ds_read_b64_tr_b16 v[{BF+4*k+2}:{BF+4*k+3}], v18 offset:{4096*k + 512}")
        d = 24 + 4 * (k % 2)
        c = "0" if k < 2 else f"v[{d}:{d+3}]"
        P.step(f"v_mfma_f32_16x16x32_bf16 v[{d}:{d+3}], v[{AF+4*k}:{AF+4*k+3}], v[{BF+4*k}:{BF+4*k+3}], {c}", [lid])
    P.run()
    a("""v_add_f32 v24, v24, v28
         v_add_f32 v25, v25, v29
         v_cndmask_b32 v24, v25, v24, s[82:83]
         v_min_u32 v24, -2, v24
         s_mov_b32 exec_hi, 0
         buffer_store_dword v24, v19, s[32:35], s62 offen sc1
         s_mov_b32 exec_hi, -1""")
    wdown()
    udg(a, 24)
    def gemv2():
        P0, P1 = 64, 72
        a("""v_mov_b32 v24, 0
             v_mov_b32 v25, 0
             v_mov_b32 v26, 0
             v_mov_b32 v27, 0
             s_mov_b32 s63, 0x40000
           K2F_POLL:
             buffer_load_dwordx4 v[32:35], v20, s[32:35], s61 offen sc1
             s_waitcnt vmcnt(0)
             v_max3_u32 v36, v32, v33, v34
             v_max_u32 v36, v36, v35
             v_cmp_eq_u32 vcc, -1, v36
             s_cbranch_vccz K2F_GOT
             s_sub_u32 s63, s63, 1
             s_cbranch_scc0 K2F_POLL
           K2F_GOT:""")
        stamp(a, 4)
        rows_allreduce(a, [32, 33, 34, 35], 36)
        a("""v_cvt_pk_bf16_f32 v32, v32, v33
             v_cvt_pk_bf16_f32 v33, v34, v35""")
        unpack(a, 40, 32, 31); unpack(a, 42, 33, 31)
        a("""v_mov_b32_dpp v34, v32 row_ror:8 row_mask:0xf bank_mask:0xf
             v_mov_b32_dpp v35, v33 row_ror:8 row_mask:0xf bank_mask:0xf""")
        for r in range(4):
            a(f"v_mul_f32 v{44+r}, s58, v{40+r}")
        for r in range(4):
            a(f"v_exp_f32 v{44+r}, -v{44+r}")
        unpack(a, 48, 34, 31); unpack(a, 50, 35, 31)
        for r in range(4):
            a(f"v_add_f32 v{44+r}, 1.0, v{44+r}")
        for r in range(4):
            a(f"v_rcp_f32 v{44+r}, v{44+r}")
        for p in range(4):
            a(f"""v_perm_b32 v{P0+p}, v{WD+2*p+1}, v{WD+2*p}, s59
                  v_perm_b32 v{P1+p}, v{WD+2*p+1}, v{WD+2*p}, s60""")
        for r in range(4):
            a(f"v_mul_f32 v{44+r}, v{44+r}, v{40+r}")
        a("""v_cvt_pk_bf16_f32 v32, v44, v45
             v_cvt_pk_bf16_f32 v33, v46, v47""")
        unpack(a, 40, 32, 31); unpack(a, 42, 33, 31)
        for r in range(4):
            a(f"v_mul_f32 v{40+r}, v{40+r}, v{48+r}")
        a("""v_cvt_pk_bf16_f32 v32, v40, v41
             v_cvt_pk_bf16_f32 v33, v42, v43""")
        for l in range(8):
            a(f"""v_readlane_b32 s{64+2*l}, v32, {l}
                  v_readlane_b32 s{65+2*l}, v33, {l}""")
        for p in range(4, 8):
            a(f"""v_perm_b32 v{P0+p}, v{WD+2*p+1}, v{WD+2*p}, s59
                  v_perm_b32 v{P1+p}, v{WD+2*p+1}, v{WD+2*p}, s60""")
        for p in range(8):
            a(f"""v_dot2c_f32_bf16 v24, s{64+p}, v{P0+p}
                  v_dot2c_f32_bf16 v25, s{64+p}, v{P1+p}
                  v_dot2c_f32_bf16 v26, s{72+p}, v{P0+p}
                  v_dot2c_f32_bf16 v27, s{72+p}, v{P1+p}""")
        a("""s_nop 2
             v_min_u32 v24, -2, v24
             v_min_u32 v25, -2, v25
             v_min_u32 v26, -2, v26
             v_min_u32 v27, -2, v27
             buffer_store_dwordx4 v[24:27], v21, s[32:35], s53 offen sc1""")
    if OPT["epi_first"]:
        a("K2_EPI:")
        epilogue(a, last=False)
        a("""s_cmp_ge_u32 s51, 28
             s_cbranch_scc1 K2_EDONE""")
        gemv2()
        a("K2_EDONE:")
        epi_end(a)
    else:
        gemv2()
        a("K2_EPI:")
        epilogue(a)

PX, PUD, PG, UF, ST = 104, 112, 120, 64, 120
KA = 76

def pair_sync(a, k, label):
    a(f"""v_mov_b32 v94, {k}
          s_waitcnt lgkmcnt(0)
          ds_write_b32 v92, v94 offset:{SY + 64}
          s_branch {label}B
        {label}:
          s_sleep 2
        {label}B:
          ds_read_b32 v94, v93 offset:{SY + 64}
          s_waitcnt lgkmcnt(0)
          v_cmp_gt_u32 vcc, {k}, v94
          s_cbranch_vccnz {label}""")

def lean_u(a, base):
    for q in range(4):
        for hh in range(2):
            r = base + 4*q + 2*hh
            unpack(a, r, PX + 2*q + hh, 31)
    for q in range(4):
        for hh in range(2):
            r = base + 4*q + 2*hh
            st = ST + 2*q
            a(f"v_pk_fma_f32 v[{r}:{r+1}], v[{st}:{st+1}], v[{r}:{r+1}], v[{st}:{st+1}] op_sel:[1,0,0] op_sel_hi:[1,1,0]")

def normalize(a):
    if OPT["lean"]:
        lean_u(a, UF)
        a("v_lshrrev_b32 v28, 2, v98")
        for ch in range(4):
            t = 24 + 2 * (ch % 2)
            a(f"""v_cvt_pk_f16_f32 v{t}, v{UF+ch}, v{UF+4+ch}
                  v_cvt_pk_f16_f32 v{t+1}, v{UF+8+ch}, v{UF+12+ch}
                  ds_write_b64 v28, v[{t}:{t+1}] offset:{UA + ch*UROW + 2*UPAD}""")
        return
    for q in range(4):
        for hh in range(2):
            r = UF + 4*q + 2*hh
            t = PUD + 2*q + hh
            norm_pair(a, r, PX + 2*q + hh, ST + 2*q, t, 31)
            unpack(a, r, t, 31)
    a("v_lshrrev_b32 v28, 2, v98")
    for ch in range(4):
        t = 24 + 2 * (ch % 2)
        a(f"""v_cvt_pk_f16_f32 v{t}, v{UF+ch}, v{UF+4+ch}
              v_cvt_pk_f16_f32 v{t+1}, v{UF+8+ch}, v{UF+12+ch}
              ds_write_b64 v28, v[{t}:{t+1}] offset:{UA + ch*UROW + 2*UPAD}""")
    NORM_TAIL.append(1)

NORM_TAIL = []

def conv_sync(a, label):
    a(f"""v_mov_b32 v15, 0
          v_mov_b32 v16, 1
          s_lshl_b32 s79, s52, 2
          v_mov_b32 v96, s79
          s_waitcnt vmcnt(0) lgkmcnt(0)
          s_mov_b64 exec, 1
          ds_add_u32 v15, v16 offset:{SY + 16}
          s_mov_b64 exec, -1""")
    stamp(a, 3)
    a(f"""s_branch {label}B
        {label}:
          s_sleep 1
        {label}B:
          ds_read_b32 v16, v15 offset:{SY + 16}
          ds_read_b32 v17, v15 offset:{SY + 28}
          s_waitcnt lgkmcnt(0)
          v_cmp_lt_u32 vcc, 1, v17
          s_cbranch_vccnz K2_RECOVER
          v_cmp_eq_u32 vcc, 0, v17
          s_cbranch_vccnz {label}
          v_cmp_gt_u32 vcc, 16, v16
          s_cbranch_vccnz {label}""")

def kgen_loads(a):
    a(f"""s_and_b32 s52, s30, 3
          s_lshr_b32 s53, s30, 2
          s_lshl_b32 s54, s3, 2
          s_add_u32 s54, s54, s52               ; d
          s_lshl_b32 s55, s54, 8
          s_lshl_b32 s56, s53, 7
          s_add_u32 s56, s56, s55
          v_lshl_add_u32 v8, v1, 1, s56
          v_lshl_add_u32 v9, v1, 2, s55
          s_lshl_b32 s57, s54, 1
          v_mov_b32 v10, s57
          s_waitcnt lgkmcnt(0)
          global_load_ushort v91, v10, s[12:13]
          global_load_ushort v2, v8, s[4:5]
          global_load_ushort v3, v8, s[6:7]
          global_load_dword v6, v9, s[8:9]
          global_load_dword v7, v9, s[10:11]
          global_load_ushort v4, v8, s[8:9]
          global_load_ushort v5, v8, s[10:11]""")

def kgen_setup(a):
    a(f"""s_lshl_b32 s68, s52, 12
          s_add_u32 s68, s68, {TB}
          s_lshl_b32 s67, s53, 11
          s_add_u32 s67, s67, s68
          v_add_u32 v90, s67, v95
          ds_write_b128 v90, v[12:15]
          ds_write_b128 v90, v[12:15] offset:1024
          s_mov_b32 s67, {L2E_LO:#x}
          s_mov_b32 s71, {LN2:#x}
          s_lshl_b32 s61, s30, 2
          v_mov_b32 v92, s61
          s_xor_b32 s61, s61, 16
          v_mov_b32 v93, s61                    ; partner's
          s_mul_i32 s69, s52, {KGC}
          s_add_u32 s69, s69, {KG}
          s_xor_b32 s70, s53, 1
          s_mul_i32 s70, s70, 4352
          s_add_u32 s70, s70, s69
          s_sub_u32 m0, s70, 16384
          v_mul_u32_u24 v41, 272, v96
          v_lshl_add_u32 v41, v97, 4, v41
          v_add_u32 v41, s70, v41
          v_add_u32 v99, s69, v95""")

def kgen_main(a, hook=None):
    a("""v_lshlrev_b32 v8, 16, v91
         v_lshlrev_b32 v2, 16, v2""")
    exp_acc(a, 9, 8, 10, 11, 58, 67, 71)
    exp_acc(a, 8, 2, 12, 13, 58, 67, 71)
    a("""v_lshlrev_b32 v3, 16, v3
         v_and_b32 v6, 0x7fff7fff, v6
         v_and_b32 v7, 0x7fff7fff, v7
         v_pk_max_u16 v6, v6, v7
         v_lshlrev_b32 v7, 16, v6
         v_max_u32 v6, v6, v7""")
    rbf(a, 9, 8)
    wave_reduce(a, "v_max_u32", [6])
    a(f"""v_mul_f32 v8, v8, v9                  ; -Re(a)
          v_mul_f32 v3, v3, v9                  ; Im(a)
          v_readlane_b32 s78, v6, 63
          v_mul_f32 v8, s58, v8
          v_mul_f32 v10, 0.15915494, v3
          v_fma_f32 v11, v3, 0.15915494, -v10
          v_mov_b32 v7, {I2PI_LO:#x}
          v_fmac_f32 v11, v3, v7
          s_and_b32 s78, s78, s31
          v_add_f32 v9, v9, v9
          v_mul_f32 v6, s78, v9
          v_frexp_exp_i32_f32 v6, v6
          v_sub_u32 v6, 7, v6
          v_min_i32 v6, 100, v6
          v_max_i32 v6, -100, v6
          v_ldexp_f32 v9, v9, v6                ; 2*dt*scale
          v_sub_u32 v6, 0, v6
          v_ldexp_f32 v6, 1.0, v6
          v_readfirstlane_b32 s70, v6           ; 1/scale""")
    for dst, pl in ((24, "0x41000000"), (12, "1.0"), (26, "0x43000000")):
        a(f"""v_mul_f32 v36, {pl}, v10
              v_mul_f32 v37, {pl}, v8
              v_fract_f32 v36, v36
              v_exp_f32 v37, -v37
              v_mul_f32 v38, {pl}, v11
              v_add_f32 v36, v36, v38
              v_sin_f32 v{dst}, v36
              v_cos_f32 v{dst+1}, v36
              v_mul_f32 v{dst}, v{dst}, v37
              v_mul_f32 v{dst+1}, v{dst+1}, v37""")
    a("""v_mov_b32 v10, v12
         v_mov_b32 v11, v13
         v_lshlrev_b32 v4, 16, v4
         v_lshlrev_b32 v5, 16, v5
         v_mul_f32 v33, v4, v9
         v_mul_f32 v32, v5, v9
         v_mov_b32 v42, 0x3c00
         ds_write_addtid_b32 v42 offset:16384""")
    BF, AF = 44, 60
    E = {1: 10}
    pool = [12, 14, 16, 18, 20, 22, 28, 30, 34, 36, 38] + list(range(100, 128, 2))
    ops = []
    val = {}
    def V(name, reg=None):
        val[name] = reg
        return name
    V("Y1", 24); V("VV", 26); V("E1", 10); V("G0", 32)
    seq = []
    def cm(d, x, y):
        ops.append(("mul", d, (x, y))); ops.append(("fma", d, (x, y, d + "'")))
    rows = []
    for k, x, y in [(2, 1, 1), (3, 2, 1), (4, 2, 2), (5, 4, 1), (6, 4, 2), (7, 4, 3)]:
        cm(f"E{k}", f"E{x}", f"E{y}")
    tree = {2: (1, 1), 3: (2, 1), 4: (2, 2), 5: (4, 1), 6: (4, 2), 7: (4, 3), 8: (4, 4)}
    for jj in range(9, 16): tree[jj] = (8, jj - 8)
    for jj in range(2, 16):
        cm(f"Y{jj}", f"Y{tree[jj][0]}", f"Y{tree[jj][1]}")
    groups = [[(f"Y{jj}", jj, False) for jj in range(1, 16)]]
    cm("V2", "VV", "VV")
    cm("G1", "G0", "VV")
    for i2 in range(2, 17):
        cm(f"G{i2}", f"G{i2-2}", "V2")
    plan = [[(0, range(8)), (1, range(8))],
            [(2, (0, 2, 4, 6)), (3, (0, 2, 4, 6)), (4, (0, 4)), (5, (0, 4)), (6, (0, 4)), (7, (0, 4))],
            [(i2, (0,)) for i2 in range(8, 17)]]
    for tile in range(3):
        g = []
        for i2, ks in plan[tile]:
            for k in ks:
                if k:
                    cm(f"X{i2}_{k}", f"G{i2}", f"E{k}")
                    g.append((f"X{i2}_{k}", len(g), True))
                else:
                    g.append((f"G{i2}", len(g), True))
        groups.append(g)
    flat = [r for g in groups for r in g]
    prod = {}
    for kind, d, srcs in ops:
        if kind == "fma": prod[d] = [x for x in srcs[:2]]
    prio = {}
    def mark(v, pr):
        if prio.get(v, 1 << 30) <= pr: return
        prio[v] = pr
        for x in prod.get(v, []): mark(x, pr)
    for n, (v, _, _) in enumerate(flat): mark(v, n)
    uses = {}
    for kind, d, srcs in ops:
        for x in srcs[:2]: uses[x] = uses.get(x, 0) + 1
    for v, _, _ in flat: uses[v] = uses.get(v, 0) + 1
    ready_at = {v: 0 for v in val}
    LAT = 3
    slot = [0]
    def emit(t):
        a(t); slot[0] += 1
    def release(x):
        uses[x] -= 1
        if uses[x] == 0 and val[x] not in (10, 24, 26, 32): pool.append(val[x])
    pend = list(ops)
    cv = [40, 42, 43, 2, 3, 4, 5, 6, 7]; cvi = [0]
    wq = []
    gi = 0; ri = 0
    mf = []
    def mfma(tile):
        for k in range(4):
            c = "0" if k == 0 else f"v[{KA+4*tile}:{KA+4*tile+3}]"
            emit(f"v_mfma_f32_16x16x32_f16 v[{KA+4*tile}:{KA+4*tile+3}], v[{AF+4*k}:{AF+4*k+3}], v[{BF+4*k}:{BF+4*k+3}], {c}")
    lds_after = [0]
    while pend or gi < len(groups) or wq or mf:
        did = False
        if wq and slot[0] - wq[0][2] >= LAT:
            r, row, _ = wq.pop(0)
            emit(f"ds_write_addtid_b32 v{r} offset:{16384 + 272*row}"); lds_after[0] += 1; did = True
        elif gi < len(groups) and ri == len(groups[gi]) and not wq and not mf:
            base = BF if gi == 0 else AF
            for k in range(4):
                emit(f"ds_read_b128 v[{base+4*k}:{base+4*k+3}], v41 offset:{64*k}")
            lds_after[0] = 0
            if gi > 0: mf.append((gi - 1, slot[0]))
            gi += 1; ri = 0; did = True
        elif mf and (slot[0] - mf[0][1] >= 24 or (not pend and gi >= len(groups)) or (gi < len(groups) and ri == len(groups[gi]) and not wq)):
            emit(f"s_waitcnt lgkmcnt({min(lds_after[0], 15)})")
            mfma(mf.pop(0)[0]); did = True
        if not did and gi < len(groups) and ri < len(groups[gi]) and len(wq) < 4:
            v, row, neg = groups[gi][ri]
            if v in ready_at and ready_at[v] <= slot[0]:
                r = cv[cvi[0] % len(cv)]; cvi[0] += 1
                emit(f"v_cvt_pk_f16_f32 v{r}, v{val[v]+1}, {'-' if neg else ''}v{val[v]}")
                wq.append((r, row, slot[0])); release(v); ri += 1; did = True
        if not did:
            best = None
            for n, (kind, d, srcs) in enumerate(pend):
                if all(x in ready_at and ready_at[x] <= slot[0] for x in srcs) and (kind == "fma" or pool):
                    key = (prio[d], 0 if kind == "fma" else 1)
                    if best is None or key < best[0]: best = (key, n)
            if best is not None:
                kind, d, srcs = pend.pop(best[1])
                x, y = val[srcs[0]], val[srcs[1]]
                if kind == "mul":
                    val[d] = pool.pop(0); r = val[d]
                    emit(f"v_pk_mul_f32 v[{r}:{r+1}], v[{x}:{x+1}], v[{y}:{y+1}] op_sel:[1,0] op_sel_hi:[1,1]")
                    ready_at[d + "'"] = slot[0] + LAT - 1
                else:
                    r = val[d]
                    emit(f"v_pk_fma_f32 v[{r}:{r+1}], v[{y}:{y+1}], v[{x}:{x+1}], v[{r}:{r+1}] op_sel:[1,0,0] op_sel_hi:[0,0,1] neg_hi:[1,0,0]")
                    ready_at[d] = slot[0] + LAT - 1
                for xx in srcs[:2]: release(xx)
                did = True
        if not did:
            slot[0] += 1

def near_table(a, tag):
    K0, K1, K2 = KA, KA + 4, KA + 8
    a(f"""
          v_lshlrev_b32 v8, 8, v97
          v_lshl_add_u32 v8, v96, 4, v8
          v_sub_u32 v8, {2*(537-256)}, v8
          v_add_u32 v8, s68, v8                 ; 2*(537 - p0), p0 = 256 + 128g + 8j
          v_lshrrev_b32 v9, 1, v97
          v_lshlrev_b32 v9, 8, v9
          v_lshl_add_u32 v9, v96, 4, v9
          v_and_b32 v10, 1, v97
          v_lshl_add_u32 v9, v10, 3, v9
          v_sub_u32 v9, 1080, v9
          v_add_u32 v9, s68, v9                 ; 1080 - 2p, p = 128(g>>1) + 8j + 4(g&1)
          ds_write_b128 v99, v[{K1}:{K1+3}] offset:5120
          ds_write_b128 v99, v[{K2}:{K2+3}] offset:6144
          v_cmp_gt_u32 vcc, 32, v1
          v_add_u32 v21, 2, v8
          v_add_u32 v22, {DELTA}, v8""")
    pair_sync(a, 1, tag + "_PS1")
    a(f"""v_cmp_gt_u32 vcc, 32, v1
          ds_read_b128 v[16:19], v99 offset:1024
          ds_read_b128 v[24:27], v99
          s_waitcnt lgkmcnt(1)
          v_pk_add_f32 v[{K1}:{K1+1}], v[{K1}:{K1+1}], v[16:17]
          v_pk_add_f32 v[{K1+2}:{K1+3}], v[{K1+2}:{K1+3}], v[18:19]
          s_waitcnt lgkmcnt(0)
          v_pk_add_f32 v[{K0}:{K0+1}], v[{K0}:{K0+1}], v[24:25]
          v_pk_add_f32 v[{K0+2}:{K0+3}], v[{K0+2}:{K0+3}], v[26:27]
          v_mov_b32_dpp v13, v{K1} row_shl:1 row_mask:0xf bank_mask:0xf
          v_writelane_b32 v13, 0, 33
          s_mov_b32 exec_hi, 3
          v_cndmask_b32 v14, v{K1}, v{K1+1}, vcc
          v_cndmask_b32 v15, v{K1+1}, v{K1+2}, vcc
          v_cndmask_b32 v13, v13, v{K1+3}, vcc
          v_cvt_pk_f16_f32 v16, v13, v15
          v_cvt_pk_f16_f32 v17, v15, v15
          v_cvt_pk_f16_f32 v18, v14, v{K1}
          v_cvt_pk_f16_f32 v19, v{K1}, v{K1}
          v_cvt_pk_f16_f32 v20, v15, v14
          ds_write_b16 v8, v16
          ds_write2_b32 v21, v17, v20 offset0:0 offset1:1
          ds_write_b32 v21, v19 offset:8
          ds_write_b16 v8, v19 offset:14
          ds_write2_b32 v22, v16, v17 offset0:0 offset1:1
          ds_write2_b32 v22, v18, v19 offset0:2 offset1:3
          s_mov_b32 exec_hi, -1
          v_cvt_pk_f16_f32 v24, v{K0+3}, v{K0+2}
          v_cvt_pk_f16_f32 v25, v{K0+1}, v{K0}
          v_cvt_pk_f16_f32 v26, v{K0+2}, v{K0+1}
          ds_write_b64 v9, v[24:25]
          ds_write_b16 v9, v24 offset:{DELTA}
          ds_write_b32 v9, v26 offset:{DELTA+2}
          ds_write_b16_d16_hi v9, v25 offset:{DELTA+6}
          """)

def far_table(a, tag):
    K0, K1, K2 = KA, KA + 4, KA + 8
    a(f"""
          v_and_b32 v13, 1, v96
          v_lshrrev_b32 v14, 1, v96
          v_lshlrev_b32 v8, 8, v13
          v_lshlrev_b32 v15, 1, v14
          v_sub_u32 v8, v8, v15
          v_lshlrev_b32 v9, 5, v97
          v_sub_u32 v8, v8, v9
          v_add_u32 v8, {R2B + 128 + 2*47 + 64 - 16}, v8
          v_add_u32 v8, s68, v8
          v_lshlrev_b32 v9, 1, v13
          v_sub_u32 v9, v8, v9
          v_add_u32 v9, {-128 + 2}, v9
          ds_write_b128 v99, v[{K0}:{K0+3}]
          ds_write_b128 v99, v[{K1}:{K1+3}] offset:1024
          v_mul_u32_u24 v10, 158, v13
          v_sub_u32 v10, v10, v15
          v_lshlrev_b32 v11, 6, v97
          v_sub_u32 v10, v10, v11
          v_add_u32 v10, {R3B + 128 - 48}, v10
          v_add_u32 v10, s68, v10
          s_nop 0""")
    pair_sync(a, 1, tag + "_PS2")
    a(f"""ds_read_b128 v[16:19], v99 offset:5120
          ds_read_b128 v[20:23], v99 offset:6144
          s_waitcnt lgkmcnt(1)
          v_pk_add_f32 v[{K1}:{K1+1}], v[{K1}:{K1+1}], v[16:17]
          v_pk_add_f32 v[{K1+2}:{K1+3}], v[{K1+2}:{K1+3}], v[18:19]
          s_waitcnt lgkmcnt(0)
          v_pk_add_f32 v[{K2}:{K2+1}], v[{K2}:{K2+1}], v[20:21]
          v_pk_add_f32 v[{K2+2}:{K2+3}], v[{K2+2}:{K2+3}], v[22:23]
          v_cvt_pk_f16_f32 v16, v{K1}, v{K1+1}
          v_cvt_pk_f16_f32 v17, v{K1+2}, v{K1+3}
          v_cvt_pk_f16_f32 v18, v{K2}, v{K2+1}
          v_cvt_pk_f16_f32 v19, v{K2+2}, v{K2+3}
          v_cvt_pk_f16_f32 v89, v{K2}, v{K2}
          s_mov_b32 exec_lo, 0
          ds_write_b16 v9, v17
          ds_write_b16 v9, v17 offset:{DELTA}
          ds_write_b16_d16_hi v8, v17
          ds_write_b16_d16_hi v8, v17 offset:{DELTA}
          s_mov_b32 exec_hi, -4
          ds_write_b16 v9, v16 offset:16
          ds_write_b16 v9, v16 offset:{DELTA+16}
          ds_write_b16_d16_hi v8, v16 offset:16
          ds_write_b16_d16_hi v8, v16 offset:{DELTA+16}
          s_mov_b32 exec_hi, 1
          s_mov_b32 exec_lo, -2
          ds_write_b16 v10, v18 offset:48
          ds_write_b16 v10, v18 offset:{DELTA+48}
          s_mov_b32 exec_hi, 0
          s_mov_b32 exec_lo, -1
          ds_write_b16_d16_hi v10, v18 offset:32
          ds_write_b16_d16_hi v10, v18 offset:{DELTA+32}
          ds_write_b16 v10, v19 offset:16
          ds_write_b16 v10, v19 offset:{DELTA+16}
          ds_write_b16_d16_hi v10, v19
          ds_write_b16_d16_hi v10, v19 offset:{DELTA}
          s_mov_b64 exec, -1
          """)

def k2_conv(a):
    if OPT["dbg"]:
        a("s_mov_b32 s2, s3")
    if OPT["kin"] == 1:
        return k2_conv_tbl(a)
    a("s_sub_u32 s30, s30, 8")
    kgen_loads(a)
    a(f"""s_cmp_lg_u32 s89, 0
          s_cbranch_scc1 K2C_P
          s_barrier
        K2C_P:
          s_lshl_b32 s57, s3, 3
          s_load_dwordx2 s[64:65], s[14:15], s57
          v_and_b32 v96, 15, v1
          v_lshrrev_b32 v97, 4, v1
          s_lshl_b32 s59, s3, 14
          s_mov_b32 s60, {WS_STATS:#x}
          v_lshlrev_b32 v95, 4, v1
          v_mov_b32 v12, 0
          v_mov_b32 v13, 0
          v_mov_b32 v14, 0
          v_mov_b32 v15, 0
          s_mul_i32 s66, s52, {UROW}
          s_add_u32 s66, s66, {UA}
          v_add_u32 v11, s66, v95
          s_mov_b32 exec_hi, 3
          ds_write_b128 v11, v[12:15]
          s_mov_b32 exec_hi, -1""")
    srd(a, 36, 26, 27, 0x400000)
    frag_addr = f"""v_lshlrev_b32 v12, 5, v96
          v_lshl_add_u32 v12, v97, 4, v12
          v_add_u32 v12, s66, v12
          v_mov_b32 v13, v95
          s_sub_u32 s78, 4, s53
          v_lshlrev_b32 v10, s78, v97
          v_lshlrev_b32 v11, 1, v96
          v_sub_u32 v10, v10, v11
          v_and_b32 v11, 1, v96
          v_xor_b32 v11, 1, v11
          v_mul_u32_u24 v11, {DELTA}, v11
          s_mul_i32 s78, s53, {R2B}
          s_add_u32 s78, s78, s68
          s_add_u32 s78, s78, 30
          v_add3_u32 v10, v10, v11, s78
          v_add_u32 v11, 512, v10"""
    kgen_setup(a)
    a("s_waitcnt vmcnt(0)")
    stamp(a, 2)
    kgen_main(a)
    stamp(a, 3, 1)
    a("""s_cmp_eq_u32 s53, 0
         s_cbranch_scc0 K2_FAR""")
    near_table(a, "K2")
    stamp(a, 4, 1)
    a(frag_addr)
    a("K2_D4:")
    conv_sync(a, "K2_W1N")
    near(a)
    flush(a)
    a.raw(".p2align 6")
    a("K2_FAR:")
    far_table(a, "K2")
    a("v_readlane_b32 s71, v89, 0")
    stamp(a, 4, 1)
    a(frag_addr)
    conv_sync(a, "K2_W1F")
    far(a)
    fixup(a)
    a("K2_CDONE:")
    flush(a)

def k2_conv_tbl(a):
    a(f"""s_sub_u32 s30, s30, 8
          s_and_b32 s52, s30, 3
          s_lshr_b32 s53, s30, 2
          s_lshl_b32 s57, s3, 3
          s_lshl_b32 s54, s3, 6
          s_add_u32 s54, s54, {WS_REC:#x}
          s_lshl_b32 s64, s52, 2
          s_add_u32 s64, s64, s54
          s_load_dword s70, s[28:29], s64
          s_load_dword s71, s[28:29], s64 offset:16
          s_load_dwordx4 s[72:75], s[28:29], s54 offset:32
          v_lshlrev_b32 v95, 4, v1
          s_lshl_b32 s59, s3, 14
          s_lshl_b32 s63, s30, 11
          s_add_u32 s62, s59, {WS_TBL:#x}
          s_add_u32 s62, s62, s63
          s_add_u32 m0, s63, {TB}
          buffer_load_dwordx4 v95, s[32:35], s62 offen {OPT['ld_flags']} lds
          buffer_load_dwordx4 v95, s[32:35], s62 offen offset:1024 {OPT['ld_flags']} lds
          s_cmp_lg_u32 s89, 0
          s_cbranch_scc1 K2C_P
          s_barrier
        K2C_P:
          v_and_b32 v96, 15, v1
          v_lshrrev_b32 v97, 4, v1
          s_mov_b32 s60, {WS_STATS:#x}
          v_mov_b32 v12, 0
          v_mov_b32 v13, 0
          v_mov_b32 v14, 0
          v_mov_b32 v15, 0
          s_mul_i32 s66, s52, {UROW}
          s_add_u32 s66, s66, {UA}
          v_add_u32 v11, s66, v95
          s_mov_b32 exec_hi, 3
          ds_write_b128 v11, v[12:15]
          s_mov_b32 exec_hi, -1
          s_lshl_b32 s68, s52, 12
          s_add_u32 s68, s68, {TB}
          s_mul_i32 s69, s52, {KGC}
          s_add_u32 s69, s69, {KG}
          v_add_u32 v99, s69, v95
        K2_D2:""")
    srd(a, 36, 26, 27, 0x400000)
    frag_addr = f"""v_lshlrev_b32 v12, 5, v96
          v_lshl_add_u32 v12, v97, 4, v12
          v_add_u32 v12, s66, v12
          v_mov_b32 v13, v95
          s_sub_u32 s78, 4, s53
          v_lshlrev_b32 v10, s78, v97
          v_lshlrev_b32 v11, 1, v96
          v_sub_u32 v10, v10, v11
          v_and_b32 v11, 1, v96
          v_xor_b32 v11, 1, v11
          v_mul_u32_u24 v11, {DELTA}, v11
          s_mul_i32 s78, s53, {R2B}
          s_add_u32 s78, s78, s68
          s_add_u32 s78, s78, 30
          v_add3_u32 v10, v10, v11, s78
          v_add_u32 v11, 512, v10"""
    a(frag_addr)
    stamp(a, 2)
    a("K2_D4:")
    conv_sync(a, "K2_W1N")
    a("""s_cmp_eq_u32 s53, 0
         s_cbranch_scc0 K2_FAR""")
    near(a)
    flush(a)
    a.raw(".p2align 6")
    a("K2_FAR:")
    far(a)
    fixup(a)
    a("K2_CDONE:")
    flush(a)

def flush(a):
    if OPT["dbg"]:
        a("s_waitcnt vmcnt(0)")
        stamp(a, 5)
        stamp_flush(a, 1, 32, 30, 256)
    a("s_endpgm")

LG, LB = 64, 80

def lean_gb(a):
    a("""s_lshl_b32 s72, s86, 16
         s_and_b32 s73, s86, s31
         s_lshl_b32 s74, s87, 16
         s_and_b32 s75, s87, s31""")
    U = 8
    lean_u(a, 48)
    for i in range(16):
        a(f"v_mul_f32 v{LG+i}, s58, v{48+i}")
    for i in range(16):
        a(f"v_exp_f32 v{LG+i}, -v{LG+i}")
        if i % 2 == 1:
            unpack(a, LB + i - 1, PX + i // 2, 31)
    for i in range(0, 16, 2):
        a(f"v_pk_add_f32 v[{LG+i}:{LG+i+1}], v[{LG+i}:{LG+i+1}], 1.0 op_sel_hi:[1,0]")
    for i in range(16):
        a(f"v_rcp_f32 v{LG+i}, v{LG+i}")
    for i in range(0, 16, 2):
        a(f"v_pk_mul_f32 v[{LG+i}:{LG+i+1}], v[{LG+i}:{LG+i+1}], v[{48+i}:{49+i}]")
    for i in range(0, 16, 2):
        hh = (i // 2) % 2
        a(f"v_pk_mul_f32 v[{48+i}:{49+i}], v[{48+i}:{49+i}], s[{72+2*hh}:{73+2*hh}]")
    for i in range(0, 16, 2):
        a(f"v_pk_fma_f32 v[{LB+i}:{LB+i+1}], v[{48+i}:{49+i}], v[{LG+i}:{LG+i+1}], v[{LB+i}:{LB+i+1}]")

def udg(a, T, UF=None):
    if OPT["lean"]: return
    UF = UF or globals()["UF"]
    a("""s_lshl_b32 s72, s86, 16
         s_and_b32 s73, s86, s31
         s_lshl_b32 s74, s87, 16
         s_and_b32 s75, s87, s31""")
    for q in range(4):
        for hh in range(2):
            r = UF + 4*q + 2*hh
            t = T + 4 * hh
            unpack(a, r, PUD + 2*q + hh, 31)
            a(f"""v_mul_f32 v{t+2}, s58, v{r}
                  v_mul_f32 v{t+3}, s58, v{r+1}
                  v_exp_f32 v{t+2}, -v{t+2}
                  v_exp_f32 v{t+3}, -v{t+3}
                  v_mul_f32 v{t}, s{72+2*hh}, v{r}
                  v_mul_f32 v{t+1}, s{73+2*hh}, v{r+1}
                  v_add_f32 v{t+2}, 1.0, v{t+2}
                  v_add_f32 v{t+3}, 1.0, v{t+3}
                  v_rcp_f32 v{t+2}, v{t+2}
                  v_rcp_f32 v{t+3}, v{t+3}
                  v_cvt_pk_bf16_f32 v{PUD+2*q+hh}, v{t}, v{t+1}
                  v_mul_f32 v{t+2}, v{t+2}, v{r}
                  v_mul_f32 v{t+3}, v{t+3}, v{r+1}
                  v_cvt_pk_bf16_f32 v{PG+2*q+hh}, v{t+2}, v{t+3}""")

def near(a):
    if not (OPT["single"] and OPT["half"]): return near1(a)
    stamp(a, 5, 1); stamp(a, 3, 3)
    ACC = 16
    TBUF = [48, 56]
    T16 = 64
    UBUF = [68, 72, 76, 80, 84, 88, 92]
    started = set()
    for h, tiles in enumerate((range(0, 4), range(4, 8))):
        P = Pipe(a)
        def tload(dst, sidx, gate):
            base, off = (10, 16 * (16 - sidx)) if sidx >= 8 else (11, 16 * (8 - sidx))
            P.load(f"ds_read2_b32 v[{dst}:{dst+1}], v{base} offset0:{off} offset1:{off+1}", gate)
            return P.load(f"ds_read2_b32 v[{dst+2}:{dst+3}], v{base} offset0:{off+2} offset1:{off+3}", gate)
        ulast = {}; tlast = {}; nu = 0
        for sl in range(8):
            tb = TBUF[sl % 2]
            tl = tload(tb, sl, tlast.get(tb, -1))
            th = tload(tb + 4, 8 + sl, tlast.get(tb, -1))
            t16 = tload(T16, 16, -1) if sl == 0 else None
            for o in range(8):
                use = [(o, tb, tl), (o + 1, tb + 4, th)] + ([(o + 2, T16, t16)] if sl == 0 else [])
                use = [u for u in use if u[0] in tiles]
                if not use: continue
                ub = UBUF[nu % len(UBUF)]; nu += 1
                ul = P.load(f"ds_read_b128 v[{ub}:{ub+3}], v12 offset:{2*(UPAD - 16 + 256*o - 32*sl)}", ulast.get(ub, -1))
                for jj, t, tid in use:
                    c = f"v[{ACC+4*jj}:{ACC+4*jj+3}]" if jj in started else "0"
                    started.add(jj)
                    P.step(f"v_mfma_f32_16x16x32_f16 v[{ACC+4*jj}:{ACC+4*jj+3}], v[{t}:{t+3}], v[{ub}:{ub+3}], {c}", [tid, ul])
                ulast[ub] = P.last()
            tlast[tb] = P.last()
        P.run()
        if h: stamp(a, 4); stamp(a, 4, 3)
        a(f"""s_setprio 3
              s_branch K2_W2{h}B
            K2_W2{h}:
              s_sleep 1
            K2_W2{h}B:
              ds_read_b32 v97, v96 offset:{SY + 32}
              s_waitcnt lgkmcnt(0)
              v_cmp_gt_u32 vcc, {h + 1}, v97
              s_cbranch_vccnz K2_W2{h}""")
        if h: stamp(a, 5, 3)
        fa = [jj for jj in tiles if jj >= 2]
        for n, jj in enumerate(fa):
            a(f"ds_read_b128 v[{100+4*n}:{103+4*n}], v99 offset:{1024*jj}")
        a("v_mov_b32 v97, 1")
        for jj in tiles:
            r = ACC + 4 * jj
            if jj >= 2:
                pp = 100 + 4 * fa.index(jj)
                a(f"""s_waitcnt lgkmcnt(3)
                      v_pk_add_f32 v[{r}:{r+1}], v[{r}:{r+1}], v[{pp}:{pp+1}]
                      v_pk_add_f32 v[{r+2}:{r+3}], v[{r+2}:{r+3}], v[{pp+2}:{pp+3}]""")
            a(f"""v_pk_mul_f32 v[{r}:{r+1}], v[{r}:{r+1}], s[70:71] op_sel_hi:[1,0]
                  v_pk_mul_f32 v[{r+2}:{r+3}], v[{r+2}:{r+3}], s[70:71] op_sel_hi:[1,0]
                  ds_write_b128 v99, v[{r}:{r+3}] offset:{1024*jj}""")
        a(f"""s_mov_b64 exec, 1
              ds_add_u32 v15, v97 offset:{SY + (108 if h else 48)}
              s_mov_b64 exec, -1""")
        if not h:
            a(f"""s_setprio {OPT['nprio']}
                  s_waitcnt lgkmcnt(0)""")

def near1(a):
    stamp(a, 5, 1); stamp(a, 3, 3)
    ACC = 16
    TBUF = [48, 56]
    T16 = 64
    UBUF = [68, 72, 76, 80, 84, 88, 92]
    P = Pipe(a)
    def tload(dst, s, gate):
        base, off = (10, 16 * (16 - s)) if s >= 8 else (11, 16 * (8 - s))
        P.load(f"ds_read2_b32 v[{dst}:{dst+1}], v{base} offset0:{off} offset1:{off+1}", gate)
        return P.load(f"ds_read2_b32 v[{dst+2}:{dst+3}], v{base} offset0:{off+2} offset1:{off+3}", gate)
    started = set(); ulast = {}; tlast = {}; nu = 0
    for sl in range(8):
        tb = TBUF[sl % 2]
        tl = tload(tb, sl, tlast.get(tb, -1))
        th = None; t16 = None
        for o in range(8):
            ub = UBUF[nu % len(UBUF)]; nu += 1
            ul = P.load(f"ds_read_b128 v[{ub}:{ub+3}], v12 offset:{2*(UPAD - 16 + 256*o - 32*sl)}", ulast.get(ub, -1))
            if o == 0:
                th = tload(tb + 4, 8 + sl, tlast.get(tb, -1))
                if sl == 0: t16 = tload(T16, 16, -1)
            use = [(o, tb, tl)]
            if o + 1 <= 7: use.append((o + 1, tb + 4, th))
            if sl == 0 and o + 2 <= 7: use.append((o + 2, T16, t16))
            for j, t, tid in use:
                c = f"v[{ACC+4*j}:{ACC+4*j+3}]" if j in started else "0"
                started.add(j)
                P.step(f"v_mfma_f32_16x16x32_f16 v[{ACC+4*j}:{ACC+4*j+3}], v[{t}:{t+3}], v[{ub}:{ub+3}], {c}", [tid, ul])
            ulast[ub] = P.last()
        tlast[tb] = P.last()
    if OPT["skip"] != 1: P.run()
    stamp(a, 4); stamp(a, 4, 3)
    a("s_setprio 3")
    a(f"""s_branch K2_W2B
        K2_W2:
          s_sleep 1
        K2_W2B:
          ds_read_b32 v97, v96 offset:{SY + 32}
          s_waitcnt lgkmcnt(0)
          v_cmp_eq_u32 vcc, 0, v97
          s_cbranch_vccnz K2_W2""")
    stamp(a, 5, 3)
    for j in range(2, 8):
        a(f"ds_read_b128 v[{48+4*(j-2)}:{51+4*(j-2)}], v99 offset:{1024*j}")
    for j in range(8):
        r = ACC + 4 * j
        if j >= 2:
            p = 48 + 4 * (j - 2)
            a(f"""s_waitcnt lgkmcnt(7)
                  v_pk_add_f32 v[{r}:{r+1}], v[{r}:{r+1}], v[{p}:{p+1}]
                  v_pk_add_f32 v[{r+2}:{r+3}], v[{r+2}:{r+3}], v[{p+2}:{p+3}]""")
        a(f"""v_pk_mul_f32 v[{r}:{r+1}], v[{r}:{r+1}], s[70:71] op_sel_hi:[1,0]
              v_pk_mul_f32 v[{r+2}:{r+3}], v[{r+2}:{r+3}], s[70:71] op_sel_hi:[1,0]
              ds_write_b128 v99, v[{r}:{r+3}] offset:{1024*j}""")
    a(f"""s_mov_b64 exec, 1
          ds_add_u32 v15, v97 offset:{SY + 48}
          s_mov_b64 exec, -1""")

def far(a):
    stamp(a, 5, 1); stamp(a, 3, 3)
    if OPT["prio"]: a(f"s_setprio {OPT['prio']}")
    ACC = 16 - 8
    BN = [40, 44]
    UB = [72, 76, 92, 100]
    W = [[2, 6], [80, 84]]
    AP = 88
    half = OPT["single"] and OPT["half"]
    PP = [Pipe(a)]
    class _P:
        load = staticmethod(lambda *x: PP[0].load(*x)); step = staticmethod(lambda *x: PP[0].step(*x)); run = staticmethod(lambda: PP[0].run())
    P = _P
    started = set()
    def accum(j, A, B, need=()):
        c = f"v[{ACC+4*j}:{ACC+4*j+3}]" if j in started else "0"
        started.add(j)
        return P.step(f"v_mfma_f32_16x16x32_f16 v[{ACC+4*j}:{ACC+4*j+3}], v[{A}:{A+3}], v[{B}:{B+3}], {c}", need)
    types = [((0, 1), (-24, -24), (R2B + 0, R2B + 384), 79, (2, 3, 4), 6, (48, 52, 56)),
             ((1, 0), (-16, -16), (R2B + 128, R2B + 256), 79, (2, 3, 4), 6, (60, 64, 68)),
             ((0, 1), (-24, -16), (R3B, R3B + 160), 127, (4, 5, 6, 7), 4, (48, 52, 56, 60))]
    last_use = {}
    bn = [P.load(f"ds_read_b128 v[{BN[i]}:{BN[i]+3}], v13 offset:{BAND + 1024*i}") for i in range(2)]
    nu = [0]
    items = [(ti, jp) for ti, t in enumerate(types) for jp in range(t[5])]
    tl = {}
    def tloads(ti):
        bands, bases, tbls, X, deltas, njp, TF = types[ti]
        for di, D in enumerate(deltas):
            for i in range(2):
                imm = tbls[i] + 2 * (X - 16 * D) - 30 - R2B
                assert imm % 4 == 0 and 0 <= imm <= 1016
                tl[ti, di] = P.load(f"ds_read2_b32 v[{TF[di]+2*i}:{TF[di]+2*i+1}], v10 offset0:{imm//4} offset1:{imm//4 + 1}",
                                    last_use.get(TF[di], -1))
    def windows(n):
        ti, jp = items[n]
        bands, bases, tbls, X, deltas, njp, TF = types[ti]
        if ti == 2 and jp == 0:
            for i in range(2):
                bn[i] = P.load(f"ds_read_b128 v[{BN[i]}:{BN[i]+3}], v13 offset:{BAND + 1024*(2+i)}", last_use[BN[i]])
        regs = {}
        for b in sorted(set(bases)):
            r = UB[nu[0] % len(UB)]; nu[0] += 1
            regs[b] = (r, P.load(f"ds_read_b128 v[{r}:{r+3}], v12 offset:{2*(UPAD + 256*jp + b)}", last_use.get(r, -1)))
        for i in range(2):
            w = W[n % 2][i]
            r, lid = regs[bases[i]]
            s = P.step(f"v_mfma_f32_16x16x32_f16 v[{w}:{w+3}], v[{r}:{r+3}], v[{BN[bands[i]]}:{BN[bands[i]]+3}], 0", [x for x in (lid, bn[bands[i]]) if x >= 0])
            last_use[r] = s; last_use[BN[bands[i]]] = s
    def body(first, last_):
        windows(first)
        for n in range(first, last_):
            ti, jp = items[n]
            bands, bases, tbls, X, deltas, njp, TF = types[ti]
            if n + 1 < last_:
                windows(n + 1)
            if (ti, 0) not in tl: tloads(ti)
            for i in range(2):
                w = W[n % 2][i]
                P.step(f"v_cvt_pk_f16_f32 v{AP+2*i}, v{w}, v{w+1}")
                P.step(f"v_cvt_pk_f16_f32 v{AP+2*i+1}, v{w+2}, v{w+3}")
            for di, D in enumerate(deltas):
                if jp + D <= 7:
                    last_use[TF[di]] = accum(jp + D, AP, TF[di], [x for x in [tl[ti, di]] if x >= 0])
    if half:
        items[:] = [(0, 0), (1, 0), (0, 1), (1, 1)] + [(0, q) for q in range(2, 6)] + [(1, q) for q in range(2, 6)] + [(2, q) for q in range(4)]
        mb = P.load(f"ds_read_b128 v[104:107], v13 offset:{BAND + 4096}")
        mu3 = P.load(f"ds_read_b128 v[108:111], v12 offset:{2*(UPAD + 256*3 - 1032)}")
        body(0, 4)
        for i in range(4):
            P.step(f"v_pk_mul_f16 v{104+i}, v{104+i}, s71", [mb])
        accum(3, 104, 108, [mu3])
        P.run()
        for j in (2, 3):
            a(f"ds_write_b128 v99, v[{ACC+4*j}:{ACC+4*j+3}] offset:{1024*j}")
        a(f"""v_mov_b32 v97, 1
              ds_write_b32 v96, v97 offset:{SY + 32}
              s_waitcnt lgkmcnt(0)""")
        PP[0] = Pipe(a)
        for kx in list(last_use): last_use[kx] = -1
        for kx in list(tl): tl[kx] = -1
        bn[0] = bn[1] = -1
        mu = [P.load(f"ds_read_b128 v[{108+4*(j-4)}:{111+4*(j-4)}], v12 offset:{2*(UPAD + 256*j - 1032)}") for j in range(4, 8)]
        body(4, len(items))
        for j in range(4, 8):
            accum(j, 104, 108 + 4*(j-4), [mu[j-4]])
        P.run()
        stamp(a, 4, 3)
        for j in range(4, 8):
            a(f"ds_write_b128 v99, v[{ACC+4*j}:{ACC+4*j+3}] offset:{1024*j}")
        a(f"""v_mov_b32 v97, 2
              ds_write_b32 v96, v97 offset:{SY + 32}""")
    else:
        windows(0)
        tloads(0)
        for n, (ti, jp) in enumerate(items):
            bands, bases, tbls, X, deltas, njp, TF = types[ti]
            if n + 1 < len(items):
                windows(n + 1)
            if (ti, jp) == (0, 2): tloads(1)
            if (ti, jp) == (2, 0): tloads(2)
            for i in range(2):
                w = W[n % 2][i]
                P.step(f"v_cvt_pk_f16_f32 v{AP+2*i}, v{w}, v{w+1}")
                P.step(f"v_cvt_pk_f16_f32 v{AP+2*i+1}, v{w+2}, v{w+3}")
            for di, D in enumerate(deltas):
                if jp + D <= 7:
                    last_use[TF[di]] = accum(jp + D, AP, TF[di], [tl[ti, di]])
        mb = P.load(f"ds_read_b128 v[64:67], v13 offset:{BAND + 4096}", last_use[64])
        MU = [68, 72, 76, 92, 100]
        mu = [P.load(f"ds_read_b128 v[{MU[j-3]}:{MU[j-3]+3}], v12 offset:{2*(UPAD + 256*j - 1032)}", last_use[MU[j-3]]) for j in range(3, 8)]
        for i in range(4):
            P.step(f"v_pk_mul_f16 v{64+i}, v{64+i}, s71", [mb])
        for j in range(3, 8):
            accum(j, 64, MU[j-3], [mu[j-3]])
        if OPT["skip"] != 2: P.run()
        stamp(a, 4, 3)
        for j in range(2, 8):
            a(f"ds_write_b128 v99, v[{ACC+4*j}:{ACC+4*j+3}] offset:{1024*j}")
        a(f"""v_mov_b32 v97, 1
              ds_write_b32 v96, v97 offset:{SY + 32}""")
    stamp(a, 4); stamp(a, 5, 3)
    if OPT["prio"]: a("s_setprio 0")
    a("""s_cmp_lg_u32 s30, 4
         s_cbranch_scc1 K2_CDONE""")
    if OPT["single"]:
        a(f"""ds_read_b64 v[16:17], v15 offset:{SY + 8}
              s_waitcnt lgkmcnt(0)
              v_readfirstlane_b32 s76, v16
              v_readfirstlane_b32 s77, v17""")
    if OPT["kin"] == 2:
        a("""s_lshl_b32 s72, s64, 16
             s_and_b32 s73, s64, s31
             s_lshl_b32 s74, s65, 16
             s_and_b32 s75, s65, s31""")
    a(f"""s_andn2_b32 s78, 0xffe, s76
          s_andn2_b32 s79, 0xffe, s77
          s_lshr_b32 s78, s78, 1
          s_lshr_b32 s79, s79, 1
          v_and_b32 v2, 1, v1
          v_bfe_u32 v3, v1, 1, 1
          v_lshl_add_u32 v2, v2, 1, v3          ; ch
          v_and_b32 v3, 4, v1
          v_cmp_ne_u32 vcc, 0, v3
          v_mov_b32 v4, s78
          v_mov_b32 v5, s79
          v_mov_b32 v6, s76
          v_mov_b32 v7, s77
          v_cndmask_b32 v4, v4, v5, vcc         ; row
          v_cndmask_b32 v5, v6, v7, vcc         ; key
          v_lshlrev_b32 v6, 3, v4
          {"v_lshlrev_b32 v7, 1, v6" if OPT["single"] and OPT["x8"] else "v_mov_b32 v7, v6"}
          v_lshl_add_u32 v7, v2, 1, v7
          {"" if OPT["single"] and OPT["gat"] else "buffer_load_ushort v80, v7, s[32:35], s59 offen sc1"}
          {"v_lshlrev_b32 v7, 11, v4" if OPT["single"] and OPT["gat"] else ""}
          {"v_lshl_add_u32 v7, v2, 1, v7" if OPT["single"] and OPT["gat"] else ""}
          {"v_add_u32 v7, s57, v7" if OPT["single"] and OPT["gat"] else ""}
          {"global_load_ushort v80, v7, s[44:45]" if OPT["single"] and OPT["gat"] else ""}
          {"v_lshlrev_b32 v6, 1, v6" if OPT["single"] else ""}
          {"buffer_load_dword v82, v6, s[32:35], s60 offen sc1" if OPT["single"] else "buffer_load_dwordx2 v[82:83], v6, s[32:35], s60 offen sc1"}
          v_mov_b32 v81, s72
          v_mov_b32 v3, s73
          v_cmp_eq_u32 vcc, 1, v2
          v_cndmask_b32 v81, v81, v3, vcc
          v_mov_b32 v3, s74
          v_cmp_eq_u32 vcc, 2, v2
          v_cndmask_b32 v81, v81, v3, vcc
          v_mov_b32 v3, s75
          v_cmp_eq_u32 vcc, 3, v2
          v_cndmask_b32 v81, v81, v3, vcc
          v_lshrrev_b32 v86, 1, v1
          v_lshlrev_b32 v86, 7, v86
          v_and_b32 v3, 1, v1
          v_lshl_add_u32 v86, v3, 4, v86
          s_lshr_b32 s72, s3, 2
          s_mul_i32 s72, s72, {NF * 128}
          s_and_b32 s73, s3, 3
          s_lshl_b32 s73, s73, 5
          s_add_u32 s72, s72, s73
          s_add_u32 s80, s72, {WS_PART:#x}
          s_add_u32 s81, s80, 4096
          s_add_u32 s82, s80, 8192
          s_add_u32 s83, s80, 12288
          s_add_u32 s84, s80, 16384
          s_add_u32 s85, s80, 20480
          s_add_u32 s86, s80, 24576
          v_mul_u32_u24 v84, {KGC}, v2
          v_lshrrev_b32 v3, 8, v4
          v_lshl_add_u32 v84, v3, 10, v84
          v_bfe_u32 v3, v4, 2, 2
          v_lshl_add_u32 v84, v3, 8, v84
          v_bfe_u32 v3, v4, 4, 4
          v_lshl_add_u32 v84, v3, 4, v84
          v_and_b32 v3, 3, v4
          v_lshl_add_u32 v84, v3, 2, v84
          v_lshlrev_b32 v87, 11, v4
          v_lshl_add_u32 v87, v2, 1, v87
          v_and_b32 v5, s31, v5
          v_ashrrev_i32 v3, 31, v5
          v_not_b32 v3, v3
          v_or_b32 v3, 0x80000000, v3
          v_xor_b32 v5, v5, v3
          v_and_b32 v5, s31, v5
          v_mul_f32 v85, s58, v5
          v_exp_f32 v85, -v85
          v_and_b32 v3, 2, v1
          v_cmp_ne_u32 s[74:75], 0, v3
          v_add_f32 v85, 1.0, v85
          v_rcp_f32 v85, v85
          v_and_b32 v3, 4, v1
          v_cmp_ne_u32 s[76:77], 0, v3""")
    rbf(a, 85)

def wait_y(a, label, which=None):
    half = OPT["single"] and OPT["half"]
    a("v_mov_b32 v96, 0")
    if half and which is None:
        a("""s_cmp_lt_u32 s30, 4
             s_cselect_b32 s72, 0, 60
             v_mov_b32 v97, s72""")
    reg = "v97" if half and which is None else "v96"
    off = SY + (108 if half and which else 48)
    a(f"""s_branch {label}B
        {label}:
          s_sleep 1
        {label}B:
          ds_read_b32 v3, {reg} offset:{off}
          s_waitcnt lgkmcnt(0)
          v_cmp_gt_u32 vcc, 4, v3
          s_cbranch_vccnz {label}""")

def epilogue(a, last=True):
    Y = 32
    srd(a, 36, 26, 27, 0x400000)
    a(f"""s_lshl_b32 s72, s30, 10
          s_add_u32 s72, s72, {KG}
          v_add_u32 v2, s72, v20
          v_lshlrev_b32 v100, 8, v98
          v_add_u32 v101, 4096, v100""")
    if OPT["lean"]: lean_gb(a)
    pre = OPT["pre"] and not OPT["lean"]
    if pre:
        for n in range(8):
            unpack(a, 64 + 2*n, PUD + n, 31)
            unpack(a, 80 + 2*n, PG + n, 31)
        for n in range(8):
            unpack(a, 112 + 2*n, PX + n, 31)
    stamp(a, 3, 2)
    wait_y(a, "K2_W3")
    stamp(a, 4, 2)
    for ch in range(4):
        a(f"ds_read_b128 v[{Y+4*ch}:{Y+4*ch+3}], v2 offset:{KGC*ch}")
    for hh in range(2 if OPT["lean"] else 0):
        a(f"s_waitcnt lgkmcnt({2-2*hh})")
        for q in range(4):
            for c in range(2):
                ch = 2 * hh + c
                a(f"v_fmac_f32 v{LB+4*q+ch}, v{Y+4*ch+q}, v{LG+4*q+ch}")
        for q in range(4):
            a(f"v_cvt_pk_bf16_f32 v{48+2*q+hh}, v{LB+4*q+2*hh}, v{LB+4*q+2*hh+1}")
            if hh == 1:
                a(f"buffer_store_dwordx2 v[{48+2*q}:{49+2*q}], v{100+q//2}, s[36:39], s80 offen offset:{2048*(q%2)}")
    for hh in range(2 if pre else 0):
        a(f"s_waitcnt lgkmcnt({2-2*hh})")
        T = [48 + 3*q for q in range(4)]
        def st(fmt):
            for q in range(4):
                n = 2*q + hh
                a(fmt.format(t=8+q, p=48+2*q, p1=49+2*q, y0=Y+8*hh+q, y1=Y+8*hh+4+q, u=64+2*n, u1=65+2*n, g=80+2*n, g1=81+2*n, x=112+2*n, x1=113+2*n, o=56+2*q+hh))
        st("v_cvt_pk_bf16_f32 v{t}, v{y0}, v{y1}")
        for nxt in ("v_pk_add_f32 v[{p}:{p1}], v[{p}:{p1}], v[{u}:{u1}]", "v_pk_mul_f32 v[{p}:{p1}], v[{p}:{p1}], v[{g}:{g1}]",
                    "v_pk_add_f32 v[{p}:{p1}], v[{p}:{p1}], v[{x}:{x1}]"):
            st("v_lshlrev_b32 v{p}, 16, v{t}")
            st("v_and_b32 v{p1}, s31, v{t}")
            st(nxt)
            if "x1" not in nxt:
                st("v_cvt_pk_bf16_f32 v{t}, v{p}, v{p1}")
        for q in range(4):
            a(f"v_cvt_pk_bf16_f32 v{56+2*q+hh}, v{48+2*q}, v{49+2*q}")
            if hh == 1:
                if not OPT["exp"] & 8: a(f"buffer_store_dwordx2 v[{56+2*q}:{57+2*q}], v{100+q//2}, s[36:39], s80 offen offset:{2048*(q%2)}")
    for hh in range(0 if OPT["lean"] or pre else 2):
        a(f"s_waitcnt lgkmcnt({2-2*hh})")
        for q in range(4):
            t = 48 + 6 * (q % 2)
            a(f"v_cvt_pk_bf16_f32 v{t}, v{Y+8*hh+q}, v{Y+8*hh+4+q}")
            unpack(a, t + 2, PUD + 2*q + hh, 31)
            unpack(a, t + 4, t, 31)
            a(f"""v_pk_add_f32 v[{t+2}:{t+3}], v[{t+2}:{t+3}], v[{t+4}:{t+5}]
                  v_cvt_pk_bf16_f32 v{t}, v{t+2}, v{t+3}""")
            unpack(a, t + 2, PG + 2*q + hh, 31)
            unpack(a, t + 4, t, 31)
            a(f"""v_pk_mul_f32 v[{t+2}:{t+3}], v[{t+2}:{t+3}], v[{t+4}:{t+5}]
                  v_cvt_pk_bf16_f32 v{t}, v{t+2}, v{t+3}""")
            unpack(a, t + 2, PX + 2*q + hh, 31)
            unpack(a, t + 4, t, 31)
            a(f"""v_pk_add_f32 v[{t+2}:{t+3}], v[{t+2}:{t+3}], v[{t+4}:{t+5}]
                  v_cvt_pk_bf16_f32 v{64+2*q+hh}, v{t+2}, v{t+3}""")
            if hh == 1:
                a(f"buffer_store_dwordx2 v[{64+2*q}:{65+2*q}], v{100+q//2}, s[36:39], s80 offen offset:{2048*(q%2)}")
    stamp(a, 5, 2)
    if last: epi_end(a)

def epi_end(a):
    a(f"""v_mov_b32 v3, 1
          s_mov_b64 exec, 1
          s_waitcnt vmcnt(0)
          ds_add_u32 v96, v3 offset:{SY + 52}""")
    if OPT["k2spin"]:
        a("""K2_SPIN:
             s_sleep 8
             s_memrealtime s[92:93]
             s_waitcnt lgkmcnt(0)
             s_sub_u32 s92, s92, s90
             s_cmp_lt_i32 s92, 0
             s_cbranch_scc1 K2_SPIN""")
    if OPT["dbg"]:
        stamp(a, 5)
        stamp_flush(a, 1, 32, 30, 0)
    a("s_endpgm")

def fixup(a):
    for i in range(7):
        a(f"buffer_load_dwordx4 v[{48+4*i}:{51+4*i}], v86, s[32:35], s{80+i} offen {OPT['p1']}")
    stamp(a, 3, 2)
    wait_y(a, "K2_W3F", 1)
    stamp(a, 4, 2)
    a(f"""ds_read_b32 v84, v84 offset:{KG}
          ds_read_b32 v17, v96 offset:{SY + 56}
          s_mov_b32 s73, 0x40000
          s_waitcnt vmcnt(0) lgkmcnt(0)
          v_lshlrev_b32 v80, 16, v80""")
    if OPT["single"]:
        a("""v_and_b32 v21, s31, v82
             v_lshlrev_b32 v82, 16, v82
             v_rcp_f32 v83, v21
             v_fma_f32 v22, -v21, v83, 1.0
             v_fmac_f32 v83, v22, v83""")
    a("v_sub_f32 v21, v80, v82")
    rbf(a, 21, 84)
    a("v_mul_f32 v21, v21, v83")
    rbf(a, 21)
    a("v_mul_f32 v22, v21, v81")
    rbf(a, 22)
    a("v_add_f32 v22, v22, v84")
    rbf(a, 22)
    a("""s_branch K2_CHECK
       K2_POLL:""")
    for i in range(7):
        a(f"buffer_load_dwordx4 v[{48+4*i}:{51+4*i}], v86, s[32:35], s{80+i} offen sc1")
    a("""s_waitcnt vmcnt(0)
       K2_CHECK:""")
    if OPT["single"]:
        a("v_mov_b32 v18, 0")
        for i in range(7):
            r = 48 + 4 * i
            a(f"""v_xor_b32 v19, v{r}, v{r+1}
                  v_xor_b32 v20, v{r+2}, v{r+3}
                  v_xor_b32 v19, v19, v20
                  v_xor_b32 v19, v19, v17
                  v_or_b32 v18, v18, v19""")
        a("v_cmp_ne_u32 vcc, 0, v18")
    else:
        a("v_max3_u32 v18, v48, v49, v50")
        for r in range(51, 75, 2):
            a(f"v_max3_u32 v18, v18, v{r}, v{r+1}")
        a("""v_max_u32 v18, v18, v75
             v_cmp_eq_u32 vcc, -1, v18""")
    a("s_branch K2_GOT" if OPT["exp"] & 16 else "s_cbranch_vccz K2_GOT")
    if OPT["psleep"]: a(f"s_sleep {OPT['psleep']}")
    a("""s_sub_u32 s73, s73, 1
         s_cbranch_scc0 K2_POLL
       K2_GOT:""")
    stamp(a, 5, 2)
    if OPT["single"]:
        a("""s_mov_b32 s64, 0x04000c0c
             s_mov_b32 s65, 0x0706000c""")
        for i in range(7):
            r = 48 + 4 * i
            a(f"""v_perm_b32 v{r+3}, v{r}, v{r+1}, s64
                  v_perm_b32 v{r+3}, v{r+3}, v{r+2}, s65""")
    for i in (0, 2, 4):
        a(f"""v_pk_add_f32 v[{48+4*i}:{49+4*i}], v[{48+4*i}:{49+4*i}], v[{52+4*i}:{53+4*i}]
              v_pk_add_f32 v[{50+4*i}:{51+4*i}], v[{50+4*i}:{51+4*i}], v[{54+4*i}:{55+4*i}]""")
    a("""v_pk_add_f32 v[48:49], v[48:49], v[56:57]
         v_pk_add_f32 v[50:51], v[50:51], v[58:59]
         v_pk_add_f32 v[64:65], v[64:65], v[72:73]
         v_pk_add_f32 v[66:67], v[66:67], v[74:75]
         v_pk_add_f32 v[48:49], v[48:49], v[64:65]
         v_pk_add_f32 v[50:51], v[50:51], v[66:67]""")
    for mod in ("quad_perm:[2,3,0,1]", "row_ror:4", "row_ror:8"):
        for r in range(48, 52):
            a(f"v_add_f32_dpp v{r}, v{r}, v{r} {mod} row_mask:0xf bank_mask:0xf")
    rows_allreduce(a, [48, 49, 50, 51], 52)
    a("""v_cndmask_b32 v48, v48, v49, s[74:75]
         v_cndmask_b32 v50, v50, v51, s[74:75]
         v_cndmask_b32 v20, v48, v50, s[76:77]""")
    rbf(a, 20)
    a("v_mul_f32 v20, v20, v85")
    rbf(a, 20)
    a("v_add_f32 v20, v20, v21")
    rbf(a, 20)
    a("""v_mul_f32 v23, s58, v20
         v_exp_f32 v23, -v23
         v_add_f32 v23, 1.0, v23
         v_rcp_f32 v23, v23
         v_mul_f32 v23, v23, v20""")
    rbf(a, 23)
    a("v_mul_f32 v23, v23, v22")
    rbf(a, 23)
    a("""v_add_f32 v23, v23, v80
         v_cvt_pk_bf16_f32 v23, v23, v23
         s_waitcnt vmcnt(0)""")
    a(f"""s_branch K2_W4B
        K2_W4:
          s_sleep 1
        K2_W4B:
          ds_read_b32 v3, v96 offset:{SY + 52}
          s_waitcnt lgkmcnt(0)
          v_cmp_gt_u32 vcc, 8, v3
          s_cbranch_vccnz K2_W4
          s_mov_b64 exec, 0xff
          buffer_store_short v23, v87, s[36:39], s57 offen""")

def FRAG_ADDR():
    return f"""v_lshlrev_b32 v12, 5, v96
          v_lshl_add_u32 v12, v97, 4, v12
          v_add_u32 v12, s66, v12
          v_mov_b32 v13, v95
          s_sub_u32 s78, 4, s53
          v_lshlrev_b32 v10, s78, v97
          v_lshlrev_b32 v11, 1, v96
          v_sub_u32 v10, v10, v11
          v_and_b32 v11, 1, v96
          v_xor_b32 v11, 1, v11
          v_mul_u32_u24 v11, {DELTA}, v11
          s_mul_i32 s78, s53, {R2B}
          s_add_u32 s78, s78, s68
          s_add_u32 s78, s78, 30
          v_add3_u32 v10, v10, v11, s78
          v_add_u32 v11, 512, v10"""


def lds_wait(a, label, reg, off, cond, zero="v59"):
    a(f"""s_branch {label}B
        {label}:
          s_sleep 1
        {label}B:
          ds_read_b32 v{reg}, {zero} offset:{off}
          s_waitcnt lgkmcnt(0)
          {cond}
          s_cbranch_vccnz {label}""")

def k3():
    a = Asm()
    name = "recurrent_scan__ssm_conv_s4d__moe_arch_mod__prompt_kernel"
    a.raw(f".p2align 8\n.globl {name}\n.type {name},@function\n{name}:")
    a("""s_cmp_ge_u32 s2, 256
         s_cbranch_scc1 K2_END""")
    stamp(a, 0)
    a(f"""s_load_dwordx16 s[4:19], s[0:1], 8
          s_load_dwordx8 s[20:27], s[0:1], 72
          s_load_dwordx4 s[40:43], s[0:1], 104
          s_load_dwordx2 s[44:45], s[0:1], 0
          v_lshrrev_b32 v2, 6, v0
          v_and_b32 v1, 63, v0
          s_mov_b32 s31, 0xffff0000
          v_readfirstlane_b32 s30, v2
          s_mov_b32 s58, {L2E_HI:#x}
          v_mov_b32 v59, 0
          s_mov_b32 s88, s30
          {"s_xor_b32 s88, s88, 8" if OPT["efirst"] else ""}
          s_and_b32 s30, s30, 7
          s_cmp_lt_u32 s88, 8
          s_cbranch_scc1 K3_C
          ; ---------------------------------------------------------------- E waves
          v_and_b32 v0, 511, v0
          v_lshlrev_b32 v3, 2, v1
          {"ds_write_b32 v3, v59" if OPT["efirst"] else ""}
          v_lshlrev_b32 v3, 4, v1
          """)
    if OPT["x8"]:
        a(f"""v_lshrrev_b32 v6, 3, v0
              v_and_b32 v7, 7, v0
              v_mul_u32_u24 v4, {XRS}, v7
              v_lshl_add_u32 v4, v6, 4, v4
              v_add_u32 v4, {XR}, v4
              s_mul_i32 s61, s30, {XRS}
              s_add_u32 s61, s61, {XR}
              v_add_u32 v5, s61, v3
              v_lshlrev_b32 v29, 15, v6
              v_lshl_add_u32 v29, v7, 4, v29
              v_add_u32 v6, {XW}, v3""")
    else:
        a(f"""
          v_lshrrev_b32 v6, 2, v0
          v_and_b32 v7, 3, v0
          v_lshlrev_b32 v4, 3, v6
          v_lshl_add_u32 v4, v7, 12, v4
          v_add_u32 v4, {XR}, v4
          s_lshl_b32 s61, s30, 11
          s_add_u32 s61, s61, {XR}
          v_add_u32 v5, s61, v3
          v_add_u32 v6, {XW}, v3
          v_lshrrev_b32 v29, 2, v0
          v_lshlrev_b32 v29, 14, v29
          v_lshl_add_u32 v29, v7, 4, v29
          """)
    a(f"""
          s_lshl_b32 s60, s2, 3
          s_add_u32 s60, s60, s30               ; row
          s_lshl_b32 s61, s60, 11
          s_lshl_b32 s62, s2, 14
          s_lshl_b32 s66, s2, {7 if OPT["x8"] else 6}
          s_add_u32 s67, s66, 0x200000
          s_mov_b32 s65, 0x3f803f80
          v_mov_b32 v30, 0x3a800000
          s_setprio {OPT['eprio']}
          s_waitcnt lgkmcnt(0)""")
    srd(a, 36, 44, 45, 0x400000)
    a("""buffer_load_dwordx4 v[8:11], v3, s[36:39], s61 offen nt
         buffer_load_dwordx4 v[12:15], v3, s[36:39], s61 offen offset:1024 nt""")
    if OPT["efirst"]:
        a("""s_cmp_lg_u32 s60, 1
             s_cbranch_scc1 K3_NONC
             s_memrealtime s[62:63]
             v_mov_b32 v16, 128
             s_waitcnt lgkmcnt(0)
             s_or_b32 s62, s62, 1
             v_mov_b32 v17, s62
             s_mov_b64 exec, 1
             global_store_dword v16, v17, s[40:41] sc1
             s_mov_b64 exec, -1
           K3_NONC:""")
    srd(a, 48, 18, 19, 2048)
    a(f"""s_and_b32 s62, s30, 1
          s_lshl_b32 s62, s62, 10
          s_add_u32 m0, s62, {XW}
          buffer_load_dwordx4 v3, s[48:51], s62 offen lds""")
    a("""s_mov_b32 s28, s42
         s_mov_b32 s29, s43""")
    srd(a, 32, 28, 29, WS_SIZE)
    F = 32
    a(f"""s_mov_b32 s16, s44
          s_mov_b32 s17, s45
          s_mov_b32 s18, s40
          s_mov_b32 s19, s41
          s_mov_b32 s81, s60
          v_mov_b32 v31, 128
          v_mov_b32 v56, 0
          v_mov_b32 v57, 0
          v_mov_b32 v58, 0
          v_mov_b32 v60, 1
          s_barrier
          s_cmp_lg_u32 s30, 0
          s_cbranch_scc1 K3_NN
          global_load_dword v63, v31, s[18:19] sc1
        K3_NN:""")
    if OPT["wdpos"] == 3:
        lds_wait(a, "K3_SW0", 2, SY, "v_cmp_eq_u32 vcc, 0, v2")
        a("""v_readfirstlane_b32 s51, v2
             s_sub_u32 s51, s51, 1
             s_lshr_b32 s50, s51, 6
             s_and_b32 s51, s51, 63""")
        tile_scalars(a, 50, 51, 55, 52, 53, 54, 30)
        srd(a, 44, 24, 25, WBYTES)
        a("""s_lshl_b32 s57, s53, 2
             s_add_u32 s57, s57, s52
             s_lshl_b32 s57, s57, 15
             v_lshlrev_b32 v2, 2, v0
             s_cmp_ge_u32 s51, 28
             s_cselect_b32 s46, 0, s46""")
        for f in range(0, 16, 2):
            a(f"""buffer_load_dword v{80+f}, v2, s[44:47], s57 offen nt
                  buffer_load_dword v{81+f}, v2, s[44:47], s57 offen offset:2048 nt
                  s_add_u32 s57, s57, 4096""")
    W3 = 16 if OPT["wdpos"] == 3 else 0
    a(f"""s_cmp_lg_u32 s30, 0
          s_cbranch_scc1 K3_NN1
          s_waitcnt vmcnt({1 + W3})
          s_branch K3_NN2
        K3_NN1:
          s_waitcnt vmcnt({W3})
        K3_NN2:""")
    stamp(a, 1)
    if not OPT["gat"]:
        a("""ds_write_b128 v5, v[8:11]
             ds_write_b128 v5, v[12:15] offset:1024""")
    a(f"""
          s_mov_b64 exec, 1
          ds_add_u32 v59, v60 offset:{SY + 20}
          s_mov_b64 exec, -1
          """)
    for i in range(8):
        unpack(a, F + 2*i, 8 + i, 31)
        a(f"v_dot2c_f32_bf16 v56, s65, v{8+i}")
    lds_wait(a, "K3_RW", 60, SY + 20, "v_cmp_gt_u32 vcc, 8, v60")
    if OPT["gat"]:
        a("""ds_read_b128 v[100:103], v6
             ds_read_b128 v[104:107], v6 offset:1024
             s_waitcnt lgkmcnt(0)""")
    else:
        a(f"""{"ds_read_b128 v[48:51], v4" if OPT["x8"] else "ds_read2st64_b64 v[48:51], v4 offset0:0 offset1:4"}
              {"ds_read_b128 v[52:55], v4 offset:1024" if OPT["x8"] else "ds_read2st64_b64 v[52:55], v4 offset0:2 offset1:6"}
              ds_read_b128 v[100:103], v6
              ds_read_b128 v[104:107], v6 offset:1024
              s_waitcnt lgkmcnt(2)
              {"" if OPT["exp"] & 2 else "buffer_store_dwordx4 v[48:51], v29, s[32:35], s66 offen " + OPT['xt_flags']}
              {"" if OPT["exp"] & 2 else "buffer_store_dwordx4 v[52:55], v29, s[32:35], s67 offen " + OPT['xt_flags']}
              s_waitcnt lgkmcnt(0)""")
    for i in range(8):
        a(f"""v_dot2c_f32_bf16 v57, v{8+i}, v{100+i}
              v_dot2c_f32_bf16 v58, s65, v{100+i}""")
    a("s_nop 2")
    wave_reduce(a, "v_add_f32", [56, 57, 58])
    a("""v_readlane_b32 s68, v56, 63
         v_mul_f32 v108, s68, v30
         v_cvt_pk_bf16_f32 v60, v108, v108
         v_lshlrev_b32 v60, 16, v60""")
    for i in range(8):
        a(f"v_pk_add_f32 v[{F+2*i}:{F+2*i+1}], v[{F+2*i}:{F+2*i+1}], v[108:109] op_sel_hi:[1,0] neg_lo:[0,1] neg_hi:[0,1]")
    a(f"""v_pk_mul_f32 v[8:9], v[{F}:{F+1}], v[{F}:{F+1}]
          v_pk_mul_f32 v[10:11], v[{F+2}:{F+3}], v[{F+2}:{F+3}]""")
    for i in range(2, 8):
        d = 8 + 2 * (i % 2)
        a(f"v_pk_fma_f32 v[{d}:{d+1}], v[{F+2*i}:{F+2*i+1}], v[{F+2*i}:{F+2*i+1}], v[{d}:{d+1}]")
    a(f"""v_pk_add_f32 v[8:9], v[8:9], v[10:11]
          v_fma_f32 v57, -v60, v58, v57
          v_add_f32 v56, v8, v9""")
    wave_reduce(a, "v_add_f32", [56])
    a("v_mul_f32 v58, v56, v30")
    rbf(a, 58)
    a("v_add_f32 v58, 0x3727c5ac, v58")
    rbf(a, 58)
    a("v_sqrt_f32 v58, v58")
    rbf(a, 58)
    a("""v_rcp_f32 v61, v58
         s_sub_u32 s68, 2047, s60
         s_lshl_b32 s68, s68, 1
         v_lshrrev_b32 v10, 16, v60
         v_or_b32 v10, v10, v58
         v_fma_f32 v56, -v58, v61, 1.0
         v_fmac_f32 v61, v56, v61
         v_mul_f32 v8, v57, v61""")
    rbf(a, 8)
    a(f"""v_ashrrev_i32 v57, 31, v8
          v_or_b32 v57, 0x80000000, v57
          v_xor_b32 v8, v8, v57
          v_and_b32 v8, s31, v8
          v_or_b32 v8, s68, v8
          v_mov_b32 v9, v10
          s_lshl_b32 s68, s30, 3
          v_mov_b32 v11, s68
          v_mov_b32 v12, 1
          s_mov_b32 exec_lo, 0
          s_mov_b32 exec_hi, 0x80000000
          ds_write_b64 v11, v[8:9] offset:{SY + 192}
          s_mov_b64 exec, -1
          s_cmp_lg_u32 s30, 0
          s_cbranch_scc1 K3_NOK
          s_mov_b32 s69, 0x100000
          s_waitcnt vmcnt({0 if OPT["gat"] else 2 + W3})
          s_branch K3_NCHK
        K3_NP:
          s_sleep 8
          global_load_dword v63, v31, s[18:19] sc1
          s_waitcnt vmcnt(0)
          s_sub_u32 s69, s69, 1
          s_cbranch_scc1 K3_NGOT
        K3_NCHK:
          v_cmp_eq_u32 vcc, 0, v63
          s_cbranch_vccnz K3_NP
        K3_NGOT:
          ds_write_b32 v59, v63 offset:{SY + 56}
        K3_NOK:
          s_waitcnt vmcnt(0)
          s_mov_b64 exec, 1
          ds_add_rtn_u32 v12, v59, v12 offset:{SY + 60}
          s_mov_b64 exec, -1
          v_lshlrev_b32 v13, 3, v1
          ds_read_b64 v[8:9], v13 offset:{SY + 192}
          ds_read_b32 v63, v59 offset:{SY + 56}
          s_waitcnt lgkmcnt(0)
          v_readfirstlane_b32 s68, v12
          s_cmp_lg_u32 s68, 7
          s_cbranch_scc1 K3_NOPUBL
          v_mov_b32 v10, v9
          v_mov_b32 v9, v63
          v_mov_b32 v11, v63
          s_lshl_b32 s68, s2, 7
          s_add_u32 s68, s68, {WS_FLAG:#x}
          v_mov_b32 v12, 1
          s_mov_b64 exec, 0xff
          buffer_store_dwordx4 v[8:11], v3, s[32:35], s68 offen sc1
          s_mov_b64 exec, 1
          ds_add_u32 v59, v12 offset:{SY + 60}
          s_mov_b64 exec, -1
        K3_NOPUBL:
          v_mov_b32 v23, v63
          s_mov_b32 s89, 0""")
    stamp(a, 2)
    a("""
       K3_SLOT:""")
    lds_wait(a, "K3_SW", 2, SY, "v_cmp_eq_u32 vcc, 0, v2")
    a("""v_readfirstlane_b32 s51, v2
         s_sub_u32 s51, s51, 1
         s_lshr_b32 s50, s51, 6
         s_and_b32 s51, s51, 63
         s_cmp_ge_u32 s50, 8
         s_cbranch_scc1 K2_END""")
    tile_scalars(a, 50, 51, 55, 52, 53, 54, 30)
    a(f"""s_lshl_b32 s48, s50, 5
          s_add_u32 s48, s48, s51               ; chblk
          s_lshl_b32 s80, s48, 3
          s_load_dwordx2 s[86:87], s[14:15], s80
          s_lshl_b32 s49, s48, 14
          {"s_and_b32 s85, s48, 1" if OPT["x8"] else ""}
          {"s_mul_i32 s85, s85, 16376" if OPT["x8"] else ""}
          {"s_sub_u32 s49, s49, s85" if OPT["x8"] else ""}
          s_lshl_b32 s3, s53, 2
          s_add_u32 s3, s3, s52
          v_lshrrev_b32 v4, 3, v1
          v_mul_u32_u24 v4, 7168, v4
          v_and_b32 v5, 7, v1
          v_lshrrev_b32 v6, 3, v1
          v_and_b32 v6, 2, v6
          v_xor_b32 v5, v5, v6
          v_lshl_add_u32 v4, v5, 4, v4
          v_xor_b32 v5, 64, v4
          v_add_u32 v5, {8 * 7168}, v5
          s_lshl_b32 s55, s30, 12
          s_add_u32 s84, s54, {16 * 7168}
          v_and_b32 v7, 15, v1
          v_lshrrev_b32 v16, 4, v1
          v_lshlrev_b32 v98, 7, v7
          v_lshl_add_u32 v98, v16, 5, v98
          s_lshl_b32 s63, s30, 11
          v_add_u32 v98, s63, v98               ; t0*8""")
    if OPT["dbg"]:
        a("s_mov_b32 s2, s48")
    srd(a, 36, 20, 21, WBYTES)
    srd(a, 40, 22, 23, WBYTES)
    srd(a, 44, 24, 25, WBYTES)
    def bulk(rng):
        for i in rng:
            for mat in range(2):
                a(f"""s_add_u32 m0, s55, {F_W + mat * 32768 + i * 1024}
                      buffer_load_dwordx4 v{4 + i % 2}, s[{36+4*mat}:{39+4*mat}], s{54 if i < 2 else 84} offen {OPT['dma_flags']} lds""")
    def gather():
        a(f"""v_lshlrev_b32 v12, 8, v98
              v_add_u32 v12, s80, v12
              v_add_u32 v13, 4096, v12""")
        for q in range(4):
            a(f"global_load_dwordx2 v[{PX+2*q}:{PX+2*q+1}], v{12 + q//2}, s[16:17] offset:{2048*(q%2)} {OPT['gfl']}")
    def xloads():
        if OPT["gat"]: return
        if OPT["x8"]:
            for q in range(4):
                a(f"buffer_load_dwordx2 v[{PX+2*q}:{PX+2*q+1}], v2, s[32:35], s49 offen offset:{16*q} {OPT['xl']}")
            return
        a(f"""buffer_load_dwordx4 v[{PX}:{PX+3}], v98, s[32:35], s49 offen sc1
              buffer_load_dwordx4 v[{PX+4}:{PX+7}], v98, s[32:35], s49 offen offset:16 sc1""")
    WD = 80
    HF = OPT["half"]
    def wdown():
        for f in range(0, 16, 2):
            a(f"""buffer_load_dword v{WD+f}, v6, s[44:47], s57 offen nt
                  buffer_load_dword v{WD+f+1}, v6, s[44:47], s57 offen offset:2048 nt""")
            if HF:
                a(f"""buffer_load_dword v{64+f}, v6, s[44:47], s57 offen offset:1024 nt
                      buffer_load_dword v{65+f}, v6, s[44:47], s57 offen offset:3072 nt""")
            if f < 14:
                a("s_add_u32 s57, s57, 4096")
    a(f"""v_and_b32 v6, {255 if HF else 511}, v0
          v_lshrrev_b32 v21, 3, v6
          v_lshlrev_b32 v6, 2, v6
          s_lshl_b32 s57, s3, 15
          v_mov_b32 v22, 0
          v_lshlrev_b32 v19, 2, v1
          v_lshlrev_b32 v20, 4, v1
          v_mul_u32_u24 v21, {NF * 128}, v21
          v_and_b32 v17, 7, v0
          v_lshl_add_u32 v21, v17, 4, v21
          s_cmp_lg_u32 s30, 0
          s_cbranch_scc1 K3_NOCL
          s_cmp_lg_u32 s89, 0
          s_cbranch_scc1 K3_NOCL
          s_lshl_b32 s68, s50, 6
          s_add_u32 s68, s68, s51
          s_lshl_b32 s68, s68, 7
          s_add_u32 s68, s68, {WS_CLAIM:#x}
          s_mov_b64 exec, 1
          buffer_atomic_swap v23, v59, s[32:35], s68 offen sc0 sc1
          s_mov_b64 exec, -1
        K3_NOCL:
          """)
    lds_wait(a, "K3_PW", 12, SY + 60, "v_cmp_gt_u32 vcc, 9, v12")
    if OPT["gat"]: gather()
    late = OPT["gat"] and OPT["bpos"]
    a("""s_cmp_ge_u32 s51, 28
         s_cbranch_scc1 K3_NOBULK""")
    if not OPT["exp"] & 4 and not late: bulk(range(OPT["cb"], 4))
    if OPT["wdpos"] == 1: wdown()
    a(f"""K3_NOBULK:
          v_bfe_u32 v17, v1, 2, 2
          v_lshl_add_u32 v18, v16, 3, v17
          v_lshlrev_b32 v18, 7, v18
          v_lshrrev_b32 v17, 1, v17
          v_and_b32 v12, 1, v16
          v_lshl_or_b32 v17, v12, 1, v17
          s_and_b32 s59, s30, 3
          v_xor_b32 v17, s59, v17
          v_lshl_add_u32 v18, v17, 5, v18
          v_and_b32 v17, 3, v1
          v_lshl_add_u32 v18, v17, 3, v18
          s_lshr_b32 s60, s30, 2
          s_lshl_b32 s61, s60, 15
          s_add_u32 s61, s61, {F_W}
          v_add_u32 v18, s61, v18
          v_and_b32 v17, 1, v1
          v_lshlrev_b32 v17, 9, v17
          v_lshl_add_u32 v17, v16, 4, v17
          v_add_u32 v17, {F_XS}, v17
          s_lshl_b32 s61, s53, 13
          s_add_u32 s61, s61, {WS_EX2:#x}
          s_lshl_b32 s62, s59, 11
          s_add_u32 s62, s62, s61
          s_lshl_b32 s63, s52, 9
          s_add_u32 s62, s62, s63
          s_lshl_b32 s63, s60, 8
          s_add_u32 s62, s62, s63
          s_lshl_b32 s63, s52, 11
          s_add_u32 s61, s61, s63
          v_lshlrev_b32 v19, 3, v1
          s_lshl_b32 s53, s3, 7
          s_add_u32 s53, s53, {WS_PART:#x}
          s_mov_b32 s59, 0x05040100
          s_mov_b32 s60, 0x07060302
          v_cmp_gt_u32 s[82:83], 16, v1
          v_lshlrev_b32 v7, 2, v7
          v_lshl_add_u32 v7, v16, 9, v7
          s_lshl_b32 s63, s30, 6
          s_add_u32 s63, s63, {F_XS}
          v_add_u32 v7, s63, v7
          """)
    lds_wait(a, "K3_NW3", 3, SY + 56, "v_cmp_eq_u32 vcc, 0, v3", "v22")
    a(f"""v_lshlrev_b32 v2, 1, v98
          s_mov_b32 s63, {WS_FLAG:#x}
          s_mov_b32 s64, 0x40000
          s_waitcnt lgkmcnt(0)
        K3_FP:""")
    flav = OPT["gpoll"].split(",")
    for n, fl in enumerate(flav):
        for i in range(4):
            a(f"buffer_load_dwordx4 v[{32+4*i}:{35+4*i}], v2, s[32:35], s63 offen offset:{16*i} {fl}")
        a("s_waitcnt vmcnt(0)")
        a("v_xor_b32 v12, v33, v3")
        for r in range(35, 48, 2):
            a(f"""v_xor_b32 v13, v{r}, v3
                  v_or_b32 v12, v12, v13""")
        a(f"""v_cmp_ne_u32 vcc, 0, v12
              s_cbranch_vccz K3_FOK
              s_mov_b64 exec, vcc
              s_sleep {OPT['gsleep']}""")
    a("""s_sub_u32 s64, s64, 1
         s_cbranch_scc0 K3_FP
       K3_FOK:
         s_mov_b64 exec, -1
         s_cmp_lg_u32 s30, 0
         s_cbranch_scc1 K3_NOPUB
         s_cmp_lg_u32 s89, 0
         s_cbranch_scc1 K3_NOPUB
         s_mov_b64 exec, 1
         v_cmp_eq_u32 vcc, v23, v3
         v_cndmask_b32 v23, 1, 2, vcc
         ds_write_b32 v22, v23 offset:28
         s_mov_b64 exec, -1
       K3_NOPUB:
         v_max_u32 v24, v32, v36
         v_min_u32 v25, v32, v36
         v_max_u32 v26, v40, v44
         v_min_u32 v27, v40, v44
         v_mov_b32 v28, 0
         v_mov_b32 v29, 0
         v_mov_b32 v30, 0
         v_mov_b32 v31, 0""")
    top2(a, 24, 12, 64, 65, 68)
    a(f"""v_mov_b32 v24, s64
          v_mov_b32 v25, s65
          v_mov_b32 v26, 1
          s_lshl_b32 s63, s30, 3
          v_mov_b32 v27, s63
          s_mov_b64 exec, 1
          ds_write_b64 v27, v[24:25] offset:{SY + 128}
          ds_add_u32 v22, v26 offset:{SY + 4}
          s_mov_b64 exec, -1""")
    for q in range(4):
        st = ST + 2 * q
        a(f"""v_lshlrev_b32 v{st}, 16, v{34+4*q}
              v_and_b32 v12, s31, v{34+4*q}
              v_rcp_f32 v{st+1}, v12
              v_fma_f32 v13, -v12, v{st+1}, 1.0
              v_fmac_f32 v{st+1}, v13, v{st+1}""")
        if OPT["lean"]:
            a(f"v_mul_f32 v{st}, -v{st}, v{st+1}")
    if OPT["gat"]:
        if late:
            a("""s_cmp_ge_u32 s51, 28
                 s_cbranch_scc1 K3_NOB2""")
            bulk(range(OPT["cb"], 4))
            a("K3_NOB2:")
        stamp(a, 4, 3)
        normalize(a)
        stamp(a, 5, 3)
        a(f"""v_mov_b32 v24, 1
              s_mov_b64 exec, 1
              ds_add_u32 v22, v24 offset:{SY + 16}
              s_mov_b64 exec, -1""")
    lds_wait(a, "K3_GW", 24, SY + 4, "v_cmp_gt_u32 vcc, 8, v24", "v22")
    stamp(a, 3); stamp(a, 3, 3)
    a("""s_cmp_lg_u32 s81, 0
         s_cbranch_scc1 K3_NOZ
         v_mov_b32 v24, 128
         s_mov_b64 exec, 1
         global_store_dword v24, v22, s[18:19] sc1
         s_mov_b64 exec, -1
       K3_NOZ:""")
    xloads()
    for i in range(4):
        a(f"ds_read_b128 v[{32+4*i}:{35+4*i}], v22 offset:{SY + 128 + 16*i}")
    a(f"""ds_read_b32 v26, v22 offset:{SY + 28}
          s_waitcnt lgkmcnt(0)
          v_cmp_lt_u32 vcc, 1, v26
          s_cbranch_vccnz K2_RECOVER""")
    for d, x, y in ((32, 32, 34), (36, 36, 38), (40, 40, 42), (44, 44, 46), (32, 32, 36), (40, 40, 44), (24, 32, 40)):
        a(f"""v_min_u32 v12, v{x}, v{y}
              v_max_u32 v{d}, v{x}, v{y}
              v_max3_u32 v{d+1}, v12, v{x+1}, v{y+1}""")
    a(f"""ds_write_b64 v22, v[24:25] offset:{SY + 8}
          s_cmp_ge_u32 s51, 28
          s_cbranch_scc1 K3_NOXS
          v_cndmask_b32 v24, v25, v24, s[82:83]
          v_not_b32 v24, v24
          v_and_b32 v24, 0xffe, v24             ; row*2
          v_lshlrev_b32 v25, 10, v24
          v_and_b32 v26, 15, v1
          v_lshl_add_u32 v25, v26, 2, v25
          s_lshl_b32 s63, s52, 9
          s_lshl_b32 s64, s30, 6
          s_add_u32 s63, s63, s64
          v_add_u32 v25, s63, v25
          v_lshlrev_b32 v24, 3, v24
          s_mov_b32 s63, {WS_FLAG + 8:#x}
          global_load_dword v12, v25, s[16:17]
          buffer_load_dword v13, v24, s[32:35], s63 offen sc1""")
    if OPT["wdpos"] == 0: wdown()
    a(f"""s_waitcnt vmcnt({16 if OPT["wdpos"] == 0 else 0})
         v_lshlrev_b32 v10, 16, v13
         v_and_b32 v13, s31, v13
         v_rcp_f32 v11, v13
         v_fma_f32 v14, -v13, v11, 1.0
         v_fmac_f32 v11, v14, v11""")
    norm_pair(a, 24, 12, 10, 12, 31)
    a(f"""s_mov_b32 exec_hi, 0
          ds_write_b32 v7, v12
          s_mov_b32 exec_hi, -1
          v_mov_b32 v24, 1
          s_mov_b64 exec, 1
          ds_add_u32 v22, v24 offset:{SY + 24}
          s_mov_b64 exec, -1
          """)
    if OPT["gat"]:
        a("""s_branch K3_G
           K3_NOXS:""")
    else:
        a(f"""
          s_branch K3_NRM
        K3_NOXS:
          s_waitcnt vmcnt(0)
        K3_NRM:""")
        stamp(a, 4, 3)
        normalize(a)
        stamp(a, 5, 3)
        a(f"""v_mov_b32 v24, 1
          s_mov_b64 exec, 1
          ds_add_u32 v22, v24 offset:{SY + 16}
          s_mov_b64 exec, -1
          s_cmp_ge_u32 s51, 28
          s_cbranch_scc0 K3_G
          """)
    a(f"""
          s_branch K3_CWB
        K3_CW:
          s_sleep 1
        K3_CWB:
          ds_read_b32 v25, v22 offset:{SY + 28}
          s_waitcnt lgkmcnt(0)
          v_cmp_eq_u32 vcc, 0, v25
          s_cbranch_vccnz K3_CW
          v_cmp_ne_u32 vcc, 1, v25
          s_cbranch_vccnz K2_RECOVER
        K3_UDG:""")
    udg(a, 24)
    a(f"""s_branch K2_EPI
        K3_G:
          s_branch K2F_GWB
        K2F_GW:
          s_sleep 1
        K2F_GWB:
          ds_read_b64 v[24:25], v22 offset:{SY + 24}
          s_waitcnt lgkmcnt(0)
          v_cmp_lt_u32 vcc, 1, v25
          s_cbranch_vccnz K2_RECOVER
          v_cmp_eq_u32 vcc, 0, v25
          s_cbranch_vccnz K2F_GW
          v_cmp_gt_u32 vcc, 16, v24
          s_cbranch_vccnz K2F_GW
          s_setprio {OPT['fprio']}""")
    stamp(a, 3, 4)
    BF, AF = 32, 64
    P = Pipe(a, maxfly=15)
    for k in range(8):
        A = AF + 4 * (k % 4)
        P.load(f"ds_read_b128 v[{A}:{A+3}], v17 offset:{64*k}", k - 4 if k >= 4 else -1)
        P.load(f"ds_read_b64_tr_b16 v[{BF+4*k}:{BF+4*k+1}], v18 offset:{4096*k}")
        lid = P.load(f"ds_read_b64_tr_b16 v[{BF+4*k+2}:{BF+4*k+3}], v18 offset:{4096*k + 512}")
        d = 24 + 4 * (k % 2)
        c = "0" if k < 2 else f"v[{d}:{d+3}]"
        P.step(f"v_mfma_f32_16x16x32_bf16 v[{d}:{d+3}], v[{A}:{A+3}], v[{BF+4*k}:{BF+4*k+3}], {c}", [lid])
    P.run()
    a("""v_add_f32 v24, v24, v28
         v_add_f32 v25, v25, v29
         v_cndmask_b32 v24, v25, v24, s[82:83]
         v_mov_b32 v25, v3
         s_mov_b32 exec_hi, 0
         buffer_store_dwordx2 v[24:25], v19, s[32:35], s62 offen sc1
         s_mov_b32 exec_hi, -1""")
    stamp(a, 4, 4)
    if HF:
        a("""s_cmp_lt_u32 s30, 4
             s_cbranch_scc1 K3_UDG""")
    if OPT["wdpos"] == 2: wdown()
    if OPT["wdpos"] == 3:
        a("""s_cmp_eq_u32 s89, 0
             s_cbranch_scc1 K3_WDOK""")
        wdown()
        a("K3_WDOK:")
    if not OPT["upos"]:
        a(f"s_setprio {OPT['uprio']}")
        udg(a, 24, 32)
        a(f"s_setprio {OPT['fprio']}")
    def gemv2():
        P0, P1 = 64, 72
        a("""v_mov_b32 v24, 0
             v_mov_b32 v25, 0
             v_mov_b32 v26, 0
             v_mov_b32 v27, 0
             s_mov_b32 s63, 0x40000""")
        a("""v_lshlrev_b32 v23, 5, v1
           K2F_POLL:
             buffer_load_dwordx4 v[40:43], v23, s[32:35], s61 offen sc1
             buffer_load_dwordx4 v[44:47], v23, s[32:35], s61 offen offset:16 sc1
             s_waitcnt vmcnt(0)
             v_xor_b32 v36, v41, v3
             v_xor_b32 v37, v43, v3
             v_xor_b32 v38, v45, v3
             v_xor_b32 v39, v47, v3
             v_or3_b32 v36, v36, v37, v38
             v_or_b32 v36, v36, v39
             v_cmp_ne_u32 vcc, 0, v36
             """)
        a("s_branch K2F_GOT" if OPT["exp"] & 32 else "s_cbranch_vccz K2F_GOT")
        if OPT["esleep"]: a(f"s_sleep {OPT['esleep']}")
        a("""s_sub_u32 s63, s63, 1
             s_cbranch_scc0 K2F_POLL
           K2F_GOT:""")
        stamp(a, 4)
        a("""v_mov_b32 v32, v40
             v_mov_b32 v33, v42
             v_mov_b32 v34, v44
             v_mov_b32 v35, v46""")
        rows_allreduce(a, [32, 33, 34, 35], 36)
        a("""v_cvt_pk_bf16_f32 v32, v32, v33
             v_cvt_pk_bf16_f32 v33, v34, v35""")
        unpack(a, 40, 32, 31); unpack(a, 42, 33, 31)
        a("""v_mov_b32_dpp v34, v32 row_ror:8 row_mask:0xf bank_mask:0xf
             v_mov_b32_dpp v35, v33 row_ror:8 row_mask:0xf bank_mask:0xf""")
        for r in range(4):
            a(f"v_mul_f32 v{44+r}, s58, v{40+r}")
        for r in range(4):
            a(f"v_exp_f32 v{44+r}, -v{44+r}")
        unpack(a, 48, 34, 31); unpack(a, 50, 35, 31)
        for r in range(4):
            a(f"v_add_f32 v{44+r}, 1.0, v{44+r}")
        for r in range(4):
            a(f"v_rcp_f32 v{44+r}, v{44+r}")
        if not HF:
            for p in range(4):
                a(f"""v_perm_b32 v{P0+p}, v{WD+2*p+1}, v{WD+2*p}, s59
                      v_perm_b32 v{P1+p}, v{WD+2*p+1}, v{WD+2*p}, s60""")
        for r in range(4):
            a(f"v_mul_f32 v{44+r}, v{44+r}, v{40+r}")
        a("""v_cvt_pk_bf16_f32 v32, v44, v45
             v_cvt_pk_bf16_f32 v33, v46, v47""")
        unpack(a, 40, 32, 31); unpack(a, 42, 33, 31)
        for r in range(4):
            a(f"v_mul_f32 v{40+r}, v{40+r}, v{48+r}")
        a("""v_cvt_pk_bf16_f32 v32, v40, v41
             v_cvt_pk_bf16_f32 v33, v42, v43""")
        for l in range(8):
            a(f"""v_readlane_b32 s{64+2*l}, v32, {l}
                  v_readlane_b32 s{65+2*l}, v33, {l}""")
        if HF:
            a(f"""s_mov_b32 s84, 0x07060503
                  s_mov_b32 s85, 0x07060502
                  s_mov_b32 s63, 0x07060501
                  s_add_u32 s62, s53, {32 * NF * 128}""")
            for r in range(28, 32):
                a(f"v_mov_b32 v{r}, 0")
            for wd, ac, so in ((80, 24, 53), (64, 28, 62)):
                for p in range(8):
                    t = 48 + 2 * (p % 2)
                    a(f"""v_perm_b32 v{t}, v{wd+2*p+1}, v{wd+2*p}, s59
                          v_perm_b32 v{t+1}, v{wd+2*p+1}, v{wd+2*p}, s60
                          v_dot2c_f32_bf16 v{ac}, s{64+p}, v{t}
                          v_dot2c_f32_bf16 v{ac+1}, s{64+p}, v{t+1}
                          v_dot2c_f32_bf16 v{ac+2}, s{72+p}, v{t}
                          v_dot2c_f32_bf16 v{ac+3}, s{72+p}, v{t+1}""")
                a("s_nop 2")
                for r in range(4):
                    a(f"v_add_u32 v{ac+r}, 0x80, v{ac+r}")
                a(f"""v_perm_b32 v{ac}, v{ac}, v{ac+3}, s84
                      v_perm_b32 v{ac+1}, v{ac+1}, v{ac+3}, s85
                      v_perm_b32 v{ac+2}, v{ac+2}, v{ac+3}, s63
                      v_xor_b32 v{ac+3}, v{ac}, v{ac+1}
                      v_xor_b32 v{ac+3}, v{ac+3}, v{ac+2}
                      v_xor_b32 v{ac+3}, v{ac+3}, v3
                      buffer_store_dwordx4 v[{ac}:{ac+3}], v21, s[32:35], s{so} offen sc1""")
            return
        for p in range(4, 8):
            a(f"""v_perm_b32 v{P0+p}, v{WD+2*p+1}, v{WD+2*p}, s59
                  v_perm_b32 v{P1+p}, v{WD+2*p+1}, v{WD+2*p}, s60""")
        for p in range(8):
            a(f"""v_dot2c_f32_bf16 v24, s{64+p}, v{P0+p}
                  v_dot2c_f32_bf16 v25, s{64+p}, v{P1+p}
                  v_dot2c_f32_bf16 v26, s{72+p}, v{P0+p}
                  v_dot2c_f32_bf16 v27, s{72+p}, v{P1+p}""")
        a("""s_nop 2
             v_add_u32 v24, 0x80, v24
             v_add_u32 v25, 0x80, v25
             v_add_u32 v26, 0x80, v26
             v_add_u32 v27, 0x80, v27
             s_mov_b32 s64, 0x07060503
             s_mov_b32 s65, 0x07060502
             s_mov_b32 s66, 0x07060501
             v_perm_b32 v24, v24, v27, s64
             v_perm_b32 v25, v25, v27, s65
             v_perm_b32 v26, v26, v27, s66
             v_xor_b32 v27, v24, v25
             v_xor_b32 v27, v27, v26
             v_xor_b32 v27, v27, v3
             buffer_store_dwordx4 v[24:27], v21, s[32:35], s53 offen sc1""")
    stamp(a, 5, 4)
    gemv2()
    if OPT["upos"]:
        a(f"s_setprio {OPT['uprio']}")
        udg(a, 24)
        a(f"s_setprio {OPT['fprio']}")
    a("K2_EPI:")
    epilogue(a)
    a.raw(".p2align 6")
    a(f"""K3_C:
          v_lshlrev_b32 v6, 2, v1
          {"" if OPT["efirst"] else "ds_write_b32 v6, v59"}
          s_getreg_b32 s50, hwreg(HW_REG_XCC_ID)
          s_and_b32 s50, s50, 7
          s_lshl_b32 s51, s50, 7
          s_add_u32 s51, s51, {WS_CNT:#x}
          v_mov_b32 v5, 1
          v_mov_b32 v7, 128
          s_waitcnt lgkmcnt(0)
          s_mov_b32 s28, s42
          s_mov_b32 s29, s43""")
    srd(a, 32, 28, 29, WS_SIZE)
    a(f"""s_cmp_lg_u32 s30, 0
          s_cbranch_scc1 K3_NOTK
          s_mov_b64 exec, 1
          buffer_atomic_add v5, v59, s[32:35], s51 offen sc0
          s_mov_b64 exec, -1
        K3_NOTK:
          """)
    nonce = f"""s_cmp_lg_u32 s30, 2
          s_cbranch_scc1 K3_NONC
          s_cmp_lg_u32 s2, 0
          s_cbranch_scc1 K3_NONC
          s_memrealtime s[60:61]
          s_waitcnt lgkmcnt(0)
          s_or_b32 s60, s60, 1
          v_mov_b32 v8, s60
          s_mov_b64 exec, 1
          global_store_dword v7, v8, s[40:41] sc1
          s_mov_b64 exec, -1
        K3_NONC:"""
    if not OPT["efirst"]: a(nonce)
    a(f"""
          s_barrier
          s_cmp_lg_u32 s30, 0
          s_cbranch_scc1 K3_NOT0
          s_lshl_b32 s50, s50, 6
          s_waitcnt vmcnt(0)
          v_readfirstlane_b32 s51, v5
          {"s_lshr_b32 s51, s51, 1" if OPT["badhint"] else ""}
          s_and_b32 s51, s51, 31
          s_add_u32 s50, s50, s51
          s_add_u32 s50, s50, 1
          v_mov_b32 v5, s50
          ds_write_b32 v59, v5 offset:{SY}
        K3_NOT0:
          s_cmp_lt_u32 s30, 3
          s_cbranch_scc1 K3_NOBAND
          s_sub_u32 s30, s30, 3
          s_lshl_b32 s70, s30, 2
          s_lshr_b32 s71, 0xabcda, s70
          s_and_b32 s71, s71, 15
          s_lshr_b32 s72, 0x66824, s70
          s_and_b32 s72, s72, 15
          v_lshrrev_b32 v4, 4, v1
          v_lshlrev_b32 v4, 3, v4
          v_and_b32 v5, 15, v1
          v_sub_u32 v4, v5, v4
          v_add_u32 v4, s71, v4
          v_mov_b32 v60, 0x3c00
          v_mov_b32 v61, 0x3c000000""")
    for jj in range(8):
        a(f"""v_subrev_u32 v5, {jj}, v4
              v_cmp_ge_u32 s[{74+2*jj}:{75+2*jj}], s72, v5""")
    for i in range(4):
        a(f"""v_cndmask_b32 v{64+i}, 0, v60, s[{74+4*i}:{75+4*i}]
              v_cndmask_b32 v5, 0, v61, s[{76+4*i}:{77+4*i}]
              v_or_b32 v{64+i}, v{64+i}, v5""")
    a(f"""s_lshl_b32 s70, s30, 10
          v_lshl_add_u32 v4, v1, 4, s70
          ds_write_b128 v4, v[64:67] offset:{BAND}
          s_add_u32 s30, s30, 3
          s_mov_b32 s88, s30
        K3_NOBAND:
        K3_CSLOT:
          v_mov_b32 v59, 0""")
    lds_wait(a, "K3_CSW", 2, SY, "v_cmp_eq_u32 vcc, 0, v2")
    a("""v_readfirstlane_b32 s51, v2
         s_sub_u32 s51, s51, 1
         s_lshr_b32 s50, s51, 6
         s_and_b32 s51, s51, 63
         s_cmp_ge_u32 s50, 8
         s_cbranch_scc1 K2_END
         s_lshl_b32 s3, s50, 5
         s_add_u32 s3, s3, s51""")
    if OPT["dbg"]:
        a("s_mov_b32 s2, s3")
    stamp(a, 1)
    kgen_loads(a)
    CB = OPT["cb"]
    if CB:
        tile_scalars(a, 50, 51, 61, 62, 63, 66, 30)
        srd(a, 36, 20, 21, WBYTES)
        srd(a, 40, 22, 23, WBYTES)
        a(f"""v_lshrrev_b32 v16, 3, v1
              v_mul_u32_u24 v16, 7168, v16
              v_and_b32 v17, 7, v1
              v_lshrrev_b32 v18, 3, v1
              v_and_b32 v18, 2, v18
              v_xor_b32 v17, v17, v18
              v_lshl_add_u32 v16, v17, 4, v16
              v_xor_b32 v17, 64, v16
              v_add_u32 v17, {8 * 7168}, v17
              s_lshl_b32 s61, s30, 12
              s_add_u32 s67, s66, {16 * 7168}
              s_cmp_ge_u32 s51, 28
              s_cbranch_scc1 K3_CNOB""")
        for i in range(CB):
            for mat in range(2):
                a(f"""s_add_u32 m0, s61, {F_W + mat * 32768 + i * 1024}
                      buffer_load_dwordx4 v{16 + i % 2}, s[{36+4*mat}:{39+4*mat}], s{66 if i < 2 else 67} offen {OPT['dma_flags']} lds""")
        a("""s_branch K3_CB
           K3_CNOB:
             s_waitcnt vmcnt(0)
           K3_CB:""")
    a(f"""s_lshl_b32 s57, s3, 3
          s_load_dwordx2 s[64:65], s[14:15], s57
          v_and_b32 v96, 15, v1
          v_lshrrev_b32 v97, 4, v1
          s_lshl_b32 s59, s3, 14
          {"s_and_b32 s60, s3, 1" if OPT["x8"] else ""}
          {"s_mul_i32 s60, s60, 16376" if OPT["x8"] else ""}
          {"s_sub_u32 s59, s59, s60" if OPT["x8"] else ""}
          s_mov_b32 s60, {WS_FLAG + 8:#x}
          v_lshlrev_b32 v95, 4, v1
          v_mov_b32 v12, 0
          v_mov_b32 v13, 0
          v_mov_b32 v14, 0
          v_mov_b32 v15, 0
          s_mul_i32 s66, s52, {UROW}
          s_add_u32 s66, s66, {UA}
          v_add_u32 v11, s66, v95
          s_mov_b32 exec_hi, 3
          ds_write_b128 v11, v[12:15]
          s_mov_b32 exec_hi, -1
          """)
    srd(a, 36, 26, 27, 0x400000)
    kgen_setup(a)
    a(f"s_waitcnt vmcnt({2 * CB})")
    stamp(a, 2)
    kgen_main(a)
    a(f"""v_mov_b32 v2, 0
          v_mov_b32 v3, 1
          s_waitcnt vmcnt(0)
          s_mov_b64 exec, 1
          ds_add_u32 v2, v3 offset:{SY + 24}
          s_mov_b64 exec, -1""")
    a("""s_cmp_eq_u32 s53, 0
         s_cbranch_scc0 K2_FAR""")
    near_table(a, "K2")
    a(FRAG_ADDR())
    a(f"s_setprio {OPT['nprio']}")
    conv_sync(a, "K2_W1N")
    near(a)
    flush(a)
    a.raw(".p2align 6")
    a("K2_FAR:")
    far_table(a, "K2")
    a("v_readlane_b32 s71, v89, 0")
    a(FRAG_ADDR())
    a(f"s_setprio {OPT['prio']}")
    conv_sync(a, "K2_W1F")
    far(a)
    fixup(a)
    a("K2_CDONE:")
    flush(a)
    a(f"""K2_RECOVER:
          s_setprio 0
          s_waitcnt vmcnt(0) lgkmcnt(0)
          s_mov_b32 s89, 1
          v_mov_b32 v59, 0
          s_waitcnt lgkmcnt(0)
          s_barrier
          s_cmp_lg_u32 s88, 0
          s_cbranch_scc1 K3_RB""")
    lds_wait(a, "K3_RN", 3, SY + 56, "v_cmp_eq_u32 vcc, 0, v3")
    a(f"""s_mov_b32 s50, 512
        K2_SCAN:
          s_sub_u32 s50, s50, 1
          s_cbranch_scc1 K2_NOSLOT
          s_and_b32 s51, s50, 63
          s_cmp_ge_u32 s51, 32
          s_cbranch_scc1 K2_SCAN
          s_lshl_b32 s51, s50, 7
          s_add_u32 s51, s51, {WS_CLAIM:#x}
          v_mov_b32 v4, v3
          s_mov_b64 exec, 1
          buffer_atomic_swap v4, v59, s[32:35], s51 offen sc0 sc1
          s_waitcnt vmcnt(0)
          v_cmp_eq_u32 vcc, v3, v4
          s_mov_b64 exec, -1
          s_cbranch_vccnz K2_SCAN
          s_branch K2_SCAN_END
        K2_NOSLOT:
          s_mov_b32 s50, 0x4000
        K2_SCAN_END:
          s_add_u32 s50, s50, 1
          v_mov_b32 v5, s50
          v_mov_b32 v6, 1
          v_lshlrev_b32 v7, 2, v1
          ds_write_b32 v59, v5 offset:{SY}
          ds_write_b32 v59, v59 offset:{SY + 4}
          ds_write_b32 v59, v59 offset:{SY + 16}
          ds_write_b32 v59, v59 offset:{SY + 24}
          ds_write_b32 v59, v6 offset:{SY + 28}
          s_mov_b64 exec, 0xff
          ds_write_b32 v7, v59 offset:{SY + 64}
          s_mov_b64 exec, -1
          s_waitcnt lgkmcnt(0)
        K3_RB:
          s_barrier
          s_cmp_ge_u32 s88, 8
          s_cbranch_scc1 K3_SLOT
          s_branch K3_CSLOT
        K2_END:
          s_endpgm""")
    return a.finish(), desc(name, 128, 102 if OPT["dbg"] else 96)

def main(path, kernels):
    hdr = open("recurrent_scan__ssm_conv_s4d__moe_arch_mod__prompt.s.ref").read().split("\n")
    out = [l for l in hdr if l.startswith(";") and "@launch" not in l and "Override launch" not in l and "grid=ceil" not in l]
    for name, fn, grid, block, lds in kernels:
        out.append(f"; @launch {'' if len(kernels) == 1 else 'kernel=' + name + ' '}grid=({grid},1,1) block=({block},1,1) lds={lds}")
    out.append('.amdgcn_target "amdgcn-amd-amdhsa--gfx950"\n.text')
    body, descs = [], []
    for name, fn, grid, block, lds in kernels:
        b, d = fn()
        body.append(b); descs.append(d)
    out += body
    out.append('.section .rodata,"a"')
    out += descs
    open(path, "w").write("\n".join(out))

if __name__ == "__main__":
    for kv in sys.argv[2:]:
        k, v = kv.split("=")
        assert k in OPT, k
        OPT[k] = int(v) if v.lstrip("-").isdigit() else v.replace("+", " ")
    if OPT["single"]:
        main(sys.argv[1], [("recurrent_scan__ssm_conv_s4d__moe_arch_mod__prompt_kernel", k3, 256, 1024, K2_LDS)])
        sys.exit(0)
    main(sys.argv[1] if len(sys.argv) > 1 else "k.s",
         [("k1_kernel", k1f, 256, 1024, F_XS) if OPT["kin"] == 1 else ("k1_kernel", k1, 256, 1024, K1_LDS), ("k2_kernel", k2, 256, 1024, K2_LDS)])
```

```python
import sys, os
sys.path.insert(0, os.path.dirname(os.path.abspath(__file__)))
from asmlib import Asm

NF = 224
WBYTES = 1024 * 3584 * 2
WS_XT    = 0x000000
WS_STATS = 0x400000
WS_KEYS  = 0x404000
WS_BAND  = 0x408000
WS_CNT   = 0x410000
WS_CLAIM = 0x420000
WS_PART  = 0x500000
WS_EX    = WS_PART + 64 * NF * 128
WS_FLAG  = 0x430000
WS_EX2   = 0x440000
WS_STAMP = 0x700000
WS_CAND  = 0x800000
WS_REC   = 0x40c000
WS_TBL   = 0x900000
WS_SIZE  = 0xd00000

OPT = dict(dbg=0, xt_flags="sc1", sent_flags="sc1", dma_flags="nt", ld_flags="nt",
           pf=0, pfd=0, prio=1, skip=0, wd_early=2, badhint=0, dry=0, grp=0, fprio=3, kin=2, tbl_flags="sc1", rep=0, k1spin=0, k2spin=0, ppf=0, xfirst=1, epi_first=0, bsplit=2, single=1, b1=1, exp=0, cb=1, wdpos=2, eprio=3, lean=0, nprio=0, uprio=3, gpoll="sc0,sc1", gsleep=2, p1="sc1", e1="sc1", tagp=1, pre=1, upos=0, esleep=0, psleep=0, x8=0, xl="sc1", half=0, gat=0, gfl="", bpos=1, efirst=1, ipf=0)

L2E_HI, L2E_LO, LN2 = 0x3fb8aa3b, 0x32a57060, 0x3f317218
I2PI_LO = 0x31dc9c88
SY = 0
UA, UROW, UPAD = 768, 4640, 272
TB = UA + 4 * UROW
DELTA = 1986
R2B, R3B = 1120, 1632
BAND = TB + 16384
KG = BAND + 5120
KGC = 8704
F_XS = KG + 4 * KGC
F_W = F_XS + 1024
XR = F_W + 65536
XRS = 2064
XW = XR + 8 * XRS
K2_LDS = XW + 2048
K1_LDS = 256

def stamp(a, i, group=0):
    if OPT["dbg"] and (group == OPT["grp"] or i <= 2 and group == 0):
        a(("s_memtime" if OPT["dbg"] == 2 else "s_memrealtime") + f" s[{90+2*i}:{91+2*i}]")

def stamp_flush(a, kern, srd_, wave_s, add=0):
    if OPT["rep"]:
        if OPT["single"]:
            report(a, [(i, i + (8 if add else 0)) for i in range(6)], 0)
            return
        sl = {(0, 0): [(0, 0), (2, 1), (5, 2)], (0, 256): [(5, 3)], (1, 0): [(i, 4 + i) for i in range(6)],
              (1, 256): [(i, 9 + i) for i in range(1, 6)]}[kern, add]
        report(a, sl, 512 * (1 - kern))
        return
    if OPT["dbg"]:
        a(f"""s_mov_b64 exec, 1
              s_add_u32 s88, s2, {add}
              s_lshl_b32 s88, s88, 3
              s_add_u32 s88, s88, s{wave_s}
              s_lshl_b32 s88, s88, 5
              s_add_u32 s88, s88, {WS_STAMP + kern * 0x40000:#x}
              v_mov_b32 v2, 0
              s_getreg_b32 s87, hwreg(HW_REG_XCC_ID)
              s_waitcnt lgkmcnt(0)""")
        for i in range(6):
            a(f"v_mov_b32 v{4+i}, s{90+2*i}")
        a(f"""v_mov_b32 v10, s87
              s_getreg_b32 s87, hwreg(HW_REG_HW_ID)
              v_mov_b32 v11, s87
              buffer_store_dwordx4 v[4:7], v2, s[{srd_}:{srd_+3}], s88 offen
              buffer_store_dwordx4 v[8:11], v2, s[{srd_}:{srd_+3}], s88 offen offset:16""")

REPN = [0]
def report(a, slots, back):
    REPN[0] += 1
    a(f"""s_and_b32 s88, s2, 31
          s_cmp_lg_u32 s88, 5
          s_cbranch_scc1 REP_{REPN[0]}
          s_and_b32 s88, s30, 3
          s_cmp_lg_u32 s88, 0
          s_cbranch_scc1 REP_{REPN[0]}
          s_load_dwordx2 s[86:87], s[0:1], 104
          s_mov_b64 exec, 1
          s_waitcnt vmcnt(0) lgkmcnt(0)
          s_add_u32 s86, s86, {back}
          s_addc_u32 s87, s87, 0""")
    for i, slot in slots:
        a(f"""v_mov_b32 v2, {4*slot}
              v_mov_b32 v3, s{90+2*i}""")
        if slot in (0, 8): a("v_not_b32 v3, v3")
        a("global_atomic_umax v2, v3, s[86:87] sc1")
    a(f"REP_{REPN[0]}:")

def srd(a, d, lo, hi, size):
    a(f"""s_mov_b32 s{d}, s{lo}
          s_mov_b32 s{d+1}, s{hi}
          s_mov_b32 s{d+2}, {size:#x}
          s_mov_b32 s{d+3}, 0x00020000""")

def wave_reduce(a, op, regs):
    for mod in ("quad_perm:[1,0,3,2] row_mask:0xf", "quad_perm:[2,3,0,1] row_mask:0xf", "row_half_mirror row_mask:0xf",
                "row_mirror row_mask:0xf", "row_bcast:15 row_mask:0xa", "row_bcast:31 row_mask:0xc"):
        for r in regs:
            a(f"{op}_dpp v{r}, v{r}, v{r} {mod} bank_mask:0xf")

def rows_allreduce(a, regs, tmp):
    for sw in ("v_permlane16_swap_b32", "v_permlane32_swap_b32"):
        for i, r in enumerate(regs):
            a(f"v_mov_b32 v{tmp+i}, v{r}")
        for i, r in enumerate(regs):
            a(f"{sw} v{tmp+i}, v{r}")
        for i, r in enumerate(regs):
            a(f"v_add_f32 v{r}, v{r}, v{tmp+i}")

def desc(name, vgpr, sgpr):
    return f""".p2align 6
.amdhsa_kernel {name}
  .amdhsa_next_free_vgpr {vgpr}
  .amdhsa_next_free_sgpr {sgpr}
  .amdhsa_accum_offset {(vgpr + 3) // 4 * 4}
  .amdhsa_group_segment_fixed_size 0
  .amdhsa_kernarg_size 120
  .amdhsa_user_sgpr_count 2
  .amdhsa_user_sgpr_kernarg_segment_ptr 1
  .amdhsa_system_sgpr_workgroup_id_x 1
.end_amdhsa_kernel
"""

def top2(a, kv, t, sK0, sK1, sT):
    def merge(d, x, y):
        a(f"""v_min_u32 v{t}, v{x}, v{y}
              v_max_u32 v{d}, v{x}, v{y}
              v_max3_u32 v{d+1}, v{t}, v{x+1}, v{y+1}""")
    merge(kv, kv, kv + 2); merge(kv + 4, kv + 4, kv + 6); merge(kv, kv, kv + 4)
    for mod in ("quad_perm:[1,0,3,2]", "quad_perm:[2,3,0,1]", "row_half_mirror", "row_mirror"):
        a(f"""v_min_u32_dpp v{t}, v{kv}, v{kv} {mod} row_mask:0xf bank_mask:0xf
              v_max_u32_dpp v{kv+1}, v{kv+1}, v{kv+1} {mod} row_mask:0xf bank_mask:0xf
              v_max_u32_dpp v{kv}, v{kv}, v{kv} {mod} row_mask:0xf bank_mask:0xf
              v_max_u32 v{kv+1}, v{kv+1}, v{t}""")
    for r in range(4):
        a(f"v_readlane_b32 s{sT+2*r}, v{kv}, {16*r}")
    for r in range(4):
        a(f"v_readlane_b32 s{sT+2*r+1}, v{kv+1}, {16*r}")
    def smerge(d0, d1, x, y):
        a(f"""s_max_u32 s{x+1}, s{x+1}, s{y+1}
              s_min_u32 s{y+1}, s{x}, s{y}
              s_max_u32 s{d0}, s{x}, s{y}
              s_max_u32 s{d1}, s{x+1}, s{y+1}""")
    smerge(sT, sT + 1, sT, sT + 2); smerge(sT + 4, sT + 5, sT + 4, sT + 6); smerge(sK0, sK1, sT, sT + 4)

def exp_acc(a, d, x, t0, t1, sL2E, sL2ELO, sLN2):
    a(f"""v_mul_f32 v{t0}, s{sL2E}, v{x}
          v_fma_f32 v{t1}, v{x}, s{sL2E}, -v{t0}
          v_exp_f32 v{d}, v{t0}
          v_fmac_f32 v{t1}, s{sL2ELO}, v{x}
          v_mul_f32 v{t1}, s{sLN2}, v{t1}
          v_fmac_f32 v{d}, v{d}, v{t1}""")

def rbf(a, *regs):
    for r in regs:
        a(f"v_cvt_pk_bf16_f32 v{r}, v{r}, v{r}")
    for r in regs:
        a(f"v_lshlrev_b32 v{r}, 16, v{r}")

def unpack(a, d, s, sM):
    a(f"""v_lshlrev_b32 v{d}, 16, v{s}
          v_and_b32 v{d+1}, s{sM}, v{s}""")

def norm_pair(a, r, src, st, t, sM, keep_packed=None):
    unpack(a, r, src, sM)
    a(f"""v_pk_add_f32 v[{r}:{r+1}], v[{r}:{r+1}], v[{st}:{st+1}] op_sel_hi:[1,0] neg_lo:[0,1] neg_hi:[0,1]
          v_cvt_pk_bf16_f32 v{t}, v{r}, v{r+1}""")
    unpack(a, r, t, sM)
    a(f"""v_pk_mul_f32 v[{r}:{r+1}], v[{st}:{st+1}], v[{r}:{r+1}] op_sel:[1,0]
          v_cvt_pk_bf16_f32 v{t}, v{r}, v{r+1}""")

def cmul(a, d, x, y):
    a(f"""v_pk_mul_f32 v[{d}:{d+1}], v[{x}:{x+1}], v[{y}:{y+1}] op_sel:[1,0] op_sel_hi:[1,1]
          v_pk_fma_f32 v[{d}:{d+1}], v[{y}:{y+1}], v[{x}:{x+1}], v[{d}:{d+1}] op_sel:[1,0,0] op_sel_hi:[0,0,1] neg_hi:[1,0,0]""")

class Pipe:
    def __init__(self, a, maxfly=12):
        self.a = a; self.loads = []; self.steps = []; self.maxfly = maxfly
    def load(self, text, gate=-1):
        self.loads.append((text, gate)); return len(self.loads) - 1
    def step(self, text, need=()):
        self.steps.append((text, list(need))); return len(self.steps) - 1
    def last(self):
        return len(self.steps) - 1
    def run(self):
        a = self.a; issued = done = 0
        for i, (text, need) in enumerate(self.steps):
            while issued < len(self.loads) and self.loads[issued][1] < i and issued - done < self.maxfly:
                a(self.loads[issued][0]); issued += 1
            if need:
                lid = max(need)
                while issued <= lid:
                    assert self.loads[issued][1] < i, "load gated behind its own consumer"
                    if issued - done >= 15:
                        a("s_waitcnt lgkmcnt(8)"); done = issued - 8
                    a(self.loads[issued][0]); issued += 1
                if done <= lid:
                    a(f"s_waitcnt lgkmcnt({issued - lid - 1})"); done = lid + 1
            a(text)
        assert issued == len(self.loads)

def tile_scalars(a, sx, sq, st, srg, scb, sbase, wave):
    a(f"""s_mul_i32 s{srg}, s{sq}, 37
          s_lshr_b32 s{srg}, s{srg}, 8
          s_mul_i32 s{scb}, s{srg}, 7
          s_sub_u32 s{scb}, s{sq}, s{scb}
          s_mul_i32 s{st}, s{sx}, 7
          s_add_u32 s{scb}, s{scb}, s{st}
          s_lshl_b32 s{sbase}, s{srg}, 3
          s_add_u32 s{sbase}, s{sbase}, s{wave}
          s_mul_i32 s{sbase}, s{sbase}, {32 * 7168}
          s_lshl_b32 s{st}, s{scb}, 7
          s_add_u32 s{sbase}, s{sbase}, s{st}""")

DRY_ENTRIES = [("K2_D0", 0), ("K2_FFN", 1), ("K2_D1", 8), ("K2_D2", 0), ("K2F_NORM", 1), ("K2_D4", 0), ("K2_FAR", 4), ("K2_EPI", 1)]

def k1():
    a = Asm()
    a.raw(".p2align 8\n.globl k1_kernel\n.type k1_kernel,@function\nk1_kernel:")
    a("""s_cmp_ge_u32 s2, 256
         s_cbranch_scc1 K1_END""")
    stamp(a, 0)
    a(f"""s_load_dwordx2 s[4:5], s[0:1], 0
          s_load_dwordx8 s[40:47], s[0:1], 64
          s_load_dwordx4 s[24:27], s[0:1], 104
          v_lshrrev_b32 v2, 6, v0
          v_and_b32 v1, 63, v0
          s_mov_b32 s31, 0xffff0000
          v_readfirstlane_b32 s30, v2
          v_lshlrev_b32 v3, 4, v1
          v_mov_b32 v59, 0
          s_cmp_ge_u32 s30, 8
          s_cbranch_scc1 K1_AUX
          v_lshrrev_b32 v6, 2, v0
          v_and_b32 v7, 3, v0
          v_lshlrev_b32 v4, 3, v6
          v_lshl_add_u32 v4, v7, 12, v4
          v_lshlrev_b32 v5, 14, v6
          v_lshl_add_u32 v5, v7, 4, v5
          s_lshl_b32 s60, s2, 3
          s_add_u32 s60, s60, s30               ; row
          s_lshl_b32 s61, s60, 11
          s_lshl_b32 s62, s2, 14
          s_lshl_b32 s63, s2, 6
          s_add_u32 s64, s63, 0x200000
          s_mov_b32 s65, 0x3f803f80
          v_mov_b32 v30, 0x3a800000
          s_waitcnt lgkmcnt(0)""")
    stamp(a, 1)
    srd(a, 16, 4, 5, 0x400000)
    a("""buffer_load_dwordx4 v[8:11], v3, s[16:19], s61 offen nt
         buffer_load_dwordx4 v[12:15], v3, s[16:19], s61 offen offset:1024 nt""")
    srd(a, 20, 40, 41, 2048)
    a("""buffer_load_dwordx4 v[16:19], v3, s[20:23], 0 offen
         buffer_load_dwordx4 v[20:23], v3, s[20:23], 0 offen offset:1024
         buffer_load_dwordx2 v[48:49], v4, s[16:19], s62 offen nt
         buffer_load_dwordx2 v[50:51], v4, s[16:19], s62 offen offset:2048 nt
         buffer_load_dwordx2 v[52:53], v4, s[16:19], s62 offen offset:1024 nt
         buffer_load_dwordx2 v[54:55], v4, s[16:19], s62 offen offset:3072 nt
         s_mov_b32 s28, s26
         s_mov_b32 s29, s27""")
    srd(a, 24, 28, 29, WS_SIZE)
    F = 32
    a("""v_mov_b32 v56, 0
         v_mov_b32 v57, 0
         v_mov_b32 v58, 0
         s_barrier
         s_waitcnt vmcnt(6)""")
    stamp(a, 2)
    for i in range(8):
        unpack(a, F + 2*i, 8 + i, 31)
        a(f"v_dot2c_f32_bf16 v56, s65, v{8+i}")
    a("s_waitcnt vmcnt(4)")
    for i in range(8):
        a(f"""v_dot2c_f32_bf16 v57, v{8+i}, v{16+i}
              v_dot2c_f32_bf16 v58, s65, v{16+i}""")
    a("s_nop 2")
    wave_reduce(a, "v_add_f32", [56, 57, 58])
    a("""v_readlane_b32 s66, v56, 63
         v_mul_f32 v62, s66, v30
         v_cvt_pk_bf16_f32 v60, v62, v62
         v_lshlrev_b32 v60, 16, v60""")
    for i in range(8):
        a(f"v_pk_add_f32 v[{F+2*i}:{F+2*i+1}], v[{F+2*i}:{F+2*i+1}], v[62:63] op_sel_hi:[1,0] neg_lo:[0,1] neg_hi:[0,1]")
    a(f"""v_pk_mul_f32 v[16:17], v[{F}:{F+1}], v[{F}:{F+1}]
          v_pk_mul_f32 v[18:19], v[{F+2}:{F+3}], v[{F+2}:{F+3}]""")
    for i in range(2, 8):
        d = 16 + 2 * (i % 2)
        a(f"v_pk_fma_f32 v[{d}:{d+1}], v[{F+2*i}:{F+2*i+1}], v[{F+2*i}:{F+2*i+1}], v[{d}:{d+1}]")
    a("""v_pk_add_f32 v[16:17], v[16:17], v[18:19]
         v_fma_f32 v57, -v60, v58, v57
         v_add_f32 v56, v16, v17""")
    wave_reduce(a, "v_add_f32", [56])
    a("v_mul_f32 v58, v56, v30")
    rbf(a, 58)
    a("v_add_f32 v58, 0x3727c5ac, v58")
    rbf(a, 58)
    a("v_sqrt_f32 v58, v58")
    rbf(a, 58)
    a(f"""v_rcp_f32 v61, v58
          s_lshl_b32 s15, s60, 3
          s_add_u32 s15, s15, {WS_STATS:#x}
          v_fma_f32 v56, -v58, v61, 1.0
          v_fmac_f32 v61, v56, v61
          s_sub_u32 s14, 2047, s60
          s_lshl_b32 s14, s14, 1
          v_mul_f32 v56, v57, v61""")
    rbf(a, 56)
    a(f"""v_ashrrev_i32 v57, 31, v56
          v_or_b32 v57, 0x80000000, v57
          v_xor_b32 v56, v56, v57
          v_and_b32 v56, s31, v56
          v_or_b32 v56, s14, v56
          s_lshl_b32 s14, s30, 2
          v_mov_b32 v57, s14
          v_mov_b32 v58, 1
          s_mov_b32 exec_lo, 0
          s_mov_b32 exec_hi, 0x80000000
          ds_write_b32 v57, v56
          ds_add_u32 v59, v58 offset:32
          buffer_store_dwordx2 v[60:61], v59, s[24:27], s15 offen
          s_mov_b64 exec, -1
          v_readlane_b32 s66, v56, 63
          v_readlane_b32 s68, v61, 63
          s_waitcnt vmcnt(1)
          buffer_store_dwordx4 v[48:51], v5, s[24:27], s63 offen {OPT['xt_flags']}
          buffer_store_dwordx4 v[52:55], v5, s[24:27], s64 offen {OPT['xt_flags']}""")
    stamp(a, 3)
    a(f"""s_branch K1_KWB
        K1_KW:
          s_sleep 1
        K1_KWB:
          ds_read_b32 v58, v59 offset:32
          ds_read_b128 v[32:35], v59
          ds_read_b128 v[36:39], v59 offset:16
          s_waitcnt lgkmcnt(0)
          v_cmp_gt_u32 vcc, 8, v58
          s_cbranch_vccnz K1_KW""")
    for i in range(4):
        a(f"""v_max_u32 v{40+2*i}, v{32+2*i}, v{33+2*i}
              v_min_u32 v{41+2*i}, v{32+2*i}, v{33+2*i}""")
    for d, x, y in ((40, 40, 42), (44, 44, 46), (40, 40, 44)):
        a(f"""v_min_u32 v31, v{x}, v{y}
              v_max_u32 v{d}, v{x}, v{y}
              v_max3_u32 v{d+1}, v31, v{x+1}, v{y+1}""")
    a(f"""v_readfirstlane_b32 s70, v40
          v_readfirstlane_b32 s71, v41
          v_mov_b32 v61, s68
          s_lshl_b32 s72, s2, 12
          s_add_u32 s72, s72, {WS_CAND:#x}
          s_cmp_eq_u32 s66, s71
          s_cselect_b32 s73, 2048, 0
          s_cbranch_scc1 K1_CAND
          s_cmp_lg_u32 s66, s70
          s_cbranch_scc1 K1_NOCAND
          s_lshl_b32 s15, s2, 3
          s_add_u32 s15, s15, {WS_KEYS:#x}
          v_or_b32 v41, 1, v41
          s_mov_b64 exec, 1
          buffer_store_dwordx2 v[40:41], v59, s[24:27], s15 offen
          s_mov_b64 exec, -1
        K1_CAND:
          s_add_u32 s73, s73, s72""")
    for i in range(8):
        norm_pair(a, F + 2*(i % 2), 8 + i, 60, 8 + i, 31)
    a("""buffer_store_dwordx4 v[8:11], v3, s[24:27], s73 offen sc1
         buffer_store_dwordx4 v[12:15], v3, s[24:27], s73 offen offset:1024 sc1
       K1_NOCAND:""")
    stamp(a, 4)
    if OPT["dbg"]:
        a("s_waitcnt vmcnt(0)")
        stamp(a, 5)
        stamp_flush(a, 0, 24, 30)
    a("""K1_END:
         s_endpgm""")
    a.raw(".p2align 6")
    a("K1_AUX:")
    if OPT["k1spin"]:
        a(f"""s_memrealtime s[90:91]
              s_waitcnt lgkmcnt(0)
              s_add_u32 s90, s90, {OPT['k1spin']}""")
    a(f"""
          v_lshlrev_b32 v7, 2, v1
          ds_write_b32 v7, v59
          s_getreg_b32 s50, hwreg(HW_REG_XCC_ID)
          s_and_b32 s50, s50, 7
          s_sub_u32 s30, s30, 8
          v_lshrrev_b32 v6, 3, v1
          v_mul_u32_u24 v6, 7168, v6
          v_and_b32 v7, 7, v1
          v_lshl_add_u32 v6, v7, 4, v6
          v_and_b32 v0, 511, v0
          v_lshlrev_b32 v7, 4, v0
          v_mov_b32 v8, -1
          v_mov_b32 v9, -1
          v_mov_b32 v10, -1
          v_mov_b32 v11, -1
          v_mov_b32 v12, 0
          v_mov_b32 v13, 0
          v_mov_b32 v14, 0
          v_mov_b32 v15, 0
          s_lshl_b32 s59, s2, 13
          s_add_u32 s59, s59, {WS_PART:#x}
          s_lshl_b32 s60, s2, 8
          s_add_u32 s60, s60, {WS_CLAIM:#x}
          s_waitcnt lgkmcnt(0)
          s_mov_b32 s28, s26
          s_mov_b32 s29, s27""")
    stamp(a, 1)
    srd(a, 24, 28, 29, WS_SIZE)
    if OPT["pf"]:
        a("""s_getreg_b32 s52, hwreg(HW_REG_HW_ID, 13, 3)
             s_getreg_b32 s53, hwreg(HW_REG_HW_ID, 8, 4)
             s_and_b32 s52, s52, 3
             s_min_u32 s53, s53, 8
             s_mul_i32 s51, s30, 36
             s_mul_i32 s52, s52, 9
             s_add_u32 s52, s52, s53
             s_add_u32 s52, s52, s51
             s_mul_i32 s52, s52, 50973
             s_lshr_b32 s52, s52, 16
             s_and_b32 s56, s52, 7
             s_lshr_b32 s52, s52, 3""")
        tile_scalars(a, 50, 52, 51, 53, 54, 55, 56)
        srd(a, 32, 42, 43, WBYTES)
        srd(a, 36, 44, 45, WBYTES)
    if OPT["ppf"]:
        a("""s_load_dwordx8 s[4:11], s[0:1], 8
             s_getreg_b32 s52, hwreg(HW_REG_HW_ID, 13, 3)
             s_getreg_b32 s53, hwreg(HW_REG_HW_ID, 8, 4)
             s_and_b32 s52, s52, 3
             s_lshl_b32 s52, s52, 3
             s_lshr_b32 s51, s30, 2
             s_add_u32 s53, s53, s51
             s_and_b32 s53, s53, 7
             s_add_u32 s52, s52, s53
             s_lshl_b32 s52, s52, 10
             s_lshl_b32 s53, s50, 15
             s_add_u32 s52, s52, s53
             v_add_u32 v4, s52, v3
             s_and_b32 s51, s30, 3
             s_lshl_b32 s51, s51, 1
             s_waitcnt lgkmcnt(0)
             s_mov_b32 m0, s51
             s_movrels_b64 s[12:13], s[4:5]
             global_load_dwordx4 v[68:71], v4, s[12:13]""")
    a("s_barrier")
    stamp(a, 2)
    if OPT["pf"]:
        for i in range(OPT["pf"]):
            a(f"""buffer_load_dwordx4 v[{16+8*i}:{19+8*i}], v6, s[32:35], s55 offen nt
                  buffer_load_dwordx4 v[{20+8*i}:{23+8*i}], v6, s[36:39], s55 offen nt
                  s_add_u32 s55, s55, {8*7168}""")
        if OPT["pfd"]:
            srd(a, 32, 46, 47, WBYTES)
            a("""s_lshl_b32 s54, s54, 2
                 s_add_u32 s54, s54, s53
                 s_lshl_b32 s54, s54, 15
                 s_lshl_b32 s53, s56, 12
                 s_add_u32 s54, s54, s53""")
            for i in range(OPT["pfd"]):
                a(f"buffer_load_dwordx4 v[{48+4*i}:{51+4*i}], v3, s[32:35], s54 offen offset:{1024*i} nt")
    a(f"""buffer_store_dwordx4 v[8:11], v7, s[24:27], s59 offen {OPT['sent_flags']}
          s_cmp_lg_u32 s30, 7
          s_cbranch_scc1 K1_NOCLR
          s_mov_b64 exec, 0xffff
          buffer_store_dwordx4 v[12:15], v3, s[24:27], s60 offen
          s_mov_b64 exec, -1
        K1_NOCLR:
          s_cmp_lg_u32 s2, 0
          s_cbranch_scc1 K1_NOBAND
          s_cmp_gt_u32 s30, 4
          s_cbranch_scc1 K1_NOBAND
          s_lshl_b32 s70, s30, 2
          s_lshr_b32 s71, 0xabcda, s70
          s_and_b32 s71, s71, 15
          s_lshr_b32 s72, 0x66824, s70
          s_and_b32 s72, s72, 15
          v_lshrrev_b32 v4, 4, v1
          v_lshlrev_b32 v4, 3, v4
          v_and_b32 v5, 15, v1
          v_sub_u32 v4, v5, v4
          v_add_u32 v4, s71, v4
          v_mov_b32 v60, 0x3c00
          v_mov_b32 v61, 0x3c000000""")
    for jj in range(8):
        a(f"""v_subrev_u32 v5, {jj}, v4
              v_cmp_ge_u32 s[{74+2*jj}:{75+2*jj}], s72, v5""")
    for i in range(4):
        a(f"""v_cndmask_b32 v{64+i}, 0, v60, s[{74+4*i}:{75+4*i}]
              v_cndmask_b32 v5, 0, v61, s[{76+4*i}:{77+4*i}]
              v_or_b32 v{64+i}, v{64+i}, v5""")
    a(f"""s_lshl_b32 s70, s30, 10
          s_add_u32 s70, s70, {WS_BAND:#x}
          s_mov_b32 s71, {WS_CNT:#x}
          buffer_store_dwordx4 v[64:67], v3, s[24:27], s70 offen
          buffer_store_dwordx4 v[12:15], v3, s[24:27], s71 offen
        K1_NOBAND:""")
    stamp(a, 3)
    if OPT["dbg"]:
        stamp(a, 4)
        a("s_waitcnt vmcnt(0)")
        stamp(a, 5)
        stamp_flush(a, 0, 24, 30, 256)
    if OPT["k1spin"]:
        a("""K1_SPIN:
             s_memrealtime s[92:93]
             s_waitcnt lgkmcnt(0)
             s_sub_u32 s92, s92, s90
             s_cmp_lt_i32 s92, 0
             s_cbranch_scc1 K1_SPIN""")
    if OPT["dry"]:
        a(f"""s_load_dwordx8 s[4:11], s[0:1], 8
              s_load_dwordx4 s[12:15], s[0:1], 40
              s_load_dwordx8 s[20:27], s[0:1], 72
              s_mov_b32 s88, s30
              s_mov_b32 s89, 1
              s_mov_b64 vcc, 0
              s_mov_b32 s3, 0
              s_mov_b32 s50, 0
              s_mov_b32 s51, 0
              s_mov_b32 s52, 0
              s_mov_b32 s53, 0
              s_mov_b32 s57, 0
              s_mov_b32 s76, 0
              s_mov_b32 s77, 0
              s_waitcnt lgkmcnt(0)""")
        srd(a, 32, 28, 29, WS_SIZE)
        srd(a, 36, 26, 27, 0x400000)
        srd(a, 40, 22, 23, WBYTES)
        srd(a, 44, 24, 25, WBYTES)
        a("""s_setvskip -1, 0
             s_nop 1""")
        for w, (lab, s30) in enumerate(DRY_ENTRIES):
            a(f"""s_mov_b32 s30, {s30}
                  s_cmp_eq_u32 s88, {w}
                  s_cbranch_scc1 {lab}""")
    a("s_endpgm")
    return a.finish(), desc("k1_kernel", 128, 102 if OPT["dbg"] else 96)

def k1f():
    a = Asm()
    a.raw(".p2align 8\n.globl k1_kernel\n.type k1_kernel,@function\nk1_kernel:")
    a("""s_cmp_ge_u32 s2, 256
         s_cbranch_scc1 K1_END""")
    stamp(a, 0)
    a(f"""s_load_dwordx8 s[4:11], s[0:1], 8
          s_load_dwordx4 s[12:15], s[0:1], 40
          s_load_dwordx2 s[48:49], s[0:1], 0
          s_load_dwordx8 s[40:47], s[0:1], 64
          s_load_dwordx2 s[26:27], s[0:1], 112
          v_lshrrev_b32 v2, 6, v0
          v_and_b32 v1, 63, v0
          s_mov_b32 s31, 0xffff0000
          v_readfirstlane_b32 s30, v2
          v_mov_b32 v59, 0
          s_mov_b32 s3, s2
          s_cmp_ge_u32 s30, 8
          s_cbranch_scc1 K1_LN
          v_lshlrev_b32 v95, 2, v1
          ds_write_b32 v95, v59""")
    kgen_loads(a)
    a(f"""global_load_ushort v88, v10, s[14:15]
          s_barrier
          s_mov_b32 s58, {L2E_HI:#x}
          v_and_b32 v96, 15, v1
          v_lshrrev_b32 v97, 4, v1
          v_lshlrev_b32 v95, 4, v1
          v_mov_b32 v12, 0
          v_mov_b32 v13, 0
          v_mov_b32 v14, 0
          v_mov_b32 v15, 0
          v_mov_b32 v16, -1
          v_mov_b32 v17, -1
          v_mov_b32 v18, -1
          v_mov_b32 v19, -1
          v_lshlrev_b32 v98, 4, v0
          s_lshl_b32 s59, s2, 13
          s_add_u32 s59, s59, {WS_PART:#x}
          s_lshl_b32 s60, s2, 8
          s_add_u32 s60, s60, {WS_CLAIM:#x}""")
    srd(a, 32, 26, 27, WS_SIZE)
    kgen_setup(a)
    a("s_waitcnt vmcnt(0)")
    stamp(a, 1)
    a(f"""buffer_store_dwordx4 v[16:19], v98, s[32:35], s59 offen {OPT['sent_flags']}
          s_cmp_lg_u32 s30, 7
          s_cbranch_scc1 K1_NOCLR
          s_mov_b64 exec, 0xffff
          buffer_store_dwordx4 v[12:15], v95, s[32:35], s60 offen
          s_mov_b64 exec, -1
        K1_NOCLR:
          s_cmp_lg_u32 s2, 0
          s_cbranch_scc1 K1_NOBAND
          s_cmp_gt_u32 s30, 4
          s_cbranch_scc1 K1_NOBAND
          s_lshl_b32 s72, s30, 2
          s_lshr_b32 s73, 0xabcda, s72
          s_and_b32 s73, s73, 15
          s_lshr_b32 s72, 0x66824, s72
          s_and_b32 s72, s72, 15
          v_lshrrev_b32 v20, 4, v1
          v_lshlrev_b32 v20, 3, v20
          v_and_b32 v21, 15, v1
          v_sub_u32 v20, v21, v20
          v_add_u32 v20, s73, v20
          v_mov_b32 v22, 0x3c00
          v_mov_b32 v23, 0x3c000000""")
    for jj in range(8):
        a(f"""v_subrev_u32 v21, {jj}, v20
              v_cmp_ge_u32 s[{74+2*jj}:{75+2*jj}], s72, v21""")
    for i in range(4):
        a(f"""v_cndmask_b32 v{24+i}, 0, v22, s[{74+4*i}:{75+4*i}]
              v_cndmask_b32 v21, 0, v23, s[{76+4*i}:{77+4*i}]
              v_or_b32 v{24+i}, v{24+i}, v21""")
    a(f"""s_lshl_b32 s72, s30, 10
          s_add_u32 s72, s72, {WS_BAND:#x}
          s_mov_b32 s73, {WS_CNT:#x}
          buffer_store_dwordx4 v[24:27], v95, s[32:35], s72 offen
          buffer_store_dwordx4 v[12:15], v95, s[32:35], s73 offen
        K1_NOBAND:""")
    kgen_main(a)
    stamp(a, 2)
    a("""s_cmp_eq_u32 s53, 0
         s_cbranch_scc0 K1_FAR""")
    near_table(a, "K1")
    a("""s_branch K1_TOUT
       K1_FAR:""")
    far_table(a, "K1")
    a(f"""s_lshl_b32 s71, s3, 6
          s_lshl_b32 s72, s52, 2
          s_add_u32 s71, s71, s72
          s_add_u32 s71, s71, {WS_REC:#x}
          v_mov_b32 v87, s70
          v_mov_b32 v86, 0
          v_lshlrev_b32 v88, 16, v88
          s_mov_b64 exec, 1
          buffer_store_dword v87, v86, s[32:35], s71 offen
          buffer_store_dword v89, v86, s[32:35], s71 offen offset:16
          buffer_store_dword v88, v86, s[32:35], s71 offen offset:32
          s_mov_b64 exec, -1
        K1_TOUT:
          s_lshl_b32 s70, s3, 14
          s_add_u32 s70, s70, {WS_TBL - TB:#x}""")
    pair_sync(a, 2, "K1_PS3")
    a(f"""ds_read_b128 v[16:19], v90
          ds_read_b128 v[20:23], v90 offset:1024
          s_waitcnt lgkmcnt(1)
          buffer_store_dwordx4 v[16:19], v90, s[32:35], s70 offen {OPT['tbl_flags']}
          s_waitcnt lgkmcnt(0)
          buffer_store_dwordx4 v[20:23], v90, s[32:35], s70 offen offset:1024 {OPT['tbl_flags']}""")
    stamp(a, 3)
    if OPT["dbg"]:
        stamp(a, 4)
        a("s_waitcnt vmcnt(0)")
        stamp(a, 5)
        stamp_flush(a, 0, 32, 30, 256)
    a("""K1_END:
         s_endpgm""")
    a.raw(".p2align 6")
    a(f"""K1_LN:
          s_sub_u32 s30, s30, 8
          v_and_b32 v0, 511, v0
          v_lshlrev_b32 v3, 4, v1
          v_lshrrev_b32 v6, 2, v0
          v_and_b32 v7, 3, v0
          v_lshlrev_b32 v4, 3, v6
          v_lshl_add_u32 v4, v7, 12, v4
          v_lshlrev_b32 v5, 14, v6
          v_lshl_add_u32 v5, v7, 4, v5
          s_lshl_b32 s60, s2, 3
          s_add_u32 s60, s60, s30               ; row
          s_lshl_b32 s61, s60, 11
          s_lshl_b32 s62, s2, 14
          s_lshl_b32 s63, s2, 6
          s_add_u32 s64, s63, 0x200000
          s_mov_b32 s65, 0x3f803f80
          v_mov_b32 v30, 0x3a800000
          s_barrier
          s_waitcnt lgkmcnt(0)""")
    stamp(a, 1)
    srd(a, 16, 48, 49, 0x400000)
    a("""buffer_load_dwordx4 v[8:11], v3, s[16:19], s61 offen nt
         buffer_load_dwordx4 v[12:15], v3, s[16:19], s61 offen offset:1024 nt""")
    srd(a, 20, 40, 41, 2048)
    a("""buffer_load_dwordx4 v[16:19], v3, s[20:23], 0 offen
         buffer_load_dwordx4 v[20:23], v3, s[20:23], 0 offen offset:1024
         buffer_load_dwordx2 v[48:49], v4, s[16:19], s62 offen nt
         buffer_load_dwordx2 v[50:51], v4, s[16:19], s62 offen offset:2048 nt
         buffer_load_dwordx2 v[52:53], v4, s[16:19], s62 offen offset:1024 nt
         buffer_load_dwordx2 v[54:55], v4, s[16:19], s62 offen offset:3072 nt
         s_mov_b32 s28, s26
         s_mov_b32 s29, s27""")
    srd(a, 24, 28, 29, WS_SIZE)
    F = 32
    a("""v_mov_b32 v56, 0
         v_mov_b32 v57, 0
         v_mov_b32 v58, 0
         s_getreg_b32 s50, hwreg(HW_REG_XCC_ID)
         s_and_b32 s50, s50, 7
         v_lshrrev_b32 v6, 3, v1
         v_mul_u32_u24 v6, 7168, v6
         v_and_b32 v7, 7, v1
         v_lshl_add_u32 v6, v7, 4, v6""")
    if OPT["pf"]:
        a("""s_getreg_b32 s52, hwreg(HW_REG_HW_ID, 13, 3)
             s_getreg_b32 s53, hwreg(HW_REG_HW_ID, 8, 4)
             s_and_b32 s52, s52, 3
             s_min_u32 s53, s53, 8
             s_mul_i32 s51, s30, 36
             s_mul_i32 s52, s52, 9
             s_add_u32 s52, s52, s53
             s_add_u32 s52, s52, s51
             s_mul_i32 s52, s52, 50973
             s_lshr_b32 s52, s52, 16
             s_and_b32 s56, s52, 7
             s_lshr_b32 s52, s52, 3""")
        tile_scalars(a, 50, 52, 51, 53, 54, 55, 56)
        srd(a, 32, 42, 43, WBYTES)
        srd(a, 36, 44, 45, WBYTES)
    if OPT["pf"]:
        for i in range(OPT["pf"]):
            a(f"""buffer_load_dwordx4 v[{64+8*i}:{67+8*i}], v6, s[32:35], s55 offen nt
                  buffer_load_dwordx4 v[{68+8*i}:{71+8*i}], v6, s[36:39], s55 offen nt
                  s_add_u32 s55, s55, {8*7168}""")
        if OPT["pfd"]:
            srd(a, 32, 46, 47, WBYTES)
            a("""s_lshl_b32 s54, s54, 2
                 s_add_u32 s54, s54, s53
                 s_lshl_b32 s54, s54, 15
                 s_lshl_b32 s53, s56, 12
                 s_add_u32 s54, s54, s53""")
            for i in range(OPT["pfd"]):
                a(f"buffer_load_dwordx4 v[{96+4*i}:{99+4*i}], v3, s[32:35], s54 offen offset:{1024*i} nt")
    npf = (2 * OPT["pf"] + OPT["pfd"]) if OPT["pf"] else 0
    a(f"s_waitcnt vmcnt({6 + npf})")
    stamp(a, 2)
    for i in range(8):
        unpack(a, F + 2*i, 8 + i, 31)
        a(f"v_dot2c_f32_bf16 v56, s65, v{8+i}")
    a(f"s_waitcnt vmcnt({4 + npf})")
    for i in range(8):
        a(f"""v_dot2c_f32_bf16 v57, v{8+i}, v{16+i}
              v_dot2c_f32_bf16 v58, s65, v{16+i}""")
    a("s_nop 2")
    wave_reduce(a, "v_add_f32", [56, 57, 58])
    a("""v_readlane_b32 s66, v56, 63
         v_mul_f32 v62, s66, v30
         v_cvt_pk_bf16_f32 v60, v62, v62
         v_lshlrev_b32 v60, 16, v60""")
    for i in range(8):
        a(f"v_pk_add_f32 v[{F+2*i}:{F+2*i+1}], v[{F+2*i}:{F+2*i+1}], v[62:63] op_sel_hi:[1,0] neg_lo:[0,1] neg_hi:[0,1]")
    a(f"""v_pk_mul_f32 v[16:17], v[{F}:{F+1}], v[{F}:{F+1}]
          v_pk_mul_f32 v[18:19], v[{F+2}:{F+3}], v[{F+2}:{F+3}]""")
    for i in range(2, 8):
        d = 16 + 2 * (i % 2)
        a(f"v_pk_fma_f32 v[{d}:{d+1}], v[{F+2*i}:{F+2*i+1}], v[{F+2*i}:{F+2*i+1}], v[{d}:{d+1}]")
    a("""v_pk_add_f32 v[16:17], v[16:17], v[18:19]
         v_fma_f32 v57, -v60, v58, v57
         v_add_f32 v56, v16, v17""")
    wave_reduce(a, "v_add_f32", [56])
    a("v_mul_f32 v58, v56, v30")
    rbf(a, 58)
    a("v_add_f32 v58, 0x3727c5ac, v58")
    rbf(a, 58)
    a("v_sqrt_f32 v58, v58")
    rbf(a, 58)
    a(f"""v_rcp_f32 v61, v58
          s_lshl_b32 s15, s60, 3
          s_add_u32 s15, s15, {WS_STATS:#x}
          v_fma_f32 v56, -v58, v61, 1.0
          v_fmac_f32 v61, v56, v61
          s_sub_u32 s14, 2047, s60
          s_lshl_b32 s14, s14, 1
          v_mul_f32 v56, v57, v61""")
    rbf(a, 56)
    a(f"""v_ashrrev_i32 v57, 31, v56
          v_or_b32 v57, 0x80000000, v57
          v_xor_b32 v56, v56, v57
          v_and_b32 v56, s31, v56
          v_or_b32 v56, s14, v56
          s_lshl_b32 s14, s30, 2
          v_mov_b32 v57, s14
          v_mov_b32 v58, 1
          s_mov_b32 exec_lo, 0
          s_mov_b32 exec_hi, 0x80000000
          ds_write_b32 v57, v56 offset:96
          ds_add_u32 v59, v58 offset:128
          buffer_store_dwordx2 v[60:61], v59, s[24:27], s15 offen
          s_mov_b64 exec, -1
          v_readlane_b32 s66, v56, 63
          v_readlane_b32 s68, v61, 63
          s_waitcnt vmcnt({1 + npf})
          buffer_store_dwordx4 v[48:51], v5, s[24:27], s63 offen {OPT['xt_flags']}
          buffer_store_dwordx4 v[52:55], v5, s[24:27], s64 offen {OPT['xt_flags']}""")
    stamp(a, 3)
    a(f"""s_branch K1_KWB
        K1_KW:
          s_sleep 1
        K1_KWB:
          ds_read_b32 v58, v59 offset:128
          ds_read_b128 v[32:35], v59 offset:96
          ds_read_b128 v[36:39], v59 offset:112
          s_waitcnt lgkmcnt(0)
          v_cmp_gt_u32 vcc, 8, v58
          s_cbranch_vccnz K1_KW""")
    for i in range(4):
        a(f"""v_max_u32 v{40+2*i}, v{32+2*i}, v{33+2*i}
              v_min_u32 v{41+2*i}, v{32+2*i}, v{33+2*i}""")
    for d, x, y in ((40, 40, 42), (44, 44, 46), (40, 40, 44)):
        a(f"""v_min_u32 v31, v{x}, v{y}
              v_max_u32 v{d}, v{x}, v{y}
              v_max3_u32 v{d+1}, v31, v{x+1}, v{y+1}""")
    a(f"""v_readfirstlane_b32 s70, v40
          v_readfirstlane_b32 s71, v41
          v_mov_b32 v61, s68
          s_lshl_b32 s72, s2, 12
          s_add_u32 s72, s72, {WS_CAND:#x}
          s_cmp_eq_u32 s66, s71
          s_cselect_b32 s73, 2048, 0
          s_cbranch_scc1 K1_CAND
          s_cmp_lg_u32 s66, s70
          s_cbranch_scc1 K1_NOCAND
          s_lshl_b32 s15, s2, 3
          s_add_u32 s15, s15, {WS_KEYS:#x}
          v_or_b32 v41, 1, v41
          s_mov_b64 exec, 1
          buffer_store_dwordx2 v[40:41], v59, s[24:27], s15 offen
          s_mov_b64 exec, -1
        K1_CAND:
          s_add_u32 s73, s73, s72""")
    for i in range(8):
        norm_pair(a, F + 2*(i % 2), 8 + i, 60, 8 + i, 31)
    a("""buffer_store_dwordx4 v[8:11], v3, s[24:27], s73 offen sc1
         buffer_store_dwordx4 v[12:15], v3, s[24:27], s73 offen offset:1024 sc1
       K1_NOCAND:""")
    stamp(a, 4)
    if OPT["dbg"]:
        a("s_waitcnt vmcnt(0)")
        stamp(a, 5)
        stamp_flush(a, 0, 24, 30)
    a("s_endpgm")
    return a.finish(), desc("k1_kernel", 128, 102 if OPT["dbg"] else 96)

def k2():
    a = Asm()
    a.raw(".p2align 8\n.globl k2_kernel\n.type k2_kernel,@function\nk2_kernel:")
    a("""s_cmp_ge_u32 s2, 256
         s_cbranch_scc1 K2_END""")
    stamp(a, 0)
    if OPT["k2spin"]:
        a(f"""s_memrealtime s[90:91]
              s_waitcnt lgkmcnt(0)
              s_add_u32 s90, s90, {OPT['k2spin']}""")
    a(f"""s_mov_b32 s89, 0
        K2_D0:
          s_load_dwordx8 s[4:11], s[0:1], 8
          s_load_dwordx4 s[12:15], s[0:1], 40
          s_load_dwordx8 s[20:27], s[0:1], 72
          s_load_dwordx2 s[28:29], s[0:1], 112
          v_lshrrev_b32 v2, 6, v0
          v_and_b32 v1, 63, v0
          s_mov_b32 s31, 0xffff0000
          v_readfirstlane_b32 s30, v2
          v_lshlrev_b32 v3, 5, v1
          s_mov_b32 s58, {L2E_HI:#x}
          s_getreg_b32 s50, hwreg(HW_REG_XCC_ID)
          s_and_b32 s50, s50, 7
          v_mov_b32 v4, 0
          s_mov_b32 s56, {WS_KEYS:#x}
          s_lshl_b32 s51, s50, 7
          s_add_u32 s51, s51, {WS_CNT:#x}
          v_mov_b32 v5, 1
          v_mov_b32 v23, 1
          v_lshlrev_b32 v6, 2, v1
          s_waitcnt lgkmcnt(0)""")
    srd(a, 32, 28, 29, WS_SIZE)
    a(f"""s_cmp_lg_u32 s30, 0
          s_cbranch_scc1 K2_TWAIT
          s_mov_b64 exec, 1
          buffer_atomic_add v5, v4, s[32:35], s51 offen sc0
          s_mov_b32 exec_lo, -1
          ds_write_b32 v6, v4 offset:{SY}
          s_mov_b64 exec, -1
          buffer_load_dwordx4 v[24:27], v3, s[32:35], s56 offen
          buffer_load_dwordx4 v[28:31], v3, s[32:35], s56 offen offset:16
          s_lshl_b32 s50, s50, 6
          s_waitcnt vmcnt(2)
          v_readfirstlane_b32 s51, v5
          {"s_lshr_b32 s51, s51, 1" if OPT["badhint"] else ""}
          s_min_u32 s51, s51, 32
          s_add_u32 s50, s50, s51
          s_lshl_b32 s51, s50, 7
          s_add_u32 s51, s51, {WS_CLAIM:#x}
          s_mov_b64 exec, 1
          buffer_atomic_swap v23, v4, s[32:35], s51 offen sc0 sc1
          s_mov_b64 exec, -1
          s_waitcnt vmcnt(1)""")
    top2(a, 24, 7, 64, 65, 68)
    a(f"""v_mov_b32 v24, s50
          v_mov_b32 v25, s64
          v_mov_b32 v26, s65
          ds_write_b96 v4, v[24:26] offset:{SY}
          s_waitcnt lgkmcnt(0)
          s_cmp_lg_u32 s89, 0
          s_cbranch_scc1 K2_D5
        K2_TWAIT:
          s_barrier
          ds_read_b96 v[24:26], v4 offset:{SY}
          s_waitcnt lgkmcnt(0)
          v_readfirstlane_b32 s51, v24
          v_readfirstlane_b32 s76, v25
          v_readfirstlane_b32 s77, v26""")
    stamp(a, 1)
    a(f"""
          s_lshr_b32 s50, s51, 6
          s_and_b32 s51, s51, 63
          s_cmp_ge_u32 s51, 32
          s_cbranch_scc1 K2_RECOVER
          s_cmp_lt_u32 s30, 8
          s_cbranch_scc1 K2_FFN
          s_lshl_b32 s3, s50, 5
          s_add_u32 s3, s3, s51                 ; chblk
        K2_D1:""")
    k2_conv(a)
    a("""K2_END:
         s_endpgm""")
    a.raw(".p2align 6")
    a(f"K2_FFN:\ns_setprio {OPT['fprio']}")
    k2_ffn(a)
    a(f"""K2_RECOVER:
          s_setprio 0
          s_waitcnt vmcnt(0) lgkmcnt(0)
          s_load_dwordx8 s[4:11], s[0:1], 8
          s_load_dwordx4 s[12:15], s[0:1], 40
          v_lshrrev_b32 v2, 6, v0
          v_lshlrev_b32 v3, 5, v1
          v_mov_b32 v4, 0
          v_readfirstlane_b32 s30, v2
          s_mov_b32 s56, {WS_KEYS:#x}
          s_waitcnt lgkmcnt(0)
          s_barrier
          s_cmp_lg_u32 s30, 0
          s_cbranch_scc1 K2_TWAIT
          s_mov_b32 s50, 512
        K2_SCAN:
          s_sub_u32 s50, s50, 1
          s_cbranch_scc1 K2_NOSLOT
          s_and_b32 s51, s50, 63
          s_cmp_ge_u32 s51, 32
          s_cbranch_scc1 K2_SCAN
          s_lshl_b32 s51, s50, 7
          s_add_u32 s51, s51, {WS_CLAIM:#x}
          v_mov_b32 v23, 1
          s_mov_b64 exec, 1
          buffer_atomic_swap v23, v4, s[32:35], s51 offen sc0 sc1
          s_mov_b64 exec, -1
          s_waitcnt vmcnt(0)
          v_readfirstlane_b32 s51, v23
          s_cmp_lg_u32 s51, 0
          s_cbranch_scc1 K2_SCAN
          v_mov_b32 v5, s50
          ds_write_b32 v4, v5 offset:{SY}
          v_lshlrev_b32 v6, 2, v1
          s_mov_b32 exec_lo, 0x0fffffff
          s_mov_b32 exec_hi, 0
          ds_write_b32 v6, v4 offset:{SY + 16}
          s_mov_b64 exec, -1
          s_waitcnt vmcnt(0) lgkmcnt(0)
          s_branch K2_TWAIT
        K2_NOSLOT:
          s_endpgm""")
    return a.finish(), desc("k2_kernel", 128, 102 if OPT["dbg"] else 96)

def k2_ffn(a):
    xf = OPT["xfirst"]
    tile_scalars(a, 50, 51, 55, 52, 53, 54, 30)
    a(f"""s_lshl_b32 s48, s50, 5
          s_add_u32 s48, s48, s51               ; chblk
          s_lshl_b32 s80, s48, 3
          s_load_dwordx2 s[86:87], s[14:15], s80
          s_lshl_b32 s49, s48, 14
          s_mov_b32 s85, {WS_STATS:#x}
          s_lshl_b32 s3, s53, 2
          s_add_u32 s3, s3, s52
          v_lshrrev_b32 v4, 3, v1
          v_mul_u32_u24 v4, 7168, v4
          v_and_b32 v5, 7, v1
          v_lshrrev_b32 v6, 3, v1
          v_and_b32 v6, 2, v6
          v_xor_b32 v5, v5, v6
          v_lshl_add_u32 v4, v5, 4, v4
          v_xor_b32 v5, 64, v4
          v_add_u32 v5, {8 * 7168}, v5
          s_lshl_b32 s55, s30, 12
          s_add_u32 s84, s54, {16 * 7168}
          v_and_b32 v7, 15, v1
          v_lshrrev_b32 v16, 4, v1
          v_lshlrev_b32 v98, 7, v7
          v_lshl_add_u32 v98, v16, 5, v98
          s_lshl_b32 s63, s30, 11
          v_add_u32 v98, s63, v98               ; t0*8""")
    if OPT["dbg"]:
        a("s_mov_b32 s2, s48")
    srd(a, 36, 20, 21, WBYTES)
    srd(a, 40, 22, 23, WBYTES)
    srd(a, 44, 24, 25, WBYTES)
    def bulk(rng):
        for i in rng:
            for mat in range(2):
                a(f"""s_add_u32 m0, s55, {F_W + mat * 32768 + i * 1024}
                      buffer_load_dwordx4 v{4 + i % 2}, s[{36+4*mat}:{39+4*mat}], s{54 if i < 2 else 84} offen {OPT['dma_flags']} lds""")
    def xloads():
        a(f"""s_min_u32 s81, s30, 4
              s_lshl_b32 s81, s81, 10
              s_add_u32 m0, s81, {BAND}
              s_add_u32 s81, s81, {WS_BAND:#x}
              buffer_load_dwordx4 v20, s[32:35], s81 offen lds
              buffer_load_dwordx4 v[{PX}:{PX+3}], v98, s[32:35], s49 offen {OPT['ld_flags']}
              buffer_load_dwordx4 v[{PX+4}:{PX+7}], v98, s[32:35], s49 offen offset:16 {OPT['ld_flags']}
              buffer_load_dwordx4 v[{ST}:{ST+3}], v98, s[32:35], s85 offen
              buffer_load_dwordx4 v[{ST+4}:{ST+7}], v98, s[32:35], s85 offen offset:16""")
    WD = 80
    def wdown():
        for f in range(0, 16, 2):
            a(f"""buffer_load_dword v{WD+f}, v6, s[44:47], s57 offen nt
                  buffer_load_dword v{WD+f+1}, v6, s[44:47], s57 offen offset:2048 nt""")
            if f < 14:
                a("s_add_u32 s57, s57, 4096")
    a(f"""v_lshlrev_b32 v6, 2, v0
          s_lshl_b32 s57, s3, 15
          v_mov_b32 v22, 0
          v_lshlrev_b32 v19, 2, v1
          v_lshlrev_b32 v20, 4, v1
          v_lshrrev_b32 v21, 3, v0
          v_mul_u32_u24 v21, {NF * 128}, v21
          v_and_b32 v17, 7, v0
          v_lshl_add_u32 v21, v17, 4, v21
          s_cmp_ge_u32 s51, 28
          s_cbranch_scc0 K2F_TILE
          s_barrier""")
    xloads()
    a(f"""s_waitcnt vmcnt(0) lgkmcnt(0)
          s_branch K2F_NORM
        K2F_TILE:
          s_lshl_b32 s62, s52, 9
          s_lshl_b32 s63, s30, 6
          s_add_u32 s62, s62, s63
          s_add_u32 s62, s62, {WS_CAND:#x}
          s_andn2_b32 s82, 0xff0, s76
          s_andn2_b32 s83, 0xff0, s77
          s_lshl_b32 s82, s82, 8
          s_lshl_b32 s83, s83, 8
          s_and_b32 s76, s76, 1
          s_and_b32 s77, s77, 1
          s_lshl_b32 s76, s76, 11
          s_lshl_b32 s77, s77, 11
          s_add_u32 s82, s82, s76
          s_add_u32 s83, s83, s77
          s_add_u32 s82, s82, s62
          s_add_u32 s83, s83, s62
          s_load_dwordx16 s[64:79], s[28:29], s82
          s_load_dwordx16 s[4:19], s[28:29], s83
          s_cmp_lg_u32 s89, 0
          s_cbranch_scc1 K2F_P
          s_barrier
        K2F_P:""")
    xloads()
    bulk(range(OPT['bsplit']))
    a(f"""s_waitcnt vmcnt({2 * OPT['bsplit']})
        K2F_NORM:
          s_cmp_lg_u32 s30, 0
          s_cbranch_scc1 K2F_G2
          v_add_u32 v23, 1, v23
          s_mov_b64 exec, 1
          ds_write_b32 v22, v23 offset:{SY + 28}
          s_mov_b64 exec, -1
        K2F_G2:""")
    normalize(a)
    a(f"""v_mov_b32 v24, 1
          s_mov_b64 exec, 1
          ds_add_u32 v22, v24 offset:{SY + 16}
          s_mov_b64 exec, -1""")
    a("""s_cmp_ge_u32 s51, 28
         s_cbranch_scc1 K2F_G""")
    bulk(range(OPT['bsplit'], 4))
    a(f"""; tr-read address: (8g + r)*128 + ((ct ^ v)*32) + 8c + mat*32768
          v_bfe_u32 v17, v1, 2, 2
          v_lshl_add_u32 v18, v16, 3, v17
          v_lshlrev_b32 v18, 7, v18
          v_lshrrev_b32 v17, 1, v17
          v_and_b32 v12, 1, v16
          v_lshl_or_b32 v17, v12, 1, v17
          s_and_b32 s59, s30, 3
          v_xor_b32 v17, s59, v17
          v_lshl_add_u32 v18, v17, 5, v18
          v_and_b32 v17, 3, v1
          v_lshl_add_u32 v18, v17, 3, v18
          s_lshr_b32 s60, s30, 2
          s_lshl_b32 s61, s60, 15
          s_add_u32 s61, s61, {F_W}
          v_add_u32 v18, s61, v18
          v_and_b32 v17, 1, v1
          v_lshlrev_b32 v17, 9, v17
          v_lshl_add_u32 v17, v16, 4, v17
          v_add_u32 v17, {F_XS}, v17
          s_lshl_b32 s61, s53, 12
          s_add_u32 s61, s61, {WS_EX:#x}
          s_lshl_b32 s62, s59, 10
          s_add_u32 s62, s62, s61
          s_lshl_b32 s63, s52, 8
          s_add_u32 s62, s62, s63
          s_lshl_b32 s63, s60, 7
          s_add_u32 s62, s62, s63
          s_lshl_b32 s63, s52, 10
          s_add_u32 s61, s61, s63
          s_lshl_b32 s53, s3, 7
          s_add_u32 s53, s53, {WS_PART:#x}
          s_mov_b32 s59, 0x05040100
          s_mov_b32 s60, 0x07060302
          v_cmp_gt_u32 s[82:83], 16, v1
          v_lshlrev_b32 v7, 2, v7
          v_lshl_add_u32 v7, v16, 9, v7
          s_lshl_b32 s63, s30, 6
          s_add_u32 s63, s63, {F_XS}
          v_add_u32 v7, s63, v7
          s_waitcnt lgkmcnt(0)""")
    stamp(a, 2)
    for i in range(16):
        a(f"""v_writelane_b32 v12, s{64+i}, {i}
              v_writelane_b32 v12, s{4+i}, {16+i}""")
    a(f"""s_mov_b32 exec_hi, 0
          ds_write_b32 v7, v12
          s_mov_b32 exec_hi, -1
          """)
    a(f"""K2F_G:
          v_mov_b32 v24, 1
          s_waitcnt vmcnt(0)
          s_mov_b64 exec, 1
          ds_add_u32 v22, v24 offset:{SY + 24}
          s_mov_b64 exec, -1
          s_branch K2F_GWB
        K2F_GW:
          s_sleep 1
        K2F_GWB:
          ds_read_b64 v[24:25], v22 offset:{SY + 24}
          s_waitcnt lgkmcnt(0)
          v_cmp_gt_u32 vcc, 8, v24
          s_cbranch_vccnz K2F_GW
          v_cmp_ne_u32 vcc, 1, v25
          s_cbranch_vccnz K2_RECOVER
          s_cmp_ge_u32 s51, 28
          s_cbranch_scc0 K2_D5""")
    udg(a, 24)
    a("s_branch K2_EPI")
    a(f"K2_D5:\ns_setprio {OPT['fprio']}")
    stamp(a, 3)
    BF, AF = 32, 64
    P = Pipe(a, maxfly=15)
    for k in range(8):
        P.load(f"ds_read_b128 v[{AF+4*k}:{AF+4*k+3}], v17 offset:{64*k}")
        P.load(f"ds_read_b64_tr_b16 v[{BF+4*k}:{BF+4*k+1}], v18 offset:{4096*k}")
        lid = P.load(f"ds_read_b64_tr_b16 v[{BF+4*k+2}:{BF+4*k+3}], v18 offset:{4096*k + 512}")
        d = 24 + 4 * (k % 2)
        c = "0" if k < 2 else f"v[{d}:{d+3}]"
        P.step(f"v_mfma_f32_16x16x32_bf16 v[{d}:{d+3}], v[{AF+4*k}:{AF+4*k+3}], v[{BF+4*k}:{BF+4*k+3}], {c}", [lid])
    P.run()
    a("""v_add_f32 v24, v24, v28
         v_add_f32 v25, v25, v29
         v_cndmask_b32 v24, v25, v24, s[82:83]
         v_min_u32 v24, -2, v24
         s_mov_b32 exec_hi, 0
         buffer_store_dword v24, v19, s[32:35], s62 offen sc1
         s_mov_b32 exec_hi, -1""")
    wdown()
    udg(a, 24)
    def gemv2():
        P0, P1 = 64, 72
        a("""v_mov_b32 v24, 0
             v_mov_b32 v25, 0
             v_mov_b32 v26, 0
             v_mov_b32 v27, 0
             s_mov_b32 s63, 0x40000
           K2F_POLL:
             buffer_load_dwordx4 v[32:35], v20, s[32:35], s61 offen sc1
             s_waitcnt vmcnt(0)
             v_max3_u32 v36, v32, v33, v34
             v_max_u32 v36, v36, v35
             v_cmp_eq_u32 vcc, -1, v36
             s_cbranch_vccz K2F_GOT
             s_sub_u32 s63, s63, 1
             s_cbranch_scc0 K2F_POLL
           K2F_GOT:""")
        stamp(a, 4)
        rows_allreduce(a, [32, 33, 34, 35], 36)
        a("""v_cvt_pk_bf16_f32 v32, v32, v33
             v_cvt_pk_bf16_f32 v33, v34, v35""")
        unpack(a, 40, 32, 31); unpack(a, 42, 33, 31)
        a("""v_mov_b32_dpp v34, v32 row_ror:8 row_mask:0xf bank_mask:0xf
             v_mov_b32_dpp v35, v33 row_ror:8 row_mask:0xf bank_mask:0xf""")
        for r in range(4):
            a(f"v_mul_f32 v{44+r}, s58, v{40+r}")
        for r in range(4):
            a(f"v_exp_f32 v{44+r}, -v{44+r}")
        unpack(a, 48, 34, 31); unpack(a, 50, 35, 31)
        for r in range(4):
            a(f"v_add_f32 v{44+r}, 1.0, v{44+r}")
        for r in range(4):
            a(f"v_rcp_f32 v{44+r}, v{44+r}")
        for p in range(4):
            a(f"""v_perm_b32 v{P0+p}, v{WD+2*p+1}, v{WD+2*p}, s59
                  v_perm_b32 v{P1+p}, v{WD+2*p+1}, v{WD+2*p}, s60""")
        for r in range(4):
            a(f"v_mul_f32 v{44+r}, v{44+r}, v{40+r}")
        a("""v_cvt_pk_bf16_f32 v32, v44, v45
             v_cvt_pk_bf16_f32 v33, v46, v47""")
        unpack(a, 40, 32, 31); unpack(a, 42, 33, 31)
        for r in range(4):
            a(f"v_mul_f32 v{40+r}, v{40+r}, v{48+r}")
        a("""v_cvt_pk_bf16_f32 v32, v40, v41
             v_cvt_pk_bf16_f32 v33, v42, v43""")
        for l in range(8):
            a(f"""v_readlane_b32 s{64+2*l}, v32, {l}
                  v_readlane_b32 s{65+2*l}, v33, {l}""")
        for p in range(4, 8):
            a(f"""v_perm_b32 v{P0+p}, v{WD+2*p+1}, v{WD+2*p}, s59
                  v_perm_b32 v{P1+p}, v{WD+2*p+1}, v{WD+2*p}, s60""")
        for p in range(8):
            a(f"""v_dot2c_f32_bf16 v24, s{64+p}, v{P0+p}
                  v_dot2c_f32_bf16 v25, s{64+p}, v{P1+p}
                  v_dot2c_f32_bf16 v26, s{72+p}, v{P0+p}
                  v_dot2c_f32_bf16 v27, s{72+p}, v{P1+p}""")
        a("""s_nop 2
             v_min_u32 v24, -2, v24
             v_min_u32 v25, -2, v25
             v_min_u32 v26, -2, v26
             v_min_u32 v27, -2, v27
             buffer_store_dwordx4 v[24:27], v21, s[32:35], s53 offen sc1""")
    if OPT["epi_first"]:
        a("K2_EPI:")
        epilogue(a, last=False)
        a("""s_cmp_ge_u32 s51, 28
             s_cbranch_scc1 K2_EDONE""")
        gemv2()
        a("K2_EDONE:")
        epi_end(a)
    else:
        gemv2()
        a("K2_EPI:")
        epilogue(a)

PX, PUD, PG, UF, ST = 104, 112, 120, 64, 120
KA = 76

def pair_sync(a, k, label):
    a(f"""v_mov_b32 v94, {k}
          s_waitcnt lgkmcnt(0)
          ds_write_b32 v92, v94 offset:{SY + 64}
          s_branch {label}B
        {label}:
          s_sleep 2
        {label}B:
          ds_read_b32 v94, v93 offset:{SY + 64}
          s_waitcnt lgkmcnt(0)
          v_cmp_gt_u32 vcc, {k}, v94
          s_cbranch_vccnz {label}""")

def lean_u(a, base):
    for q in range(4):
        for hh in range(2):
            r = base + 4*q + 2*hh
            unpack(a, r, PX + 2*q + hh, 31)
    for q in range(4):
        for hh in range(2):
            r = base + 4*q + 2*hh
            st = ST + 2*q
            a(f"v_pk_fma_f32 v[{r}:{r+1}], v[{st}:{st+1}], v[{r}:{r+1}], v[{st}:{st+1}] op_sel:[1,0,0] op_sel_hi:[1,1,0]")

def normalize(a):
    if OPT["lean"]:
        lean_u(a, UF)
        a("v_lshrrev_b32 v28, 2, v98")
        for ch in range(4):
            t = 24 + 2 * (ch % 2)
            a(f"""v_cvt_pk_f16_f32 v{t}, v{UF+ch}, v{UF+4+ch}
                  v_cvt_pk_f16_f32 v{t+1}, v{UF+8+ch}, v{UF+12+ch}
                  ds_write_b64 v28, v[{t}:{t+1}] offset:{UA + ch*UROW + 2*UPAD}""")
        return
    for q in range(4):
        for hh in range(2):
            r = UF + 4*q + 2*hh
            t = PUD + 2*q + hh
            norm_pair(a, r, PX + 2*q + hh, ST + 2*q, t, 31)
            unpack(a, r, t, 31)
    a("v_lshrrev_b32 v28, 2, v98")
    for ch in range(4):
        t = 24 + 2 * (ch % 2)
        a(f"""v_cvt_pk_f16_f32 v{t}, v{UF+ch}, v{UF+4+ch}
              v_cvt_pk_f16_f32 v{t+1}, v{UF+8+ch}, v{UF+12+ch}
              ds_write_b64 v28, v[{t}:{t+1}] offset:{UA + ch*UROW + 2*UPAD}""")
    NORM_TAIL.append(1)

NORM_TAIL = []

def conv_sync(a, label):
    a(f"""v_mov_b32 v15, 0
          v_mov_b32 v16, 1
          s_lshl_b32 s79, s52, 2
          v_mov_b32 v96, s79
          s_waitcnt vmcnt(0) lgkmcnt(0)
          s_mov_b64 exec, 1
          ds_add_u32 v15, v16 offset:{SY + 16}
          s_mov_b64 exec, -1""")
    stamp(a, 3)
    a(f"""s_branch {label}B
        {label}:
          s_sleep 1
        {label}B:
          ds_read_b32 v16, v15 offset:{SY + 16}
          ds_read_b32 v17, v15 offset:{SY + 28}
          s_waitcnt lgkmcnt(0)
          v_cmp_lt_u32 vcc, 1, v17
          s_cbranch_vccnz K2_RECOVER
          v_cmp_eq_u32 vcc, 0, v17
          s_cbranch_vccnz {label}
          v_cmp_gt_u32 vcc, 16, v16
          s_cbranch_vccnz {label}""")

def kgen_loads(a):
    a(f"""s_and_b32 s52, s30, 3
          s_lshr_b32 s53, s30, 2
          s_lshl_b32 s54, s3, 2
          s_add_u32 s54, s54, s52               ; d
          s_lshl_b32 s55, s54, 8
          s_lshl_b32 s56, s53, 7
          s_add_u32 s56, s56, s55
          v_lshl_add_u32 v8, v1, 1, s56
          v_lshl_add_u32 v9, v1, 2, s55
          s_lshl_b32 s57, s54, 1
          v_mov_b32 v10, s57
          s_waitcnt lgkmcnt(0)
          global_load_ushort v91, v10, s[12:13]
          global_load_ushort v2, v8, s[4:5]
          global_load_ushort v3, v8, s[6:7]
          global_load_dword v6, v9, s[8:9]
          global_load_dword v7, v9, s[10:11]
          global_load_ushort v4, v8, s[8:9]
          global_load_ushort v5, v8, s[10:11]""")

def kgen_setup(a):
    a(f"""s_lshl_b32 s68, s52, 12
          s_add_u32 s68, s68, {TB}
          s_lshl_b32 s67, s53, 11
          s_add_u32 s67, s67, s68
          v_add_u32 v90, s67, v95
          ds_write_b128 v90, v[12:15]
          ds_write_b128 v90, v[12:15] offset:1024
          s_mov_b32 s67, {L2E_LO:#x}
          s_mov_b32 s71, {LN2:#x}
          s_lshl_b32 s61, s30, 2
          v_mov_b32 v92, s61
          s_xor_b32 s61, s61, 16
          v_mov_b32 v93, s61                    ; partner's
          s_mul_i32 s69, s52, {KGC}
          s_add_u32 s69, s69, {KG}
          s_xor_b32 s70, s53, 1
          s_mul_i32 s70, s70, 4352
          s_add_u32 s70, s70, s69
          s_sub_u32 m0, s70, 16384
          v_mul_u32_u24 v41, 272, v96
          v_lshl_add_u32 v41, v97, 4, v41
          v_add_u32 v41, s70, v41
          v_add_u32 v99, s69, v95""")

def kgen_main(a, hook=None):
    a("""v_lshlrev_b32 v8, 16, v91
         v_lshlrev_b32 v2, 16, v2""")
    exp_acc(a, 9, 8, 10, 11, 58, 67, 71)
    exp_acc(a, 8, 2, 12, 13, 58, 67, 71)
    a("""v_lshlrev_b32 v3, 16, v3
         v_and_b32 v6, 0x7fff7fff, v6
         v_and_b32 v7, 0x7fff7fff, v7
         v_pk_max_u16 v6, v6, v7
         v_lshlrev_b32 v7, 16, v6
         v_max_u32 v6, v6, v7""")
    rbf(a, 9, 8)
    wave_reduce(a, "v_max_u32", [6])
    a(f"""v_mul_f32 v8, v8, v9                  ; -Re(a)
          v_mul_f32 v3, v3, v9                  ; Im(a)
          v_readlane_b32 s78, v6, 63
          v_mul_f32 v8, s58, v8
          v_mul_f32 v10, 0.15915494, v3
          v_fma_f32 v11, v3, 0.15915494, -v10
          v_mov_b32 v7, {I2PI_LO:#x}
          v_fmac_f32 v11, v3, v7
          s_and_b32 s78, s78, s31
          v_add_f32 v9, v9, v9
          v_mul_f32 v6, s78, v9
          v_frexp_exp_i32_f32 v6, v6
          v_sub_u32 v6, 7, v6
          v_min_i32 v6, 100, v6
          v_max_i32 v6, -100, v6
          v_ldexp_f32 v9, v9, v6                ; 2*dt*scale
          v_sub_u32 v6, 0, v6
          v_ldexp_f32 v6, 1.0, v6
          v_readfirstlane_b32 s70, v6           ; 1/scale""")
    for dst, pl in ((24, "0x41000000"), (12, "1.0"), (26, "0x43000000")):
        a(f"""v_mul_f32 v36, {pl}, v10
              v_mul_f32 v37, {pl}, v8
              v_fract_f32 v36, v36
              v_exp_f32 v37, -v37
              v_mul_f32 v38, {pl}, v11
              v_add_f32 v36, v36, v38
              v_sin_f32 v{dst}, v36
              v_cos_f32 v{dst+1}, v36
              v_mul_f32 v{dst}, v{dst}, v37
              v_mul_f32 v{dst+1}, v{dst+1}, v37""")
    a("""v_mov_b32 v10, v12
         v_mov_b32 v11, v13
         v_lshlrev_b32 v4, 16, v4
         v_lshlrev_b32 v5, 16, v5
         v_mul_f32 v33, v4, v9
         v_mul_f32 v32, v5, v9
         v_mov_b32 v42, 0x3c00
         ds_write_addtid_b32 v42 offset:16384""")
    BF, AF = 44, 60
    E = {1: 10}
    pool = [12, 14, 16, 18, 20, 22, 28, 30, 34, 36, 38] + list(range(100, 128, 2))
    ops = []
    val = {}
    def V(name, reg=None):
        val[name] = reg
        return name
    V("Y1", 24); V("VV", 26); V("E1", 10); V("G0", 32)
    seq = []
    def cm(d, x, y):
        ops.append(("mul", d, (x, y))); ops.append(("fma", d, (x, y, d + "'")))
    rows = []
    for k, x, y in [(2, 1, 1), (3, 2, 1), (4, 2, 2), (5, 4, 1), (6, 4, 2), (7, 4, 3)]:
        cm(f"E{k}", f"E{x}", f"E{y}")
    tree = {2: (1, 1), 3: (2, 1), 4: (2, 2), 5: (4, 1), 6: (4, 2), 7: (4, 3), 8: (4, 4)}
    for jj in range(9, 16): tree[jj] = (8, jj - 8)
    for jj in range(2, 16):
        cm(f"Y{jj}", f"Y{tree[jj][0]}", f"Y{tree[jj][1]}")
    groups = [[(f"Y{jj}", jj, False) for jj in range(1, 16)]]
    cm("V2", "VV", "VV")
    cm("G1", "G0", "VV")
    for i2 in range(2, 17):
        cm(f"G{i2}", f"G{i2-2}", "V2")
    plan = [[(0, range(8)), (1, range(8))],
            [(2, (0, 2, 4, 6)), (3, (0, 2, 4, 6)), (4, (0, 4)), (5, (0, 4)), (6, (0, 4)), (7, (0, 4))],
            [(i2, (0,)) for i2 in range(8, 17)]]
    for tile in range(3):
        g = []
        for i2, ks in plan[tile]:
            for k in ks:
                if k:
                    cm(f"X{i2}_{k}", f"G{i2}", f"E{k}")
                    g.append((f"X{i2}_{k}", len(g), True))
                else:
                    g.append((f"G{i2}", len(g), True))
        groups.append(g)
    flat = [r for g in groups for r in g]
    prod = {}
    for kind, d, srcs in ops:
        if kind == "fma": prod[d] = [x for x in srcs[:2]]
    prio = {}
    def mark(v, pr):
        if prio.get(v, 1 << 30) <= pr: return
        prio[v] = pr
        for x in prod.get(v, []): mark(x, pr)
    for n, (v, _, _) in enumerate(flat): mark(v, n)
    uses = {}
    for kind, d, srcs in ops:
        for x in srcs[:2]: uses[x] = uses.get(x, 0) + 1
    for v, _, _ in flat: uses[v] = uses.get(v, 0) + 1
    ready_at = {v: 0 for v in val}
    LAT = 3
    slot = [0]
    def emit(t):
        a(t); slot[0] += 1
    def release(x):
        uses[x] -= 1
        if uses[x] == 0 and val[x] not in (10, 24, 26, 32): pool.append(val[x])
    pend = list(ops)
    cv = [40, 42, 43, 2, 3, 4, 5, 6, 7]; cvi = [0]
    wq = []
    gi = 0; ri = 0
    mf = []
    def mfma(tile):
        for k in range(4):
            c = "0" if k == 0 else f"v[{KA+4*tile}:{KA+4*tile+3}]"
            emit(f"v_mfma_f32_16x16x32_f16 v[{KA+4*tile}:{KA+4*tile+3}], v[{AF+4*k}:{AF+4*k+3}], v[{BF+4*k}:{BF+4*k+3}], {c}")
    lds_after = [0]
    while pend or gi < len(groups) or wq or mf:
        did = False
        if wq and slot[0] - wq[0][2] >= LAT:
            r, row, _ = wq.pop(0)
            emit(f"ds_write_addtid_b32 v{r} offset:{16384 + 272*row}"); lds_after[0] += 1; did = True
        elif gi < len(groups) and ri == len(groups[gi]) and not wq and not mf:
            base = BF if gi == 0 else AF
            for k in range(4):
                emit(f"ds_read_b128 v[{base+4*k}:{base+4*k+3}], v41 offset:{64*k}")
            lds_after[0] = 0
            if gi > 0: mf.append((gi - 1, slot[0]))
            gi += 1; ri = 0; did = True
        elif mf and (slot[0] - mf[0][1] >= 24 or (not pend and gi >= len(groups)) or (gi < len(groups) and ri == len(groups[gi]) and not wq)):
            emit(f"s_waitcnt lgkmcnt({min(lds_after[0], 15)})")
            mfma(mf.pop(0)[0]); did = True
        if not did and gi < len(groups) and ri < len(groups[gi]) and len(wq) < 4:
            v, row, neg = groups[gi][ri]
            if v in ready_at and ready_at[v] <= slot[0]:
                r = cv[cvi[0] % len(cv)]; cvi[0] += 1
                emit(f"v_cvt_pk_f16_f32 v{r}, v{val[v]+1}, {'-' if neg else ''}v{val[v]}")
                wq.append((r, row, slot[0])); release(v); ri += 1; did = True
        if not did:
            best = None
            for n, (kind, d, srcs) in enumerate(pend):
                if all(x in ready_at and ready_at[x] <= slot[0] for x in srcs) and (kind == "fma" or pool):
                    key = (prio[d], 0 if kind == "fma" else 1)
                    if best is None or key < best[0]: best = (key, n)
            if best is not None:
                kind, d, srcs = pend.pop(best[1])
                x, y = val[srcs[0]], val[srcs[1]]
                if kind == "mul":
                    val[d] = pool.pop(0); r = val[d]
                    emit(f"v_pk_mul_f32 v[{r}:{r+1}], v[{x}:{x+1}], v[{y}:{y+1}] op_sel:[1,0] op_sel_hi:[1,1]")
                    ready_at[d + "'"] = slot[0] + LAT - 1
                else:
                    r = val[d]
                    emit(f"v_pk_fma_f32 v[{r}:{r+1}], v[{y}:{y+1}], v[{x}:{x+1}], v[{r}:{r+1}] op_sel:[1,0,0] op_sel_hi:[0,0,1] neg_hi:[1,0,0]")
                    ready_at[d] = slot[0] + LAT - 1
                for xx in srcs[:2]: release(xx)
                did = True
        if not did:
            slot[0] += 1

def near_table(a, tag):
    K0, K1, K2 = KA, KA + 4, KA + 8
    a(f"""
          v_lshlrev_b32 v8, 8, v97
          v_lshl_add_u32 v8, v96, 4, v8
          v_sub_u32 v8, {2*(537-256)}, v8
          v_add_u32 v8, s68, v8                 ; 2*(537 - p0), p0 = 256 + 128g + 8j
          v_lshrrev_b32 v9, 1, v97
          v_lshlrev_b32 v9, 8, v9
          v_lshl_add_u32 v9, v96, 4, v9
          v_and_b32 v10, 1, v97
          v_lshl_add_u32 v9, v10, 3, v9
          v_sub_u32 v9, 1080, v9
          v_add_u32 v9, s68, v9                 ; 1080 - 2p, p = 128(g>>1) + 8j + 4(g&1)
          ds_write_b128 v99, v[{K1}:{K1+3}] offset:5120
          ds_write_b128 v99, v[{K2}:{K2+3}] offset:6144
          v_cmp_gt_u32 vcc, 32, v1
          v_add_u32 v21, 2, v8
          v_add_u32 v22, {DELTA}, v8""")
    pair_sync(a, 1, tag + "_PS1")
    a(f"""v_cmp_gt_u32 vcc, 32, v1
          ds_read_b128 v[16:19], v99 offset:1024
          ds_read_b128 v[24:27], v99
          s_waitcnt lgkmcnt(1)
          v_pk_add_f32 v[{K1}:{K1+1}], v[{K1}:{K1+1}], v[16:17]
          v_pk_add_f32 v[{K1+2}:{K1+3}], v[{K1+2}:{K1+3}], v[18:19]
          s_waitcnt lgkmcnt(0)
          v_pk_add_f32 v[{K0}:{K0+1}], v[{K0}:{K0+1}], v[24:25]
          v_pk_add_f32 v[{K0+2}:{K0+3}], v[{K0+2}:{K0+3}], v[26:27]
          v_mov_b32_dpp v13, v{K1} row_shl:1 row_mask:0xf bank_mask:0xf
          v_writelane_b32 v13, 0, 33
          s_mov_b32 exec_hi, 3
          v_cndmask_b32 v14, v{K1}, v{K1+1}, vcc
          v_cndmask_b32 v15, v{K1+1}, v{K1+2}, vcc
          v_cndmask_b32 v13, v13, v{K1+3}, vcc
          v_cvt_pk_f16_f32 v16, v13, v15
          v_cvt_pk_f16_f32 v17, v15, v15
          v_cvt_pk_f16_f32 v18, v14, v{K1}
          v_cvt_pk_f16_f32 v19, v{K1}, v{K1}
          v_cvt_pk_f16_f32 v20, v15, v14
          ds_write_b16 v8, v16
          ds_write2_b32 v21, v17, v20 offset0:0 offset1:1
          ds_write_b32 v21, v19 offset:8
          ds_write_b16 v8, v19 offset:14
          ds_write2_b32 v22, v16, v17 offset0:0 offset1:1
          ds_write2_b32 v22, v18, v19 offset0:2 offset1:3
          s_mov_b32 exec_hi, -1
          v_cvt_pk_f16_f32 v24, v{K0+3}, v{K0+2}
          v_cvt_pk_f16_f32 v25, v{K0+1}, v{K0}
          v_cvt_pk_f16_f32 v26, v{K0+2}, v{K0+1}
          ds_write_b64 v9, v[24:25]
          ds_write_b16 v9, v24 offset:{DELTA}
          ds_write_b32 v9, v26 offset:{DELTA+2}
          ds_write_b16_d16_hi v9, v25 offset:{DELTA+6}
          """)

def far_table(a, tag):
    K0, K1, K2 = KA, KA + 4, KA + 8
    a(f"""
          v_and_b32 v13, 1, v96
          v_lshrrev_b32 v14, 1, v96
          v_lshlrev_b32 v8, 8, v13
          v_lshlrev_b32 v15, 1, v14
          v_sub_u32 v8, v8, v15
          v_lshlrev_b32 v9, 5, v97
          v_sub_u32 v8, v8, v9
          v_add_u32 v8, {R2B + 128 + 2*47 + 64 - 16}, v8
          v_add_u32 v8, s68, v8
          v_lshlrev_b32 v9, 1, v13
          v_sub_u32 v9, v8, v9
          v_add_u32 v9, {-128 + 2}, v9
          ds_write_b128 v99, v[{K0}:{K0+3}]
          ds_write_b128 v99, v[{K1}:{K1+3}] offset:1024
          v_mul_u32_u24 v10, 158, v13
          v_sub_u32 v10, v10, v15
          v_lshlrev_b32 v11, 6, v97
          v_sub_u32 v10, v10, v11
          v_add_u32 v10, {R3B + 128 - 48}, v10
          v_add_u32 v10, s68, v10
          s_nop 0""")
    pair_sync(a, 1, tag + "_PS2")
    a(f"""ds_read_b128 v[16:19], v99 offset:5120
          ds_read_b128 v[20:23], v99 offset:6144
          s_waitcnt lgkmcnt(1)
          v_pk_add_f32 v[{K1}:{K1+1}], v[{K1}:{K1+1}], v[16:17]
          v_pk_add_f32 v[{K1+2}:{K1+3}], v[{K1+2}:{K1+3}], v[18:19]
          s_waitcnt lgkmcnt(0)
          v_pk_add_f32 v[{K2}:{K2+1}], v[{K2}:{K2+1}], v[20:21]
          v_pk_add_f32 v[{K2+2}:{K2+3}], v[{K2+2}:{K2+3}], v[22:23]
          v_cvt_pk_f16_f32 v16, v{K1}, v{K1+1}
          v_cvt_pk_f16_f32 v17, v{K1+2}, v{K1+3}
          v_cvt_pk_f16_f32 v18, v{K2}, v{K2+1}
          v_cvt_pk_f16_f32 v19, v{K2+2}, v{K2+3}
          v_cvt_pk_f16_f32 v89, v{K2}, v{K2}
          s_mov_b32 exec_lo, 0
          ds_write_b16 v9, v17
          ds_write_b16 v9, v17 offset:{DELTA}
          ds_write_b16_d16_hi v8, v17
          ds_write_b16_d16_hi v8, v17 offset:{DELTA}
          s_mov_b32 exec_hi, -4
          ds_write_b16 v9, v16 offset:16
          ds_write_b16 v9, v16 offset:{DELTA+16}
          ds_write_b16_d16_hi v8, v16 offset:16
          ds_write_b16_d16_hi v8, v16 offset:{DELTA+16}
          s_mov_b32 exec_hi, 1
          s_mov_b32 exec_lo, -2
          ds_write_b16 v10, v18 offset:48
          ds_write_b16 v10, v18 offset:{DELTA+48}
          s_mov_b32 exec_hi, 0
          s_mov_b32 exec_lo, -1
          ds_write_b16_d16_hi v10, v18 offset:32
          ds_write_b16_d16_hi v10, v18 offset:{DELTA+32}
          ds_write_b16 v10, v19 offset:16
          ds_write_b16 v10, v19 offset:{DELTA+16}
          ds_write_b16_d16_hi v10, v19
          ds_write_b16_d16_hi v10, v19 offset:{DELTA}
          s_mov_b64 exec, -1
          """)

def k2_conv(a):
    if OPT["dbg"]:
        a("s_mov_b32 s2, s3")
    if OPT["kin"] == 1:
        return k2_conv_tbl(a)
    a("s_sub_u32 s30, s30, 8")
    kgen_loads(a)
    a(f"""s_cmp_lg_u32 s89, 0
          s_cbranch_scc1 K2C_P
          s_barrier
        K2C_P:
          s_lshl_b32 s57, s3, 3
          s_load_dwordx2 s[64:65], s[14:15], s57
          v_and_b32 v96, 15, v1
          v_lshrrev_b32 v97, 4, v1
          s_lshl_b32 s59, s3, 14
          s_mov_b32 s60, {WS_STATS:#x}
          v_lshlrev_b32 v95, 4, v1
          v_mov_b32 v12, 0
          v_mov_b32 v13, 0
          v_mov_b32 v14, 0
          v_mov_b32 v15, 0
          s_mul_i32 s66, s52, {UROW}
          s_add_u32 s66, s66, {UA}
          v_add_u32 v11, s66, v95
          s_mov_b32 exec_hi, 3
          ds_write_b128 v11, v[12:15]
          s_mov_b32 exec_hi, -1""")
    srd(a, 36, 26, 27, 0x400000)
    frag_addr = f"""v_lshlrev_b32 v12, 5, v96
          v_lshl_add_u32 v12, v97, 4, v12
          v_add_u32 v12, s66, v12
          v_mov_b32 v13, v95
          s_sub_u32 s78, 4, s53
          v_lshlrev_b32 v10, s78, v97
          v_lshlrev_b32 v11, 1, v96
          v_sub_u32 v10, v10, v11
          v_and_b32 v11, 1, v96
          v_xor_b32 v11, 1, v11
          v_mul_u32_u24 v11, {DELTA}, v11
          s_mul_i32 s78, s53, {R2B}
          s_add_u32 s78, s78, s68
          s_add_u32 s78, s78, 30
          v_add3_u32 v10, v10, v11, s78
          v_add_u32 v11, 512, v10"""
    kgen_setup(a)
    a("s_waitcnt vmcnt(0)")
    stamp(a, 2)
    kgen_main(a)
    stamp(a, 3, 1)
    a("""s_cmp_eq_u32 s53, 0
         s_cbranch_scc0 K2_FAR""")
    near_table(a, "K2")
    stamp(a, 4, 1)
    a(frag_addr)
    a("K2_D4:")
    conv_sync(a, "K2_W1N")
    near(a)
    flush(a)
    a.raw(".p2align 6")
    a("K2_FAR:")
    far_table(a, "K2")
    a("v_readlane_b32 s71, v89, 0")
    stamp(a, 4, 1)
    a(frag_addr)
    conv_sync(a, "K2_W1F")
    far(a)
    fixup(a)
    a("K2_CDONE:")
    flush(a)

def k2_conv_tbl(a):
    a(f"""s_sub_u32 s30, s30, 8
          s_and_b32 s52, s30, 3
          s_lshr_b32 s53, s30, 2
          s_lshl_b32 s57, s3, 3
          s_lshl_b32 s54, s3, 6
          s_add_u32 s54, s54, {WS_REC:#x}
          s_lshl_b32 s64, s52, 2
          s_add_u32 s64, s64, s54
          s_load_dword s70, s[28:29], s64
          s_load_dword s71, s[28:29], s64 offset:16
          s_load_dwordx4 s[72:75], s[28:29], s54 offset:32
          v_lshlrev_b32 v95, 4, v1
          s_lshl_b32 s59, s3, 14
          s_lshl_b32 s63, s30, 11
          s_add_u32 s62, s59, {WS_TBL:#x}
          s_add_u32 s62, s62, s63
          s_add_u32 m0, s63, {TB}
          buffer_load_dwordx4 v95, s[32:35], s62 offen {OPT['ld_flags']} lds
          buffer_load_dwordx4 v95, s[32:35], s62 offen offset:1024 {OPT['ld_flags']} lds
          s_cmp_lg_u32 s89, 0
          s_cbranch_scc1 K2C_P
          s_barrier
        K2C_P:
          v_and_b32 v96, 15, v1
          v_lshrrev_b32 v97, 4, v1
          s_mov_b32 s60, {WS_STATS:#x}
          v_mov_b32 v12, 0
          v_mov_b32 v13, 0
          v_mov_b32 v14, 0
          v_mov_b32 v15, 0
          s_mul_i32 s66, s52, {UROW}
          s_add_u32 s66, s66, {UA}
          v_add_u32 v11, s66, v95
          s_mov_b32 exec_hi, 3
          ds_write_b128 v11, v[12:15]
          s_mov_b32 exec_hi, -1
          s_lshl_b32 s68, s52, 12
          s_add_u32 s68, s68, {TB}
          s_mul_i32 s69, s52, {KGC}
          s_add_u32 s69, s69, {KG}
          v_add_u32 v99, s69, v95
        K2_D2:""")
    srd(a, 36, 26, 27, 0x400000)
    frag_addr = f"""v_lshlrev_b32 v12, 5, v96
          v_lshl_add_u32 v12, v97, 4, v12
          v_add_u32 v12, s66, v12
          v_mov_b32 v13, v95
          s_sub_u32 s78, 4, s53
          v_lshlrev_b32 v10, s78, v97
          v_lshlrev_b32 v11, 1, v96
          v_sub_u32 v10, v10, v11
          v_and_b32 v11, 1, v96
          v_xor_b32 v11, 1, v11
          v_mul_u32_u24 v11, {DELTA}, v11
          s_mul_i32 s78, s53, {R2B}
          s_add_u32 s78, s78, s68
          s_add_u32 s78, s78, 30
          v_add3_u32 v10, v10, v11, s78
          v_add_u32 v11, 512, v10"""
    a(frag_addr)
    stamp(a, 2)
    a("K2_D4:")
    conv_sync(a, "K2_W1N")
    a("""s_cmp_eq_u32 s53, 0
         s_cbranch_scc0 K2_FAR""")
    near(a)
    flush(a)
    a.raw(".p2align 6")
    a("K2_FAR:")
    far(a)
    fixup(a)
    a("K2_CDONE:")
    flush(a)

def flush(a):
    if OPT["dbg"]:
        a("s_waitcnt vmcnt(0)")
        stamp(a, 5)
        stamp_flush(a, 1, 32, 30, 256)
    a("s_endpgm")

LG, LB = 64, 80

def lean_gb(a):
    a("""s_lshl_b32 s72, s86, 16
         s_and_b32 s73, s86, s31
         s_lshl_b32 s74, s87, 16
         s_and_b32 s75, s87, s31""")
    U = 8
    lean_u(a, 48)
    for i in range(16):
        a(f"v_mul_f32 v{LG+i}, s58, v{48+i}")
    for i in range(16):
        a(f"v_exp_f32 v{LG+i}, -v{LG+i}")
        if i % 2 == 1:
            unpack(a, LB + i - 1, PX + i // 2, 31)
    for i in range(0, 16, 2):
        a(f"v_pk_add_f32 v[{LG+i}:{LG+i+1}], v[{LG+i}:{LG+i+1}], 1.0 op_sel_hi:[1,0]")
    for i in range(16):
        a(f"v_rcp_f32 v{LG+i}, v{LG+i}")
    for i in range(0, 16, 2):
        a(f"v_pk_mul_f32 v[{LG+i}:{LG+i+1}], v[{LG+i}:{LG+i+1}], v[{48+i}:{49+i}]")
    for i in range(0, 16, 2):
        hh = (i // 2) % 2
        a(f"v_pk_mul_f32 v[{48+i}:{49+i}], v[{48+i}:{49+i}], s[{72+2*hh}:{73+2*hh}]")
    for i in range(0, 16, 2):
        a(f"v_pk_fma_f32 v[{LB+i}:{LB+i+1}], v[{48+i}:{49+i}], v[{LG+i}:{LG+i+1}], v[{LB+i}:{LB+i+1}]")

def udg(a, T, UF=None):
    if OPT["lean"]: return
    UF = UF or globals()["UF"]
    a("""s_lshl_b32 s72, s86, 16
         s_and_b32 s73, s86, s31
         s_lshl_b32 s74, s87, 16
         s_and_b32 s75, s87, s31""")
    for q in range(4):
        for hh in range(2):
            r = UF + 4*q + 2*hh
            t = T + 4 * hh
            unpack(a, r, PUD + 2*q + hh, 31)
            a(f"""v_mul_f32 v{t+2}, s58, v{r}
                  v_mul_f32 v{t+3}, s58, v{r+1}
                  v_exp_f32 v{t+2}, -v{t+2}
                  v_exp_f32 v{t+3}, -v{t+3}
                  v_mul_f32 v{t}, s{72+2*hh}, v{r}
                  v_mul_f32 v{t+1}, s{73+2*hh}, v{r+1}
                  v_add_f32 v{t+2}, 1.0, v{t+2}
                  v_add_f32 v{t+3}, 1.0, v{t+3}
                  v_rcp_f32 v{t+2}, v{t+2}
                  v_rcp_f32 v{t+3}, v{t+3}
                  v_cvt_pk_bf16_f32 v{PUD+2*q+hh}, v{t}, v{t+1}
                  v_mul_f32 v{t+2}, v{t+2}, v{r}
                  v_mul_f32 v{t+3}, v{t+3}, v{r+1}
                  v_cvt_pk_bf16_f32 v{PG+2*q+hh}, v{t+2}, v{t+3}""")

def near(a):
    if not (OPT["single"] and OPT["half"]): return near1(a)
    stamp(a, 5, 1); stamp(a, 3, 3)
    ACC = 16
    TBUF = [48, 56]
    T16 = 64
    UBUF = [68, 72, 76, 80, 84, 88, 92]
    started = set()
    for h, tiles in enumerate((range(0, 4), range(4, 8))):
        P = Pipe(a)
        def tload(dst, sidx, gate):
            base, off = (10, 16 * (16 - sidx)) if sidx >= 8 else (11, 16 * (8 - sidx))
            P.load(f"ds_read2_b32 v[{dst}:{dst+1}], v{base} offset0:{off} offset1:{off+1}", gate)
            return P.load(f"ds_read2_b32 v[{dst+2}:{dst+3}], v{base} offset0:{off+2} offset1:{off+3}", gate)
        ulast = {}; tlast = {}; nu = 0
        for sl in range(8):
            tb = TBUF[sl % 2]
            tl = tload(tb, sl, tlast.get(tb, -1))
            th = tload(tb + 4, 8 + sl, tlast.get(tb, -1))
            t16 = tload(T16, 16, -1) if sl == 0 else None
            for o in range(8):
                use = [(o, tb, tl), (o + 1, tb + 4, th)] + ([(o + 2, T16, t16)] if sl == 0 else [])
                use = [u for u in use if u[0] in tiles]
                if not use: continue
                ub = UBUF[nu % len(UBUF)]; nu += 1
                ul = P.load(f"ds_read_b128 v[{ub}:{ub+3}], v12 offset:{2*(UPAD - 16 + 256*o - 32*sl)}", ulast.get(ub, -1))
                for jj, t, tid in use:
                    c = f"v[{ACC+4*jj}:{ACC+4*jj+3}]" if jj in started else "0"
                    started.add(jj)
                    P.step(f"v_mfma_f32_16x16x32_f16 v[{ACC+4*jj}:{ACC+4*jj+3}], v[{t}:{t+3}], v[{ub}:{ub+3}], {c}", [tid, ul])
                ulast[ub] = P.last()
            tlast[tb] = P.last()
        P.run()
        if h: stamp(a, 4); stamp(a, 4, 3)
        a(f"""s_setprio 3
              s_branch K2_W2{h}B
            K2_W2{h}:
              s_sleep 1
            K2_W2{h}B:
              ds_read_b32 v97, v96 offset:{SY + 32}
              s_waitcnt lgkmcnt(0)
              v_cmp_gt_u32 vcc, {h + 1}, v97
              s_cbranch_vccnz K2_W2{h}""")
        if h: stamp(a, 5, 3)
        fa = [jj for jj in tiles if jj >= 2]
        for n, jj in enumerate(fa):
            a(f"ds_read_b128 v[{100+4*n}:{103+4*n}], v99 offset:{1024*jj}")
        a("v_mov_b32 v97, 1")
        for jj in tiles:
            r = ACC + 4 * jj
            if jj >= 2:
                pp = 100 + 4 * fa.index(jj)
                a(f"""s_waitcnt lgkmcnt(3)
                      v_pk_add_f32 v[{r}:{r+1}], v[{r}:{r+1}], v[{pp}:{pp+1}]
                      v_pk_add_f32 v[{r+2}:{r+3}], v[{r+2}:{r+3}], v[{pp+2}:{pp+3}]""")
            a(f"""v_pk_mul_f32 v[{r}:{r+1}], v[{r}:{r+1}], s[70:71] op_sel_hi:[1,0]
                  v_pk_mul_f32 v[{r+2}:{r+3}], v[{r+2}:{r+3}], s[70:71] op_sel_hi:[1,0]
                  ds_write_b128 v99, v[{r}:{r+3}] offset:{1024*jj}""")
        a(f"""s_mov_b64 exec, 1
              ds_add_u32 v15, v97 offset:{SY + (108 if h else 48)}
              s_mov_b64 exec, -1""")
        if not h:
            a(f"""s_setprio {OPT['nprio']}
                  s_waitcnt lgkmcnt(0)""")

def near1(a):
    stamp(a, 5, 1); stamp(a, 3, 3)
    ACC = 16
    TBUF = [48, 56]
    T16 = 64
    UBUF = [68, 72, 76, 80, 84, 88, 92]
    P = Pipe(a)
    def tload(dst, s, gate):
        base, off = (10, 16 * (16 - s)) if s >= 8 else (11, 16 * (8 - s))
        P.load(f"ds_read2_b32 v[{dst}:{dst+1}], v{base} offset0:{off} offset1:{off+1}", gate)
        return P.load(f"ds_read2_b32 v[{dst+2}:{dst+3}], v{base} offset0:{off+2} offset1:{off+3}", gate)
    started = set(); ulast = {}; tlast = {}; nu = 0
    for sl in range(8):
        tb = TBUF[sl % 2]
        tl = tload(tb, sl, tlast.get(tb, -1))
        th = None; t16 = None
        for o in range(8):
            ub = UBUF[nu % len(UBUF)]; nu += 1
            ul = P.load(f"ds_read_b128 v[{ub}:{ub+3}], v12 offset:{2*(UPAD - 16 + 256*o - 32*sl)}", ulast.get(ub, -1))
            if o == 0:
                th = tload(tb + 4, 8 + sl, tlast.get(tb, -1))
                if sl == 0: t16 = tload(T16, 16, -1)
            use = [(o, tb, tl)]
            if o + 1 <= 7: use.append((o + 1, tb + 4, th))
            if sl == 0 and o + 2 <= 7: use.append((o + 2, T16, t16))
            for j, t, tid in use:
                c = f"v[{ACC+4*j}:{ACC+4*j+3}]" if j in started else "0"
                started.add(j)
                P.step(f"v_mfma_f32_16x16x32_f16 v[{ACC+4*j}:{ACC+4*j+3}], v[{t}:{t+3}], v[{ub}:{ub+3}], {c}", [tid, ul])
            ulast[ub] = P.last()
        tlast[tb] = P.last()
    if OPT["skip"] != 1: P.run()
    stamp(a, 4); stamp(a, 4, 3)
    a("s_setprio 3")
    a(f"""s_branch K2_W2B
        K2_W2:
          s_sleep 1
        K2_W2B:
          ds_read_b32 v97, v96 offset:{SY + 32}
          s_waitcnt lgkmcnt(0)
          v_cmp_eq_u32 vcc, 0, v97
          s_cbranch_vccnz K2_W2""")
    stamp(a, 5, 3)
    for j in range(2, 8):
        a(f"ds_read_b128 v[{48+4*(j-2)}:{51+4*(j-2)}], v99 offset:{1024*j}")
    for j in range(8):
        r = ACC + 4 * j
        if j >= 2:
            p = 48 + 4 * (j - 2)
            a(f"""s_waitcnt lgkmcnt(7)
                  v_pk_add_f32 v[{r}:{r+1}], v[{r}:{r+1}], v[{p}:{p+1}]
                  v_pk_add_f32 v[{r+2}:{r+3}], v[{r+2}:{r+3}], v[{p+2}:{p+3}]""")
        a(f"""v_pk_mul_f32 v[{r}:{r+1}], v[{r}:{r+1}], s[70:71] op_sel_hi:[1,0]
              v_pk_mul_f32 v[{r+2}:{r+3}], v[{r+2}:{r+3}], s[70:71] op_sel_hi:[1,0]
              ds_write_b128 v99, v[{r}:{r+3}] offset:{1024*j}""")
    a(f"""s_mov_b64 exec, 1
          ds_add_u32 v15, v97 offset:{SY + 48}
          s_mov_b64 exec, -1""")

def far(a):
    stamp(a, 5, 1); stamp(a, 3, 3)
    if OPT["prio"]: a(f"s_setprio {OPT['prio']}")
    ACC = 16 - 8
    BN = [40, 44]
    UB = [72, 76, 92, 100]
    W = [[2, 6], [80, 84]]
    AP = 88
    half = OPT["single"] and OPT["half"]
    PP = [Pipe(a)]
    class _P:
        load = staticmethod(lambda *x: PP[0].load(*x)); step = staticmethod(lambda *x: PP[0].step(*x)); run = staticmethod(lambda: PP[0].run())
    P = _P
    started = set()
    def accum(j, A, B, need=()):
        c = f"v[{ACC+4*j}:{ACC+4*j+3}]" if j in started else "0"
        started.add(j)
        return P.step(f"v_mfma_f32_16x16x32_f16 v[{ACC+4*j}:{ACC+4*j+3}], v[{A}:{A+3}], v[{B}:{B+3}], {c}", need)
    types = [((0, 1), (-24, -24), (R2B + 0, R2B + 384), 79, (2, 3, 4), 6, (48, 52, 56)),
             ((1, 0), (-16, -16), (R2B + 128, R2B + 256), 79, (2, 3, 4), 6, (60, 64, 68)),
             ((0, 1), (-24, -16), (R3B, R3B + 160), 127, (4, 5, 6, 7), 4, (48, 52, 56, 60))]
    last_use = {}
    bn = [P.load(f"ds_read_b128 v[{BN[i]}:{BN[i]+3}], v13 offset:{BAND + 1024*i}") for i in range(2)]
    nu = [0]
    items = [(ti, jp) for ti, t in enumerate(types) for jp in range(t[5])]
    tl = {}
    def tloads(ti):
        bands, bases, tbls, X, deltas, njp, TF = types[ti]
        for di, D in enumerate(deltas):
            for i in range(2):
                imm = tbls[i] + 2 * (X - 16 * D) - 30 - R2B
                assert imm % 4 == 0 and 0 <= imm <= 1016
                tl[ti, di] = P.load(f"ds_read2_b32 v[{TF[di]+2*i}:{TF[di]+2*i+1}], v10 offset0:{imm//4} offset1:{imm//4 + 1}",
                                    last_use.get(TF[di], -1))
    def windows(n):
        ti, jp = items[n]
        bands, bases, tbls, X, deltas, njp, TF = types[ti]
        if ti == 2 and jp == 0:
            for i in range(2):
                bn[i] = P.load(f"ds_read_b128 v[{BN[i]}:{BN[i]+3}], v13 offset:{BAND + 1024*(2+i)}", last_use[BN[i]])
        regs = {}
        for b in sorted(set(bases)):
            r = UB[nu[0] % len(UB)]; nu[0] += 1
            regs[b] = (r, P.load(f"ds_read_b128 v[{r}:{r+3}], v12 offset:{2*(UPAD + 256*jp + b)}", last_use.get(r, -1)))
        for i in range(2):
            w = W[n % 2][i]
            r, lid = regs[bases[i]]
            s = P.step(f"v_mfma_f32_16x16x32_f16 v[{w}:{w+3}], v[{r}:{r+3}], v[{BN[bands[i]]}:{BN[bands[i]]+3}], 0", [x for x in (lid, bn[bands[i]]) if x >= 0])
            last_use[r] = s; last_use[BN[bands[i]]] = s
    def body(first, last_):
        windows(first)
        for n in range(first, last_):
            ti, jp = items[n]
            bands, bases, tbls, X, deltas, njp, TF = types[ti]
            if n + 1 < last_:
                windows(n + 1)
            if (ti, 0) not in tl: tloads(ti)
            for i in range(2):
                w = W[n % 2][i]
                P.step(f"v_cvt_pk_f16_f32 v{AP+2*i}, v{w}, v{w+1}")
                P.step(f"v_cvt_pk_f16_f32 v{AP+2*i+1}, v{w+2}, v{w+3}")
            for di, D in enumerate(deltas):
                if jp + D <= 7:
                    last_use[TF[di]] = accum(jp + D, AP, TF[di], [x for x in [tl[ti, di]] if x >= 0])
    if half:
        items[:] = [(0, 0), (1, 0), (0, 1), (1, 1)] + [(0, q) for q in range(2, 6)] + [(1, q) for q in range(2, 6)] + [(2, q) for q in range(4)]
        mb = P.load(f"ds_read_b128 v[104:107], v13 offset:{BAND + 4096}")
        mu3 = P.load(f"ds_read_b128 v[108:111], v12 offset:{2*(UPAD + 256*3 - 1032)}")
        body(0, 4)
        for i in range(4):
            P.step(f"v_pk_mul_f16 v{104+i}, v{104+i}, s71", [mb])
        accum(3, 104, 108, [mu3])
        P.run()
        for j in (2, 3):
            a(f"ds_write_b128 v99, v[{ACC+4*j}:{ACC+4*j+3}] offset:{1024*j}")
        a(f"""v_mov_b32 v97, 1
              ds_write_b32 v96, v97 offset:{SY + 32}
              s_waitcnt lgkmcnt(0)""")
        PP[0] = Pipe(a)
        for kx in list(last_use): last_use[kx] = -1
        for kx in list(tl): tl[kx] = -1
        bn[0] = bn[1] = -1
        mu = [P.load(f"ds_read_b128 v[{108+4*(j-4)}:{111+4*(j-4)}], v12 offset:{2*(UPAD + 256*j - 1032)}") for j in range(4, 8)]
        body(4, len(items))
        for j in range(4, 8):
            accum(j, 104, 108 + 4*(j-4), [mu[j-4]])
        P.run()
        stamp(a, 4, 3)
        for j in range(4, 8):
            a(f"ds_write_b128 v99, v[{ACC+4*j}:{ACC+4*j+3}] offset:{1024*j}")
        a(f"""v_mov_b32 v97, 2
              ds_write_b32 v96, v97 offset:{SY + 32}""")
    else:
        windows(0)
        tloads(0)
        for n, (ti, jp) in enumerate(items):
            bands, bases, tbls, X, deltas, njp, TF = types[ti]
            if n + 1 < len(items):
                windows(n + 1)
            if (ti, jp) == (0, 2): tloads(1)
            if (ti, jp) == (2, 0): tloads(2)
            for i in range(2):
                w = W[n % 2][i]
                P.step(f"v_cvt_pk_f16_f32 v{AP+2*i}, v{w}, v{w+1}")
                P.step(f"v_cvt_pk_f16_f32 v{AP+2*i+1}, v{w+2}, v{w+3}")
            for di, D in enumerate(deltas):
                if jp + D <= 7:
                    last_use[TF[di]] = accum(jp + D, AP, TF[di], [tl[ti, di]])
        mb = P.load(f"ds_read_b128 v[64:67], v13 offset:{BAND + 4096}", last_use[64])
        MU = [68, 72, 76, 92, 100]
        mu = [P.load(f"ds_read_b128 v[{MU[j-3]}:{MU[j-3]+3}], v12 offset:{2*(UPAD + 256*j - 1032)}", last_use[MU[j-3]]) for j in range(3, 8)]
        for i in range(4):
            P.step(f"v_pk_mul_f16 v{64+i}, v{64+i}, s71", [mb])
        for j in range(3, 8):
            accum(j, 64, MU[j-3], [mu[j-3]])
        if OPT["skip"] != 2: P.run()
        stamp(a, 4, 3)
        for j in range(2, 8):
            a(f"ds_write_b128 v99, v[{ACC+4*j}:{ACC+4*j+3}] offset:{1024*j}")
        a(f"""v_mov_b32 v97, 1
              ds_write_b32 v96, v97 offset:{SY + 32}""")
    stamp(a, 4); stamp(a, 5, 3)
    if OPT["prio"]: a("s_setprio 0")
    a("""s_cmp_lg_u32 s30, 4
         s_cbranch_scc1 K2_CDONE""")
    if OPT["single"]:
        a(f"""ds_read_b64 v[16:17], v15 offset:{SY + 8}
              s_waitcnt lgkmcnt(0)
              v_readfirstlane_b32 s76, v16
              v_readfirstlane_b32 s77, v17""")
    if OPT["kin"] == 2:
        a("""s_lshl_b32 s72, s64, 16
             s_and_b32 s73, s64, s31
             s_lshl_b32 s74, s65, 16
             s_and_b32 s75, s65, s31""")
    a(f"""s_andn2_b32 s78, 0xffe, s76
          s_andn2_b32 s79, 0xffe, s77
          s_lshr_b32 s78, s78, 1
          s_lshr_b32 s79, s79, 1
          v_and_b32 v2, 1, v1
          v_bfe_u32 v3, v1, 1, 1
          v_lshl_add_u32 v2, v2, 1, v3          ; ch
          v_and_b32 v3, 4, v1
          v_cmp_ne_u32 vcc, 0, v3
          v_mov_b32 v4, s78
          v_mov_b32 v5, s79
          v_mov_b32 v6, s76
          v_mov_b32 v7, s77
          v_cndmask_b32 v4, v4, v5, vcc         ; row
          v_cndmask_b32 v5, v6, v7, vcc         ; key
          v_lshlrev_b32 v6, 3, v4
          {"v_lshlrev_b32 v7, 1, v6" if OPT["single"] and OPT["x8"] else "v_mov_b32 v7, v6"}
          v_lshl_add_u32 v7, v2, 1, v7
          {"" if OPT["single"] and OPT["gat"] else "buffer_load_ushort v80, v7, s[32:35], s59 offen sc1"}
          {"v_lshlrev_b32 v7, 11, v4" if OPT["single"] and OPT["gat"] else ""}
          {"v_lshl_add_u32 v7, v2, 1, v7" if OPT["single"] and OPT["gat"] else ""}
          {"v_add_u32 v7, s57, v7" if OPT["single"] and OPT["gat"] else ""}
          {"global_load_ushort v80, v7, s[44:45]" if OPT["single"] and OPT["gat"] else ""}
          {"v_lshlrev_b32 v6, 1, v6" if OPT["single"] else ""}
          {"buffer_load_dword v82, v6, s[32:35], s60 offen sc1" if OPT["single"] else "buffer_load_dwordx2 v[82:83], v6, s[32:35], s60 offen sc1"}
          v_mov_b32 v81, s72
          v_mov_b32 v3, s73
          v_cmp_eq_u32 vcc, 1, v2
          v_cndmask_b32 v81, v81, v3, vcc
          v_mov_b32 v3, s74
          v_cmp_eq_u32 vcc, 2, v2
          v_cndmask_b32 v81, v81, v3, vcc
          v_mov_b32 v3, s75
          v_cmp_eq_u32 vcc, 3, v2
          v_cndmask_b32 v81, v81, v3, vcc
          v_lshrrev_b32 v86, 1, v1
          v_lshlrev_b32 v86, 7, v86
          v_and_b32 v3, 1, v1
          v_lshl_add_u32 v86, v3, 4, v86
          s_lshr_b32 s72, s3, 2
          s_mul_i32 s72, s72, {NF * 128}
          s_and_b32 s73, s3, 3
          s_lshl_b32 s73, s73, 5
          s_add_u32 s72, s72, s73
          s_add_u32 s80, s72, {WS_PART:#x}
          s_add_u32 s81, s80, 4096
          s_add_u32 s82, s80, 8192
          s_add_u32 s83, s80, 12288
          s_add_u32 s84, s80, 16384
          s_add_u32 s85, s80, 20480
          s_add_u32 s86, s80, 24576
          v_mul_u32_u24 v84, {KGC}, v2
          v_lshrrev_b32 v3, 8, v4
          v_lshl_add_u32 v84, v3, 10, v84
          v_bfe_u32 v3, v4, 2, 2
          v_lshl_add_u32 v84, v3, 8, v84
          v_bfe_u32 v3, v4, 4, 4
          v_lshl_add_u32 v84, v3, 4, v84
          v_and_b32 v3, 3, v4
          v_lshl_add_u32 v84, v3, 2, v84
          v_lshlrev_b32 v87, 11, v4
          v_lshl_add_u32 v87, v2, 1, v87
          v_and_b32 v5, s31, v5
          v_ashrrev_i32 v3, 31, v5
          v_not_b32 v3, v3
          v_or_b32 v3, 0x80000000, v3
          v_xor_b32 v5, v5, v3
          v_and_b32 v5, s31, v5
          v_mul_f32 v85, s58, v5
          v_exp_f32 v85, -v85
          v_and_b32 v3, 2, v1
          v_cmp_ne_u32 s[74:75], 0, v3
          v_add_f32 v85, 1.0, v85
          v_rcp_f32 v85, v85
          v_and_b32 v3, 4, v1
          v_cmp_ne_u32 s[76:77], 0, v3""")
    rbf(a, 85)

def wait_y(a, label, which=None):
    half = OPT["single"] and OPT["half"]
    a("v_mov_b32 v96, 0")
    if half and which is None:
        a("""s_cmp_lt_u32 s30, 4
             s_cselect_b32 s72, 0, 60
             v_mov_b32 v97, s72""")
    reg = "v97" if half and which is None else "v96"
    off = SY + (108 if half and which else 48)
    a(f"""s_branch {label}B
        {label}:
          s_sleep 1
        {label}B:
          ds_read_b32 v3, {reg} offset:{off}
          s_waitcnt lgkmcnt(0)
          v_cmp_gt_u32 vcc, 4, v3
          s_cbranch_vccnz {label}""")

def epilogue(a, last=True):
    Y = 32
    srd(a, 36, 26, 27, 0x400000)
    a(f"""s_lshl_b32 s72, s30, 10
          s_add_u32 s72, s72, {KG}
          v_add_u32 v2, s72, v20
          v_lshlrev_b32 v100, 8, v98
          v_add_u32 v101, 4096, v100""")
    if OPT["lean"]: lean_gb(a)
    pre = OPT["pre"] and not OPT["lean"]
    if pre:
        for n in range(8):
            unpack(a, 64 + 2*n, PUD + n, 31)
            unpack(a, 80 + 2*n, PG + n, 31)
        for n in range(8):
            unpack(a, 112 + 2*n, PX + n, 31)
    stamp(a, 3, 2)
    wait_y(a, "K2_W3")
    stamp(a, 4, 2)
    for ch in range(4):
        a(f"ds_read_b128 v[{Y+4*ch}:{Y+4*ch+3}], v2 offset:{KGC*ch}")
    for hh in range(2 if OPT["lean"] else 0):
        a(f"s_waitcnt lgkmcnt({2-2*hh})")
        for q in range(4):
            for c in range(2):
                ch = 2 * hh + c
                a(f"v_fmac_f32 v{LB+4*q+ch}, v{Y+4*ch+q}, v{LG+4*q+ch}")
        for q in range(4):
            a(f"v_cvt_pk_bf16_f32 v{48+2*q+hh}, v{LB+4*q+2*hh}, v{LB+4*q+2*hh+1}")
            if hh == 1:
                a(f"buffer_store_dwordx2 v[{48+2*q}:{49+2*q}], v{100+q//2}, s[36:39], s80 offen offset:{2048*(q%2)}")
    for hh in range(2 if pre else 0):
        a(f"s_waitcnt lgkmcnt({2-2*hh})")
        T = [48 + 3*q for q in range(4)]
        def st(fmt):
            for q in range(4):
                n = 2*q + hh
                a(fmt.format(t=8+q, p=48+2*q, p1=49+2*q, y0=Y+8*hh+q, y1=Y+8*hh+4+q, u=64+2*n, u1=65+2*n, g=80+2*n, g1=81+2*n, x=112+2*n, x1=113+2*n, o=56+2*q+hh))
        st("v_cvt_pk_bf16_f32 v{t}, v{y0}, v{y1}")
        for nxt in ("v_pk_add_f32 v[{p}:{p1}], v[{p}:{p1}], v[{u}:{u1}]", "v_pk_mul_f32 v[{p}:{p1}], v[{p}:{p1}], v[{g}:{g1}]",
                    "v_pk_add_f32 v[{p}:{p1}], v[{p}:{p1}], v[{x}:{x1}]"):
            st("v_lshlrev_b32 v{p}, 16, v{t}")
            st("v_and_b32 v{p1}, s31, v{t}")
            st(nxt)
            if "x1" not in nxt:
                st("v_cvt_pk_bf16_f32 v{t}, v{p}, v{p1}")
        for q in range(4):
            a(f"v_cvt_pk_bf16_f32 v{56+2*q+hh}, v{48+2*q}, v{49+2*q}")
            if hh == 1:
                if not OPT["exp"] & 8: a(f"buffer_store_dwordx2 v[{56+2*q}:{57+2*q}], v{100+q//2}, s[36:39], s80 offen offset:{2048*(q%2)}")
    for hh in range(0 if OPT["lean"] or pre else 2):
        a(f"s_waitcnt lgkmcnt({2-2*hh})")
        for q in range(4):
            t = 48 + 6 * (q % 2)
            a(f"v_cvt_pk_bf16_f32 v{t}, v{Y+8*hh+q}, v{Y+8*hh+4+q}")
            unpack(a, t + 2, PUD + 2*q + hh, 31)
            unpack(a, t + 4, t, 31)
            a(f"""v_pk_add_f32 v[{t+2}:{t+3}], v[{t+2}:{t+3}], v[{t+4}:{t+5}]
                  v_cvt_pk_bf16_f32 v{t}, v{t+2}, v{t+3}""")
            unpack(a, t + 2, PG + 2*q + hh, 31)
            unpack(a, t + 4, t, 31)
            a(f"""v_pk_mul_f32 v[{t+2}:{t+3}], v[{t+2}:{t+3}], v[{t+4}:{t+5}]
                  v_cvt_pk_bf16_f32 v{t}, v{t+2}, v{t+3}""")
            unpack(a, t + 2, PX + 2*q + hh, 31)
            unpack(a, t + 4, t, 31)
            a(f"""v_pk_add_f32 v[{t+2}:{t+3}], v[{t+2}:{t+3}], v[{t+4}:{t+5}]
                  v_cvt_pk_bf16_f32 v{64+2*q+hh}, v{t+2}, v{t+3}""")
            if hh == 1:
                a(f"buffer_store_dwordx2 v[{64+2*q}:{65+2*q}], v{100+q//2}, s[36:39], s80 offen offset:{2048*(q%2)}")
    stamp(a, 5, 2)
    if last: epi_end(a)

def epi_end(a):
    a(f"""v_mov_b32 v3, 1
          s_mov_b64 exec, 1
          s_waitcnt vmcnt(0)
          ds_add_u32 v96, v3 offset:{SY + 52}""")
    if OPT["k2spin"]:
        a("""K2_SPIN:
             s_sleep 8
             s_memrealtime s[92:93]
             s_waitcnt lgkmcnt(0)
             s_sub_u32 s92, s92, s90
             s_cmp_lt_i32 s92, 0
             s_cbranch_scc1 K2_SPIN""")
    if OPT["dbg"]:
        stamp(a, 5)
        stamp_flush(a, 1, 32, 30, 0)
    a("s_endpgm")

def fixup(a):
    for i in range(7):
        a(f"buffer_load_dwordx4 v[{48+4*i}:{51+4*i}], v86, s[32:35], s{80+i} offen {OPT['p1']}")
    stamp(a, 3, 2)
    wait_y(a, "K2_W3F", 1)
    stamp(a, 4, 2)
    a(f"""ds_read_b32 v84, v84 offset:{KG}
          ds_read_b32 v17, v96 offset:{SY + 56}
          s_mov_b32 s73, 0x40000
          s_waitcnt vmcnt(0) lgkmcnt(0)
          v_lshlrev_b32 v80, 16, v80""")
    if OPT["single"]:
        a("""v_and_b32 v21, s31, v82
             v_lshlrev_b32 v82, 16, v82
             v_rcp_f32 v83, v21
             v_fma_f32 v22, -v21, v83, 1.0
             v_fmac_f32 v83, v22, v83""")
    a("v_sub_f32 v21, v80, v82")
    rbf(a, 21, 84)
    a("v_mul_f32 v21, v21, v83")
    rbf(a, 21)
    a("v_mul_f32 v22, v21, v81")
    rbf(a, 22)
    a("v_add_f32 v22, v22, v84")
    rbf(a, 22)
    a("""s_branch K2_CHECK
       K2_POLL:""")
    for i in range(7):
        a(f"buffer_load_dwordx4 v[{48+4*i}:{51+4*i}], v86, s[32:35], s{80+i} offen sc1")
    a("""s_waitcnt vmcnt(0)
       K2_CHECK:""")
    if OPT["single"]:
        a("v_mov_b32 v18, 0")
        for i in range(7):
            r = 48 + 4 * i
            a(f"""v_xor_b32 v19, v{r}, v{r+1}
                  v_xor_b32 v20, v{r+2}, v{r+3}
                  v_xor_b32 v19, v19, v20
                  v_xor_b32 v19, v19, v17
                  v_or_b32 v18, v18, v19""")
        a("v_cmp_ne_u32 vcc, 0, v18")
    else:
        a("v_max3_u32 v18, v48, v49, v50")
        for r in range(51, 75, 2):
            a(f"v_max3_u32 v18, v18, v{r}, v{r+1}")
        a("""v_max_u32 v18, v18, v75
             v_cmp_eq_u32 vcc, -1, v18""")
    a("s_branch K2_GOT" if OPT["exp"] & 16 else "s_cbranch_vccz K2_GOT")
    if OPT["psleep"]: a(f"s_sleep {OPT['psleep']}")
    a("""s_sub_u32 s73, s73, 1
         s_cbranch_scc0 K2_POLL
       K2_GOT:""")
    stamp(a, 5, 2)
    if OPT["single"]:
        a("""s_mov_b32 s64, 0x04000c0c
             s_mov_b32 s65, 0x0706000c""")
        for i in range(7):
            r = 48 + 4 * i
            a(f"""v_perm_b32 v{r+3}, v{r}, v{r+1}, s64
                  v_perm_b32 v{r+3}, v{r+3}, v{r+2}, s65""")
    for i in (0, 2, 4):
        a(f"""v_pk_add_f32 v[{48+4*i}:{49+4*i}], v[{48+4*i}:{49+4*i}], v[{52+4*i}:{53+4*i}]
              v_pk_add_f32 v[{50+4*i}:{51+4*i}], v[{50+4*i}:{51+4*i}], v[{54+4*i}:{55+4*i}]""")
    a("""v_pk_add_f32 v[48:49], v[48:49], v[56:57]
         v_pk_add_f32 v[50:51], v[50:51], v[58:59]
         v_pk_add_f32 v[64:65], v[64:65], v[72:73]
         v_pk_add_f32 v[66:67], v[66:67], v[74:75]
         v_pk_add_f32 v[48:49], v[48:49], v[64:65]
         v_pk_add_f32 v[50:51], v[50:51], v[66:67]""")
    for mod in ("quad_perm:[2,3,0,1]", "row_ror:4", "row_ror:8"):
        for r in range(48, 52):
            a(f"v_add_f32_dpp v{r}, v{r}, v{r} {mod} row_mask:0xf bank_mask:0xf")
    rows_allreduce(a, [48, 49, 50, 51], 52)
    a("""v_cndmask_b32 v48, v48, v49, s[74:75]
         v_cndmask_b32 v50, v50, v51, s[74:75]
         v_cndmask_b32 v20, v48, v50, s[76:77]""")
    rbf(a, 20)
    a("v_mul_f32 v20, v20, v85")
    rbf(a, 20)
    a("v_add_f32 v20, v20, v21")
    rbf(a, 20)
    a("""v_mul_f32 v23, s58, v20
         v_exp_f32 v23, -v23
         v_add_f32 v23, 1.0, v23
         v_rcp_f32 v23, v23
         v_mul_f32 v23, v23, v20""")
    rbf(a, 23)
    a("v_mul_f32 v23, v23, v22")
    rbf(a, 23)
    a("""v_add_f32 v23, v23, v80
         v_cvt_pk_bf16_f32 v23, v23, v23
         s_waitcnt vmcnt(0)""")
    a(f"""s_branch K2_W4B
        K2_W4:
          s_sleep 1
        K2_W4B:
          ds_read_b32 v3, v96 offset:{SY + 52}
          s_waitcnt lgkmcnt(0)
          v_cmp_gt_u32 vcc, 8, v3
          s_cbranch_vccnz K2_W4
          s_mov_b64 exec, 0xff
          buffer_store_short v23, v87, s[36:39], s57 offen""")

def FRAG_ADDR():
    return f"""v_lshlrev_b32 v12, 5, v96
          v_lshl_add_u32 v12, v97, 4, v12
          v_add_u32 v12, s66, v12
          v_mov_b32 v13, v95
          s_sub_u32 s78, 4, s53
          v_lshlrev_b32 v10, s78, v97
          v_lshlrev_b32 v11, 1, v96
          v_sub_u32 v10, v10, v11
          v_and_b32 v11, 1, v96
          v_xor_b32 v11, 1, v11
          v_mul_u32_u24 v11, {DELTA}, v11
          s_mul_i32 s78, s53, {R2B}
          s_add_u32 s78, s78, s68
          s_add_u32 s78, s78, 30
          v_add3_u32 v10, v10, v11, s78
          v_add_u32 v11, 512, v10"""


def lds_wait(a, label, reg, off, cond, zero="v59"):
    a(f"""s_branch {label}B
        {label}:
          s_sleep 1
        {label}B:
          ds_read_b32 v{reg}, {zero} offset:{off}
          s_waitcnt lgkmcnt(0)
          {cond}
          s_cbranch_vccnz {label}""")

def k3():
    a = Asm()
    name = "recurrent_scan__ssm_conv_s4d__moe_arch_mod__prompt_kernel"
    a.raw(f".p2align 8\n.globl {name}\n.type {name},@function\n{name}:")
    a("""s_cmp_ge_u32 s2, 256
         s_cbranch_scc1 K2_END""")
    stamp(a, 0)
    if OPT["ipf"]:
        a(f"""s_getpc_b64 s[46:47]
              s_lshr_b32 s48, s2, 3
              s_mul_i32 s48, s48, 640
              s_min_u32 s48, s48, 18176
              s_add_u32 s46, s46, s48
              s_addc_u32 s47, s47, 0
              v_lshlrev_b32 v2, 4, v0
              v_cmp_gt_u32 vcc, 48, v0
              s_and_saveexec_b64 s[48:49], vcc
              s_cbranch_execz K3_NOPF
              global_load_dwordx4 v[120:123], v2, s[46:47]
            K3_NOPF:
              s_mov_b64 exec, s[48:49]""")
    a(f"""s_load_dwordx16 s[4:19], s[0:1], 8
          s_load_dwordx8 s[20:27], s[0:1], 72
          s_load_dwordx4 s[40:43], s[0:1], 104
          s_load_dwordx2 s[44:45], s[0:1], 0
          v_lshrrev_b32 v2, 6, v0
          v_and_b32 v1, 63, v0
          s_mov_b32 s31, 0xffff0000
          v_readfirstlane_b32 s30, v2
          s_mov_b32 s58, {L2E_HI:#x}
          v_mov_b32 v59, 0
          s_mov_b32 s88, s30
          {"s_xor_b32 s88, s88, 8" if OPT["efirst"] else ""}
          s_and_b32 s30, s30, 7
          s_cmp_lt_u32 s88, 8
          s_cbranch_scc1 K3_C
          ; ---------------------------------------------------------------- E waves
          v_and_b32 v0, 511, v0
          v_lshlrev_b32 v3, 2, v1
          {"ds_write_b32 v3, v59" if OPT["efirst"] else ""}
          v_lshlrev_b32 v3, 4, v1
          """)
    if OPT["x8"]:
        a(f"""v_lshrrev_b32 v6, 3, v0
              v_and_b32 v7, 7, v0
              v_mul_u32_u24 v4, {XRS}, v7
              v_lshl_add_u32 v4, v6, 4, v4
              v_add_u32 v4, {XR}, v4
              s_mul_i32 s61, s30, {XRS}
              s_add_u32 s61, s61, {XR}
              v_add_u32 v5, s61, v3
              v_lshlrev_b32 v29, 15, v6
              v_lshl_add_u32 v29, v7, 4, v29
              v_add_u32 v6, {XW}, v3""")
    else:
        a(f"""
          v_lshrrev_b32 v6, 2, v0
          v_and_b32 v7, 3, v0
          v_lshlrev_b32 v4, 3, v6
          v_lshl_add_u32 v4, v7, 12, v4
          v_add_u32 v4, {XR}, v4
          s_lshl_b32 s61, s30, 11
          s_add_u32 s61, s61, {XR}
          v_add_u32 v5, s61, v3
          v_add_u32 v6, {XW}, v3
          v_lshrrev_b32 v29, 2, v0
          v_lshlrev_b32 v29, 14, v29
          v_lshl_add_u32 v29, v7, 4, v29
          """)
    a(f"""
          s_lshl_b32 s60, s2, 3
          s_add_u32 s60, s60, s30               ; row
          s_lshl_b32 s61, s60, 11
          s_lshl_b32 s62, s2, 14
          s_lshl_b32 s66, s2, {7 if OPT["x8"] else 6}
          s_add_u32 s67, s66, 0x200000
          s_mov_b32 s65, 0x3f803f80
          v_mov_b32 v30, 0x3a800000
          s_setprio {OPT['eprio']}
          s_waitcnt lgkmcnt(0)""")
    srd(a, 36, 44, 45, 0x400000)
    a("""buffer_load_dwordx4 v[8:11], v3, s[36:39], s61 offen nt
         buffer_load_dwordx4 v[12:15], v3, s[36:39], s61 offen offset:1024 nt""")
    if OPT["efirst"]:
        a("""s_cmp_lg_u32 s60, 1
             s_cbranch_scc1 K3_NONC
             s_memrealtime s[62:63]
             v_mov_b32 v16, 128
             s_waitcnt lgkmcnt(0)
             s_or_b32 s62, s62, 1
             v_mov_b32 v17, s62
             s_mov_b64 exec, 1
             global_store_dword v16, v17, s[40:41] sc1
             s_mov_b64 exec, -1
           K3_NONC:""")
    srd(a, 48, 18, 19, 2048)
    a(f"""s_and_b32 s62, s30, 1
          s_lshl_b32 s62, s62, 10
          s_add_u32 m0, s62, {XW}
          buffer_load_dwordx4 v3, s[48:51], s62 offen lds""")
    a("""s_mov_b32 s28, s42
         s_mov_b32 s29, s43""")
    srd(a, 32, 28, 29, WS_SIZE)
    F = 32
    a(f"""s_mov_b32 s16, s44
          s_mov_b32 s17, s45
          s_mov_b32 s18, s40
          s_mov_b32 s19, s41
          s_mov_b32 s81, s60
          v_mov_b32 v31, 128
          v_mov_b32 v56, 0
          v_mov_b32 v57, 0
          v_mov_b32 v58, 0
          v_mov_b32 v60, 1
          s_barrier
          s_cmp_lg_u32 s30, 0
          s_cbranch_scc1 K3_NN
          global_load_dword v63, v31, s[18:19] sc1
        K3_NN:""")
    if OPT["wdpos"] == 3:
        lds_wait(a, "K3_SW0", 2, SY, "v_cmp_eq_u32 vcc, 0, v2")
        a("""v_readfirstlane_b32 s51, v2
             s_sub_u32 s51, s51, 1
             s_lshr_b32 s50, s51, 6
             s_and_b32 s51, s51, 63""")
        tile_scalars(a, 50, 51, 55, 52, 53, 54, 30)
        srd(a, 44, 24, 25, WBYTES)
        a("""s_lshl_b32 s57, s53, 2
             s_add_u32 s57, s57, s52
             s_lshl_b32 s57, s57, 15
             v_lshlrev_b32 v2, 2, v0
             s_cmp_ge_u32 s51, 28
             s_cselect_b32 s46, 0, s46""")
        for f in range(0, 16, 2):
            a(f"""buffer_load_dword v{80+f}, v2, s[44:47], s57 offen nt
                  buffer_load_dword v{81+f}, v2, s[44:47], s57 offen offset:2048 nt
                  s_add_u32 s57, s57, 4096""")
    W3 = 16 if OPT["wdpos"] == 3 else 0
    a(f"""s_cmp_lg_u32 s30, 0
          s_cbranch_scc1 K3_NN1
          s_waitcnt vmcnt({1 + W3})
          s_branch K3_NN2
        K3_NN1:
          s_waitcnt vmcnt({W3})
        K3_NN2:""")
    stamp(a, 1)
    if not OPT["gat"]:
        a("""ds_write_b128 v5, v[8:11]
             ds_write_b128 v5, v[12:15] offset:1024""")
    a(f"""
          s_mov_b64 exec, 1
          ds_add_u32 v59, v60 offset:{SY + 20}
          s_mov_b64 exec, -1
          """)
    for i in range(8):
        unpack(a, F + 2*i, 8 + i, 31)
        a(f"v_dot2c_f32_bf16 v56, s65, v{8+i}")
    lds_wait(a, "K3_RW", 60, SY + 20, "v_cmp_gt_u32 vcc, 8, v60")
    if OPT["gat"]:
        a("""ds_read_b128 v[100:103], v6
             ds_read_b128 v[104:107], v6 offset:1024
             s_waitcnt lgkmcnt(0)""")
    else:
        a(f"""{"ds_read_b128 v[48:51], v4" if OPT["x8"] else "ds_read2st64_b64 v[48:51], v4 offset0:0 offset1:4"}
              {"ds_read_b128 v[52:55], v4 offset:1024" if OPT["x8"] else "ds_read2st64_b64 v[52:55], v4 offset0:2 offset1:6"}
              ds_read_b128 v[100:103], v6
              ds_read_b128 v[104:107], v6 offset:1024
              s_waitcnt lgkmcnt(2)
              {"" if OPT["exp"] & 2 else "buffer_store_dwordx4 v[48:51], v29, s[32:35], s66 offen " + OPT['xt_flags']}
              {"" if OPT["exp"] & 2 else "buffer_store_dwordx4 v[52:55], v29, s[32:35], s67 offen " + OPT['xt_flags']}
              s_waitcnt lgkmcnt(0)""")
    for i in range(8):
        a(f"""v_dot2c_f32_bf16 v57, v{8+i}, v{100+i}
              v_dot2c_f32_bf16 v58, s65, v{100+i}""")
    a("s_nop 2")
    wave_reduce(a, "v_add_f32", [56, 57, 58])
    a("""v_readlane_b32 s68, v56, 63
         v_mul_f32 v108, s68, v30
         v_cvt_pk_bf16_f32 v60, v108, v108
         v_lshlrev_b32 v60, 16, v60""")
    for i in range(8):
        a(f"v_pk_add_f32 v[{F+2*i}:{F+2*i+1}], v[{F+2*i}:{F+2*i+1}], v[108:109] op_sel_hi:[1,0] neg_lo:[0,1] neg_hi:[0,1]")
    a(f"""v_pk_mul_f32 v[8:9], v[{F}:{F+1}], v[{F}:{F+1}]
          v_pk_mul_f32 v[10:11], v[{F+2}:{F+3}], v[{F+2}:{F+3}]""")
    for i in range(2, 8):
        d = 8 + 2 * (i % 2)
        a(f"v_pk_fma_f32 v[{d}:{d+1}], v[{F+2*i}:{F+2*i+1}], v[{F+2*i}:{F+2*i+1}], v[{d}:{d+1}]")
    a(f"""v_pk_add_f32 v[8:9], v[8:9], v[10:11]
          v_fma_f32 v57, -v60, v58, v57
          v_add_f32 v56, v8, v9""")
    wave_reduce(a, "v_add_f32", [56])
    a("v_mul_f32 v58, v56, v30")
    rbf(a, 58)
    a("v_add_f32 v58, 0x3727c5ac, v58")
    rbf(a, 58)
    a("v_sqrt_f32 v58, v58")
    rbf(a, 58)
    a("""v_rcp_f32 v61, v58
         s_sub_u32 s68, 2047, s60
         s_lshl_b32 s68, s68, 1
         v_lshrrev_b32 v10, 16, v60
         v_or_b32 v10, v10, v58
         v_fma_f32 v56, -v58, v61, 1.0
         v_fmac_f32 v61, v56, v61
         v_mul_f32 v8, v57, v61""")
    rbf(a, 8)
    a(f"""v_ashrrev_i32 v57, 31, v8
          v_or_b32 v57, 0x80000000, v57
          v_xor_b32 v8, v8, v57
          v_and_b32 v8, s31, v8
          v_or_b32 v8, s68, v8
          v_mov_b32 v9, v10
          s_lshl_b32 s68, s30, 3
          v_mov_b32 v11, s68
          v_mov_b32 v12, 1
          s_mov_b32 exec_lo, 0
          s_mov_b32 exec_hi, 0x80000000
          ds_write_b64 v11, v[8:9] offset:{SY + 192}
          s_mov_b64 exec, -1
          s_cmp_lg_u32 s30, 0
          s_cbranch_scc1 K3_NOK
          s_mov_b32 s69, 0x100000
          s_waitcnt vmcnt({0 if OPT["gat"] else 2 + W3})
          s_branch K3_NCHK
        K3_NP:
          s_sleep 8
          global_load_dword v63, v31, s[18:19] sc1
          s_waitcnt vmcnt(0)
          s_sub_u32 s69, s69, 1
          s_cbranch_scc1 K3_NGOT
        K3_NCHK:
          v_cmp_eq_u32 vcc, 0, v63
          s_cbranch_vccnz K3_NP
        K3_NGOT:
          ds_write_b32 v59, v63 offset:{SY + 56}
        K3_NOK:
          s_waitcnt vmcnt(0)
          s_mov_b64 exec, 1
          ds_add_rtn_u32 v12, v59, v12 offset:{SY + 60}
          s_mov_b64 exec, -1
          v_lshlrev_b32 v13, 3, v1
          ds_read_b64 v[8:9], v13 offset:{SY + 192}
          ds_read_b32 v63, v59 offset:{SY + 56}
          s_waitcnt lgkmcnt(0)
          v_readfirstlane_b32 s68, v12
          s_cmp_lg_u32 s68, 7
          s_cbranch_scc1 K3_NOPUBL
          v_mov_b32 v10, v9
          v_mov_b32 v9, v63
          v_mov_b32 v11, v63
          s_lshl_b32 s68, s2, 7
          s_add_u32 s68, s68, {WS_FLAG:#x}
          v_mov_b32 v12, 1
          s_mov_b64 exec, 0xff
          buffer_store_dwordx4 v[8:11], v3, s[32:35], s68 offen sc1
          s_mov_b64 exec, 1
          ds_add_u32 v59, v12 offset:{SY + 60}
          s_mov_b64 exec, -1
        K3_NOPUBL:
          v_mov_b32 v23, v63
          s_mov_b32 s89, 0""")
    stamp(a, 2)
    a("""
       K3_SLOT:""")
    lds_wait(a, "K3_SW", 2, SY, "v_cmp_eq_u32 vcc, 0, v2")
    a("""v_readfirstlane_b32 s51, v2
         s_sub_u32 s51, s51, 1
         s_lshr_b32 s50, s51, 6
         s_and_b32 s51, s51, 63
         s_cmp_ge_u32 s50, 8
         s_cbranch_scc1 K2_END""")
    tile_scalars(a, 50, 51, 55, 52, 53, 54, 30)
    a(f"""s_lshl_b32 s48, s50, 5
          s_add_u32 s48, s48, s51               ; chblk
          s_lshl_b32 s80, s48, 3
          s_load_dwordx2 s[86:87], s[14:15], s80
          s_lshl_b32 s49, s48, 14
          {"s_and_b32 s85, s48, 1" if OPT["x8"] else ""}
          {"s_mul_i32 s85, s85, 16376" if OPT["x8"] else ""}
          {"s_sub_u32 s49, s49, s85" if OPT["x8"] else ""}
          s_lshl_b32 s3, s53, 2
          s_add_u32 s3, s3, s52
          v_lshrrev_b32 v4, 3, v1
          v_mul_u32_u24 v4, 7168, v4
          v_and_b32 v5, 7, v1
          v_lshrrev_b32 v6, 3, v1
          v_and_b32 v6, 2, v6
          v_xor_b32 v5, v5, v6
          v_lshl_add_u32 v4, v5, 4, v4
          v_xor_b32 v5, 64, v4
          v_add_u32 v5, {8 * 7168}, v5
          s_lshl_b32 s55, s30, 12
          s_add_u32 s84, s54, {16 * 7168}
          v_and_b32 v7, 15, v1
          v_lshrrev_b32 v16, 4, v1
          v_lshlrev_b32 v98, 7, v7
          v_lshl_add_u32 v98, v16, 5, v98
          s_lshl_b32 s63, s30, 11
          v_add_u32 v98, s63, v98               ; t0*8""")
    if OPT["dbg"]:
        a("s_mov_b32 s2, s48")
    srd(a, 36, 20, 21, WBYTES)
    srd(a, 40, 22, 23, WBYTES)
    srd(a, 44, 24, 25, WBYTES)
    def bulk(rng):
        for i in rng:
            for mat in range(2):
                a(f"""s_add_u32 m0, s55, {F_W + mat * 32768 + i * 1024}
                      buffer_load_dwordx4 v{4 + i % 2}, s[{36+4*mat}:{39+4*mat}], s{54 if i < 2 else 84} offen {OPT['dma_flags']} lds""")
    def gather():
        a(f"""v_lshlrev_b32 v12, 8, v98
              v_add_u32 v12, s80, v12
              v_add_u32 v13, 4096, v12""")
        for q in range(4):
            a(f"global_load_dwordx2 v[{PX+2*q}:{PX+2*q+1}], v{12 + q//2}, s[16:17] offset:{2048*(q%2)} {OPT['gfl']}")
    def xloads():
        if OPT["gat"]: return
        if OPT["x8"]:
            for q in range(4):
                a(f"buffer_load_dwordx2 v[{PX+2*q}:{PX+2*q+1}], v2, s[32:35], s49 offen offset:{16*q} {OPT['xl']}")
            return
        a(f"""buffer_load_dwordx4 v[{PX}:{PX+3}], v98, s[32:35], s49 offen sc1
              buffer_load_dwordx4 v[{PX+4}:{PX+7}], v98, s[32:35], s49 offen offset:16 sc1""")
    WD = 80
    HF = OPT["half"]
    def wdown():
        for f in range(0, 16, 2):
            a(f"""buffer_load_dword v{WD+f}, v6, s[44:47], s57 offen nt
                  buffer_load_dword v{WD+f+1}, v6, s[44:47], s57 offen offset:2048 nt""")
            if HF:
                a(f"""buffer_load_dword v{64+f}, v6, s[44:47], s57 offen offset:1024 nt
                      buffer_load_dword v{65+f}, v6, s[44:47], s57 offen offset:3072 nt""")
            if f < 14:
                a("s_add_u32 s57, s57, 4096")
    a(f"""v_and_b32 v6, {255 if HF else 511}, v0
          v_lshrrev_b32 v21, 3, v6
          v_lshlrev_b32 v6, 2, v6
          s_lshl_b32 s57, s3, 15
          v_mov_b32 v22, 0
          v_lshlrev_b32 v19, 2, v1
          v_lshlrev_b32 v20, 4, v1
          v_mul_u32_u24 v21, {NF * 128}, v21
          v_and_b32 v17, 7, v0
          v_lshl_add_u32 v21, v17, 4, v21
          s_cmp_lg_u32 s30, 0
          s_cbranch_scc1 K3_NOCL
          s_cmp_lg_u32 s89, 0
          s_cbranch_scc1 K3_NOCL
          s_lshl_b32 s68, s50, 6
          s_add_u32 s68, s68, s51
          s_lshl_b32 s68, s68, 7
          s_add_u32 s68, s68, {WS_CLAIM:#x}
          s_mov_b64 exec, 1
          buffer_atomic_swap v23, v59, s[32:35], s68 offen sc0 sc1
          s_mov_b64 exec, -1
        K3_NOCL:
          """)
    lds_wait(a, "K3_PW", 12, SY + 60, "v_cmp_gt_u32 vcc, 9, v12")
    if OPT["gat"]: gather()
    late = OPT["gat"] and OPT["bpos"]
    a("""s_cmp_ge_u32 s51, 28
         s_cbranch_scc1 K3_NOBULK""")
    if not OPT["exp"] & 4 and not late: bulk(range(OPT["cb"], 4))
    if OPT["wdpos"] == 1: wdown()
    a(f"""K3_NOBULK:
          v_bfe_u32 v17, v1, 2, 2
          v_lshl_add_u32 v18, v16, 3, v17
          v_lshlrev_b32 v18, 7, v18
          v_lshrrev_b32 v17, 1, v17
          v_and_b32 v12, 1, v16
          v_lshl_or_b32 v17, v12, 1, v17
          s_and_b32 s59, s30, 3
          v_xor_b32 v17, s59, v17
          v_lshl_add_u32 v18, v17, 5, v18
          v_and_b32 v17, 3, v1
          v_lshl_add_u32 v18, v17, 3, v18
          s_lshr_b32 s60, s30, 2
          s_lshl_b32 s61, s60, 15
          s_add_u32 s61, s61, {F_W}
          v_add_u32 v18, s61, v18
          v_and_b32 v17, 1, v1
          v_lshlrev_b32 v17, 9, v17
          v_lshl_add_u32 v17, v16, 4, v17
          v_add_u32 v17, {F_XS}, v17
          s_lshl_b32 s61, s53, 13
          s_add_u32 s61, s61, {WS_EX2:#x}
          s_lshl_b32 s62, s59, 11
          s_add_u32 s62, s62, s61
          s_lshl_b32 s63, s52, 9
          s_add_u32 s62, s62, s63
          s_lshl_b32 s63, s60, 8
          s_add_u32 s62, s62, s63
          s_lshl_b32 s63, s52, 11
          s_add_u32 s61, s61, s63
          v_lshlrev_b32 v19, 3, v1
          s_lshl_b32 s53, s3, 7
          s_add_u32 s53, s53, {WS_PART:#x}
          s_mov_b32 s59, 0x05040100
          s_mov_b32 s60, 0x07060302
          v_cmp_gt_u32 s[82:83], 16, v1
          v_lshlrev_b32 v7, 2, v7
          v_lshl_add_u32 v7, v16, 9, v7
          s_lshl_b32 s63, s30, 6
          s_add_u32 s63, s63, {F_XS}
          v_add_u32 v7, s63, v7
          """)
    lds_wait(a, "K3_NW3", 3, SY + 56, "v_cmp_eq_u32 vcc, 0, v3", "v22")
    a(f"""v_lshlrev_b32 v2, 1, v98
          s_mov_b32 s63, {WS_FLAG:#x}
          s_mov_b32 s64, 0x40000
          s_waitcnt lgkmcnt(0)
        K3_FP:""")
    flav = OPT["gpoll"].split(",")
    for n, fl in enumerate(flav):
        for i in range(4):
            a(f"buffer_load_dwordx4 v[{32+4*i}:{35+4*i}], v2, s[32:35], s63 offen offset:{16*i} {fl}")
        a("s_waitcnt vmcnt(0)")
        a("v_xor_b32 v12, v33, v3")
        for r in range(35, 48, 2):
            a(f"""v_xor_b32 v13, v{r}, v3
                  v_or_b32 v12, v12, v13""")
        a(f"""v_cmp_ne_u32 vcc, 0, v12
              s_cbranch_vccz K3_FOK
              s_mov_b64 exec, vcc
              s_sleep {OPT['gsleep']}""")
    a("""s_sub_u32 s64, s64, 1
         s_cbranch_scc0 K3_FP
       K3_FOK:
         s_mov_b64 exec, -1
         s_cmp_lg_u32 s30, 0
         s_cbranch_scc1 K3_NOPUB
         s_cmp_lg_u32 s89, 0
         s_cbranch_scc1 K3_NOPUB
         s_mov_b64 exec, 1
         v_cmp_eq_u32 vcc, v23, v3
         v_cndmask_b32 v23, 1, 2, vcc
         ds_write_b32 v22, v23 offset:28
         s_mov_b64 exec, -1
       K3_NOPUB:
         v_max_u32 v24, v32, v36
         v_min_u32 v25, v32, v36
         v_max_u32 v26, v40, v44
         v_min_u32 v27, v40, v44
         v_mov_b32 v28, 0
         v_mov_b32 v29, 0
         v_mov_b32 v30, 0
         v_mov_b32 v31, 0""")
    top2(a, 24, 12, 64, 65, 68)
    a(f"""v_mov_b32 v24, s64
          v_mov_b32 v25, s65
          v_mov_b32 v26, 1
          s_lshl_b32 s63, s30, 3
          v_mov_b32 v27, s63
          s_mov_b64 exec, 1
          ds_write_b64 v27, v[24:25] offset:{SY + 128}
          ds_add_u32 v22, v26 offset:{SY + 4}
          s_mov_b64 exec, -1""")
    for q in range(4):
        st = ST + 2 * q
        a(f"""v_lshlrev_b32 v{st}, 16, v{34+4*q}
              v_and_b32 v12, s31, v{34+4*q}
              v_rcp_f32 v{st+1}, v12
              v_fma_f32 v13, -v12, v{st+1}, 1.0
              v_fmac_f32 v{st+1}, v13, v{st+1}""")
        if OPT["lean"]:
            a(f"v_mul_f32 v{st}, -v{st}, v{st+1}")
    if OPT["gat"]:
        if late:
            a("""s_cmp_ge_u32 s51, 28
                 s_cbranch_scc1 K3_NOB2""")
            bulk(range(OPT["cb"], 4))
            a("K3_NOB2:")
        stamp(a, 4, 3)
        normalize(a)
        stamp(a, 5, 3)
        a(f"""v_mov_b32 v24, 1
              s_mov_b64 exec, 1
              ds_add_u32 v22, v24 offset:{SY + 16}
              s_mov_b64 exec, -1""")
    lds_wait(a, "K3_GW", 24, SY + 4, "v_cmp_gt_u32 vcc, 8, v24", "v22")
    stamp(a, 3); stamp(a, 3, 3)
    a("""s_cmp_lg_u32 s81, 0
         s_cbranch_scc1 K3_NOZ
         v_mov_b32 v24, 128
         s_mov_b64 exec, 1
         global_store_dword v24, v22, s[18:19] sc1
         s_mov_b64 exec, -1
       K3_NOZ:""")
    xloads()
    for i in range(4):
        a(f"ds_read_b128 v[{32+4*i}:{35+4*i}], v22 offset:{SY + 128 + 16*i}")
    a(f"""ds_read_b32 v26, v22 offset:{SY + 28}
          s_waitcnt lgkmcnt(0)
          v_cmp_lt_u32 vcc, 1, v26
          s_cbranch_vccnz K2_RECOVER""")
    for d, x, y in ((32, 32, 34), (36, 36, 38), (40, 40, 42), (44, 44, 46), (32, 32, 36), (40, 40, 44), (24, 32, 40)):
        a(f"""v_min_u32 v12, v{x}, v{y}
              v_max_u32 v{d}, v{x}, v{y}
              v_max3_u32 v{d+1}, v12, v{x+1}, v{y+1}""")
    a(f"""ds_write_b64 v22, v[24:25] offset:{SY + 8}
          s_cmp_ge_u32 s51, 28
          s_cbranch_scc1 K3_NOXS
          v_cndmask_b32 v24, v25, v24, s[82:83]
          v_not_b32 v24, v24
          v_and_b32 v24, 0xffe, v24             ; row*2
          v_lshlrev_b32 v25, 10, v24
          v_and_b32 v26, 15, v1
          v_lshl_add_u32 v25, v26, 2, v25
          s_lshl_b32 s63, s52, 9
          s_lshl_b32 s64, s30, 6
          s_add_u32 s63, s63, s64
          v_add_u32 v25, s63, v25
          v_lshlrev_b32 v24, 3, v24
          s_mov_b32 s63, {WS_FLAG + 8:#x}
          global_load_dword v12, v25, s[16:17]
          buffer_load_dword v13, v24, s[32:35], s63 offen sc1""")
    if OPT["wdpos"] == 0: wdown()
    a(f"""s_waitcnt vmcnt({16 if OPT["wdpos"] == 0 else 0})
         v_lshlrev_b32 v10, 16, v13
         v_and_b32 v13, s31, v13
         v_rcp_f32 v11, v13
         v_fma_f32 v14, -v13, v11, 1.0
         v_fmac_f32 v11, v14, v11""")
    norm_pair(a, 24, 12, 10, 12, 31)
    a(f"""s_mov_b32 exec_hi, 0
          ds_write_b32 v7, v12
          s_mov_b32 exec_hi, -1
          v_mov_b32 v24, 1
          s_mov_b64 exec, 1
          ds_add_u32 v22, v24 offset:{SY + 24}
          s_mov_b64 exec, -1
          """)
    if OPT["gat"]:
        a("""s_branch K3_G
           K3_NOXS:""")
    else:
        a(f"""
          s_branch K3_NRM
        K3_NOXS:
          s_waitcnt vmcnt(0)
        K3_NRM:""")
        stamp(a, 4, 3)
        normalize(a)
        stamp(a, 5, 3)
        a(f"""v_mov_b32 v24, 1
          s_mov_b64 exec, 1
          ds_add_u32 v22, v24 offset:{SY + 16}
          s_mov_b64 exec, -1
          s_cmp_ge_u32 s51, 28
          s_cbranch_scc0 K3_G
          """)
    a(f"""
          s_branch K3_CWB
        K3_CW:
          s_sleep 1
        K3_CWB:
          ds_read_b32 v25, v22 offset:{SY + 28}
          s_waitcnt lgkmcnt(0)
          v_cmp_eq_u32 vcc, 0, v25
          s_cbranch_vccnz K3_CW
          v_cmp_ne_u32 vcc, 1, v25
          s_cbranch_vccnz K2_RECOVER
        K3_UDG:""")
    udg(a, 24)
    a(f"""s_branch K2_EPI
        K3_G:
          s_branch K2F_GWB
        K2F_GW:
          s_sleep 1
        K2F_GWB:
          ds_read_b64 v[24:25], v22 offset:{SY + 24}
          s_waitcnt lgkmcnt(0)
          v_cmp_lt_u32 vcc, 1, v25
          s_cbranch_vccnz K2_RECOVER
          v_cmp_eq_u32 vcc, 0, v25
          s_cbranch_vccnz K2F_GW
          v_cmp_gt_u32 vcc, 16, v24
          s_cbranch_vccnz K2F_GW
          s_setprio {OPT['fprio']}""")
    stamp(a, 3, 4)
    BF, AF = 32, 64
    P = Pipe(a, maxfly=15)
    for k in range(8):
        A = AF + 4 * (k % 4)
        P.load(f"ds_read_b128 v[{A}:{A+3}], v17 offset:{64*k}", k - 4 if k >= 4 else -1)
        P.load(f"ds_read_b64_tr_b16 v[{BF+4*k}:{BF+4*k+1}], v18 offset:{4096*k}")
        lid = P.load(f"ds_read_b64_tr_b16 v[{BF+4*k+2}:{BF+4*k+3}], v18 offset:{4096*k + 512}")
        d = 24 + 4 * (k % 2)
        c = "0" if k < 2 else f"v[{d}:{d+3}]"
        P.step(f"v_mfma_f32_16x16x32_bf16 v[{d}:{d+3}], v[{A}:{A+3}], v[{BF+4*k}:{BF+4*k+3}], {c}", [lid])
    P.run()
    a("""v_add_f32 v24, v24, v28
         v_add_f32 v25, v25, v29
         v_cndmask_b32 v24, v25, v24, s[82:83]
         v_mov_b32 v25, v3
         s_mov_b32 exec_hi, 0
         buffer_store_dwordx2 v[24:25], v19, s[32:35], s62 offen sc1
         s_mov_b32 exec_hi, -1""")
    stamp(a, 4, 4)
    if HF:
        a("""s_cmp_lt_u32 s30, 4
             s_cbranch_scc1 K3_UDG""")
    if OPT["wdpos"] == 2: wdown()
    if OPT["wdpos"] == 3:
        a("""s_cmp_eq_u32 s89, 0
             s_cbranch_scc1 K3_WDOK""")
        wdown()
        a("K3_WDOK:")
    if not OPT["upos"]:
        a(f"s_setprio {OPT['uprio']}")
        udg(a, 24, 32)
        a(f"s_setprio {OPT['fprio']}")
    def gemv2():
        P0, P1 = 64, 72
        a("""v_mov_b32 v24, 0
             v_mov_b32 v25, 0
             v_mov_b32 v26, 0
             v_mov_b32 v27, 0
             s_mov_b32 s63, 0x40000""")
        a("""v_lshlrev_b32 v23, 5, v1
           K2F_POLL:
             buffer_load_dwordx4 v[40:43], v23, s[32:35], s61 offen sc1
             buffer_load_dwordx4 v[44:47], v23, s[32:35], s61 offen offset:16 sc1
             s_waitcnt vmcnt(0)
             v_xor_b32 v36, v41, v3
             v_xor_b32 v37, v43, v3
             v_xor_b32 v38, v45, v3
             v_xor_b32 v39, v47, v3
             v_or3_b32 v36, v36, v37, v38
             v_or_b32 v36, v36, v39
             v_cmp_ne_u32 vcc, 0, v36
             """)
        a("s_branch K2F_GOT" if OPT["exp"] & 32 else "s_cbranch_vccz K2F_GOT")
        if OPT["esleep"]: a(f"s_sleep {OPT['esleep']}")
        a("""s_sub_u32 s63, s63, 1
             s_cbranch_scc0 K2F_POLL
           K2F_GOT:""")
        stamp(a, 4)
        a("""v_mov_b32 v32, v40
             v_mov_b32 v33, v42
             v_mov_b32 v34, v44
             v_mov_b32 v35, v46""")
        rows_allreduce(a, [32, 33, 34, 35], 36)
        a("""v_cvt_pk_bf16_f32 v32, v32, v33
             v_cvt_pk_bf16_f32 v33, v34, v35""")
        unpack(a, 40, 32, 31); unpack(a, 42, 33, 31)
        a("""v_mov_b32_dpp v34, v32 row_ror:8 row_mask:0xf bank_mask:0xf
             v_mov_b32_dpp v35, v33 row_ror:8 row_mask:0xf bank_mask:0xf""")
        for r in range(4):
            a(f"v_mul_f32 v{44+r}, s58, v{40+r}")
        for r in range(4):
            a(f"v_exp_f32 v{44+r}, -v{44+r}")
        unpack(a, 48, 34, 31); unpack(a, 50, 35, 31)
        for r in range(4):
            a(f"v_add_f32 v{44+r}, 1.0, v{44+r}")
        for r in range(4):
            a(f"v_rcp_f32 v{44+r}, v{44+r}")
        if not HF:
            for p in range(4):
                a(f"""v_perm_b32 v{P0+p}, v{WD+2*p+1}, v{WD+2*p}, s59
                      v_perm_b32 v{P1+p}, v{WD+2*p+1}, v{WD+2*p}, s60""")
        for r in range(4):
            a(f"v_mul_f32 v{44+r}, v{44+r}, v{40+r}")
        a("""v_cvt_pk_bf16_f32 v32, v44, v45
             v_cvt_pk_bf16_f32 v33, v46, v47""")
        unpack(a, 40, 32, 31); unpack(a, 42, 33, 31)
        for r in range(4):
            a(f"v_mul_f32 v{40+r}, v{40+r}, v{48+r}")
        a("""v_cvt_pk_bf16_f32 v32, v40, v41
             v_cvt_pk_bf16_f32 v33, v42, v43""")
        for l in range(8):
            a(f"""v_readlane_b32 s{64+2*l}, v32, {l}
                  v_readlane_b32 s{65+2*l}, v33, {l}""")
        if HF:
            a(f"""s_mov_b32 s84, 0x07060503
                  s_mov_b32 s85, 0x07060502
                  s_mov_b32 s63, 0x07060501
                  s_add_u32 s62, s53, {32 * NF * 128}""")
            for r in range(28, 32):
                a(f"v_mov_b32 v{r}, 0")
            for wd, ac, so in ((80, 24, 53), (64, 28, 62)):
                for p in range(8):
                    t = 48 + 2 * (p % 2)
                    a(f"""v_perm_b32 v{t}, v{wd+2*p+1}, v{wd+2*p}, s59
                          v_perm_b32 v{t+1}, v{wd+2*p+1}, v{wd+2*p}, s60
                          v_dot2c_f32_bf16 v{ac}, s{64+p}, v{t}
                          v_dot2c_f32_bf16 v{ac+1}, s{64+p}, v{t+1}
                          v_dot2c_f32_bf16 v{ac+2}, s{72+p}, v{t}
                          v_dot2c_f32_bf16 v{ac+3}, s{72+p}, v{t+1}""")
                a("s_nop 2")
                for r in range(4):
                    a(f"v_add_u32 v{ac+r}, 0x80, v{ac+r}")
                a(f"""v_perm_b32 v{ac}, v{ac}, v{ac+3}, s84
                      v_perm_b32 v{ac+1}, v{ac+1}, v{ac+3}, s85
                      v_perm_b32 v{ac+2}, v{ac+2}, v{ac+3}, s63
                      v_xor_b32 v{ac+3}, v{ac}, v{ac+1}
                      v_xor_b32 v{ac+3}, v{ac+3}, v{ac+2}
                      v_xor_b32 v{ac+3}, v{ac+3}, v3
                      buffer_store_dwordx4 v[{ac}:{ac+3}], v21, s[32:35], s{so} offen sc1""")
            return
        for p in range(4, 8):
            a(f"""v_perm_b32 v{P0+p}, v{WD+2*p+1}, v{WD+2*p}, s59
                  v_perm_b32 v{P1+p}, v{WD+2*p+1}, v{WD+2*p}, s60""")
        for p in range(8):
            a(f"""v_dot2c_f32_bf16 v24, s{64+p}, v{P0+p}
                  v_dot2c_f32_bf16 v25, s{64+p}, v{P1+p}
                  v_dot2c_f32_bf16 v26, s{72+p}, v{P0+p}
                  v_dot2c_f32_bf16 v27, s{72+p}, v{P1+p}""")
        a("""s_nop 2
             v_add_u32 v24, 0x80, v24
             v_add_u32 v25, 0x80, v25
             v_add_u32 v26, 0x80, v26
             v_add_u32 v27, 0x80, v27
             s_mov_b32 s64, 0x07060503
             s_mov_b32 s65, 0x07060502
             s_mov_b32 s66, 0x07060501
             v_perm_b32 v24, v24, v27, s64
             v_perm_b32 v25, v25, v27, s65
             v_perm_b32 v26, v26, v27, s66
             v_xor_b32 v27, v24, v25
             v_xor_b32 v27, v27, v26
             v_xor_b32 v27, v27, v3
             buffer_store_dwordx4 v[24:27], v21, s[32:35], s53 offen sc1""")
    stamp(a, 5, 4)
    gemv2()
    if OPT["upos"]:
        a(f"s_setprio {OPT['uprio']}")
        udg(a, 24)
        a(f"s_setprio {OPT['fprio']}")
    a("K2_EPI:")
    epilogue(a)
    a.raw(".p2align 6")
    a(f"""K3_C:
          v_lshlrev_b32 v6, 2, v1
          {"" if OPT["efirst"] else "ds_write_b32 v6, v59"}
          s_getreg_b32 s50, hwreg(HW_REG_XCC_ID)
          s_and_b32 s50, s50, 7
          s_lshl_b32 s51, s50, 7
          s_add_u32 s51, s51, {WS_CNT:#x}
          v_mov_b32 v5, 1
          v_mov_b32 v7, 128
          s_waitcnt lgkmcnt(0)
          s_mov_b32 s28, s42
          s_mov_b32 s29, s43""")
    srd(a, 32, 28, 29, WS_SIZE)
    a(f"""s_cmp_lg_u32 s30, 0
          s_cbranch_scc1 K3_NOTK
          s_mov_b64 exec, 1
          buffer_atomic_add v5, v59, s[32:35], s51 offen sc0
          s_mov_b64 exec, -1
        K3_NOTK:
          """)
    nonce = f"""s_cmp_lg_u32 s30, 2
          s_cbranch_scc1 K3_NONC
          s_cmp_lg_u32 s2, 0
          s_cbranch_scc1 K3_NONC
          s_memrealtime s[60:61]
          s_waitcnt lgkmcnt(0)
          s_or_b32 s60, s60, 1
          v_mov_b32 v8, s60
          s_mov_b64 exec, 1
          global_store_dword v7, v8, s[40:41] sc1
          s_mov_b64 exec, -1
        K3_NONC:"""
    if not OPT["efirst"]: a(nonce)
    a(f"""
          s_barrier
          s_cmp_lg_u32 s30, 0
          s_cbranch_scc1 K3_NOT0
          s_lshl_b32 s50, s50, 6
          s_waitcnt vmcnt(0)
          v_readfirstlane_b32 s51, v5
          {"s_lshr_b32 s51, s51, 1" if OPT["badhint"] else ""}
          s_and_b32 s51, s51, 31
          s_add_u32 s50, s50, s51
          s_add_u32 s50, s50, 1
          v_mov_b32 v5, s50
          ds_write_b32 v59, v5 offset:{SY}
        K3_NOT0:
          s_cmp_lt_u32 s30, 3
          s_cbranch_scc1 K3_NOBAND
          s_sub_u32 s30, s30, 3
          s_lshl_b32 s70, s30, 2
          s_lshr_b32 s71, 0xabcda, s70
          s_and_b32 s71, s71, 15
          s_lshr_b32 s72, 0x66824, s70
          s_and_b32 s72, s72, 15
          v_lshrrev_b32 v4, 4, v1
          v_lshlrev_b32 v4, 3, v4
          v_and_b32 v5, 15, v1
          v_sub_u32 v4, v5, v4
          v_add_u32 v4, s71, v4
          v_mov_b32 v60, 0x3c00
          v_mov_b32 v61, 0x3c000000""")
    for jj in range(8):
        a(f"""v_subrev_u32 v5, {jj}, v4
              v_cmp_ge_u32 s[{74+2*jj}:{75+2*jj}], s72, v5""")
    for i in range(4):
        a(f"""v_cndmask_b32 v{64+i}, 0, v60, s[{74+4*i}:{75+4*i}]
              v_cndmask_b32 v5, 0, v61, s[{76+4*i}:{77+4*i}]
              v_or_b32 v{64+i}, v{64+i}, v5""")
    a(f"""s_lshl_b32 s70, s30, 10
          v_lshl_add_u32 v4, v1, 4, s70
          ds_write_b128 v4, v[64:67] offset:{BAND}
          s_add_u32 s30, s30, 3
          s_mov_b32 s88, s30
        K3_NOBAND:
        K3_CSLOT:
          v_mov_b32 v59, 0""")
    lds_wait(a, "K3_CSW", 2, SY, "v_cmp_eq_u32 vcc, 0, v2")
    a("""v_readfirstlane_b32 s51, v2
         s_sub_u32 s51, s51, 1
         s_lshr_b32 s50, s51, 6
         s_and_b32 s51, s51, 63
         s_cmp_ge_u32 s50, 8
         s_cbranch_scc1 K2_END
         s_lshl_b32 s3, s50, 5
         s_add_u32 s3, s3, s51""")
    if OPT["dbg"]:
        a("s_mov_b32 s2, s3")
    stamp(a, 1)
    kgen_loads(a)
    CB = OPT["cb"]
    if CB:
        tile_scalars(a, 50, 51, 61, 62, 63, 66, 30)
        srd(a, 36, 20, 21, WBYTES)
        srd(a, 40, 22, 23, WBYTES)
        a(f"""v_lshrrev_b32 v16, 3, v1
              v_mul_u32_u24 v16, 7168, v16
              v_and_b32 v17, 7, v1
              v_lshrrev_b32 v18, 3, v1
              v_and_b32 v18, 2, v18
              v_xor_b32 v17, v17, v18
              v_lshl_add_u32 v16, v17, 4, v16
              v_xor_b32 v17, 64, v16
              v_add_u32 v17, {8 * 7168}, v17
              s_lshl_b32 s61, s30, 12
              s_add_u32 s67, s66, {16 * 7168}
              s_cmp_ge_u32 s51, 28
              s_cbranch_scc1 K3_CNOB""")
        for i in range(CB):
            for mat in range(2):
                a(f"""s_add_u32 m0, s61, {F_W + mat * 32768 + i * 1024}
                      buffer_load_dwordx4 v{16 + i % 2}, s[{36+4*mat}:{39+4*mat}], s{66 if i < 2 else 67} offen {OPT['dma_flags']} lds""")
        a("""s_branch K3_CB
           K3_CNOB:
             s_waitcnt vmcnt(0)
           K3_CB:""")
    a(f"""s_lshl_b32 s57, s3, 3
          s_load_dwordx2 s[64:65], s[14:15], s57
          v_and_b32 v96, 15, v1
          v_lshrrev_b32 v97, 4, v1
          s_lshl_b32 s59, s3, 14
          {"s_and_b32 s60, s3, 1" if OPT["x8"] else ""}
          {"s_mul_i32 s60, s60, 16376" if OPT["x8"] else ""}
          {"s_sub_u32 s59, s59, s60" if OPT["x8"] else ""}
          s_mov_b32 s60, {WS_FLAG + 8:#x}
          v_lshlrev_b32 v95, 4, v1
          v_mov_b32 v12, 0
          v_mov_b32 v13, 0
          v_mov_b32 v14, 0
          v_mov_b32 v15, 0
          s_mul_i32 s66, s52, {UROW}
          s_add_u32 s66, s66, {UA}
          v_add_u32 v11, s66, v95
          s_mov_b32 exec_hi, 3
          ds_write_b128 v11, v[12:15]
          s_mov_b32 exec_hi, -1
          """)
    srd(a, 36, 26, 27, 0x400000)
    kgen_setup(a)
    a(f"s_waitcnt vmcnt({2 * CB})")
    stamp(a, 2)
    kgen_main(a)
    a(f"""v_mov_b32 v2, 0
          v_mov_b32 v3, 1
          s_waitcnt vmcnt(0)
          s_mov_b64 exec, 1
          ds_add_u32 v2, v3 offset:{SY + 24}
          s_mov_b64 exec, -1""")
    a("""s_cmp_eq_u32 s53, 0
         s_cbranch_scc0 K2_FAR""")
    near_table(a, "K2")
    a(FRAG_ADDR())
    a(f"s_setprio {OPT['nprio']}")
    conv_sync(a, "K2_W1N")
    near(a)
    flush(a)
    a.raw(".p2align 6")
    a("K2_FAR:")
    far_table(a, "K2")
    a("v_readlane_b32 s71, v89, 0")
    a(FRAG_ADDR())
    a(f"s_setprio {OPT['prio']}")
    conv_sync(a, "K2_W1F")
    far(a)
    fixup(a)
    a("K2_CDONE:")
    flush(a)
    a(f"""K2_RECOVER:
          s_setprio 0
          s_waitcnt vmcnt(0) lgkmcnt(0)
          s_mov_b32 s89, 1
          v_mov_b32 v59, 0
          s_waitcnt lgkmcnt(0)
          s_barrier
          s_cmp_lg_u32 s88, 0
          s_cbranch_scc1 K3_RB""")
    lds_wait(a, "K3_RN", 3, SY + 56, "v_cmp_eq_u32 vcc, 0, v3")
    a(f"""s_mov_b32 s50, 512
        K2_SCAN:
          s_sub_u32 s50, s50, 1
          s_cbranch_scc1 K2_NOSLOT
          s_and_b32 s51, s50, 63
          s_cmp_ge_u32 s51, 32
          s_cbranch_scc1 K2_SCAN
          s_lshl_b32 s51, s50, 7
          s_add_u32 s51, s51, {WS_CLAIM:#x}
          v_mov_b32 v4, v3
          s_mov_b64 exec, 1
          buffer_atomic_swap v4, v59, s[32:35], s51 offen sc0 sc1
          s_waitcnt vmcnt(0)
          v_cmp_eq_u32 vcc, v3, v4
          s_mov_b64 exec, -1
          s_cbranch_vccnz K2_SCAN
          s_branch K2_SCAN_END
        K2_NOSLOT:
          s_mov_b32 s50, 0x4000
        K2_SCAN_END:
          s_add_u32 s50, s50, 1
          v_mov_b32 v5, s50
          v_mov_b32 v6, 1
          v_lshlrev_b32 v7, 2, v1
          ds_write_b32 v59, v5 offset:{SY}
          ds_write_b32 v59, v59 offset:{SY + 4}
          ds_write_b32 v59, v59 offset:{SY + 16}
          ds_write_b32 v59, v59 offset:{SY + 24}
          ds_write_b32 v59, v6 offset:{SY + 28}
          s_mov_b64 exec, 0xff
          ds_write_b32 v7, v59 offset:{SY + 64}
          s_mov_b64 exec, -1
          s_waitcnt lgkmcnt(0)
        K3_RB:
          s_barrier
          s_cmp_ge_u32 s88, 8
          s_cbranch_scc1 K3_SLOT
          s_branch K3_CSLOT
        K2_END:
          s_endpgm""")
    return a.finish(), desc(name, 128, 102 if OPT["dbg"] else 96)

def main(path, kernels):
    hdr = open("recurrent_scan__ssm_conv_s4d__moe_arch_mod__prompt.s.ref").read().split("\n")
    out = [l for l in hdr if l.startswith(";") and "@launch" not in l and "Override launch" not in l and "grid=ceil" not in l]
    for name, fn, grid, block, lds in kernels:
        out.append(f"; @launch {'' if len(kernels) == 1 else 'kernel=' + name + ' '}grid=({grid},1,1) block=({block},1,1) lds={lds}")
    out.append('.amdgcn_target "amdgcn-amd-amdhsa--gfx950"\n.text')
    body, descs = [], []
    for name, fn, grid, block, lds in kernels:
        b, d = fn()
        body.append(b); descs.append(d)
    out += body
    out.append('.section .rodata,"a"')
    out += descs
    open(path, "w").write("\n".join(out))

if __name__ == "__main__":
    for kv in sys.argv[2:]:
        k, v = kv.split("=")
        assert k in OPT, k
        OPT[k] = int(v) if v.lstrip("-").isdigit() else v.replace("+", " ")
    if OPT["single"]:
        main(sys.argv[1], [("recurrent_scan__ssm_conv_s4d__moe_arch_mod__prompt_kernel", k3, 256, 1024, K2_LDS)])
        sys.exit(0)
    main(sys.argv[1] if len(sys.argv) > 1 else "k.s",
         [("k1_kernel", k1f, 256, 1024, F_XS) if OPT["kin"] == 1 else ("k1_kernel", k1, 256, 1024, K1_LDS), ("k2_kernel", k2, 256, 1024, K2_LDS)])
```

```python
import sys, os
sys.path.insert(0, os.path.join(os.path.dirname(os.path.abspath(__file__)), ".."))
from asmlib import Asm
NAME = "recurrent_scan__ssm_conv_s4d__moe_arch_mod__prompt_kernel"
ST0 = int(os.environ.get("ST0", 64)); NST = int(os.environ.get("NST", 16))
def head(a):
    a.raw(f".p2align 8\n.globl {NAME}\n.type {NAME},@function\n{NAME}:")
    a("""s_cmp_ge_u32 s2, 256
         s_cbranch_scc1 K_END""")
    for i in range(1, NST): a(f"s_mov_b32 s{ST0+2*i}, 0")
def stamp(a, i, cyc=False):
    a(("s_memtime" if cyc else "s_memrealtime") + f" s[{ST0+2*i}:{ST0+2*i+1}]")
def srd(a, d, lo, hi, size):
    a(f"""s_mov_b32 s{d}, s{lo}
          s_mov_b32 s{d+1}, s{hi}
          s_mov_b32 s{d+2}, {size:#x}
          s_mov_b32 s{d+3}, 0x00020000""")
def flush(a, wave_s):
    a(f"""s_load_dwordx2 s[96:97], s[0:1], 112
          s_mov_b64 exec, 1
          s_lshl_b32 s100, s2, 4
          s_add_u32 s100, s100, s{wave_s}
          s_lshl_b32 s100, s100, 6
          s_add_u32 s100, s100, 0x700000
          s_waitcnt lgkmcnt(0)
          s_mov_b32 s98, 0x1000000
          s_mov_b32 s99, 0x00020000
          v_mov_b32 v0, 0""")
    for i in range(16): a(f"v_mov_b32 v{4+i}, s{ST0+2*min(i, NST-1)}")
    for i in range(4): a(f"buffer_store_dwordx4 v[{4+4*i}:{7+4*i}], v0, s[96:99], s100 offen offset:{16*i}")
    a("""K_END:
         s_endpgm""")
def write(path, a, block, lds, vgpr=128):
    hdr = f"; @launch grid=(256,1,1) block=({block},1,1) lds={lds}\n" + '.amdgcn_target "amdgcn-amd-amdhsa--gfx950"\n.text\n'
    d = f""".section .rodata,"a"
.p2align 6
.amdhsa_kernel {NAME}
  .amdhsa_next_free_vgpr {vgpr}
  .amdhsa_next_free_sgpr 102
  .amdhsa_accum_offset {(vgpr + 3) // 4 * 4}
  .amdhsa_group_segment_fixed_size 0
  .amdhsa_kernarg_size 120
  .amdhsa_user_sgpr_count 2
  .amdhsa_user_sgpr_kernarg_segment_ptr 1
  .amdhsa_system_sgpr_workgroup_id_x 1
.end_amdhsa_kernel
"""
    open(path, "w").write(hdr + a.finish() + d)
```

```python
from mblib import *
WB = 1024 * 3584 * 2
def probe(kind, fl):
    a = Asm()
    a.raw(".p2align 8\n.globl probe_kernel\n.type probe_kernel,@function\nprobe_kernel:")
    a("""s_cmp_ge_u32 s2, 256
         s_cbranch_scc1 P_END
         s_load_dwordx2 s[4:5], s[0:1], 0
         s_load_dwordx4 s[8:11], s[0:1], 72
         s_load_dwordx2 s[12:13], s[0:1], 88
         s_load_dwordx2 s[18:19], s[0:1], 112
         v_lshlrev_b32 v5, 4, v0
         s_waitcnt lgkmcnt(0)""")
    srd(a, 36, 4, 5, 0x400000)
    srd(a, 44, 8, 9, WB); srd(a, 48, 10, 11, WB); srd(a, 52, 12, 13, WB)
    srd(a, 32, 18, 19, 0x10000000)
    if kind == "w":
        a("s_mul_i32 s26, s2, 28672\n s_add_u32 s27, s26, 12288")
        for m in range(3):
            a(f"buffer_load_dwordx4 v[{8+8*m}:{11+8*m}], v5, s[{44+4*m}:{47+4*m}], s26 offen {fl}")
            a(f"buffer_load_dwordx4 v[{12+8*m}:{15+8*m}], v5, s[{44+4*m}:{47+4*m}], s27 offen {fl}")
    if kind == "x":
        a("s_lshl_b32 s26, s2, 14")
        a(f"buffer_load_dwordx4 v[8:11], v5, s[36:39], s26 offen {fl}")
    if kind == "chain":
        a("s_mul_i32 s26, s2, 28672\n v_and_b32 v5, 0x3ff, v5\n v_readfirstlane_b32 s20, v0\n s_cmp_lg_u32 s20, 0\n s_cbranch_scc1 P_END")
        for k in range(8):
            a(f"buffer_load_dwordx4 v[8:11], v5, s[44:47], s26 offen {fl}\n s_add_u32 s26, s26, 2048\n s_waitcnt vmcnt(0)")
    if kind == "chainws":
        a("s_mul_i32 s26, s2, 28672\n v_and_b32 v5, 0x3ff, v5\n v_readfirstlane_b32 s20, v0\n s_cmp_lg_u32 s20, 0\n s_cbranch_scc1 P_END\n s_add_u32 s26, s26, 0x1000000")
        for k in range(8):
            a(f"buffer_load_dwordx4 v[8:11], v5, s[32:35], s26 offen {fl}\n s_add_u32 s26, s26, 2048\n s_waitcnt vmcnt(0)")
    a("""s_waitcnt vmcnt(0)
       P_END:
         s_endpgm""")
    return a.finish()
def gen(path, kind, fl):
    s = open("spin30.s").read()
    s = s.replace("; @launch grid=(256,1,1) block=(1024,1,1) lds=160768",
      "; @launch kernel=probe_kernel grid=(256,1,1) block=(1024,1,1) lds=160768\n; @launch kernel=%s grid=(256,1,1) block=(1024,1,1) lds=160768" % NAME)
    s = s.replace('.section .rodata,"a"', probe(kind, fl) + '.section .rodata,"a"\n' + '''.p2align 6
.amdhsa_kernel probe_kernel
  .amdhsa_next_free_vgpr 128
  .amdhsa_next_free_sgpr 96
  .amdhsa_accum_offset 128
  .amdhsa_group_segment_fixed_size 0
  .amdhsa_kernarg_size 120
  .amdhsa_user_sgpr_count 2
  .amdhsa_user_sgpr_kernarg_segment_ptr 1
  .amdhsa_system_sgpr_workgroup_id_x 1
.end_amdhsa_kernel
''')
    open(path, "w").write(s)
W = "work/"
gen(W + "mb3_e.s", "e", "")
gen(W + "mb3_w.s", "w", "")
gen(W + "mb3_wnt.s", "w", "nt")
gen(W + "mb3_x.s", "x", "nt")
gen(W + "mb3_c.s", "chain", "nt")
gen(W + "mb3_cw.s", "chainws", "nt")
```

```python
import re

TRANS = ("v_exp_f32", "v_log_f32", "v_rcp_f32", "v_rsq_f32", "v_sqrt_f32", "v_sin_f32", "v_cos_f32",
         "v_rcp_iflag_f32", "v_exp_f16", "v_rcp_f16")

def _regs(tok):
    tok = tok.strip()
    neg = tok.lstrip("-")
    m = re.fullmatch(r"(?:abs\(|\|)?([vsa])(\d+)[\)|]?", neg)
    if m:
        return {m.group(1) + m.group(2)}
    m = re.fullmatch(r"([vsa])\[(\d+):(\d+)\]", neg)
    if m:
        return {m.group(1) + str(i) for i in range(int(m.group(2)), int(m.group(3)) + 1)}
    if neg in ("vcc", "vcc_lo", "vcc_hi"):
        return {"vcc"}
    if neg in ("exec", "exec_lo", "exec_hi"):
        return {"exec"}
    if neg == "m0":
        return {"m0"}
    return set()

def _split_ops(s):
    out, depth, cur = [], 0, ""
    for ch in s:
        if ch in "[(":
            depth += 1
        if ch in "])":
            depth -= 1
        if ch == "," and depth == 0:
            out.append(cur); cur = ""
        else:
            cur += ch
    if cur.strip():
        out.append(cur)
    return [o.strip() for o in out]

class Ins:
    __slots__ = ("text", "op", "kind", "wr", "rd", "dpp", "srcc", "ab", "states", "wide_store_data", "lane_sel", "passes", "lds_dma", "opsel_dst")

def parse(text):
    I = Ins()
    I.text = text
    t = text.split(";")[0].strip()
    parts = t.split(None, 1)
    op = parts[0]
    rest = parts[1] if len(parts) > 1 else ""
    ops = _split_ops(rest)
    mods = ""
    if ops:
        last = ops[-1].split(None, 1)
        if len(last) > 1 and not last[0].endswith("("):
            ops[-1] = last[0]; mods = last[1]
    for suf in ("_e32", "_e64"):
        if op.endswith(suf):
            op = op[:-4]
    I.op = op; I.wr = set(); I.rd = set(); I.dpp = False; I.srcc = set(); I.ab = set(); I.states = 1
    I.wide_store_data = set(); I.lane_sel = set(); I.passes = 0; I.lds_dma = False; I.opsel_dst = False
    R = [_regs(o) for o in ops]
    if op == "s_nop":
        I.kind = "nop"; I.states = int(ops[0], 0) + 1
    elif op.startswith("v_mfma"):
        I.kind = "mfma"
        I.wr = R[0]; I.ab = R[1] | R[2]; I.srcc = R[3]; I.rd = I.ab | I.srcc
        I.passes = 8 if "32x32" in op else 4
    elif op.startswith("v_"):
        I.kind = "valu"
        I.dpp = op.endswith("_dpp") or "quad_perm" in mods or "row_" in mods or "wave_" in mods
        if op.startswith("v_cmpx"):
            I.wr = R[0] | {"exec"}; I.rd = set().union(*R[1:])
        elif op.startswith("v_cmp"):
            I.wr = R[0]; I.rd = set().union(*R[1:])
        elif op.startswith(("v_add_co", "v_sub_co", "v_subrev_co", "v_addc_co", "v_subb_co", "v_div_scale", "v_mad_u64")):
            I.wr = R[0] | R[1]; I.rd = set().union(*R[2:])
        elif op.startswith("v_permlane") and "swap" in op:
            I.wr = R[0] | R[1]; I.rd = R[0] | R[1]
        elif op.startswith(("v_readlane", "v_writelane")):
            I.wr = R[0]; I.rd = R[1] | R[2]; I.lane_sel = R[2]
            if op.startswith("v_writelane"):
                I.rd |= R[0]
        else:
            I.wr = R[0]; I.rd = set().union(*R[1:]) if len(R) > 1 else set()
            if op.startswith("v_dot"):
                I.ab = R[1] | R[2]
            if op.startswith(("v_fmac", "v_dot2c", "v_pk_fmac", "v_mac")) or I.dpp or "UNUSED_PRESERVE" in mods:
                I.rd |= R[0]
            if ("dst_sel:WORD" in mods or "dst_sel:BYTE" in mods):
                I.opsel_dst = True
            if op.startswith("v_pk_") and op.endswith("_f32"):
                m = re.search(r"op_sel:\[(\d),(\d)", mods)
                assert not (m and m.group(2) == "1" and ops[2].lstrip("-").startswith("v")), "src1 op_sel=1 on packed f32: " + text
    elif op.startswith("ds_"):
        I.kind = "ds"
        if op.startswith(("ds_read", "ds_bpermute", "ds_permute", "ds_swizzle")) or "_rtn" in op:
            I.wr = R[0]; I.rd = set().union(*R[1:])
            if "d16" in op:
                I.rd |= R[0]
        else:
            I.rd = set().union(*R)
    elif op.startswith(("buffer_", "global_")):
        I.kind = "vmem"
        lds = re.search(r"\blds\b", mods) is not None or "load_lds" in op
        I.lds_dma = lds
        if op in ("buffer_wbl2", "buffer_inv"):
            pass
        elif "load" in op and not lds:
            I.wr = R[0]; I.rd = set().union(*R[1:])
            if "d16" in op:
                I.rd |= R[0]
        else:
            I.rd = set().union(*R) if R else set()
            if ("store" in op) and ("x3" in op or "x4" in op):
                I.wide_store_data = R[0] if op.startswith("buffer_") else R[1]
            if lds:
                I.rd |= {"m0"}
    elif op.startswith("s_"):
        I.kind = "salu"
        if op.startswith(("s_load", "s_buffer_load", "s_memtime", "s_memrealtime", "s_getreg")):
            I.kind = "smem"; I.wr = R[0]; I.rd = set().union(*R[1:]) if len(R) > 1 else set()
        elif op.startswith(("s_cmp", "s_cbranch", "s_branch", "s_waitcnt", "s_barrier", "s_endpgm", "s_setprio", "s_sleep", "s_bitcmp")):
            I.rd = set().union(*R) if R else set()
        else:
            I.wr = R[0]; I.rd = set().union(*R[1:]) if len(R) > 1 else set()
            if "saveexec" in op:
                I.wr |= {"exec"}
    else:
        raise ValueError("unknown instruction: " + text)
    return I

def is_s(r):
    return r[0] == "s" or r == "vcc"

def need(P, C):
    n = 0
    pv = {r for r in P.wr if r[0] in "va"}
    ps = {r for r in P.wr if is_s(r)}
    if P.kind == "valu":
        if C.kind == "valu":
            if C.dpp and (pv & C.rd): n = max(n, 2)
            if C.op.startswith(("v_readlane", "v_readfirstlane")) and (pv & C.rd): n = max(n, 1)
            if C.op.startswith("v_permlane") and (pv & C.rd): n = max(n, 2)
            if ps & C.lane_sel: n = max(n, 4)
            if ps & C.rd: n = max(n, 2)
            if C.op.startswith("v_div_fmas") and "vcc" in ps: n = max(n, 4)
            if P.op in TRANS and (pv & C.rd) and C.op not in TRANS: n = max(n, 1)
            if P.opsel_dst and (pv & (C.rd | C.wr)): n = max(n, 1)
            if P.op.startswith("v_dot") and (pv & (C.rd | C.wr)) and not (C.op == P.op and pv == C.wr and not (pv & C.ab)): n = max(n, 3)
            if "exec" in P.wr:
                n = max(n, 5 if C.dpp else 4 if C.op.startswith(("v_readlane", "v_readfirstlane", "v_writelane", "v_permlane")) else 0)
        if C.kind == "mfma":
            if pv & C.rd: n = max(n, 2)
            if "exec" in P.wr: n = max(n, 4)
        if C.kind == "vmem" and (ps & C.rd): n = max(n, 5)
        if C.kind in ("salu", "smem") and (ps & C.rd): n = max(n, 1)
        if C.kind in ("vmem", "ds") and (P.op in TRANS or P.opsel_dst) and (pv & C.rd): n = max(n, 1)
        if C.kind in ("vmem", "ds", "mfma") and P.op.startswith("v_dot") and (pv & (C.rd | C.wr)): n = max(n, 3)
    if P.kind == "mfma":
        big = {4: 8, 8: 12}[P.passes]
        if C.kind == "mfma":
            if pv & C.ab: n = max(n, big)
            if (pv & C.srcc) and not (C.srcc == pv and C.passes == P.passes): n = max(n, big - 2)
            if (pv & C.wr) and not (C.srcc == pv and C.wr == pv and C.passes == P.passes) and not (pv & C.srcc):
                n = max(n, big)
        elif C.kind in ("valu", "ds", "vmem"):
            if pv & (C.rd | C.wr): n = max(n, big)
        if C.kind == "valu" and (P.srcc & C.wr): n = max(n, {4: 3, 8: 7}[P.passes])
    if P.kind == "vmem" and P.wide_store_data and (P.wide_store_data & C.wr) and C.kind in ("valu", "mfma", "ds", "vmem"):
        n = max(n, 2)
    if P.kind == "salu" and "m0" in P.wr and (C.lds_dma or "addtid" in C.op or C.op.startswith("s_movrel")):
        n = max(n, 1)
    return n

class Asm:
    def __init__(self):
        self.lines = []
        self.hist = []
        self.nops = 0
        self.labels = {}
    def raw(self, text):
        self.lines.append((text, None))
    def label(self, name):
        self.labels[name] = len(self.lines)
        self.lines.append((name + ":", None))
    def _required(self, hist, C):
        req = 0; dist = 0
        for P in reversed(hist):
            n = need(P, C)
            if n > dist:
                req = max(req, n - dist)
            dist += P.states
            if dist >= 20:
                break
        return req
    def __call__(self, text):
        for line in text.strip().split("\n"):
            line = line.strip()
            if not line or line.startswith(";"):
                continue
            if line.endswith(":"):
                self.label(line[:-1]); continue
            I = parse(line)
            req = self._required(self.hist, I)
            while req > 0:
                k = min(req, 16)
                N = parse(f"s_nop {k-1}")
                self.lines.append(("  " + N.text, N)); self.hist.append(N); self.nops += 1
                req -= k
            self.lines.append(("  " + line, I)); self.hist.append(I)
            m = re.match(r"s_(?:cbranch\w*|branch)\s+(\S+)", line)
            if m and m.group(1) in self.labels:
                self._check_edge(m.group(1))
            if m:
                self.fwd = getattr(self, "fwd", [])
                self.fwd.append((m.group(1), list(self.hist[-24:])))
    def _check_edge(self, label, hist=None):
        hist = list(self.hist[-24:]) if hist is None else list(hist)
        cnt = 0
        for text, I in self.lines[self.labels[label]:]:
            if I is None:
                continue
            req = self._required(hist, I)
            if req > 0:
                raise RuntimeError(f"hazard across branch to {label}: '{I.text}' needs {req} more wait states")
            hist.append(I); cnt += I.states
            if cnt > 20 or I.op in ("s_branch", "s_endpgm"):
                break
    def finish(self):
        for label, hist in getattr(self, "fwd", []):
            if label in self.labels:
                self._check_edge(label, hist)
        return "\n".join(t for t, _ in self.lines) + "\n"
```

```python
import sys, os
sys.path.insert(0, os.path.dirname(os.path.abspath(__file__)))
from asmlib import Asm

WBYTES = 1024 * 3584 * 2
WS_PS = 0x400000
WS_CI = 0x440000
WS_KM = 0x441000
WS_EX = 0x450000
WS_DP = 0x4c0000
WS_STAMP = 0x700000
WS_SIZE = 0x800000

OPT = dict(dbg=0, grp=0, w1=1, w2=2, wfl="nt", xfl="", pace=1, slow=0, eprio=3, pprio=0, nprio=1, fprio=2, gprio=3, lean=0, ipf=1,
           psl=1, pt=0, isl=0, exp=0, ppos=0, outfl="", nsl=0)

L2E_HI, L2E_LO, LN2 = 0x3fb8aa3b, 0x32a57060, 0x3f317218
I2PI_LO = 0x31dc9c88
SY = 0
UA, UROW, UPAD = 768, 4640, 272
TB = UA + 4 * UROW
DELTA = 1986
R2B, R3B = 1120, 1632
BAND = TB + 16384
KG = BAND + 5120
KGC = 8704
F_W = (KG + 4 * KGC + 255) // 256 * 256
G2 = F_W + 65536
JUNK = G2 + 8192
LDS = JUNK + 1024
KA = 76
TAGM = 0x00030003
TAGP = (0x00010002, 0x00020001, 0x00020002, 0x00010001)
SPIN = 0x20000

def stamp(a, i, group=None):
    if OPT["dbg"] and (group is None or group == OPT["grp"]):
        a(f"s_memrealtime s[{84+2*i}:{85+2*i}]")

def stamp_flush(a, add):
    if OPT["dbg"]:
        a(f"""s_waitcnt vmcnt(0)
              s_memrealtime s[100:101]
              s_mov_b64 exec, 1
              s_lshl_b32 s82, s2, 4
              s_add_u32 s82, s82, s30
              s_add_u32 s82, s82, {add}
              s_lshl_b32 s82, s82, 6
              s_add_u32 s82, s82, {WS_STAMP:#x}
              v_mov_b32 v2, 0
              s_waitcnt lgkmcnt(0)""")
        for i in range(9):
            a(f"v_mov_b32 v{4+i}, s{84+2*i}")
        a("""v_mov_b32 v13, s80
             v_mov_b32 v14, s81
             v_mov_b32 v15, s83""")
        for i in range(3):
            a(f"buffer_store_dwordx4 v[{4+4*i}:{7+4*i}], v2, s[32:35], s82 offen offset:{16*i}")
    a("s_endpgm")

def lds_wait(a, label, reg, addr, off, cond, sleep=1):
    a(f"""s_branch {label}B
        {label}:
          s_sleep {sleep}
        {label}B:
          ds_read_b32 v{reg}, {addr} offset:{off}
          s_waitcnt lgkmcnt(0)
          {cond}
          s_cbranch_vccnz {label}""")

def both_modes(a, label, text, mode="s47"):
    a(f"""s_cmp_lg_u32 {mode}, 0
          s_cbranch_scc1 {label}_W""")
    a(text.replace("@", ""))
    a(f"""s_branch {label}_D
        {label}_W:""")
    a(text.replace("@", "sc1"))
    a(f"{label}_D:")

def transpose4(a, *bases):
    for b in bases:
        a(f"""v_permlane32_swap_b32 v{b}, v{b+2}
              v_permlane32_swap_b32 v{b+1}, v{b+3}""")
    for b in bases:
        a(f"""v_permlane16_swap_b32 v{b}, v{b+1}
              v_permlane16_swap_b32 v{b+2}, v{b+3}""")

def rows4(a, r):
    a(f"""v_permlane16_swap_b32 v{r}, v{r+1}
          v_permlane16_swap_b32 v{r+2}, v{r+3}
          v_add_f32 v{r}, v{r}, v{r+1}
          v_add_f32 v{r+2}, v{r+2}, v{r+3}
          v_permlane32_swap_b32 v{r}, v{r+2}
          v_add_f32 v{r}, v{r}, v{r+2}""")

def pack24(a, r, nonce, s0):
    for i in range(4):
        a(f"v_add_u32 v{r+i}, 0x80, v{r+i}")
    for i in range(3):
        a(f"v_perm_b32 v{r+i}, v{r+i}, v{r+3}, s{s0+i}")
    a(f"v_mov_b32 v{r+3}, {nonce}")

def unpack24(a, r, s0):
    a(f"""v_perm_b32 v{r+3}, v{r}, v{r+1}, s{s0}
          v_perm_b32 v{r+3}, v{r+3}, v{r+2}, s{s0+1}""")

def top2(a, k, t, s0, s1):
    a(f"v_mov_b32 v{t}, v{k}")
    wave_reduce(a, "v_max_u32", [t])
    a(f"""v_readlane_b32 s{s0}, v{t}, 63
          v_cmp_ne_u32 vcc, s{s0}, v{k}
          v_cndmask_b32 v{t}, 0, v{k}, vcc""")
    wave_reduce(a, "v_max_u32", [t])
    a(f"v_readlane_b32 s{s1}, v{t}, 63")

def srd(a, d, lo, hi, size):
    a(f"""s_mov_b32 s{d}, s{lo}
          s_mov_b32 s{d+1}, s{hi}
          s_mov_b32 s{d+2}, {size:#x}
          s_mov_b32 s{d+3}, 0x00020000""")

def wave_reduce(a, op, regs):
    for mod in ("quad_perm:[1,0,3,2] row_mask:0xf", "quad_perm:[2,3,0,1] row_mask:0xf", "row_half_mirror row_mask:0xf",
                "row_mirror row_mask:0xf", "row_bcast:15 row_mask:0xa", "row_bcast:31 row_mask:0xc"):
        for r in regs:
            a(f"{op}_dpp v{r}, v{r}, v{r} {mod} bank_mask:0xf")

def desc(name, vgpr, sgpr):
    return f""".p2align 6
.amdhsa_kernel {name}
  .amdhsa_next_free_vgpr {vgpr}
  .amdhsa_next_free_sgpr {sgpr}
  .amdhsa_accum_offset {(vgpr + 3) // 4 * 4}
  .amdhsa_group_segment_fixed_size 0
  .amdhsa_kernarg_size 120
  .amdhsa_user_sgpr_count 2
  .amdhsa_user_sgpr_kernarg_segment_ptr 1
  .amdhsa_system_sgpr_workgroup_id_x 1
.end_amdhsa_kernel
"""

def exp_acc(a, d, x, t0, t1, sL2E, sL2ELO, sLN2):
    a(f"""v_mul_f32 v{t0}, s{sL2E}, v{x}
          v_fma_f32 v{t1}, v{x}, s{sL2E}, -v{t0}
          v_exp_f32 v{d}, v{t0}
          v_fmac_f32 v{t1}, s{sL2ELO}, v{x}
          v_mul_f32 v{t1}, s{sLN2}, v{t1}
          v_fmac_f32 v{d}, v{d}, v{t1}""")

def rbf(a, *regs):
    for r in regs:
        a(f"v_cvt_pk_bf16_f32 v{r}, v{r}, v{r}")
    for r in regs:
        a(f"v_lshlrev_b32 v{r}, 16, v{r}")

def unpack(a, d, s, sM):
    a(f"""v_lshlrev_b32 v{d}, 16, v{s}
          v_and_b32 v{d+1}, s{sM}, v{s}""")

class Pipe:
    def __init__(self, a, maxfly=12):
        self.a = a; self.loads = []; self.steps = []; self.maxfly = maxfly
    def load(self, text, gate=-1):
        self.loads.append((text, gate)); return len(self.loads) - 1
    def step(self, text, need=()):
        self.steps.append((text, list(need))); return len(self.steps) - 1
    def last(self):
        return len(self.steps) - 1
    def run(self):
        a = self.a; issued = done = 0
        for i, (text, need) in enumerate(self.steps):
            while issued < len(self.loads) and self.loads[issued][1] < i and issued - done < self.maxfly:
                a(self.loads[issued][0]); issued += 1
            if need:
                lid = max(need)
                while issued <= lid:
                    assert self.loads[issued][1] < i, "load gated behind its own consumer"
                    if issued - done >= 15:
                        a("s_waitcnt lgkmcnt(8)"); done = issued - 8
                    a(self.loads[issued][0]); issued += 1
                if done <= lid:
                    a(f"s_waitcnt lgkmcnt({issued - lid - 1})"); done = lid + 1
            a(text)
        assert issued == len(self.loads)

def pair_sync(a, k, label):
    a(f"""v_mov_b32 v94, {k}
          s_waitcnt lgkmcnt(0)
          ds_write_b32 v92, v94 offset:{SY + 64}
          s_branch {label}B
        {label}:
          s_sleep 2
        {label}B:
          ds_read_b32 v94, v93 offset:{SY + 64}
          s_waitcnt lgkmcnt(0)
          v_cmp_gt_u32 vcc, {k}, v94
          s_cbranch_vccnz {label}""")

def kgen_setup(a):
    a(f"""s_lshl_b32 s68, s52, 12
          s_add_u32 s68, s68, {TB}
          s_lshl_b32 s67, s53, 11
          s_add_u32 s67, s67, s68
          v_add_u32 v90, s67, v95
          ds_write_b128 v90, v[12:15]
          ds_write_b128 v90, v[12:15] offset:1024
          s_mov_b32 s67, {L2E_LO:#x}
          s_mov_b32 s71, {LN2:#x}
          s_lshl_b32 s61, s30, 2
          v_mov_b32 v92, s61
          s_xor_b32 s61, s61, 16
          v_mov_b32 v93, s61                    ; partner's
          s_mul_i32 s69, s52, {KGC}
          s_add_u32 s69, s69, {KG}
          s_xor_b32 s70, s53, 1
          s_mul_i32 s70, s70, 4352
          s_add_u32 s70, s70, s69
          s_sub_u32 m0, s70, 16384
          v_mul_u32_u24 v41, 272, v96
          v_lshl_add_u32 v41, v97, 4, v41
          v_add_u32 v41, s70, v41
          v_add_u32 v99, s69, v95""")

def kgen_main(a, hook=None):
    a("""v_lshlrev_b32 v8, 16, v91
         v_lshlrev_b32 v2, 16, v2""")
    exp_acc(a, 9, 8, 10, 11, 58, 67, 71)
    exp_acc(a, 8, 2, 12, 13, 58, 67, 71)
    a("""v_lshlrev_b32 v3, 16, v3
         v_and_b32 v6, 0x7fff7fff, v6
         v_and_b32 v7, 0x7fff7fff, v7
         v_pk_max_u16 v6, v6, v7
         v_lshlrev_b32 v7, 16, v6
         v_max_u32 v6, v6, v7""")
    rbf(a, 9, 8)
    wave_reduce(a, "v_max_u32", [6])
    a(f"""v_mul_f32 v8, v8, v9                  ; -Re(a)
          v_mul_f32 v3, v3, v9                  ; Im(a)
          v_readlane_b32 s78, v6, 63
          v_mul_f32 v8, s58, v8
          v_mul_f32 v10, 0.15915494, v3
          v_fma_f32 v11, v3, 0.15915494, -v10
          v_mov_b32 v7, {I2PI_LO:#x}
          v_fmac_f32 v11, v3, v7
          s_and_b32 s78, s78, s31
          v_add_f32 v9, v9, v9
          v_mul_f32 v6, s78, v9
          v_frexp_exp_i32_f32 v6, v6
          v_sub_u32 v6, 7, v6
          v_min_i32 v6, 100, v6
          v_max_i32 v6, -100, v6
          v_ldexp_f32 v9, v9, v6                ; 2*dt*scale
          v_sub_u32 v6, 0, v6
          v_ldexp_f32 v6, 1.0, v6
          v_readfirstlane_b32 s70, v6           ; 1/scale""")
    for dst, pl in ((24, "0x41000000"), (12, "1.0"), (26, "0x43000000")):
        a(f"""v_mul_f32 v36, {pl}, v10
              v_mul_f32 v37, {pl}, v8
              v_fract_f32 v36, v36
              v_exp_f32 v37, -v37
              v_mul_f32 v38, {pl}, v11
              v_add_f32 v36, v36, v38
              v_sin_f32 v{dst}, v36
              v_cos_f32 v{dst+1}, v36
              v_mul_f32 v{dst}, v{dst}, v37
              v_mul_f32 v{dst+1}, v{dst+1}, v37""")
    a("""v_mov_b32 v10, v12
         v_mov_b32 v11, v13
         v_lshlrev_b32 v4, 16, v4
         v_lshlrev_b32 v5, 16, v5
         v_mul_f32 v33, v4, v9
         v_mul_f32 v32, v5, v9
         v_mov_b32 v42, 0x3c00
         ds_write_addtid_b32 v42 offset:16384""")
    BF, AF = 44, 60
    E = {1: 10}
    pool = [12, 14, 16, 18, 20, 22, 28, 30, 34, 36, 38] + list(range(100, 128, 2))
    ops = []
    val = {}
    def V(name, reg=None):
        val[name] = reg
        return name
    V("Y1", 24); V("VV", 26); V("E1", 10); V("G0", 32)
    seq = []
    def cm(d, x, y):
        ops.append(("mul", d, (x, y))); ops.append(("fma", d, (x, y, d + "'")))
    rows = []
    for k, x, y in [(2, 1, 1), (3, 2, 1), (4, 2, 2), (5, 4, 1), (6, 4, 2), (7, 4, 3)]:
        cm(f"E{k}", f"E{x}", f"E{y}")
    tree = {2: (1, 1), 3: (2, 1), 4: (2, 2), 5: (4, 1), 6: (4, 2), 7: (4, 3), 8: (4, 4)}
    for jj in range(9, 16): tree[jj] = (8, jj - 8)
    for jj in range(2, 16):
        cm(f"Y{jj}", f"Y{tree[jj][0]}", f"Y{tree[jj][1]}")
    groups = [[(f"Y{jj}", jj, False) for jj in range(1, 16)]]
    cm("V2", "VV", "VV")
    cm("G1", "G0", "VV")
    for i2 in range(2, 17):
        cm(f"G{i2}", f"G{i2-2}", "V2")
    plan = [[(0, range(8)), (1, range(8))],
            [(2, (0, 2, 4, 6)), (3, (0, 2, 4, 6)), (4, (0, 4)), (5, (0, 4)), (6, (0, 4)), (7, (0, 4))],
            [(i2, (0,)) for i2 in range(8, 17)]]
    for tile in range(3):
        g = []
        for i2, ks in plan[tile]:
            for k in ks:
                if k:
                    cm(f"X{i2}_{k}", f"G{i2}", f"E{k}")
                    g.append((f"X{i2}_{k}", len(g), True))
                else:
                    g.append((f"G{i2}", len(g), True))
        groups.append(g)
    flat = [r for g in groups for r in g]
    prod = {}
    for kind, d, srcs in ops:
        if kind == "fma": prod[d] = [x for x in srcs[:2]]
    prio = {}
    def mark(v, pr):
        if prio.get(v, 1 << 30) <= pr: return
        prio[v] = pr
        for x in prod.get(v, []): mark(x, pr)
    for n, (v, _, _) in enumerate(flat): mark(v, n)
    uses = {}
    for kind, d, srcs in ops:
        for x in srcs[:2]: uses[x] = uses.get(x, 0) + 1
    for v, _, _ in flat: uses[v] = uses.get(v, 0) + 1
    ready_at = {v: 0 for v in val}
    LAT = 3
    slot = [0]
    def emit(t):
        a(t); slot[0] += 1
    def release(x):
        uses[x] -= 1
        if uses[x] == 0 and val[x] not in (10, 24, 26, 32): pool.append(val[x])
    pend = list(ops)
    cv = [40, 42, 43, 2, 3, 4, 5, 6, 7]; cvi = [0]
    wq = []
    gi = 0; ri = 0
    mf = []
    def mfma(tile):
        for k in range(4):
            c = "0" if k == 0 else f"v[{KA+4*tile}:{KA+4*tile+3}]"
            emit(f"v_mfma_f32_16x16x32_f16 v[{KA+4*tile}:{KA+4*tile+3}], v[{AF+4*k}:{AF+4*k+3}], v[{BF+4*k}:{BF+4*k+3}], {c}")
    lds_after = [0]
    while pend or gi < len(groups) or wq or mf:
        did = False
        if wq and slot[0] - wq[0][2] >= LAT:
            r, row, _ = wq.pop(0)
            emit(f"ds_write_addtid_b32 v{r} offset:{16384 + 272*row}"); lds_after[0] += 1; did = True
        elif gi < len(groups) and ri == len(groups[gi]) and not wq and not mf:
            base = BF if gi == 0 else AF
            for k in range(4):
                emit(f"ds_read_b128 v[{base+4*k}:{base+4*k+3}], v41 offset:{64*k}")
            lds_after[0] = 0
            if gi > 0: mf.append((gi - 1, slot[0]))
            gi += 1; ri = 0; did = True
        elif mf and (slot[0] - mf[0][1] >= 24 or (not pend and gi >= len(groups)) or (gi < len(groups) and ri == len(groups[gi]) and not wq)):
            emit(f"s_waitcnt lgkmcnt({min(lds_after[0], 15)})")
            mfma(mf.pop(0)[0]); did = True
        if not did and gi < len(groups) and ri < len(groups[gi]) and len(wq) < 4:
            v, row, neg = groups[gi][ri]
            if v in ready_at and ready_at[v] <= slot[0]:
                r = cv[cvi[0] % len(cv)]; cvi[0] += 1
                emit(f"v_cvt_pk_f16_f32 v{r}, v{val[v]+1}, {'-' if neg else ''}v{val[v]}")
                wq.append((r, row, slot[0])); release(v); ri += 1; did = True
        if not did:
            best = None
            for n, (kind, d, srcs) in enumerate(pend):
                if all(x in ready_at and ready_at[x] <= slot[0] for x in srcs) and (kind == "fma" or pool):
                    key = (prio[d], 0 if kind == "fma" else 1)
                    if best is None or key < best[0]: best = (key, n)
            if best is not None:
                kind, d, srcs = pend.pop(best[1])
                x, y = val[srcs[0]], val[srcs[1]]
                if kind == "mul":
                    val[d] = pool.pop(0); r = val[d]
                    emit(f"v_pk_mul_f32 v[{r}:{r+1}], v[{x}:{x+1}], v[{y}:{y+1}] op_sel:[1,0] op_sel_hi:[1,1]")
                    ready_at[d + "'"] = slot[0] + LAT - 1
                else:
                    r = val[d]
                    emit(f"v_pk_fma_f32 v[{r}:{r+1}], v[{y}:{y+1}], v[{x}:{x+1}], v[{r}:{r+1}] op_sel:[1,0,0] op_sel_hi:[0,0,1] neg_hi:[1,0,0]")
                    ready_at[d] = slot[0] + LAT - 1
                for xx in srcs[:2]: release(xx)
                did = True
        if not did:
            slot[0] += 1

def near_table(a, tag):
    K0, K1, K2 = KA, KA + 4, KA + 8
    a(f"""
          v_lshlrev_b32 v8, 8, v97
          v_lshl_add_u32 v8, v96, 4, v8
          v_sub_u32 v8, {2*(537-256)}, v8
          v_add_u32 v8, s68, v8                 ; 2*(537 - p0), p0 = 256 + 128g + 8j
          v_lshrrev_b32 v9, 1, v97
          v_lshlrev_b32 v9, 8, v9
          v_lshl_add_u32 v9, v96, 4, v9
          v_and_b32 v10, 1, v97
          v_lshl_add_u32 v9, v10, 3, v9
          v_sub_u32 v9, 1080, v9
          v_add_u32 v9, s68, v9                 ; 1080 - 2p, p = 128(g>>1) + 8j + 4(g&1)
          ds_write_b128 v99, v[{K1}:{K1+3}] offset:5120
          ds_write_b128 v99, v[{K2}:{K2+3}] offset:6144
          v_cmp_gt_u32 vcc, 32, v1
          v_add_u32 v21, 2, v8
          v_add_u32 v22, {DELTA}, v8""")
    pair_sync(a, 1, tag + "_PS1")
    a(f"""v_cmp_gt_u32 vcc, 32, v1
          ds_read_b128 v[16:19], v99 offset:1024
          ds_read_b128 v[24:27], v99
          s_waitcnt lgkmcnt(1)
          v_pk_add_f32 v[{K1}:{K1+1}], v[{K1}:{K1+1}], v[16:17]
          v_pk_add_f32 v[{K1+2}:{K1+3}], v[{K1+2}:{K1+3}], v[18:19]
          s_waitcnt lgkmcnt(0)
          v_pk_add_f32 v[{K0}:{K0+1}], v[{K0}:{K0+1}], v[24:25]
          v_pk_add_f32 v[{K0+2}:{K0+3}], v[{K0+2}:{K0+3}], v[26:27]
          v_mov_b32_dpp v13, v{K1} row_shl:1 row_mask:0xf bank_mask:0xf
          v_writelane_b32 v13, 0, 33
          s_mov_b32 exec_hi, 3
          v_cndmask_b32 v14, v{K1}, v{K1+1}, vcc
          v_cndmask_b32 v15, v{K1+1}, v{K1+2}, vcc
          v_cndmask_b32 v13, v13, v{K1+3}, vcc
          v_cvt_pk_f16_f32 v16, v13, v15
          v_cvt_pk_f16_f32 v17, v15, v15
          v_cvt_pk_f16_f32 v18, v14, v{K1}
          v_cvt_pk_f16_f32 v19, v{K1}, v{K1}
          v_cvt_pk_f16_f32 v20, v15, v14
          ds_write_b16 v8, v16
          ds_write2_b32 v21, v17, v20 offset0:0 offset1:1
          ds_write_b32 v21, v19 offset:8
          ds_write_b16 v8, v19 offset:14
          ds_write2_b32 v22, v16, v17 offset0:0 offset1:1
          ds_write2_b32 v22, v18, v19 offset0:2 offset1:3
          s_mov_b32 exec_hi, -1
          v_cvt_pk_f16_f32 v24, v{K0+3}, v{K0+2}
          v_cvt_pk_f16_f32 v25, v{K0+1}, v{K0}
          v_cvt_pk_f16_f32 v26, v{K0+2}, v{K0+1}
          ds_write_b64 v9, v[24:25]
          ds_write_b16 v9, v24 offset:{DELTA}
          ds_write_b32 v9, v26 offset:{DELTA+2}
          ds_write_b16_d16_hi v9, v25 offset:{DELTA+6}
          """)

def far_table(a, tag):
    K0, K1, K2 = KA, KA + 4, KA + 8
    a(f"""
          v_and_b32 v13, 1, v96
          v_lshrrev_b32 v14, 1, v96
          v_lshlrev_b32 v8, 8, v13
          v_lshlrev_b32 v15, 1, v14
          v_sub_u32 v8, v8, v15
          v_lshlrev_b32 v9, 5, v97
          v_sub_u32 v8, v8, v9
          v_add_u32 v8, {R2B + 128 + 2*47 + 64 - 16}, v8
          v_add_u32 v8, s68, v8
          v_lshlrev_b32 v9, 1, v13
          v_sub_u32 v9, v8, v9
          v_add_u32 v9, {-128 + 2}, v9
          ds_write_b128 v99, v[{K0}:{K0+3}]
          ds_write_b128 v99, v[{K1}:{K1+3}] offset:1024
          v_mul_u32_u24 v10, 158, v13
          v_sub_u32 v10, v10, v15
          v_lshlrev_b32 v11, 6, v97
          v_sub_u32 v10, v10, v11
          v_add_u32 v10, {R3B + 128 - 48}, v10
          v_add_u32 v10, s68, v10
          s_nop 0""")
    pair_sync(a, 1, tag + "_PS2")
    a(f"""ds_read_b128 v[16:19], v99 offset:5120
          ds_read_b128 v[20:23], v99 offset:6144
          s_waitcnt lgkmcnt(1)
          v_pk_add_f32 v[{K1}:{K1+1}], v[{K1}:{K1+1}], v[16:17]
          v_pk_add_f32 v[{K1+2}:{K1+3}], v[{K1+2}:{K1+3}], v[18:19]
          s_waitcnt lgkmcnt(0)
          v_pk_add_f32 v[{K2}:{K2+1}], v[{K2}:{K2+1}], v[20:21]
          v_pk_add_f32 v[{K2+2}:{K2+3}], v[{K2+2}:{K2+3}], v[22:23]
          v_cvt_pk_f16_f32 v16, v{K1}, v{K1+1}
          v_cvt_pk_f16_f32 v17, v{K1+2}, v{K1+3}
          v_cvt_pk_f16_f32 v18, v{K2}, v{K2+1}
          v_cvt_pk_f16_f32 v19, v{K2+2}, v{K2+3}
          v_cvt_pk_f16_f32 v89, v{K2}, v{K2}
          s_mov_b32 exec_lo, 0
          ds_write_b16 v9, v17
          ds_write_b16 v9, v17 offset:{DELTA}
          ds_write_b16_d16_hi v8, v17
          ds_write_b16_d16_hi v8, v17 offset:{DELTA}
          s_mov_b32 exec_hi, -4
          ds_write_b16 v9, v16 offset:16
          ds_write_b16 v9, v16 offset:{DELTA+16}
          ds_write_b16_d16_hi v8, v16 offset:16
          ds_write_b16_d16_hi v8, v16 offset:{DELTA+16}
          s_mov_b32 exec_hi, 1
          s_mov_b32 exec_lo, -2
          ds_write_b16 v10, v18 offset:48
          ds_write_b16 v10, v18 offset:{DELTA+48}
          s_mov_b32 exec_hi, 0
          s_mov_b32 exec_lo, -1
          ds_write_b16_d16_hi v10, v18 offset:32
          ds_write_b16_d16_hi v10, v18 offset:{DELTA+32}
          ds_write_b16 v10, v19 offset:16
          ds_write_b16 v10, v19 offset:{DELTA+16}
          ds_write_b16_d16_hi v10, v19
          ds_write_b16_d16_hi v10, v19 offset:{DELTA}
          s_mov_b64 exec, -1
          """)

def FRAG_ADDR():
    return f"""v_lshlrev_b32 v12, 5, v96
          v_lshl_add_u32 v12, v97, 4, v12
          v_add_u32 v12, s66, v12
          v_mov_b32 v13, v95
          s_sub_u32 s78, 4, s53
          v_lshlrev_b32 v10, s78, v97
          v_lshlrev_b32 v11, 1, v96
          v_sub_u32 v10, v10, v11
          v_and_b32 v11, 1, v96
          v_xor_b32 v11, 1, v11
          v_mul_u32_u24 v11, {DELTA}, v11
          s_mul_i32 s78, s53, {R2B}
          s_add_u32 s78, s78, s68
          s_add_u32 s78, s78, 30
          v_add3_u32 v10, v10, v11, s78
          v_add_u32 v11, 512, v10"""


def conv_sync(a, label):
    a(f"""v_mov_b32 v15, 0
          v_mov_b32 v16, 1
          v_lshlrev_b32 v98, 5, v96
          v_lshl_add_u32 v98, v97, 3, v98
          v_add_u32 v98, s66, v98
          s_lshl_b32 s79, s52, 2
          v_mov_b32 v96, s79
          s_waitcnt lgkmcnt(0)
          s_mov_b64 exec, 1
          ds_add_u32 v15, v16 offset:{SY + 16}
          s_mov_b64 exec, -1""")
    stamp(a, 3)
    lds_wait(a, label, 16, "v15", SY + 16, "v_cmp_gt_u32 vcc, 16, v16")
    stamp(a, 4)

def near(a):
    ACC = 16
    TBUF = [48, 56]
    T16 = 64
    UBUF = [68, 72, 76, 80, 84, 88, 92]
    P = Pipe(a)
    def tload(dst, s, gate):
        base, off = (10, 16 * (16 - s)) if s >= 8 else (11, 16 * (8 - s))
        P.load(f"ds_read2_b32 v[{dst}:{dst+1}], v{base} offset0:{off} offset1:{off+1}", gate)
        return P.load(f"ds_read2_b32 v[{dst+2}:{dst+3}], v{base} offset0:{off+2} offset1:{off+3}", gate)
    started = set(); ulast = {}; tlast = {}; nu = 0
    for sl in range(8):
        tb = TBUF[sl % 2]
        tl = tload(tb, sl, tlast.get(tb, -1))
        th = None; t16 = None
        for o in range(8):
            ub = UBUF[nu % len(UBUF)]; nu += 1
            ul = P.load(f"ds_read_b128 v[{ub}:{ub+3}], v12 offset:{2*(UPAD - 16 + 256*o - 32*sl)}", ulast.get(ub, -1))
            if o == 0:
                th = tload(tb + 4, 8 + sl, tlast.get(tb, -1))
                if sl == 0: t16 = tload(T16, 16, -1)
            use = [(o, tb, tl)]
            if o + 1 <= 7: use.append((o + 1, tb + 4, th))
            if sl == 0 and o + 2 <= 7: use.append((o + 2, T16, t16))
            for j, t, tid in use:
                c = f"v[{ACC+4*j}:{ACC+4*j+3}]" if j in started else "0"
                started.add(j)
                P.step(f"v_mfma_f32_16x16x32_f16 v[{ACC+4*j}:{ACC+4*j+3}], v[{t}:{t+3}], v[{ub}:{ub+3}], {c}", [tid, ul])
            ulast[ub] = P.last()
        tlast[tb] = P.last()
    P.run()
    stamp(a, 5)
    a("s_setprio 3")
    lds_wait(a, "K_W2", 97, "v96", SY + 32, "v_cmp_eq_u32 vcc, 0, v97")
    for j in range(2, 8):
        a(f"ds_read_b128 v[{48+4*(j-2)}:{51+4*(j-2)}], v99 offset:{1024*j}")
    for j in range(8):
        r = ACC + 4 * j
        if j >= 2:
            p = 48 + 4 * (j - 2)
            a(f"""s_waitcnt lgkmcnt(7)
                  v_pk_add_f32 v[{r}:{r+1}], v[{r}:{r+1}], v[{p}:{p+1}]
                  v_pk_add_f32 v[{r+2}:{r+3}], v[{r+2}:{r+3}], v[{p+2}:{p+3}]""")
        a(f"""v_pk_mul_f32 v[{r}:{r+1}], v[{r}:{r+1}], s[70:71] op_sel_hi:[1,0]
              v_pk_mul_f32 v[{r+2}:{r+3}], v[{r+2}:{r+3}], s[70:71] op_sel_hi:[1,0]
              v_cvt_pk_bf16_f32 v{r}, v{r}, v{r+1}
              v_cvt_pk_bf16_f32 v{r+1}, v{r+2}, v{r+3}
              ds_write_b64 v98, v[{r}:{r+1}] offset:{2*UPAD + 512*j}""")
    a(f"""s_mov_b64 exec, 1
          ds_add_u32 v15, v97 offset:{SY + 48}
          s_mov_b64 exec, -1""")

def far(a):
    ACC = 16 - 8
    BN = [40, 44]
    UB = [72, 76, 92, 100]
    W = [[2, 6], [80, 84]]
    AP = 88
    P = Pipe(a)
    started = set()
    def accum(j, A, B, need=()):
        c = f"v[{ACC+4*j}:{ACC+4*j+3}]" if j in started else "0"
        started.add(j)
        return P.step(f"v_mfma_f32_16x16x32_f16 v[{ACC+4*j}:{ACC+4*j+3}], v[{A}:{A+3}], v[{B}:{B+3}], {c}", need)
    types = [((0, 1), (-24, -24), (R2B + 0, R2B + 384), 79, (2, 3, 4), 6, (48, 52, 56)),
             ((1, 0), (-16, -16), (R2B + 128, R2B + 256), 79, (2, 3, 4), 6, (60, 64, 68)),
             ((0, 1), (-24, -16), (R3B, R3B + 160), 127, (4, 5, 6, 7), 4, (48, 52, 56, 60))]
    last_use = {}
    bn = [P.load(f"ds_read_b128 v[{BN[i]}:{BN[i]+3}], v13 offset:{BAND + 1024*i}") for i in range(2)]
    nu = [0]
    items = [(ti, jp) for ti, t in enumerate(types) for jp in range(t[5])]
    tl = {}
    def tloads(ti):
        bands, bases, tbls, X, deltas, njp, TF = types[ti]
        for di, D in enumerate(deltas):
            for i in range(2):
                imm = tbls[i] + 2 * (X - 16 * D) - 30 - R2B
                assert imm % 4 == 0 and 0 <= imm <= 1016
                tl[ti, di] = P.load(f"ds_read2_b32 v[{TF[di]+2*i}:{TF[di]+2*i+1}], v10 offset0:{imm//4} offset1:{imm//4 + 1}",
                                    last_use.get(TF[di], -1))
    def windows(n):
        ti, jp = items[n]
        bands, bases, tbls, X, deltas, njp, TF = types[ti]
        if ti == 2 and jp == 0:
            for i in range(2):
                bn[i] = P.load(f"ds_read_b128 v[{BN[i]}:{BN[i]+3}], v13 offset:{BAND + 1024*(2+i)}", last_use[BN[i]])
        regs = {}
        for b in sorted(set(bases)):
            r = UB[nu[0] % len(UB)]; nu[0] += 1
            regs[b] = (r, P.load(f"ds_read_b128 v[{r}:{r+3}], v12 offset:{2*(UPAD + 256*jp + b)}", last_use.get(r, -1)))
        for i in range(2):
            w = W[n % 2][i]
            r, lid = regs[bases[i]]
            s = P.step(f"v_mfma_f32_16x16x32_f16 v[{w}:{w+3}], v[{r}:{r+3}], v[{BN[bands[i]]}:{BN[bands[i]]+3}], 0", [x for x in (lid, bn[bands[i]]) if x >= 0])
            last_use[r] = s; last_use[BN[bands[i]]] = s
    windows(0)
    tloads(0)
    for n, (ti, jp) in enumerate(items):
        bands, bases, tbls, X, deltas, njp, TF = types[ti]
        if n + 1 < len(items):
            windows(n + 1)
        if (ti, jp) == (0, 2): tloads(1)
        if (ti, jp) == (2, 0): tloads(2)
        for i in range(2):
            w = W[n % 2][i]
            P.step(f"v_cvt_pk_f16_f32 v{AP+2*i}, v{w}, v{w+1}")
            P.step(f"v_cvt_pk_f16_f32 v{AP+2*i+1}, v{w+2}, v{w+3}")
        for di, D in enumerate(deltas):
            if jp + D <= 7:
                last_use[TF[di]] = accum(jp + D, AP, TF[di], [tl[ti, di]])
    mb = P.load(f"ds_read_b128 v[64:67], v13 offset:{BAND + 4096}", last_use[64])
    MU = [68, 72, 76, 92, 100]
    mu = [P.load(f"ds_read_b128 v[{MU[j-3]}:{MU[j-3]+3}], v12 offset:{2*(UPAD + 256*j - 1032)}", last_use[MU[j-3]]) for j in range(3, 8)]
    for i in range(4):
        P.step(f"v_pk_mul_f16 v{64+i}, v{64+i}, s71", [mb])
    for j in range(3, 8):
        accum(j, 64, MU[j-3], [mu[j-3]])
    P.run()
    for j in range(2, 8):
        a(f"ds_write_b128 v99, v[{ACC+4*j}:{ACC+4*j+3}] offset:{1024*j}")
    a(f"""v_mov_b32 v97, 1
          ds_write_b32 v96, v97 offset:{SY + 32}""")
    stamp(a, 5)

PX, F, PUD, PG, WD, AF, BF = 8, 32, 64, 72, 80, 100, 32
RS, MM = 116, 118
Z, ONE = "v126", "v127"

def unit(a, n):
    i, mat = n // 2, n % 2
    a(f"""s_add_u32 m0, s72, {mat * 32768 + i * 1024}
          buffer_load_dwordx4 v{24 + i // 2}, s[{48+4*mat}:{51+4*mat}], s{68+i} offen {OPT['wfl']} lds""")

def operands(a, es):
    def un(d, s):
        for e in es:
            unpack(a, d(e), s(e), 31)
    T = lambda e: 32 + 2 * (e % 4)
    T2 = lambda e: 40 + 2 * (e % 4)
    T3 = lambda e: 48 + 2 * (e % 4)
    K = lambda e: 56 + e % 4
    for e in es:
        a(f"""{"v_and_b32" if e % 2 else "v_lshlrev_b32"} v{T(e)}, {"s31" if e % 2 else "16"}, v{PX + e//2}
              {"v_and_b32" if e % 2 else "v_lshlrev_b32"} v{T(e)+1}, {"s31" if e % 2 else "16"}, v{PX + 4 + e//2}""")
    for e in es: a(f"v_pk_add_f32 v[{T(e)}:{T(e)+1}], v[{T(e)}:{T(e)+1}], v[{MM}:{MM+1}] neg_lo:[0,1] neg_hi:[0,1]")
    for e in es: a(f"v_cvt_pk_bf16_f32 v{K(e)}, v{T(e)}, v{T(e)+1}")
    un(T, K)
    for e in es: a(f"v_pk_mul_f32 v[{T(e)}:{T(e)+1}], v[{T(e)}:{T(e)+1}], v[{RS}:{RS+1}]")
    for e in es: a(f"v_cvt_pk_bf16_f32 v{K(e)}, v{T(e)}, v{T(e)+1}")
    un(T, K)
    for e in es: a(f"v_pk_mul_f32 v[{T2(e)}:{T2(e)+1}], v[{T(e)}:{T(e)+1}], s[58:59] op_sel_hi:[1,0]")
    for e in es:
        a(f"""v_exp_f32 v{T2(e)}, -v{T2(e)}
              {"v_and_b32" if e % 2 else "v_lshlrev_b32"} v{T3(e)}, {"s31" if e % 2 else "16"}, v{20 + e//2}
              v_exp_f32 v{T2(e)+1}, -v{T2(e)+1}""")
    for e in es: a(f"v_pk_add_f32 v[{T2(e)}:{T2(e)+1}], v[{T2(e)}:{T2(e)+1}], 1.0 op_sel_hi:[1,0]")
    for e in es:
        a(f"""v_rcp_f32 v{T2(e)}, v{T2(e)}
              v_pk_mul_f32 v[{T3(e)}:{T3(e)+1}], v[{T(e)}:{T(e)+1}], v[{T3(e)}:{T3(e)+1}] op_sel_hi:[1,0]
              v_rcp_f32 v{T2(e)+1}, v{T2(e)+1}""")
    for e in es: a(f"v_cvt_pk_bf16_f32 v{PUD+e}, v{T3(e)}, v{T3(e)+1}")
    for e in es: a(f"v_pk_mul_f32 v[{T2(e)}:{T2(e)+1}], v[{T2(e)}:{T2(e)+1}], v[{T(e)}:{T(e)+1}]")
    for e in es: a(f"v_cvt_pk_bf16_f32 v{PG+e}, v{T2(e)}, v{T2(e)+1}")

def inbox(a, vo, vl, vt, so, st):
    a(f"""v_and_b32 v{vt}, 3, v1
          v_mul_u32_u24 v{vl}, {UROW}, v{vt}
          v_lshlrev_b32 v{vo}, 4, v{vt}
          v_lshrrev_b32 v{vt}, 2, v1
          v_lshl_add_u32 v{vl}, v{vt}, 4, v{vl}
          v_lshl_add_u32 v{vo}, v{vt}, 14, v{vo}
          s_lshl_b32 s{st}, s30, 9
          v_add_u32 v{vl}, s{st}, v{vl}
          s_lshl_b32 s{so}, s30, 19
          s_lshl_b32 s{st}, s28, 8
          s_add_u32 s{so}, s{so}, s{st}
          s_and_b32 s{st}, s29, 3
          s_lshl_b32 s{st}, s{st}, 12
          s_add_u32 s{so}, s{so}, s{st}
          s_and_b32 s{st}, s29, 4
          s_lshl_b32 s{st}, s{st}, 9
          s_add_u32 s{so}, s{so}, s{st}
          s_lshr_b32 s{st}, s29, 3
          s_lshl_b32 s{st}, s{st}, 6
          s_add_u32 s{so}, s{so}, s{st}
          s_add_u32 s{so+1}, s{so}, 0x40000""")

def touch(a):
    a(f"""s_mov_b32 m0, {JUNK}
          s_add_u32 s78, s61, 2048
          buffer_load_dwordx4 v4, s[20:23], s61 offen sc1 lds
          buffer_load_dwordx4 v4, s[20:23], s78 offen sc1 lds""")

def e_path(a):
    W1, W2 = OPT["w1"], OPT["w2"]
    T1, T2 = 2 * (OPT["pt"] == 1), 2 * (OPT["pt"] == 2)
    a(f"""v_lshlrev_b32 v97, 4, v1
          s_setprio {OPT['eprio']}""")
    if OPT["ipf"]:
        a(f"""s_cmp_lg_u32 s30, 0
              s_cbranch_scc1 K_NOPF
              s_getpc_b64 s[46:47]
            K_PC:
              s_lshl_b32 s48, s29, 10
              s_min_u32 s48, s48, K_END - K_PC - 1024
              s_add_u32 s46, s46, s48
              s_addc_u32 s47, s47, 0
              global_load_dwordx4 v[32:35], v97, s[46:47]
            K_NOPF:""")
    a(f"""v_lshrrev_b32 v2, 4, v1
          v_and_b32 v3, 15, v1
          v_lshlrev_b32 v5, 4, v3
          v_lshl_add_u32 v4, v2, 12, v5
          s_lshl_b32 s60, s29, 3
          s_add_u32 s60, s60, s30
          s_lshl_b32 s61, s60, 14
          s_lshl_b32 s62, s28, 8
          s_add_u32 s61, s61, s62
          v_add_u32 v6, s62, v5
          v_mov_b32 {Z}, 0
          v_mov_b32 {ONE}, 1
          v_lshlrev_b32 v123, 2, v1
          ds_write_b32 v123, {Z}
          s_mov_b32 s38, 0x400000
          s_mov_b32 s39, 0x00020000
          s_waitcnt lgkmcnt(0)
          s_mov_b32 s36, s44
          s_mov_b32 s37, s45
          buffer_load_dwordx4 v[8:11], v4, s[36:39], s61 offen {OPT['xfl']}
          buffer_load_dwordx4 v[12:15], v4, s[36:39], s61 offen offset:2048 {OPT['xfl']}
          s_lshl_b32 s63, s2, 3
          s_add_u32 s63, s63, s30
          s_cmp_lg_u32 s63, 1
          s_cbranch_scc1 K_NONC
          s_memrealtime s[64:65]
          v_mov_b32 v16, 128
          s_waitcnt lgkmcnt(0)
          s_or_b32 s64, s64, 1
          v_mov_b32 v17, s64
          s_mov_b64 exec, 1
          global_store_dword v16, v17, s[40:41] sc1
          s_mov_b64 exec, -1
        K_NONC:
          global_load_dwordx4 v[16:19], v6, s[18:19]
          global_load_dwordx4 v[20:23], v6, s[14:15]""")
    srd(a, 48, 20, 21, WBYTES); srd(a, 52, 22, 23, WBYTES); srd(a, 64, 24, 25, WBYTES)
    a(f"""s_cmp_ge_u32 s29, 28                  ; no FFN tile: empty descriptors
          s_cselect_b32 s50, 0, s50
          s_cselect_b32 s54, 0, s54
          s_cselect_b32 s66, 0, s66
          v_lshlrev_b32 v24, 1, v2
          v_xor_b32 v24, v24, v3
          v_lshlrev_b32 v24, 4, v24
          v_xor_b32 v25, 0x80, v24
          v_mul_u32_u24 v7, 7168, v2
          v_add_u32 v24, v24, v7
          v_add_u32 v25, v25, v7
          s_lshl_b32 s68, s28, 3
          s_add_u32 s68, s68, s30
          s_mul_i32 s68, s68, {16 * 7168}
          s_lshl_b32 s69, s29, 8
          s_add_u32 s68, s68, s69
          s_add_u32 s69, s68, {4 * 7168}
          s_add_u32 s70, s68, {8 * 7168}
          s_add_u32 s71, s68, {12 * 7168}
          s_lshl_b32 s72, s30, 12
          s_add_u32 s72, s72, {F_W}""")
    for n in range(W1): unit(a, n)
    srd(a, 32, 42, 43, WS_SIZE)
    srd(a, 20, 26, 27, 0x400000)
    inbox(a, 96, 121, 7, 75, 78)
    if OPT["pt"] == 1: touch(a)
    a(f"""s_barrier
          v_and_b32 v56, 7, v1
          v_lshlrev_b32 v56, 10, v56
          v_lshrrev_b32 v7, 3, v1
          v_lshl_add_u32 v56, v7, 4, v56
          v_and_b32 v57, 31, v1
          v_lshlrev_b32 v57, 3, v57
          v_lshlrev_b32 v63, 1, v1
          s_lshl_b32 s63, s29, 13
          s_lshl_b32 s73, s30, 7
          s_add_u32 s63, s63, s73
          s_add_u32 s63, s63, {WS_PS:#x}
          s_lshl_b32 s73, s28, 10
          s_add_u32 s57, s73, {WS_KM:#x}
          s_add_u32 s73, s73, s63
          s_add_u32 s74, s62, {WS_CI:#x}
          s_getreg_b32 s56, hwreg(HW_REG_XCC_ID)
          v_mov_b32 v122, {TAGM:#x}
          s_mov_b32 s4, {TAGP[0]:#x}
          s_mov_b32 s5, {TAGP[1]:#x}
          s_mov_b32 s6, {TAGP[2]:#x}
          s_mov_b32 s7, {TAGP[3]:#x}
          v_mov_b32 v48, 0
          v_mov_b32 v49, 0
          s_mov_b32 s83, {SPIN:#x}""")
    for r in range(AF, AF + 16): a(f"v_mov_b32 v{r}, 0x3f803f80")
    a(f"s_waitcnt vmcnt({W1 + T1 + 3})")
    for k in range(4):
        a(f"""v_lshlrev_b32 v{F+4*k}, 16, v{8+k}
              v_and_b32 v{F+4*k+2}, s31, v{8+k}""")
    a(f"""ds_read_b64 v[58:59], {Z} offset:{SY}
          s_waitcnt vmcnt({W1 + T1 + 2})""")
    stamp(a, 1)
    for k in range(4):
        a(f"""v_lshlrev_b32 v{F+4*k+1}, 16, v{12+k}
              v_and_b32 v{F+4*k+3}, s31, v{12+k}""")
    a(f"""v_mov_b32_dpp v26, v{F} row_newbcast:0 row_mask:0xf bank_mask:0xf
          v_mov_b32_dpp v27, v{F+1} row_newbcast:0 row_mask:0xf bank_mask:0xf
          s_waitcnt vmcnt({W1 + T1 + 1})""")
    for e in range(8):
        a(f"v_pk_add_f32 v[{F+2*e}:{F+2*e+1}], v[{F+2*e}:{F+2*e+1}], v[26:27] neg_lo:[0,1] neg_hi:[0,1]")
        a(f"v_dot2c_f32_bf16 v{48 + e % 2}, v{8 + 4 * (e % 2) + e // 2}, v{16 + e // 2}")
    a(f"""v_pk_add_f32 v[28:29], v[{F}:{F+1}], v[{F+2}:{F+3}]
          v_pk_mul_f32 v[30:31], v[{F}:{F+1}], v[{F}:{F+1}]
          v_pk_add_f32 v[50:51], v[{F+4}:{F+5}], v[{F+6}:{F+7}]
          v_pk_mul_f32 v[52:53], v[{F+2}:{F+3}], v[{F+2}:{F+3}]""")
    for e in range(2, 8):
        d = 30 if e % 2 == 0 else 52
        a(f"v_pk_fma_f32 v[{d}:{d+1}], v[{F+2*e}:{F+2*e+1}], v[{F+2*e}:{F+2*e+1}], v[{d}:{d+1}]")
        if e >= 4:
            d = 28 if e % 2 == 0 else 50
            a(f"v_pk_add_f32 v[{d}:{d+1}], v[{d}:{d+1}], v[{F+2*e}:{F+2*e+1}]")
    a("""v_pk_add_f32 v[28:29], v[28:29], v[50:51]
         v_pk_add_f32 v[30:31], v[30:31], v[52:53]
         v_add_f32_dpp v54, v48, v48 row_ror:8 row_mask:0xf bank_mask:0x3
         v_add_f32_dpp v54, v49, v49 row_ror:8 row_mask:0xf bank_mask:0xc
         v_mov_b32_dpp v26, v27 quad_perm:[0,1,2,3] row_mask:0xf bank_mask:0xc
         v_add_f32_dpp v52, v28, v28 row_ror:8 row_mask:0xf bank_mask:0x3
         v_add_f32_dpp v53, v30, v30 row_ror:8 row_mask:0xf bank_mask:0x3
         v_add_f32_dpp v52, v29, v29 row_ror:8 row_mask:0xf bank_mask:0xc
         v_add_f32_dpp v53, v31, v31 row_ror:8 row_mask:0xf bank_mask:0xc""")
    def red8():
        for mod in ("row_half_mirror", "quad_perm:[1,0,3,2]", "quad_perm:[2,3,0,1]"):
            for r in (54, 52, 53):
                a(f"v_add_f32_dpp v{r}, v{r}, v{r} {mod} row_mask:0xf bank_mask:0xf")
    red8()
    a(f"""v_mul_f32 v55, 0x3c000000, v52
          s_waitcnt lgkmcnt(0)
          v_readfirstlane_b32 s46, v58
          v_fma_f32 v53, -v55, v52, v53
          v_add_f32 v52, v26, v55
          s_cmp_lg_u32 s46, 0
          s_cbranch_scc1 K_NOK""")
    lds_wait(a, "K_NW", 58, Z, SY, "v_cmp_eq_u32 vcc, 0, v58")
    a(f"""v_readfirstlane_b32 s46, v58
        K_NOK:
          v_mov_b32 v55, v58
          s_mov_b32 exec_lo, 0x01010101
          s_mov_b32 exec_hi, 0x01010101
          buffer_store_dwordx4 v[52:55], v63, s[32:35], s73 offen sc1
          s_mov_b64 exec, -1""")
    stamp(a, 2)
    if OPT["pace"]: a("s_waitcnt vmcnt(0)")
    if OPT["psl"]: a(f"s_sleep {OPT['psl']}")
    a("""buffer_load_dwordx4 v[52:55], v56, s[32:35], s63 offen sc1
         buffer_load_dwordx2 v[62:63], v57, s[32:35], s74 offen sc1""")
    if T2: touch(a)
    for n in range(W1, W1 + W2): unit(a, n)
    a(f"""{"s_mov_b32 s80, 1" if OPT["dbg"] else ""}
          s_waitcnt vmcnt({W2 + T2 + 1})
          s_branch K_P1C
        K_P1:
          s_sleep 2
          buffer_load_dwordx4 v[52:55], v56, s[32:35], s63 offen sc1
          {"s_add_u32 s80, s80, 1" if OPT["dbg"] else ""}
          s_sub_u32 s83, s83, 1
          s_waitcnt vmcnt(0)
          s_cbranch_scc1 K_P1D
        K_P1C:
          v_cmp_ne_u32 vcc, s46, v55
          s_cbranch_vccnz K_P1
        K_P1D:
          s_max_i32 s83, s83, 0""")
    stamp(a, 3)
    if OPT["pt"] == 3: touch(a); T2 = 2
    a(f"""v_mov_b32_dpp v60, v52 row_newbcast:0 row_mask:0xf bank_mask:0x3
          v_mov_b32_dpp v60, v52 row_newbcast:8 row_mask:0xf bank_mask:0xc
          v_sub_f32 v52, v52, v60
          v_mul_f32 v61, 0x43000000, v52
          v_fmac_f32 v53, v61, v52""")
    red8()
    a(f"""v_mul_f32 v61, 0x41800000, v52
          v_fmac_f32 v60, 0x3e000000, v52
          v_fma_f32 v53, -v61, v52, v53
          v_mul_f32 v53, 0x3a800000, v53
          v_max_f32 v53, 0, v53
          v_cvt_pk_bf16_f32 v61, v60, v53
          v_and_b32 v53, s31, v61
          v_lshlrev_b32 v60, 16, v61
          v_add_f32 v53, 0x3727c5ac, v53
          v_cvt_pk_bf16_f32 v53, v53, v53
          v_sub_f32 v26, v26, v60
          v_and_b32 v53, s31, v53
          v_sqrt_f32 v53, v53
          v_mov_b32_dpp v{MM}, v60 row_newbcast:0 row_mask:0xf bank_mask:0xf
          v_cvt_pk_bf16_f32 v51, v60, v53
          v_mov_b32_dpp v{MM+1}, v60 row_newbcast:8 row_mask:0xf bank_mask:0xf
          v_and_b32 v53, s31, v51
          v_rcp_f32 v61, v53
          s_waitcnt vmcnt({W2 + T2})
          v_cmp_ne_u32 s[78:79], s46, v62
          v_fma_f32 v53, -v53, v61, 1.0
          v_fmac_f32 v61, v53, v61
          v_mul_f32 v26, v26, v61
          v_mov_b32_dpp v{RS}, v61 row_newbcast:0 row_mask:0xf bank_mask:0xf
          v_mov_b32_dpp v{RS+1}, v61 row_newbcast:8 row_mask:0xf bank_mask:0xf
          v_mov_b32_dpp v30, v26 row_newbcast:0 row_mask:0xf bank_mask:0xf
          v_mov_b32_dpp v31, v26 row_newbcast:8 row_mask:0xf bank_mask:0xf""")
    for e in range(8):
        a(f"v_pk_fma_f32 v[{F+2*e}:{F+2*e+1}], v[{F+2*e}:{F+2*e+1}], v[{RS}:{RS+1}], v[30:31]")
    for e in range(8):
        a(f"v_cvt_pk_f16_f32 v{64+e}, v{F+2*e}, v{F+2*e+1}")
    transpose4(a, 64, 68)
    a(f"""s_cmp_eq_u64 s[78:79], 0
          s_cbranch_scc1 K_CID
        K_CI:
          s_sleep 2
          buffer_load_dwordx2 v[62:63], v57, s[32:35], s74 offen sc1
          s_sub_u32 s83, s83, 1
          s_waitcnt vmcnt(0)
          s_cbranch_scc1 K_CID
          v_cmp_ne_u32 vcc, s46, v62
          s_cbranch_vccnz K_CI
        K_CID:
          s_max_i32 s83, s83, 0
          v_cmp_ne_u32 vcc, s56, v63
          """)
    for r in range(8): a(f"v_bfi_b32 v{64+r}, v122, s{4+r%4}, v{64+r}")
    a(f"""s_cmp_lg_u64 vcc, 0
          s_cselect_b32 s47, 1, {OPT['slow']}""")
    both_modes(a, "K_US", """buffer_store_dwordx4 v[64:67], v4, s[20:23], s61 offen @
                             buffer_store_dwordx4 v[68:71], v4, s[20:23], s61 offen offset:2048 @""")
    stamp(a, 4)
    a(f"""v_cmp_ne_u32 vcc, 0, v59
          s_cbranch_vccnz K_SWD""")
    lds_wait(a, "K_SW", 59, Z, SY + 4, "v_cmp_eq_u32 vcc, 0, v59")
    a(f"""K_SWD:
          v_fma_f32 v54, -v60, v59, v54
          s_lshl_b32 s78, s60, 4
          s_sub_u32 s78, 4094, s78
          v_mul_f32 v54, v54, v61
          v_lshrrev_b32 v52, 2, v1
          v_cvt_pk_bf16_f32 v54, v54, v54
          v_sub_u32 v52, s78, v52
          v_ashrrev_i32 v53, 31, v54
          v_or_b32 v53, 0x80000000, v53
          v_xor_b32 v54, v54, v53
          v_and_or_b32 v50, v54, s31, v52
          s_lshl_b32 s78, s30, 6
          v_add_u32 v52, s78, v1
          s_mov_b32 exec_lo, 0x01010101
          s_mov_b32 exec_hi, 0x01010101
          ds_write_b64 v52, v[50:51] offset:{SY + 128}
          s_mov_b64 exec, 1
          ds_add_rtn_u32 v52, {Z}, {ONE} offset:{SY + 20}
          s_mov_b64 exec, -1
          v_lshlrev_b32 v53, 3, v1
          ds_read_b64 v[72:73], v53 offset:{SY + 128}
          s_waitcnt lgkmcnt(0)
          v_readfirstlane_b32 s78, v52
          s_cmp_lg_u32 s78, 7
          s_cbranch_scc1 K_NOKEY""")
    top2(a, 72, 52, 78, 79)
    a(f"""v_mov_b32 v74, s46
          v_mov_b32 v75, s46
          s_lshl_b32 s78, s29, 5
          s_add_u32 s78, s78, s57
          v_cndmask_b32 v52, 0, 16, vcc
          v_cmp_le_u32 vcc, s79, v72
          s_mov_b64 exec, vcc""")
    both_modes(a, "K_KS", "buffer_store_dwordx4 v[72:75], v52, s[32:35], s78 offen @")
    a(f"""s_mov_b64 exec, -1
        K_NOKEY:
          {"s_mov_b32 s81, 0" if OPT["dbg"] else ""}
          s_branch K_P2B
        K_P2:
          {"s_sleep " + str(OPT["isl"]) if OPT["isl"] else ""}
        K_P2B:
          buffer_load_dwordx4 v[64:67], v96, s[20:23], s75 offen sc1
          buffer_load_dwordx4 v[68:71], v96, s[20:23], s76 offen sc1
          buffer_load_dwordx4 v[72:75], v97, s[32:35], s57 offen sc1
          {"s_add_u32 s81, s81, 1" if OPT["dbg"] else ""}
          s_sub_u32 s83, s83, 1
          s_waitcnt vmcnt(1)
          v_bitop3_b32 v52, v64, v68, s4 bitop3:0x7e
          v_bitop3_b32 v53, v65, v69, s5 bitop3:0x7e
          v_bitop3_b32 v54, v66, v70, s6 bitop3:0x7e
          v_bitop3_b32 v55, v67, v71, s7 bitop3:0x7e
          s_cbranch_scc1 K_P2D
          v_or3_b32 v52, v52, v53, v54
          v_bitop3_b32 v52, v52, v55, v122 bitop3:0xa8
          v_cmp_ne_u32 vcc, 0, v52
          s_cbranch_vccnz K_P2
        K_P2D:
          s_max_i32 s83, s83, 0
          ds_write_b128 v121, v[64:67] offset:{UA + 2*UPAD}
          ds_write_b128 v121, v[68:71] offset:{UA + 2*UPAD + 256}
          s_add_u32 s78, s47, 1
          v_mov_b32 v52, s78
          s_mov_b64 exec, 1
          ds_write_b32 {Z}, v52 offset:{SY + 8}
          ds_add_u32 {Z}, {ONE} offset:{SY + 16}
          s_mov_b64 exec, -1""")
    stamp(a, 5, 0)
    a(f"""s_waitcnt vmcnt(0)
          s_branch K_P3C
        K_P3:
          buffer_load_dwordx4 v[72:75], v97, s[32:35], s57 offen sc1
          s_sub_u32 s83, s83, 1
          s_waitcnt vmcnt(0)
          s_cbranch_scc1 K_P3D
        K_P3C:
          v_cmp_ne_u32 vcc, s46, v74
          s_cbranch_vccnz K_P3
        K_P3D:
          s_max_i32 s83, s83, 0""")
    stamp(a, 6, 0)
    for n in range(W1 + W2, 8): unit(a, n)
    top2(a, 72, 52, 4, 5)
    a(f"""s_andn2_b32 s6, 0xffe, s4             ; 2 * row
          s_andn2_b32 s7, 0xffe, s5
          s_lshr_b32 s75, s6, 4
          s_lshr_b32 s76, s7, 4
          s_mov_b32 s78, 0xaaaaaaaa
          s_mov_b32 s79, s78
          v_mov_b32 v52, s6
          v_mov_b32 v53, s7
          v_cndmask_b32 v98, v52, v53, s[78:79]
          v_lshlrev_b32 v98, 10, v98
          v_lshl_add_u32 v98, v2, 4, v98
          s_mov_b32 exec_lo, 0x33333333
          s_mov_b32 exec_hi, 0x33333333""")
    for k in range(4):
        a(f"buffer_load_dwordx4 v[{AF+4*k}:{AF+4*k+3}], v98, s[36:39], s62 offen offset:{64*k}")
    a(f"""s_mov_b64 exec, -1
          s_lshl_b32 s78, s60, 15
          s_add_u32 s78, s78, s62""")
    for f in range(0, 16, 2):
        a(f"""buffer_load_dword v{WD+f}, v123, s[64:67], s78 offen {OPT['wfl']}
              buffer_load_dword v{WD+f+1}, v123, s[64:67], s78 offen offset:2048 {OPT['wfl']}""")
        if f < 14: a("s_add_u32 s78, s78, 4096")
    a(f"""v_cmp_eq_u32 vcc, s4, v72
          v_cmp_eq_u32 s[78:79], s5, v72
          s_ff1_i32_b64 s8, vcc
          s_ff1_i32_b64 s9, s[78:79]
          s_lshl_b32 s78, s60, 4
          v_lshl_add_u32 v52, v2, 2, s78        ; 2 * row A
          v_readlane_b32 s8, v73, s8
          v_readlane_b32 s9, v73, s9
          v_cmp_ne_u32 s[52:53], s6, v52
          v_cmp_ne_u32 vcc, s7, v52
          v_add_u32 v52, 2, v52
          s_and_b64 s[52:53], s[52:53], vcc
          v_cmp_ne_u32 s[54:55], s6, v52
          v_cmp_ne_u32 vcc, s7, v52
          s_and_b64 s[54:55], s[54:55], vcc
          v_or_b32 v52, s4, {ONE}
          v_mov_b32 v53, s5
          v_mov_b32 v54, s8
          v_mov_b32 v55, s9
          ds_write_b128 {Z}, v[52:55] offset:{SY + 96}
          v_and_b32 v54, s31, v54
          v_and_b32 v55, s31, v55
          v_rcp_f32 v124, v54
          v_rcp_f32 v125, v55
          s_lshl_b32 s8, s8, 16
          s_lshl_b32 s9, s9, 16
          v_fma_f32 v54, -v54, v124, 1.0
          v_fma_f32 v55, -v55, v125, 1.0
          v_fmac_f32 v124, v54, v124
          v_fmac_f32 v125, v55, v125
          s_or_b32 s78, s2, s30
          s_cmp_lg_u32 s78, 0
          s_cbranch_scc1 K_NOZ
          v_mov_b32 v52, 128
          s_mov_b64 exec, 1
          global_store_dword v52, {Z}, s[40:41] sc1
          s_mov_b64 exec, -1
        K_NOZ:
          v_lshrrev_b32 v52, 2, v3
          v_lshl_add_u32 v99, v2, 3, v52
          v_lshlrev_b32 v99, 8, v99
          v_and_b32 v53, 1, v2
          v_lshl_or_b32 v52, v53, 2, v52
          v_xor_b32 v52, s30, v52
          v_lshl_add_u32 v99, v52, 5, v99
          v_and_b32 v52, 3, v1
          v_lshl_add_u32 v99, v52, 3, v99
          v_add_u32 v99, {F_W}, v99
          v_lshl_add_u32 v120, v2, 11, v5
          v_lshlrev_b32 v121, 8, v2
          v_lshl_add_u32 v121, v52, 6, v121
          v_and_b32 v52, 12, v1
          v_add_u32 v121, v121, v52
          s_lshl_b32 s78, s30, 10
          s_add_u32 s78, s78, {G2}
          v_add_u32 v121, s78, v121
          s_lshl_b32 s63, s29, 14
          s_lshl_b32 s78, s30, 8
          s_add_u32 s63, s63, s78
          s_add_u32 s63, s63, {WS_EX:#x}
          s_add_u32 s74, s63, 8192
          s_lshl_b32 s73, s28, 11
          s_add_u32 s73, s73, s63
          s_mov_b32 s68, 0x07060503
          s_mov_b32 s69, 0x07060502
          s_mov_b32 s70, 0x07060501
          s_mov_b32 s71, 0x04000c0c
          s_mov_b32 s72, 0x0706000c
          s_mov_b32 s56, 0x05040100
          s_mov_b32 s57, 0x07060302""")
    a(f"""s_mov_b32 s48, {TAGP[0]:#x}
          s_mov_b32 s49, {TAGP[1]:#x}
          s_setprio {OPT['pprio']}""")
    pp = OPT["ppos"]
    if pp < 2: operands(a, range(4))
    if pp < 1: operands(a, range(4, 8))
    stamp(a, 7, 0); stamp(a, 5, 1)
    a(f"""s_cmp_ge_u32 s29, 28
          s_cbranch_scc1 K_NOG1
          s_setprio {OPT['gprio']}
          s_waitcnt vmcnt(16)
          s_mov_b64 exec, 1
          ds_add_u32 {Z}, {ONE} offset:{SY + 24}
          s_mov_b64 exec, -1""")
    lds_wait(a, "K_GW", 52, Z, SY + 24, "v_cmp_gt_u32 vcc, 8, v52")
    stamp(a, 6, 1)
    P = Pipe(a, maxfly=15)
    for n in range(8):
        k, mat = n // 2, n % 2
        P.load(f"ds_read_b64_tr_b16 v[{BF+4*n}:{BF+4*n+1}], v99 offset:{32768*mat + 8192*k}")
        lid = P.load(f"ds_read_b64_tr_b16 v[{BF+4*n+2}:{BF+4*n+3}], v99 offset:{32768*mat + 8192*k + 1024}")
        d = 16 + 8 * mat
        c = "0" if k == 0 else f"v[{d}:{d+3}]"
        P.step(f"v_mfma_f32_16x16x32_bf16 v[{d}:{d+3}], v[{AF+4*k}:{AF+4*k+3}], v[{BF+4*n}:{BF+4*n+3}], {c}", [lid])
    P.run()
    a("""v_fma_f32 v16, -s8, v18, v16
         v_fma_f32 v17, -s9, v18, v17
         v_fma_f32 v18, -s8, v26, v24
         v_fma_f32 v19, -s9, v26, v25
         v_pk_mul_f32 v[16:17], v[16:17], v[124:125]
         v_pk_mul_f32 v[18:19], v[18:19], v[124:125]""")
    pack24(a, 16, "s46", 68)
    a(f"""s_mov_b64 exec, 0xffff
          buffer_store_dwordx4 v[16:19], v97, s[32:35], s73 offen sc1
          s_mov_b64 exec, -1
          s_setprio {OPT['pprio']}
        K_NOG1:""")
    stamp(a, 7, 1)
    if pp >= 2: operands(a, range(4))
    if pp >= 1: operands(a, range(4, 8))
    XX, UD, GG = 32, 48, 100
    for e in range(8):
        unpack(a, UD + 2*e, PUD + e, 31)
        unpack(a, GG + 2*e, PG + e, 31)
        a(f"""{"v_and_b32" if e % 2 else "v_lshlrev_b32"} v{XX+2*e}, {"s31" if e % 2 else "16"}, v{PX + e//2}
              {"v_and_b32" if e % 2 else "v_lshlrev_b32"} v{XX+2*e+1}, {"s31" if e % 2 else "16"}, v{PX + 4 + e//2}""")
    yload = """buffer_load_dwordx4 v[72:75], v4, s[20:23], s61 offen sc1
               buffer_load_dwordx4 v[76:79], v4, s[20:23], s61 offen offset:2048 sc1"""
    a(f"""s_setprio {OPT['gprio']}
          s_cmp_ge_u32 s29, 28
          s_cbranch_scc1 K_PY
          s_waitcnt vmcnt(0)""")
    stamp(a, 5, 2)
    a(f"""buffer_load_dwordx4 v[64:67], v120, s[32:35], s63 offen sc1
          buffer_load_dwordx4 v[68:71], v120, s[32:35], s74 offen sc1""")
    a(yload)
    for p in range(8):
        a(f"""v_perm_b32 v{16+p}, v{WD+2*p+1}, v{WD+2*p}, s56
              v_perm_b32 v{WD+2*p+1}, v{WD+2*p+1}, v{WD+2*p}, s57""")
    a(f"""v_mov_b32 v24, 0
          v_mov_b32 v25, 0
          v_mov_b32 v26, 0
          v_mov_b32 v27, 0
          s_waitcnt vmcnt(2)
          s_branch K_P4C
        K_P4:
          s_sleep 2
          buffer_load_dwordx4 v[64:67], v120, s[32:35], s63 offen sc1
          buffer_load_dwordx4 v[68:71], v120, s[32:35], s74 offen sc1
          s_sub_u32 s83, s83, 1
          s_waitcnt vmcnt(0)
          s_cbranch_scc1 K_P4D
        K_P4C:
          v_cmp_ne_u32 vcc, s46, v67
          v_cmp_ne_u32 s[78:79], s46, v71
          s_or_b64 vcc, vcc, s[78:79]
          s_cbranch_vccnz K_P4
        K_P4D:
          s_max_i32 s83, s83, 0""")
    stamp(a, 6, 2)
    unpack24(a, 64, 71); unpack24(a, 68, 71)
    a("""v_pk_add_f32 v[64:65], v[64:65], v[68:69]
         v_pk_add_f32 v[66:67], v[66:67], v[70:71]""")
    rows4(a, 64)
    a("""v_cvt_pk_bf16_f32 v64, v64, v64
         v_and_b32 v65, s31, v64
         v_and_b32 v64, s31, v64
         v_permlane32_swap_b32 v65, v64
         v_mul_f32 v66, s58, v65
         v_exp_f32 v66, -v66
         v_add_f32 v66, 1.0, v66
         v_rcp_f32 v66, v66
         v_mul_f32 v66, v66, v65
         v_cvt_pk_bf16_f32 v66, v66, v66
         v_and_b32 v66, s31, v66
         v_mul_f32 v66, v66, v64
         v_mov_b32_dpp v67, v66 quad_perm:[1,0,3,2] row_mask:0xf bank_mask:0xf
         v_cvt_pk_bf16_f32 v66, v66, v67""")
    for p in range(8):
        a(f"""v_readlane_b32 s{4+p}, v66, {2*p}
              v_readlane_b32 s{12+p}, v66, {16+2*p}""")
    for p in range(8):
        a(f"""v_dot2c_f32_bf16 v24, s{4+p}, v{16+p}
              v_dot2c_f32_bf16 v25, s{4+p}, v{WD+2*p+1}
              v_dot2c_f32_bf16 v26, s{12+p}, v{16+p}
              v_dot2c_f32_bf16 v27, s{12+p}, v{WD+2*p+1}""")
    a(f"""v_add_u32 v28, {G2}, v97
          ds_write2_b32 v121, v24, v26 offset0:0 offset1:4
          ds_write2_b32 v121, v25, v27 offset0:8 offset1:12
          s_mov_b64 exec, 1
          ds_add_rtn_u32 v29, {Z}, {ONE} offset:{SY + 28}
          s_mov_b64 exec, -1
          s_waitcnt lgkmcnt(0)
          v_readfirstlane_b32 s78, v29
          s_cmp_lg_u32 s78, 7
          s_cbranch_scc1 K_NOG2""")
    R = [80, 84, 88, 92, 16, 20, 24, 64]
    for w in range(8):
        a(f"ds_read_b128 v[{R[w]}:{R[w]+3}], v28 offset:{1024*w}")
    a(f"""s_lshl_b32 s78, s28, 15
          s_lshl_b32 s79, s29, 10
          s_add_u32 s78, s78, s79
          s_add_u32 s78, s78, {WS_DP:#x}""")
    def padd(d, s):
        a(f"""v_pk_add_f32 v[{d}:{d+1}], v[{d}:{d+1}], v[{s}:{s+1}]
              v_pk_add_f32 v[{d+2}:{d+3}], v[{d+2}:{d+3}], v[{s+2}:{s+3}]""")
    for w in range(0, 8, 2):
        a(f"s_waitcnt lgkmcnt({6 - w})")
        padd(R[w], R[w+1])
        if w == 2: padd(R[0], R[2])
    padd(R[4], R[6]); padd(R[0], R[4])
    pack24(a, 80, "s46", 68)
    both_modes(a, "K_DS", "buffer_store_dwordx4 v[80:83], v97, s[32:35], s78 offen @")
    a(f"""s_waitcnt vmcnt(1)
          s_branch K_PYC
        K_NOG2:
          s_waitcnt vmcnt(0)
          s_branch K_PYC
        K_PY:""")
    a(yload)
    a(f"""s_sub_u32 s83, s83, 1
          s_waitcnt vmcnt(0)
          s_cbranch_scc1 K_PYD
        K_PYC:
          v_xor_b32 v64, s48, v72
          v_xor_b32 v65, s48, v76
          v_bitop3_b32 v64, v64, v73, s49 bitop3:0xf6
          v_bitop3_b32 v65, v65, v77, s49 bitop3:0xf6
          v_and_b32 v64, v122, v64
          v_and_b32 v65, v122, v65
          v_min_u32 v64, v64, v65
          v_cmp_eq_u32 vcc, 0, v64
          s_cbranch_vccnz K_PY
        K_PYD:
          s_cmp_eq_u32 s75, s60
          s_cselect_b32 s78, 0x55555555, 0
          s_cmp_eq_u32 s76, s60
          s_cselect_b32 s79, 0xaaaaaaaa, 0
          s_or_b32 s78, s78, s79
          s_cbranch_scc0 K_NOOWN
          v_mov_b32 v64, 0
          v_mov_b32 v65, 0
          v_mov_b32 v66, 0
          v_mov_b32 v67, s46
          s_mov_b32 exec_lo, s78
          s_mov_b32 exec_hi, s78
          s_lshl_b32 s78, s28, 15
          s_add_u32 s78, s78, {WS_DP + 28 * 1024:#x}""")
    both_modes(a, "K_OS", "buffer_store_dwordx4 v[64:67], v97, s[32:35], s78 offen @")
    a("""s_mov_b64 exec, -1
       K_NOOWN:""")
    stamp(a, 7, 2)
    transpose4(a, 72, 76)
    T = lambda e: 80 + 2 * e
    for nxt, op in ((UD, "add"), (GG, "mul"), (XX, "add")):
        for e in range(8): unpack(a, T(e), 72 + e, 31)
        for e in range(8): a(f"v_pk_{op}_f32 v[{T(e)}:{T(e)+1}], v[{T(e)}:{T(e)+1}], v[{nxt+2*e}:{nxt+2*e+1}]")
        if nxt != XX:
            for e in range(8): a(f"v_cvt_pk_bf16_f32 v{72+e}, v{T(e)}, v{T(e)+1}")
    for h in range(2):
        for k in range(4): a(f"v_cvt_pk_bf16_f32 v{64+4*h+k}, v{T(2*k)+h}, v{T(2*k+1)+h}")
        a(f"""s_mov_b64 exec, s[{52+2*h}:{53+2*h}]
              buffer_store_dwordx4 v[{64+4*h}:{67+4*h}], v4, s[20:23], s61 offen offset:{2048*h} {OPT['outfl']}
              s_mov_b64 exec, -1""")
    stamp_flush(a, 0)

def c_path(a):
    a(f"""s_sub_u32 s30, s30, 8
          s_and_b32 s52, s30, 3
          s_lshr_b32 s53, s30, 2
          s_lshr_b32 s3, s29, 3
          s_lshl_b32 s3, s3, 5
          s_and_b32 s55, s29, 7
          s_add_u32 s3, s3, s55
          s_lshl_b32 s55, s28, 7
          s_add_u32 s3, s3, s55
          s_lshl_b32 s55, s52, 3
          s_add_u32 s54, s3, s55                ; d
          s_lshl_b32 s55, s54, 8
          s_lshl_b32 s56, s53, 7
          s_add_u32 s56, s56, s55
          v_lshl_add_u32 v8, v1, 1, s56
          v_lshl_add_u32 v9, v1, 2, s55
          s_lshl_b32 s57, s54, 1
          v_mov_b32 v10, s57
          v_lshlrev_b32 v95, 4, v1
          v_mov_b32 v12, 0
          v_mov_b32 v13, 0
          v_mov_b32 v14, 0
          v_mov_b32 v15, 0
          s_mov_b32 s34, {WS_SIZE:#x}
          s_mov_b32 s35, 0x00020000
          s_waitcnt lgkmcnt(0)
          global_load_ushort v91, v10, s[12:13]
          global_load_ushort v2, v8, s[4:5]
          global_load_ushort v3, v8, s[6:7]
          global_load_dword v6, v9, s[8:9]
          global_load_dword v7, v9, s[10:11]
          global_load_ushort v4, v8, s[8:9]
          global_load_ushort v5, v8, s[10:11]
          s_mov_b32 s32, s42
          s_mov_b32 s33, s43
          s_mov_b32 m0, {JUNK}
          s_cmp_lg_u32 s30, 1
          s_cbranch_scc1 K_NOW
          global_load_dwordx4 v[100:103], v95, s[18:19]
          global_load_dwordx4 v[104:107], v95, s[18:19] offset:1024
        K_NOW:
          s_cmp_lg_u32 s30, 2
          s_cbranch_scc1 K_NOT
          s_lshl_b32 s60, s28, 15
          s_lshl_b32 s61, s29, 10
          s_add_u32 s60, s60, s61
          s_add_u32 s60, s60, {WS_DP:#x}
          s_lshl_b32 s61, s28, 10
          s_add_u32 s61, s61, {WS_KM:#x}
          buffer_load_dwordx4 v95, s[32:35], s60 offen sc1 lds
          buffer_load_dwordx4 v95, s[32:35], s61 offen sc1 lds
        K_NOT:
          s_barrier
          s_cmp_lt_u32 s30, 3
          s_cbranch_scc1 K_NOBAND
          s_sub_u32 s79, s30, 3
          s_lshl_b32 s76, s79, 2
          s_lshr_b32 s77, 0xabcda, s76
          s_and_b32 s77, s77, 15
          s_lshr_b32 s78, 0x66824, s76
          s_and_b32 s78, s78, 15
          v_lshrrev_b32 v16, 4, v1
          v_lshlrev_b32 v16, 3, v16
          v_and_b32 v17, 15, v1
          v_sub_u32 v16, v17, v16
          v_add_u32 v16, s77, v16
          v_mov_b32 v60, 0x3c00
          v_mov_b32 v61, 0x3c000000""")
    for jj in range(8):
        a(f"""v_subrev_u32 v17, {jj}, v16
              v_cmp_ge_u32 s[{60+2*jj}:{61+2*jj}], s78, v17""")
    for i in range(4):
        a(f"""v_cndmask_b32 v{64+i}, 0, v60, s[{60+4*i}:{61+4*i}]
              v_cndmask_b32 v17, 0, v61, s[{62+4*i}:{63+4*i}]
              v_or_b32 v{64+i}, v{64+i}, v17""")
    a(f"""s_lshl_b32 s76, s79, 10
          v_add_u32 v16, s76, v95
          ds_write_b128 v16, v[64:67] offset:{BAND}
        K_NOBAND:
          v_and_b32 v96, 15, v1
          v_lshrrev_b32 v97, 4, v1
          s_mul_i32 s66, s52, {UROW}
          s_add_u32 s66, s66, {UA}
          v_add_u32 v11, s66, v95
          s_mov_b32 exec_hi, 3
          ds_write_b128 v11, v[12:15]
          s_mov_b32 exec_hi, -1""")
    kgen_setup(a)
    a(f"""v_mov_b32 v16, 128
          s_cmp_lg_u32 s30, 0
          s_cbranch_scc1 K_NON
          {"s_sleep " + str(OPT["nsl"]) if OPT["nsl"] else ""}
          global_load_dword v18, v16, s[40:41] sc1
        K_NON:
          s_waitcnt vmcnt(0)""")
    stamp(a, 1)
    a(f"""s_cmp_lg_u32 s30, 0
          s_cbranch_scc1 K_NOCI
          s_mov_b32 s83, {SPIN:#x}
          s_branch K_NC
        K_NP:
          s_sleep 4
          global_load_dword v18, v16, s[40:41] sc1
          s_sub_u32 s83, s83, 1
          s_waitcnt vmcnt(0)
          s_cbranch_scc1 K_NG
        K_NC:
          v_cmp_eq_u32 vcc, 0, v18
          s_cbranch_vccnz K_NP
        K_NG:
          v_or_b32 v18, 1, v18
          ds_write_b32 v12, v18 offset:{SY}
          s_getreg_b32 s60, hwreg(HW_REG_XCC_ID)
          v_mov_b32 v19, s60
          s_lshl_b32 s60, s28, 8
          s_lshl_b32 s61, s29, 3
          s_add_u32 s60, s60, s61
          s_add_u32 s60, s60, {WS_CI:#x}""")
    a(f"""s_mov_b64 exec, 1
          buffer_store_dwordx2 v[18:19], v12, s[32:35], s60 offen sc1
          s_mov_b64 exec, -1
        K_NOCI:
          s_cmp_lg_u32 s30, 1
          s_cbranch_scc1 K_NOSW
          s_mov_b32 s60, 0x3f803f80
          v_mov_b32 v16, 0""")
    for i in range(8): a(f"v_dot2c_f32_bf16 v16, s60, v{100+i}")
    wave_reduce(a, "v_add_f32", [16])
    a(f"""v_or_b32 v16, 1, v16
          s_mov_b32 exec_lo, 0
          s_mov_b32 exec_hi, 0x80000000
          ds_write_b32 v12, v16 offset:{SY + 4}
          s_mov_b64 exec, -1
        K_NOSW:""")
    stamp(a, 2)
    kgen_main(a)
    a("""s_cmp_eq_u32 s53, 0
         s_cbranch_scc0 K_FAR""")
    near_table(a, "K")
    a(FRAG_ADDR())
    a(f"s_setprio {OPT['nprio']}")
    conv_sync(a, "K_W1N")
    near(a)
    a("s_branch K_YOUT")
    a.raw(".p2align 6")
    a("K_FAR:")
    far_table(a, "K")
    a("v_readlane_b32 s71, v89, 0")
    a(FRAG_ADDR())
    a(f"s_setprio {OPT['fprio']}")
    conv_sync(a, "K_W1F")
    far(a)
    a("""s_cmp_lg_u32 s30, 4
         s_cbranch_scc1 K_YOUT""")
    lds_wait(a, "K_TW", 16, "v15", SY + 96, "v_cmp_eq_u32 vcc, 0, v16")
    a(f"""v_and_b32 v2, 1, v1
          v_lshlrev_b32 v3, 2, v2
          ds_read2_b32 v[80:81], v3 offset0:{(SY + 96)//4} offset1:{(SY + 104)//4}
          ds_read_b32 v90, v15 offset:{SY}
          v_lshrrev_b32 v4, 4, v1
          v_lshl_add_u32 v5, v4, 3, s3
          v_lshlrev_b32 v5, 1, v5               ; 2 * channel
          global_load_ushort v82, v5, s[14:15]
          v_lshrrev_b32 v86, 1, v1
          v_lshlrev_b32 v86, 10, v86
          v_lshl_add_u32 v86, v2, 4, v86
          s_lshl_b32 s60, s28, 15
          s_lshl_b32 s61, s29, 5
          s_add_u32 s60, s60, s61
          s_add_u32 s60, s60, {WS_DP:#x}
          v_mul_u32_u24 v84, {UROW}, v4
          s_waitcnt lgkmcnt(0)
          v_not_b32 v6, v80
          v_and_b32 v6, 0xffe, v6               ; 2 * row
          v_add_u32 v84, v84, v6                ; y address
          v_lshl_add_u32 v87, v6, 10, v5
          global_load_ushort v83, v87, s[44:45]
          v_and_b32 v5, s31, v80
          v_ashrrev_i32 v3, 31, v5
          v_not_b32 v3, v3
          v_or_b32 v3, 0x80000000, v3
          v_xor_b32 v5, v5, v3
          v_and_b32 v5, s31, v5
          v_mul_f32 v85, s58, v5
          v_exp_f32 v85, -v85
          v_and_b32 v88, s31, v81
          v_lshlrev_b32 v81, 16, v81
          v_add_f32 v85, 1.0, v85
          v_rcp_f32 v85, v85
          v_rcp_f32 v89, v88
          v_fma_f32 v88, -v88, v89, 1.0
          v_fmac_f32 v89, v88, v89""")
    rbf(a, 85)
    a("K_YOUT:")
    inbox(a, 95, 2, 3, 72, 61)
    srd(a, 20, 26, 27, 0x400000)
    a(f"""v_mov_b32 v4, {TAGP[1]:#x}
          s_mov_b32 s62, {TAGM:#x}
          s_mov_b32 s63, {TAGP[0]:#x}
          ds_read_b32 v5, v15 offset:{SY + 8}
          s_setprio 3""")
    lds_wait(a, "K_YW", 3, "v15", SY + 48, "v_cmp_gt_u32 vcc, 4, v3")
    stamp(a, 6)
    a(f"""ds_read_b128 v[16:19], v2 offset:{UA + 2*UPAD}
          ds_read_b128 v[20:23], v2 offset:{UA + 2*UPAD + 256}
          v_readfirstlane_b32 s47, v5
          s_sub_u32 s47, s47, 1
          s_waitcnt lgkmcnt(1)
          v_xor_b32 v6, s63, v16
          v_bitop3_b32 v6, v6, v17, v4 bitop3:0xf6
          v_and_b32 v6, s62, v6
          v_cmp_eq_u32 vcc, 0, v6
          s_waitcnt lgkmcnt(0)
          v_xor_b32 v7, s63, v20
          v_bitop3_b32 v7, v7, v21, v4 bitop3:0xf6
          v_and_b32 v7, s62, v7
          v_addc_co_u32 v16, vcc, 0, v16, vcc
          v_cmp_eq_u32 vcc, 0, v7
          v_addc_co_u32 v20, vcc, 0, v20, vcc""")
    both_modes(a, "K_YS", """buffer_store_dwordx4 v[16:19], v95, s[20:23], s72 offen @
                             buffer_store_dwordx4 v[20:23], v95, s[20:23], s73 offen @""")
    a(f"""s_cmp_lg_u32 s30, 4
          s_cbranch_scc1 K_CDONE
          ds_read_u16 v84, v84 offset:{UA + 2*UPAD}
          v_mov_b32 v48, 0
          v_mov_b32 v49, 0
          v_mov_b32 v50, 0
          v_mov_b32 v51, v90
          s_mov_b32 exec_hi, 0x03ffffff
          buffer_load_dwordx4 v[48:51], v86, s[32:35], s60 offen sc1
          s_mov_b32 exec_hi, -1
          s_mov_b32 s83, {SPIN:#x}
          s_mov_b32 s64, 0x04000c0c
          s_mov_b32 s65, 0x0706000c
          s_waitcnt vmcnt(3) lgkmcnt(0)
          v_lshlrev_b32 v83, 16, v83
          v_lshlrev_b32 v82, 16, v82
          v_lshlrev_b32 v84, 16, v84
          v_sub_f32 v21, v83, v81""")
    rbf(a, 21)
    a("v_mul_f32 v21, v21, v89")
    rbf(a, 21)
    a("v_mul_f32 v22, v21, v82")
    rbf(a, 22)
    a("v_add_f32 v22, v22, v84")
    rbf(a, 22)
    a(f"""s_waitcnt vmcnt(0)
          s_branch K_DC
        K_DP:
          s_mov_b32 exec_hi, 0x03ffffff
          buffer_load_dwordx4 v[48:51], v86, s[32:35], s60 offen sc1
          s_mov_b32 exec_hi, -1
          s_sub_u32 s83, s83, 1
          s_waitcnt vmcnt(0)
          s_cbranch_scc1 K_DD
        K_DC:
          v_cmp_ne_u32 vcc, v51, v90
          s_cbranch_vccnz K_DP
        K_DD:""")
    stamp(a, 7)
    unpack24(a, 48, 64)
    rows4(a, 48)
    for mod in ("quad_perm:[2,3,0,1]", "row_ror:4", "row_ror:8"):
        a(f"v_add_f32_dpp v48, v48, v48 {mod} row_mask:0xf bank_mask:0xf")
    rbf(a, 48)
    a("v_mul_f32 v20, v48, v85")
    rbf(a, 20)
    a("v_add_f32 v20, v20, v21")
    rbf(a, 20)
    a("""v_mul_f32 v23, s58, v20
         v_exp_f32 v23, -v23
         v_add_f32 v23, 1.0, v23
         v_rcp_f32 v23, v23
         v_mul_f32 v23, v23, v20""")
    rbf(a, 23)
    a("v_mul_f32 v23, v23, v22")
    rbf(a, 23)
    a("""v_add_f32 v23, v23, v83
         v_cvt_pk_bf16_f32 v23, v23, v23
         s_mov_b32 exec_lo, 0x00030003
         s_mov_b32 exec_hi, 0x00030003
         global_store_short v87, v23, s[26:27]
       K_CDONE:""")
    stamp_flush(a, 8)

def k4():
    a = Asm()
    name = "recurrent_scan__ssm_conv_s4d__moe_arch_mod__prompt_kernel"
    a.raw(f".p2align 8\n.globl {name}\n.type {name},@function\n{name}:")
    a("""s_cmp_ge_u32 s2, 256
         s_cbranch_scc1 K_END""")
    if OPT["dbg"]:
        for i in range(80, 102): a(f"s_mov_b32 s{i}, 0")
    stamp(a, 0)
    a(f"""s_load_dwordx2 s[44:45], s[0:1], 0
          s_load_dwordx16 s[4:19], s[0:1], 8
          s_load_dwordx8 s[20:27], s[0:1], 72
          s_load_dwordx4 s[40:43], s[0:1], 104
          v_readfirstlane_b32 s30, v0
          v_and_b32 v1, 63, v0
          s_and_b32 s28, s2, 7
          s_lshr_b32 s29, s2, 3
          s_mov_b32 s31, 0xffff0000
          s_mov_b32 s58, {L2E_HI:#x}
          s_lshr_b32 s30, s30, 6
          s_cmp_ge_u32 s30, 8
          s_cbranch_scc1 K_C""")
    e_path(a)
    a.raw(".p2align 6")
    a("K_C:")
    c_path(a)
    a("""K_END:
         s_endpgm""")
    return a.finish(), desc(name, 128, 102 if OPT["dbg"] else 96)

if __name__ == "__main__":
    for kv in sys.argv[2:]:
        k, v = kv.split("=")
        assert k in OPT, k
        OPT[k] = int(v) if v.lstrip("-").isdigit() else v.replace("+", " ")
    hdr = open("recurrent_scan__ssm_conv_s4d__moe_arch_mod__prompt.s.ref").read().split("\n")
    out = [l for l in hdr if l.startswith(";") and "@launch" not in l and "Override launch" not in l and "grid=ceil" not in l]
    out.append(f"; @launch grid=(256,1,1) block=(1024,1,1) lds={LDS}")
    out.append('.amdgcn_target "amdgcn-amd-amdhsa--gfx950"\n.text')
    b, d = k4()
    out += [b, '.section .rodata,"a"', d]
    open(sys.argv[1], "w").write("\n".join(out))
```

```python
import re

TRANS = ("v_exp_f32", "v_log_f32", "v_rcp_f32", "v_rsq_f32", "v_sqrt_f32", "v_sin_f32", "v_cos_f32",
         "v_rcp_iflag_f32", "v_exp_f16", "v_rcp_f16")

def _regs(tok):
    tok = tok.strip()
    neg = tok.lstrip("-")
    m = re.fullmatch(r"(?:abs\(|\|)?([vsa])(\d+)[\)|]?", neg)
    if m:
        return {m.group(1) + m.group(2)}
    m = re.fullmatch(r"([vsa])\[(\d+):(\d+)\]", neg)
    if m:
        return {m.group(1) + str(i) for i in range(int(m.group(2)), int(m.group(3)) + 1)}
    if neg in ("vcc", "vcc_lo", "vcc_hi"):
        return {"vcc"}
    if neg in ("exec", "exec_lo", "exec_hi"):
        return {"exec"}
    if neg == "m0":
        return {"m0"}
    return set()

def _split_ops(s):
    out, depth, cur = [], 0, ""
    for ch in s:
        if ch in "[(":
            depth += 1
        if ch in "])":
            depth -= 1
        if ch == "," and depth == 0:
            out.append(cur); cur = ""
        else:
            cur += ch
    if cur.strip():
        out.append(cur)
    return [o.strip() for o in out]

class Ins:
    __slots__ = ("text", "op", "kind", "wr", "rd", "dpp", "srcc", "ab", "states", "wide_store_data", "lane_sel", "passes", "lds_dma", "opsel_dst")

def parse(text):
    I = Ins()
    I.text = text
    t = text.split(";")[0].strip()
    parts = t.split(None, 1)
    op = parts[0]
    rest = parts[1] if len(parts) > 1 else ""
    ops = _split_ops(rest)
    mods = ""
    if ops:
        last = ops[-1].split(None, 1)
        if len(last) > 1 and not last[0].endswith("("):
            ops[-1] = last[0]; mods = last[1]
    for suf in ("_e32", "_e64"):
        if op.endswith(suf):
            op = op[:-4]
    I.op = op; I.wr = set(); I.rd = set(); I.dpp = False; I.srcc = set(); I.ab = set(); I.states = 1
    I.wide_store_data = set(); I.lane_sel = set(); I.passes = 0; I.lds_dma = False; I.opsel_dst = False
    R = [_regs(o) for o in ops]
    if op == "s_nop":
        I.kind = "nop"; I.states = int(ops[0], 0) + 1
    elif op.startswith("v_mfma"):
        I.kind = "mfma"
        I.wr = R[0]; I.ab = R[1] | R[2]; I.srcc = R[3]; I.rd = I.ab | I.srcc
        I.passes = 8 if "32x32" in op else 4
    elif op.startswith("v_"):
        I.kind = "valu"
        I.dpp = op.endswith("_dpp") or "quad_perm" in mods or "row_" in mods or "wave_" in mods
        if op.startswith("v_cmpx"):
            I.wr = R[0] | {"exec"}; I.rd = set().union(*R[1:])
        elif op.startswith("v_cmp"):
            I.wr = R[0]; I.rd = set().union(*R[1:])
        elif op.startswith(("v_add_co", "v_sub_co", "v_subrev_co", "v_addc_co", "v_subb_co", "v_div_scale", "v_mad_u64")):
            I.wr = R[0] | R[1]; I.rd = set().union(*R[2:])
        elif op.startswith("v_permlane") and "swap" in op:
            I.wr = R[0] | R[1]; I.rd = R[0] | R[1]
        elif op.startswith(("v_readlane", "v_writelane")):
            I.wr = R[0]; I.rd = R[1] | R[2]; I.lane_sel = R[2]
            if op.startswith("v_writelane"):
                I.rd |= R[0]
        else:
            I.wr = R[0]; I.rd = set().union(*R[1:]) if len(R) > 1 else set()
            if op.startswith("v_dot"):
                I.ab = R[1] | R[2]
            if op.startswith(("v_fmac", "v_dot2c", "v_pk_fmac", "v_mac")) or I.dpp or "UNUSED_PRESERVE" in mods:
                I.rd |= R[0]
            if ("dst_sel:WORD" in mods or "dst_sel:BYTE" in mods):
                I.opsel_dst = True
            if op.startswith("v_pk_") and op.endswith("_f32"):
                m = re.search(r"op_sel:\[(\d),(\d)", mods)
                assert not (m and m.group(2) == "1" and ops[2].lstrip("-").startswith("v")), "src1 op_sel=1 on packed f32: " + text
    elif op.startswith("ds_"):
        I.kind = "ds"
        if op.startswith(("ds_read", "ds_bpermute", "ds_permute", "ds_swizzle")) or "_rtn" in op:
            I.wr = R[0]; I.rd = set().union(*R[1:])
            if "d16" in op:
                I.rd |= R[0]
        else:
            I.rd = set().union(*R)
    elif op.startswith(("buffer_", "global_")):
        I.kind = "vmem"
        lds = re.search(r"\blds\b", mods) is not None or "load_lds" in op
        I.lds_dma = lds
        if op in ("buffer_wbl2", "buffer_inv"):
            pass
        elif "load" in op and not lds:
            I.wr = R[0]; I.rd = set().union(*R[1:])
            if "d16" in op:
                I.rd |= R[0]
        else:
            I.rd = set().union(*R) if R else set()
            if ("store" in op) and ("x3" in op or "x4" in op):
                I.wide_store_data = R[0] if op.startswith("buffer_") else R[1]
            if lds:
                I.rd |= {"m0"}
    elif op.startswith("s_"):
        I.kind = "salu"
        if op.startswith(("s_load", "s_buffer_load", "s_memtime", "s_memrealtime", "s_getreg")):
            I.kind = "smem"; I.wr = R[0]; I.rd = set().union(*R[1:]) if len(R) > 1 else set()
        elif op.startswith(("s_cmp", "s_cbranch", "s_branch", "s_waitcnt", "s_barrier", "s_endpgm", "s_setprio", "s_sleep", "s_bitcmp", "s_wakeup")):
            I.rd = set().union(*R) if R else set()
        else:
            I.wr = R[0]; I.rd = set().union(*R[1:]) if len(R) > 1 else set()
            if "saveexec" in op:
                I.wr |= {"exec"}
    else:
        raise ValueError("unknown instruction: " + text)
    return I

def is_s(r):
    return r[0] == "s" or r == "vcc"

def need(P, C):
    n = 0
    pv = {r for r in P.wr if r[0] in "va"}
    ps = {r for r in P.wr if is_s(r)}
    if P.kind == "valu":
        if C.kind == "valu":
            if C.dpp and (pv & C.rd): n = max(n, 2)
            if C.op.startswith(("v_readlane", "v_readfirstlane")) and (pv & C.rd): n = max(n, 1)
            if C.op.startswith("v_permlane") and (pv & C.rd): n = max(n, 2)
            if ps & C.lane_sel: n = max(n, 4)
            if ps & C.rd: n = max(n, 2)
            if C.op.startswith("v_div_fmas") and "vcc" in ps: n = max(n, 4)
            if P.op in TRANS and (pv & C.rd) and C.op not in TRANS: n = max(n, 1)
            if P.opsel_dst and (pv & (C.rd | C.wr)): n = max(n, 1)
            if P.op.startswith("v_dot") and (pv & (C.rd | C.wr)) and not (C.op == P.op and pv == C.wr and not (pv & C.ab)): n = max(n, 3)
            if "exec" in P.wr:
                n = max(n, 5 if C.dpp else 4 if C.op.startswith(("v_readlane", "v_readfirstlane", "v_writelane", "v_permlane")) else 0)
        if C.kind == "mfma":
            if pv & C.rd: n = max(n, 2)
            if "exec" in P.wr: n = max(n, 4)
        if C.kind == "vmem" and (ps & C.rd): n = max(n, 5)
        if C.kind in ("salu", "smem") and (ps & C.rd): n = max(n, 1)
        if C.kind in ("vmem", "ds") and (P.op in TRANS or P.opsel_dst) and (pv & C.rd): n = max(n, 1)
        if C.kind in ("vmem", "ds", "mfma") and P.op.startswith("v_dot") and (pv & (C.rd | C.wr)): n = max(n, 3)
    if P.kind == "mfma":
        big = {4: 8, 8: 12}[P.passes]
        if C.kind == "mfma":
            if pv & C.ab: n = max(n, big)
            if (pv & C.srcc) and not (C.srcc == pv and C.passes == P.passes): n = max(n, big - 2)
            if (pv & C.wr) and not (C.srcc == pv and C.wr == pv and C.passes == P.passes) and not (pv & C.srcc):
                n = max(n, big)
        elif C.kind in ("valu", "ds", "vmem"):
            if pv & (C.rd | C.wr): n = max(n, big)
        if C.kind == "valu" and (P.srcc & C.wr): n = max(n, {4: 3, 8: 7}[P.passes])
    if P.kind == "vmem" and P.wide_store_data and (P.wide_store_data & C.wr) and C.kind in ("valu", "mfma", "ds", "vmem"):
        n = max(n, 2)
    if P.kind == "salu" and "m0" in P.wr and (C.lds_dma or "addtid" in C.op or C.op.startswith("s_movrel")):
        n = max(n, 1)
    return n

MFMA_TIME = False

class Asm:
    def __init__(self):
        self.lines = []
        self.hist = []
        self.nops = 0
        self.labels = {}
    def raw(self, text):
        self.lines.append((text, None))
    def label(self, name):
        self.labels[name] = len(self.lines)
        self.lines.append((name + ":", None))
    def _required(self, hist, C):
        req = 0; dist = 0; k = 0; after = 0
        for P in reversed(hist):
            n = need(P, C)
            d = dist
            if MFMA_TIME and P.kind == "mfma": d = max(d, 3 * k + after)
            if n > d:
                req = max(req, n - d)
            if P.kind == "mfma": k += 1
            elif k == 0: after += P.states
            dist += P.states
            if dist >= 20:
                break
        return req
    def __call__(self, text):
        for line in text.strip().split("\n"):
            line = line.strip()
            if not line or line.startswith(";"):
                continue
            if line.endswith(":"):
                self.label(line[:-1]); continue
            I = parse(line)
            req = self._required(self.hist, I)
            while req > 0:
                k = min(req, 16)
                N = parse(f"s_nop {k-1}")
                self.lines.append(("  " + N.text, N)); self.hist.append(N); self.nops += 1
                req -= k
            self.lines.append(("  " + line, I)); self.hist.append(I)
            m = re.match(r"s_(?:cbranch\w*|branch)\s+(\S+)", line)
            if m and m.group(1) in self.labels:
                self._check_edge(m.group(1))
            if m:
                self.fwd = getattr(self, "fwd", [])
                self.fwd.append((m.group(1), list(self.hist[-24:])))
    def _check_edge(self, label, hist=None):
        hist = list(self.hist[-24:]) if hist is None else list(hist)
        cnt = 0
        for text, I in self.lines[self.labels[label]:]:
            if I is None:
                continue
            req = self._required(hist, I)
            if req > 0:
                raise RuntimeError(f"hazard across branch to {label}: '{I.text}' needs {req} more wait states")
            hist.append(I); cnt += I.states
            if cnt > 20 or I.op in ("s_branch", "s_endpgm"):
                break
    def finish(self):
        for label, hist in getattr(self, "fwd", []):
            if label in self.labels:
                self._check_edge(label, hist)
        return "\n".join(t for t, _ in self.lines) + "\n"
```

```python
import sys, os
sys.path.insert(0, os.path.dirname(os.path.abspath(__file__)))
import asmlib
from asmlib import Asm

WBYTES = 0 if any(x.startswith("exp=") and int(x[4:]) & 1 for x in sys.argv) else 1024 * 3584 * 2
WS_PS = 0x400000
WS_CI = 0x440000
WS_KM = 0x441000
WS_EX = 0x450000
WS_DP = 0x500000
WS_EP = 0x000000
STEP = 0x9e3779b9
WS_STAMP = 0x700000
WS_SIZE = 0x800000

OPT = dict(dbg=0, grp=0, w0=1, w1=0, w2=0, wdp=0, rsl=2, old=5, flate=12, lsl=6, xwsl=4, ugate=1,  mid=0, scal=1, lprio=2, wd0=8, csend=0, kprio=2, gwait=1, dsl=3, wsl=0, hp=0, hfly=1, hprio=1, gsl=2, hsl=1, xsl=8, clat=3, mt=1, cfly=12, fchk=-1, fstep=1, ywsl=6, kp="1:u,50:u,100:u,150:u", sprio=0, xpace=0, ysl=0, xfirst=1, wbat=8, klat=3, wfl="nt", xfl="", pace=1, slow=0, eprio=3, pprio=0, nprio=1, fprio=0, gprio=3, lean=0, ipf=1,
           psl=1, pt=0, isl=0, exp=0, early=1, cdone=8, outfl="", nsl=0)

L2E_HI, L2E_LO, LN2 = 0x3fb8aa3b, 0x32a57060, 0x3f317218
I2PI_LO = 0x31dc9c88
SY = 0
UA, UROW, UPAD = 768, 4640, 272
KG = UA + 4 * UROW
KGC = 9216
TB = (KG + 4 * KGC + 255) // 256 * 256
DELTA = 1986
R2B, R3B = 1120, 1632
BAND = TB + 16384
PRM = BAND + 5120
JUNK = PRM + 4096
WDN = KG
F_W = JUNK + 2048
XS = F_W + 65536
HB = XS + 1280
LDS = HB + 1280
KA = 76
TAGM = 0x00030003
TAGP = (0x00010002, 0x00020001, 0x00020002, 0x00010001)
SPIN = 0x20000

def stamp(a, i, group=None):
    if OPT["dbg"] and (group is None or group == OPT["grp"]):
        a(f"{'s_memtime' if OPT['dbg'] == 2 else 's_memrealtime'} s[{84+2*i}:{85+2*i}]")

def stamp_flush(a, add):
    if OPT["dbg"]:
        a(f"""s_waitcnt vmcnt(0)
              {'s_memtime' if OPT['dbg'] == 2 else 's_memrealtime'} s[100:101]
              s_mov_b64 exec, 1
              s_lshl_b32 s82, s2, 4
              s_add_u32 s82, s82, s30
              s_add_u32 s82, s82, {add}
              s_lshl_b32 s82, s82, 6
              s_add_u32 s82, s82, {WS_STAMP:#x}
              v_mov_b32 v2, 0
              s_waitcnt lgkmcnt(0)""")
        for i in range(9):
            a(f"v_mov_b32 v{4+i}, s{84+2*i}")
        a("""v_mov_b32 v13, s80
             v_mov_b32 v14, s81
             v_mov_b32 v15, s83""")
        for i in range(3):
            a(f"buffer_store_dwordx4 v[{4+4*i}:{7+4*i}], v2, s[32:35], s82 offen offset:{16*i}")
    a("s_endpgm")

def lds_wait(a, label, reg, addr, off, cond, sleep=1):
    a(f"""s_branch {label}B
        {label}:
          {"s_sleep " + str(sleep) if sleep else ""}
        {label}B:
          ds_read_b32 v{reg}, {addr} offset:{off}
          s_waitcnt lgkmcnt(0)
          {cond}
          s_cbranch_vccnz {label}""")

def both_modes(a, label, text, mode="s47"):
    a(f"""s_cmp_lg_u32 {mode}, 0
          s_cbranch_scc1 {label}_W""")
    a(text.replace("@", ""))
    a(f"""s_branch {label}_D
        {label}_W:""")
    a(text.replace("@", "sc1"))
    a(f"{label}_D:")

def transpose4(a, *bases):
    for b in bases:
        a(f"""v_permlane32_swap_b32 v{b}, v{b+2}
              v_permlane32_swap_b32 v{b+1}, v{b+3}""")
    for b in bases:
        a(f"""v_permlane16_swap_b32 v{b}, v{b+1}
              v_permlane16_swap_b32 v{b+2}, v{b+3}""")

def rows4(a, r):
    a(f"""v_permlane16_swap_b32 v{r}, v{r+1}
          v_permlane16_swap_b32 v{r+2}, v{r+3}
          v_add_f32 v{r}, v{r}, v{r+1}
          v_add_f32 v{r+2}, v{r+2}, v{r+3}
          v_permlane32_swap_b32 v{r}, v{r+2}
          v_add_f32 v{r}, v{r}, v{r+2}""")

def pack24(a, r, nonce, s0):
    for i in range(4):
        a(f"v_add_u32 v{r+i}, 0x80, v{r+i}")
    for i in range(3):
        a(f"v_perm_b32 v{r+i}, v{r+i}, v{r+3}, s{s0+i}")
    a(f"v_mov_b32 v{r+3}, {nonce}")

def unpack24(a, r, s0):
    a(f"""v_perm_b32 v{r+3}, v{r}, v{r+1}, s{s0}
          v_perm_b32 v{r+3}, v{r+3}, v{r+2}, s{s0+1}""")

def top2(a, k, t, s0, s1, m):
    a(f"v_mov_b32 v{t}, v{k}")
    wave_reduce(a, "v_max_u32", [t])
    a(f"""v_readlane_b32 s{s0}, v{t}, 63
          v_cmp_ne_u32 s[{m}:{m+1}], s{s0}, v{k}
          v_cndmask_b32 v{t}, 0, v{k}, s[{m}:{m+1}]""")
    wave_reduce(a, "v_max_u32", [t])
    a(f"v_readlane_b32 s{s1}, v{t}, 63")

def srd(a, d, lo, hi, size):
    a(f"""s_mov_b32 s{d}, s{lo}
          s_mov_b32 s{d+1}, s{hi}
          s_mov_b32 s{d+2}, {size:#x}
          s_mov_b32 s{d+3}, 0x00020000""")

def wave_reduce(a, op, regs):
    for mod in ("quad_perm:[1,0,3,2] row_mask:0xf", "quad_perm:[2,3,0,1] row_mask:0xf", "row_half_mirror row_mask:0xf",
                "row_mirror row_mask:0xf", "row_bcast:15 row_mask:0xa", "row_bcast:31 row_mask:0xc"):
        for r in regs:
            a(f"{op}_dpp v{r}, v{r}, v{r} {mod} bank_mask:0xf")

def desc(name, vgpr, sgpr):
    return f""".p2align 6
.amdhsa_kernel {name}
  .amdhsa_next_free_vgpr {vgpr}
  .amdhsa_next_free_sgpr {sgpr}
  .amdhsa_accum_offset {(vgpr + 3) // 4 * 4}
  .amdhsa_group_segment_fixed_size 0
  .amdhsa_kernarg_size 120
  .amdhsa_user_sgpr_count 2
  .amdhsa_user_sgpr_kernarg_segment_ptr 1
  .amdhsa_system_sgpr_workgroup_id_x 1
.end_amdhsa_kernel
"""

def exp_acc(a, d, x, t0, t1, sL2E, sL2ELO, sLN2):
    a(f"""v_mul_f32 v{t0}, s{sL2E}, v{x}
          v_fma_f32 v{t1}, v{x}, s{sL2E}, -v{t0}
          v_exp_f32 v{d}, v{t0}
          v_fmac_f32 v{t1}, s{sL2ELO}, v{x}
          v_mul_f32 v{t1}, s{sLN2}, v{t1}
          v_fmac_f32 v{d}, v{d}, v{t1}""")

def pair_sync(a, k, label):
    a(f"""v_mov_b32 v94, {k}
          ds_write_b32 v92, v94 offset:{SY + 64}
          s_branch {label}B
        {label}:
        {label}B:
          ds_read_b32 v94, v93 offset:{SY + 64}
          s_waitcnt lgkmcnt(0)
          v_cmp_gt_u32 vcc, {k}, v94
          s_cbranch_vccnz {label}""")
    stamp(a, 6, 1)

def kgen_setup(a):
    a(f"""s_lshl_b32 s68, s52, 12
          s_add_u32 s68, s68, {TB}
          s_lshl_b32 s67, s53, 11
          s_add_u32 s67, s67, s68
          v_add_u32 v90, s67, v95
          ds_write_b128 v90, v[20:23]
          ds_write_b128 v90, v[20:23] offset:1024
          s_mov_b32 s67, {L2E_LO:#x}
          s_mov_b32 s71, {LN2:#x}
          s_lshl_b32 s61, s30, 2
          v_mov_b32 v92, s61
          s_xor_b32 s61, s61, 4
          v_mov_b32 v93, s61                    ; partner's
          ; scratch: role 1 wave uses [0,4608), role 0 wave [4608,9216) of the channel area
          s_mul_i32 s69, s52, {KGC}
          s_add_u32 s69, s69, {KG}
          s_xor_b32 s70, s53, 1
          s_mul_i32 s70, s70, 4608
          s_add_u32 s70, s70, s69
          s_sub_u32 m0, s70, 16384
          v_mul_u32_u24 v41, 288, v96
          v_lshl_add_u32 v41, v97, 4, v41
          v_add_u32 v41, s70, v41
          v_add_u32 v99, s69, v95""")

def near_table(a, tag):
    K0, K1, K2 = KA, KA + 4, KA + 8
    a(f"""
          ds_write_b128 v99, v[{K1}:{K1+3}] offset:5120
          ds_write_b128 v99, v[{K2}:{K2+3}] offset:6144
          """)
    pair_sync(a, 1, tag + "_PS1")
    a(f"""ds_read_b128 v[16:19], v99 offset:1024
          ds_read_b128 v[24:27], v99
          s_waitcnt lgkmcnt(1)
          v_pk_add_f32 v[{K1}:{K1+1}], v[{K1}:{K1+1}], v[16:17]
          v_pk_add_f32 v[{K1+2}:{K1+3}], v[{K1+2}:{K1+3}], v[18:19]
          s_waitcnt lgkmcnt(0)
          v_pk_add_f32 v[{K0}:{K0+1}], v[{K0}:{K0+1}], v[24:25]
          v_pk_add_f32 v[{K0+2}:{K0+3}], v[{K0+2}:{K0+3}], v[26:27]
          v_mov_b32_dpp v28, v{K1} row_shl:1 row_mask:0xf bank_mask:0xf
          v_writelane_b32 v28, 0, 33
          s_mov_b32 exec_hi, 3
          v_cndmask_b32 v29, v{K1}, v{K1+1}, s[72:73]
          v_cndmask_b32 v30, v{K1+1}, v{K1+2}, s[72:73]
          v_cndmask_b32 v28, v28, v{K1+3}, s[72:73]
          v_cvt_pk_f16_f32 v16, v28, v30
          v_cvt_pk_f16_f32 v17, v30, v30
          v_cvt_pk_f16_f32 v18, v29, v{K1}
          v_cvt_pk_f16_f32 v19, v{K1}, v{K1}
          v_cvt_pk_f16_f32 v20, v30, v29
          ds_write_b16 v124, v16
          ds_write2_b32 v126, v17, v20 offset0:0 offset1:1
          ds_write_b32 v126, v19 offset:8
          ds_write_b16 v124, v19 offset:14
          ds_write2_b32 v127, v16, v17 offset0:0 offset1:1
          ds_write2_b32 v127, v18, v19 offset0:2 offset1:3
          s_mov_b32 exec_hi, -1
          v_cvt_pk_f16_f32 v24, v{K0+3}, v{K0+2}
          v_cvt_pk_f16_f32 v25, v{K0+1}, v{K0}
          v_cvt_pk_f16_f32 v26, v{K0+2}, v{K0+1}
          ds_write_b64 v125, v[24:25]
          ds_write_b16 v125, v24 offset:{DELTA}
          ds_write_b32 v125, v26 offset:{DELTA+2}
          ds_write_b16_d16_hi v125, v25 offset:{DELTA+6}
          """)

def far_table(a, tag):
    K0, K1, K2 = KA, KA + 4, KA + 8
    a(f"""
          ds_write_b128 v99, v[{K0}:{K0+3}]
          ds_write_b128 v99, v[{K1}:{K1+3}] offset:1024
          s_nop 0""")
    pair_sync(a, 1, tag + "_PS2")
    a(f"""ds_read_b128 v[16:19], v99 offset:5120
          ds_read_b128 v[20:23], v99 offset:6144
          s_waitcnt lgkmcnt(1)
          v_pk_add_f32 v[{K1}:{K1+1}], v[{K1}:{K1+1}], v[16:17]
          v_pk_add_f32 v[{K1+2}:{K1+3}], v[{K1+2}:{K1+3}], v[18:19]
          s_waitcnt lgkmcnt(0)
          v_pk_add_f32 v[{K2}:{K2+1}], v[{K2}:{K2+1}], v[20:21]
          v_pk_add_f32 v[{K2+2}:{K2+3}], v[{K2+2}:{K2+3}], v[22:23]
          v_cvt_pk_f16_f32 v16, v{K1}, v{K1+1}
          v_cvt_pk_f16_f32 v17, v{K1+2}, v{K1+3}
          v_cvt_pk_f16_f32 v18, v{K2}, v{K2+1}
          v_cvt_pk_f16_f32 v19, v{K2+2}, v{K2+3}
          v_cvt_pk_f16_f32 v89, v{K2}, v{K2}
          s_mov_b32 exec_lo, 0
          ds_write_b16 v125, v17
          ds_write_b16 v125, v17 offset:{DELTA}
          ds_write_b16_d16_hi v124, v17
          ds_write_b16_d16_hi v124, v17 offset:{DELTA}
          s_mov_b32 exec_hi, -4
          ds_write_b16 v125, v16 offset:16
          ds_write_b16 v125, v16 offset:{DELTA+16}
          ds_write_b16_d16_hi v124, v16 offset:16
          ds_write_b16_d16_hi v124, v16 offset:{DELTA+16}
          s_mov_b32 exec_hi, 1
          s_mov_b32 exec_lo, -2
          ds_write_b16 v126, v18 offset:48
          ds_write_b16 v126, v18 offset:{DELTA+48}
          s_mov_b32 exec_hi, 0
          s_mov_b32 exec_lo, -1
          ds_write_b16_d16_hi v126, v18 offset:32
          ds_write_b16_d16_hi v126, v18 offset:{DELTA+32}
          ds_write_b16 v126, v19 offset:16
          ds_write_b16 v126, v19 offset:{DELTA+16}
          ds_write_b16_d16_hi v126, v19
          ds_write_b16_d16_hi v126, v19 offset:{DELTA}
          s_mov_b64 exec, -1
          """)

class Pipe:
    def __init__(self, a, maxfly=12):
        self.a = a; self.ops = []; self.steps = []; self.maxfly = maxfly
    def load(self, text, gate=-1, urgent=False):
        self.ops.append([text, gate, urgent]); return len(self.ops) - 1
    def step(self, text, need=()):
        self.steps.append((text, list(need))); return len(self.steps) - 1
    def last(self):
        return len(self.steps) - 1
    def run(self, per_step=99):
        a = self.a; seq = {}; done = [0]; pend = list(range(len(self.ops)))
        def issue(n):
            if len(seq) - done[0] >= 15:
                a("s_waitcnt lgkmcnt(8)"); done[0] = len(seq) - 8
            a(self.ops[n][0]); seq[n] = len(seq); pend.remove(n)
        for i, (text, need) in enumerate(self.steps + [("", [])]):
            for n in [n for n in pend if self.ops[n][2] and self.ops[n][1] < i]: issue(n)
            k = 0
            for n in [n for n in pend if not self.ops[n][2]]:
                if self.ops[n][1] >= i or len(seq) - done[0] >= self.maxfly or k >= per_step: break
                issue(n); k += 1
            for n in need:
                for m in [m for m in pend if m <= n and not self.ops[m][2]]:
                    assert self.ops[m][1] < i, "load gated behind its own consumer"
                    issue(m)
            if need:
                top = max(seq[n] for n in need)
                if done[0] <= top:
                    a(f"s_waitcnt lgkmcnt({len(seq) - top - 1})"); done[0] = top + 1
            a(text)
        assert not pend

def kgen_main(a):
    a("""s_waitcnt lgkmcnt(5)
         v_mul_f32 v2, 0x3fb8aa3b, v2
         s_waitcnt lgkmcnt(4)
         v_mul_f32 v118, v3, v90
         v_exp_f32 v116, v2
         v_mul_f32 v119, 0x43000000, v118
         v_fract_f32 v118, v118
         v_fract_f32 v119, v119
         s_waitcnt lgkmcnt(2)
         v_and_b32 v6, 0x7fff7fff, v6
         v_and_b32 v7, 0x7fff7fff, v7
         v_cvt_pk_bf16_f32 v116, v116, v116
         v_pk_max_u16 v6, v6, v7
         v_and_b32 v116, 0xffff0000, v116
         v_pk_max_u16 v6, v6, v6 op_sel:[0,1] op_sel_hi:[1,0]
         v_mul_f32 v116, v116, v91
         v_sin_f32 v26, v119
         v_mul_f32 v120, 0x43000000, v116
         v_max_u32_dpp v6, v6, v6 quad_perm:[1,0,3,2] row_mask:0xf bank_mask:0xf
         v_exp_f32 v116, -v116
         v_cos_f32 v27, v119
         v_max_u32_dpp v6, v6, v6 quad_perm:[2,3,0,1] row_mask:0xf bank_mask:0xf
         v_cos_f32 v119, v118
         v_sin_f32 v118, v118
         v_max_u32_dpp v6, v6, v6 row_half_mirror row_mask:0xf bank_mask:0xf
         v_exp_f32 v120, -v120
         v_mul_f32 v119, v119, v116
         v_max_u32_dpp v6, v6, v6 row_mirror row_mask:0xf bank_mask:0xf
         v_mul_f32 v118, v118, v116
         v_mul_f32 v26, v26, v120
         v_max_u32_dpp v6, v6, v6 row_bcast:15 row_mask:0xa bank_mask:0xf
         v_mul_f32 v27, v27, v120
         v_add_f32 v117, v117, v117
         v_max_u32_dpp v6, v6, v6 row_bcast:31 row_mask:0xc bank_mask:0xf
         v_pk_mul_f32 v[24:25], v[118:119], v[118:119] op_sel:[1,0] op_sel_hi:[1,1]
         v_mul_f32 v6, v6, v117
         v_pk_fma_f32 v[24:25], v[118:119], v[118:119], v[24:25] op_sel:[1,0,0] op_sel_hi:[0,0,1] neg_hi:[1,0,0]
         v_readlane_b32 s78, v6, 63
         s_lshr_b32 s78, s78, 23
         s_max_u32 s78, s78, 33
         s_min_u32 s78, s78, 233
         s_sub_u32 s70, s78, 6
         s_sub_u32 s78, 260, s78
         s_lshl_b32 s70, s70, 23                ; 1 / scale
         s_lshl_b32 s78, s78, 23
         v_mul_f32 v117, s78, v117
         s_waitcnt lgkmcnt(0)
         v_mul_f32 v33, v4, v117
         v_mul_f32 v32, v5, v117""")
    stamp(a, 4, 1)
    BF, AF = 44, 60
    pool2 = [120, 122, 16, 18, 20, 22, 28, 30, 34, 36, 38]
    pool1 = list(range(100, 118)) + [2, 3, 4, 5, 6, 7, 40, 43, 90, 91]
    ops = []
    val = {"E1": 118, "E2": 24, "V1": 26, "G0": 32}
    def cm(d, x, y): ops.append(("mul", d, (x, y))); ops.append(("fma", d, (x, y, d + "'")))
    def ch(d, x, y): ops.append(("hmul", d, (x, y))); ops.append(("hfma", d, (x, y, d + "'")))
    def cv(x, neg): ops.append(("cvn" if neg else "cvt", x.lower(), (x,)))
    cm("E4", "E2", "E2"); cm("E3", "E2", "E1"); cm("Y1", "E4", "E4"); cm("Y2", "Y1", "Y1"); cm("Y4", "Y2", "Y2"); cm("Y8", "Y4", "Y4")
    cm("Y3", "Y2", "Y1"); cm("Y12", "Y8", "Y4")
    cm("V2", "V1", "V1"); cm("V4", "V2", "V2"); cm("V3", "V2", "V1"); cm("G1", "G0", "V1")
    for i in (4, 8, 12, 16): cm(f"G{i}", f"G{i-4}", "V4")
    for n in (1, 2, 3, 4): cv(f"E{n}", True)
    for n in (1, 2, 3, 4, 8, 12): cv(f"Y{n}", False)
    for n in (1, 2, 3): cv(f"V{n}", True)
    for n in (0, 1, 4, 8, 12, 16): cv(f"G{n}", True)
    for n in (5, 6, 7): ch(f"e{n}", "e4", f"e{n-4}")
    for n in range(5, 16):
        if n % 4: ch(f"y{n}", f"y{n & 12}", f"y{n & 3}")
    for n in range(2, 16):
        if n % 4: ch(f"g{n}", f"g{n & 12}", f"v{n & 3}")
    groups = [[(f"y{jj}", jj) for jj in (1, 2, 4, 3, 8, 5, 6, 7, 12, 9, 10, 11, 13, 14, 15)]]
    plan = [[(0, range(8)), (1, range(8))],
            [(2, (0, 2, 4, 6)), (3, (0, 2, 4, 6)), (4, (0, 4)), (5, (0, 4)), (6, (0, 4)), (7, (0, 4))],
            [(i2, (0,)) for i2 in range(8, 17)]]
    for tile in range(3):
        g = []
        for i2, ks in plan[tile]:
            for k in ks:
                if k:
                    ch(f"x{i2}_{k}", f"g{i2}", f"e{k}")
                    g.append((f"x{i2}_{k}", len(g)))
                else:
                    g.append((f"g{i2}", len(g)))
        groups.append(g)
    if OPT["xfirst"]: groups[0], groups[1] = groups[1], groups[0]
    flat = [r for g in groups for r in g]
    prod = {d: list(srcs[:2]) for kind, d, srcs in ops if kind != "mul" and kind != "hmul"}
    prio = {}
    def mark(v, pr):
        if prio.get(v, 1 << 30) <= pr: return
        prio[v] = pr
        for x in prod.get(v, []): mark(x, pr)
    for n, (v, _) in enumerate(flat): mark(v, n)
    for v in ("E4", "Y1", "Y2", "Y4", "Y8"): prio[v] = -1
    uses = {}
    for kind, d, srcs in ops:
        for x in srcs[:2]: uses[x] = uses.get(x, 0) + 1
    for v, _ in flat: uses[v] = uses.get(v, 0) + 1
    ready_at = {v: 0 for v in val}
    LAT = OPT["klat"]
    slot = [0]
    todo = paced(); nu = [OPT["w0"]]
    def emit(t):
        if not (OPT["exp"] & 128 and t.startswith(("v_pk", "v_cvt", "ds_write"))): a(t)
        slot[0] += 1
        while todo and todo[0][0] <= slot[0]:
            u = todo.pop(0)[1]
            if u[0] == "t":
                a(f"""s_mov_b32 m0, {JUNK}
                      buffer_load_dwordx4 v94, s[20:23], s{38 + int(u[1])} offen sc1 lds""")
            else:
                unit(a, nu[0], UC); nu[0] += 1
            a("s_mov_b32 m0, s37")
    def release(x):
        uses[x] -= 1
        if uses[x] == 0: (pool2 if x[0].isupper() else pool1).append(val[x])
    pend = list(ops)
    gi = 0; left = list(groups[0])
    mf = []; have = set()
    tile_of = {0: 0, 2: 1, 3: 2} if OPT["xfirst"] else {1: 0, 2: 1, 3: 2}
    yg = 1 if OPT["xfirst"] else 0
    def mfma(tile):
        for k in range(4):
            c = "0" if k == 0 else f"v[{KA+4*tile}:{KA+4*tile+3}]"
            emit(f"v_mfma_f32_16x16x32_f16 v[{KA+4*tile}:{KA+4*tile+3}], v[{AF+4*k}:{AF+4*k+3}], v[{BF+4*k}:{BF+4*k+3}], {c}")
    lds_after = [0]; lastw = [-9]
    if yg == 0: emit("ds_write_addtid_b32 v42 offset:16384")
    while pend or gi < len(groups) or mf:
        did = False
        rdy = [r for r in left if r[0] in ready_at and ready_at[r[0]] <= slot[0]]
        if rdy and (len(rdy) >= OPT["wbat"] or len(rdy) == len(left)):
            for v, row in rdy:
                left.remove((v, row))
                emit(f"ds_write_addtid_b32 v{val[v]} offset:{16384 + 288*row}"); lds_after[0] += 1; release(v)
            did = True
        elif gi < len(groups) and not left and (gi == yg or not mf):
            base = BF if gi == yg else AF
            for k in range(4):
                emit(f"ds_read_b128 v[{base+4*k}:{base+4*k+3}], v41 offset:{64*k}")
            lds_after[0] = 0
            if gi == yg: have.add("y"); mf = [(t, slot[0]) for t, _ in mf]
            else: mf.append((tile_of[gi], slot[0]))
            gi += 1; left = list(groups[gi]) if gi < len(groups) else []
            if gi == yg: emit("ds_write_addtid_b32 v42 offset:16384"); lds_after[0] += 1
            did = True
        elif mf and "y" in have and (slot[0] - mf[0][1] >= 24 or (not pend and gi >= len(groups)) or (gi < len(groups) and not left)):
            emit(f"s_waitcnt lgkmcnt({min(lds_after[0], 15)})")
            mfma(mf.pop(0)[0]); did = True
        if not did:
            best = None
            for n, (kind, d, srcs) in enumerate(pend):
                room = pool2 if kind == "mul" else pool1 if kind in ("hmul", "cvt", "cvn") else True
                if all(x in ready_at and ready_at[x] <= slot[0] for x in srcs) and room:
                    key = (prio[d], 0 if kind.endswith("fma") else 1)
                    if best is None or key < best[0]: best = (key, n)
            if best is not None:
                kind, d, srcs = pend.pop(best[1])
                x = val[srcs[0]]; y = val[srcs[1]] if len(srcs) > 1 else None
                if kind == "mul":
                    val[d] = r = pool2.pop(0)
                    emit(f"v_pk_mul_f32 v[{r}:{r+1}], v[{x}:{x+1}], v[{y}:{y+1}] op_sel:[1,0] op_sel_hi:[1,1]")
                elif kind == "fma":
                    r = val[d]
                    emit(f"v_pk_fma_f32 v[{r}:{r+1}], v[{y}:{y+1}], v[{x}:{x+1}], v[{r}:{r+1}] op_sel:[1,0,0] op_sel_hi:[0,0,1] neg_hi:[1,0,0]")
                elif kind == "hmul":
                    val[d] = r = pool1.pop(0)
                    emit(f"v_pk_mul_f16 v{r}, v{x}, v{y} op_sel:[0,0] op_sel_hi:[0,1]")
                elif kind == "hfma":
                    r = val[d]
                    emit(f"v_pk_fma_f16 v{r}, v{x}, v{y}, v{r} op_sel:[1,1,0] op_sel_hi:[1,0,1] neg_lo:[1,0,0]")
                else:
                    val[d] = r = pool1.pop(0)
                    emit(f"v_cvt_pk_f16_f32 v{r}, v{x+1}, {'-' if kind == 'cvn' else ''}v{x}")
                ready_at[d + "'" if kind.endswith("mul") else d] = slot[0] + LAT - 1
                for xx in srcs[:2]: release(xx)
                did = True
        if not did:
            slot[0] += 1
    assert not todo, slot[0]

class Sched:
    CAP = 2
    def __init__(self, a, old=5, maxfly=12):
        self.a = a; self.m = []; self.it = []; self.old = old; self.maxfly = maxfly
    def mfma(self, text, need=()):
        self.m.append((text, [x for x in need if x is not None])); return len(self.m) - 1
    def item(self, text, gate=-1, need=(), cost=1, lds=False, pri=None):
        self.it.append(dict(text=text, gate=gate, need=[x for x in need if x is not None], cost=cost, lds=lds, pri=pri, at=None, seq=None))
        return len(self.it) - 1
    def run(self):
        a, it = self.a, self.it
        dl = [len(self.m) + 1] * len(it)
        for g, (_, need) in enumerate(self.m):
            for x in need: dl[x] = min(dl[x], g)
        for n in reversed(range(len(it))):
            if it[n]["pri"] is not None: dl[n] = min(dl[n], it[n]["pri"])
            for x in it[n]["need"] + ([it[n]["issued"]] if "issued" in it[n] else []):
                dl[x] = min(dl[x], dl[n] - (self.old + 1 if it[n]["lds"] and it[n]["cost"] == 1 else 0))
        lead = lambda n: dl[n] - (self.old + 1 if it[n]["lds"] else 1)
        issued = []; done = [0]; self.over = 0
        def wait_for(xs, g):
            top = max([it[x]["seq"] for x in xs if it[x]["lds"]], default=-1)
            if top < done[0]: return 0
            while top + 1 < len(issued) and it[issued[top + 1]]["at"] <= g - self.old: top += 1
            a(f"s_waitcnt lgkmcnt({len(issued) - top - 1})"); done[0] = top + 1
            return 1
        def needs_wait(xs): return any(it[x]["lds"] and it[x]["seq"] >= done[0] for x in xs)
        def emit(n, g):
            c = wait_for(it[n]["need"], g) if not it[n]["lds"] or it[n]["cost"] > 1 or True else 0
            if it[n]["lds"]:
                if len(issued) - done[0] >= 15:
                    a("s_waitcnt lgkmcnt(10)"); done[0] = len(issued) - 10; c += 1
                it[n]["seq"] = len(issued); issued.append(n)
            a(it[n]["text"]); it[n]["at"] = g
            return c + it[n]["cost"]
        def force(n, g):
            c = 0
            if it[n]["at"] is None:
                if "issued" in it[n]: c += force(it[n]["issued"], g)
                for x in it[n]["need"]: c += force(x, g)
                c += emit(n, g)
            return c
        for g in range(len(self.m) + 1):
            need = self.m[g][1] if g < len(self.m) else range(len(it))
            used = sum(force(x, g) for x in need)
            room = (self.CAP if g else 8) - used - (1 if needs_wait(need) else 0)
            while room > 0:
                c = [n for n in range(len(it)) if it[n]["at"] is None and it[n]["gate"] < g and ("issued" not in it[n] or it[it[n]["issued"]]["at"] is not None)
                     and all(it[x]["at"] is not None and (not it[x]["lds"] or it[x]["at"] <= g - self.old or it[x]["seq"] < done[0]) for x in it[n]["need"])
                     and it[n]["cost"] + needs_wait(it[n]["need"]) <= room and not (it[n]["lds"] and len(issued) - done[0] >= self.maxfly)]
                if not c: break
                room -= emit(min(c, key=lambda n: (lead(n), n)), g)
            if room < 0 and 0 < g < len(self.m): self.over -= room
            if g < len(self.m):
                wait_for(need, g)
                a(self.m[g][0] if not OPT["exp"] & 2 else "")

def conv_sync(a, label):
    a(f"""v_mov_b32 v6, 0
          v_mov_b32 v7, 1
          s_waitcnt vmcnt(0)
          s_mov_b64 exec, 1
          ds_add_u32 v6, v7 offset:{SY + 112}
          s_mov_b64 exec, -1""")
    stamp(a, 3)
    lds_wait(a, label, 7, "v6", SY + 16, "v_cmp_gt_u32 vcc, 8, v7")
    stamp(a, 4, 0); stamp(a, 4, 2)

def conv(a):
    ACC = lambda j: 16 + 4 * j
    TBUF, T16 = [96, 104], 92
    UN = [112, 116, 120, 124, 2]
    BN, MB = [88, 92, 16, 20], 2
    UF_ = [112, 116, 120, 124]
    W = [96, 104]
    types = [((0, 1), (-24, -24), (R2B + 0, R2B + 384), 79, (2, 3, 4), 6, (48, 52, 56)),
             ((1, 0), (-16, -16), (R2B + 128, R2B + 256), 79, (2, 3, 4), 6, (60, 64, 68)),
             ((2, 3), (-24, -16), (R3B, R3B + 160), 127, (4, 5, 6, 7), 4, (72, 76, 80, 84))]
    a(f"""v_mov_b32 v8, s70""")
    def tl(dst, s):
        base, off = (10, 16 * (16 - s)) if s >= 8 else (11, 16 * (8 - s))
        return [f"ds_read2_b32 v[{dst}:{dst+1}], v{base} offset0:{off} offset1:{off+1}",
                f"ds_read2_b32 v[{dst+2}:{dst+3}], v{base} offset0:{off+2} offset1:{off+3}"]
    for dst, s in ((96, 0), (100, 8), (T16, 16), (104, 1), (108, 9)):
        for t in tl(dst, s): a(t)
    far_loads = []
    for bands, bases, tbls, X, deltas, njp, TF in types:
        for di, D in enumerate(deltas):
            for i in range(2):
                imm = tbls[i] + 2 * (X - 16 * D) - 30 - R2B
                assert imm % 4 == 0 and 0 <= imm <= 1016
                far_loads.append((TF[di], f"ds_read2_b32 v[{TF[di]+2*i}:{TF[di]+2*i+1}], v14 offset0:{imm//4} offset1:{imm//4 + 1}"))
    for i in range(2): far_loads.append((BN[i], f"ds_read_b128 v[{BN[i]}:{BN[i]+3}], v13 offset:{1024*i}"))
    ld = {}
    if OPT["fchk"] < 0:
        lds_wait(a, "K_FW", 6, "v15", SY + 640, "v_cmp_eq_u32 vcc, 0, v6")
        a("v_readfirstlane_b32 s71, v6")
        for n, (r, t) in enumerate(far_loads[:-2]):
            a(t); ld[r] = None
            if n == 10: a("s_waitcnt lgkmcnt(4)")
        far_loads = far_loads[-2:]
    if OPT["csend"]:
        assert OPT["fchk"] < 0
        a("""s_lshr_b32 s62, s52, 1
             s_add_u32 s62, s62, 6""")
        inbox(a, 0, 14, 6, 72, 61, "s62", 4096)
        a("""s_bitcmp1_b32 s52, 0
             s_cselect_b32 s72, s73, s72
             s_cselect_b32 s61, 256, 0
             v_add_u32 v14, s61, v14""")
        srd(a, 20, 26, 27, 0x400000)
    a(f"s_setprio {OPT['nprio']}")
    conv_sync(a, "K_W1N")
    asmlib.MFMA_TIME = bool(OPT["mt"])
    S = Sched(a, OPT["old"], OPT["cfly"])
    started = set(); free = {}; fneed = {}
    def load(text, reg):
        return S.item(text, free.get(reg, -1), fneed.pop(reg, ()), lds=True)
    def accum(j, A, B, need=()):
        c = f"v[{ACC(j)}:{ACC(j)+3}]" if j in started else "0"
        started.add(j)
        return S.mfma(f"v_mfma_f32_16x16x32_f16 v[{ACC(j)}:{ACC(j)+3}], v[{A}:{A+3}], v[{B}:{B+3}], {c}", need)
    prev = []
    def finish(j, last):
        r = ACC(j); p = last + OPT["flate"]
        m = [S.item(f"v_mul_f32 v{r+k}, v{r+k}, v8", last + 3, pri=p) for k in range(4)]
        c0 = S.item(f"v_cvt_pk_bf16_f32 v{r}, v{r}, v{r+1}", -1, m, pri=p)
        c1 = S.item(f"v_cvt_pk_bf16_f32 v{r+1}, v{r+2}, v{r+3}", -1, [c0], pri=p)
        w = S.item(f"ds_write_b64 v9, v[{r}:{r+1}] offset:{512*j}", -1, [c1], cost=2, lds=True, pri=p)
        prev.append(w); fneed[r] = [mark(w)]
        if j % 4 == 3:
            mv = S.item(f"v_mov_b32 v7, {j + 1}", last, pri=p)
            S.item(f"ds_write_b32 v15, v7 offset:{SY + 48}", -1, [mv] + [mark(x) for x in prev], cost=2, lds=True, pri=p)
    def mark(w):
        n = S.item("", -1, [], cost=0); S.it[n]["issued"] = w
        return n
    nu = 0; tid = {0: [None, None], 1: [None, None]}
    for sl in range(8):
        tb = TBUF[sl % 2]
        if 1 <= sl <= 6:
            nb = TBUF[(sl + 1) % 2]
            tid[sl + 1] = [[load(t, nb) for t in tl(nb + 4 * h, sl + 1 + 8 * h)] for h in range(2)]
        if sl == 1:
            for r, t in far_loads: ld[r] = S.item(t, len(S.m) - 1, lds=True)
        for o in range(8):
            ub = UN[nu % len(UN)]; nu += 1
            ul = load(f"ds_read_b128 v[{ub}:{ub+3}], v12 offset:{2*(UPAD - 16 + 256*o - 32*sl)}", ub)
            last = free[ub] = accum(o, tb, ub, (tid[sl][0] or []) + [ul])
            if o + 1 <= 7: free[ub] = accum(o + 1, tb + 4, ub, tid[sl][1] or [])
            if sl == 0 and o + 2 <= 7: free[ub] = accum(o + 2, T16, ub)
            if sl == 7 and o < 2: finish(o, last)
        free[tb] = len(S.m) - 1
    ld[MB] = load(f"ds_read_b128 v[{MB}:{MB+3}], v13 offset:4096", MB)
    mb = [S.item(f"v_pk_mul_f16 v{MB+k}, v{MB+k}, s71 op_sel_hi:[1,0]", -1, [ld[MB]]) for k in range(4)]
    frag = {}; nf = [0]; cv = {}
    def uload(base):
        if base not in frag:
            r = UF_[nf[0] % len(UF_)]; nf[0] += 1
            frag[base] = (r, load(f"ds_read_b128 v[{r}:{r+3}], v12 offset:{2*(UPAD + base)}", r))
        return frag[base]
    items = [(ti, jp) for jp in range(6) for ti in (0, 2, 1) if jp < types[ti][5]]
    def window(n, i):
        ti, jp = items[n]
        bands, bases = types[ti][:2]
        w, d = W[n % 2] + 4 * i, W[n % 2] + 2 * i
        r, lid = uload(256 * jp + bases[i])
        b = BN[bands[i]]
        if b not in ld: ld[b] = load(f"ds_read_b128 v[{b}:{b+3}], v13 offset:{1024*bands[i]}", b)
        free[r] = g = S.mfma(f"v_mfma_f32_16x16x32_f16 v[{w}:{w+3}], v[{r}:{r+3}], v[{b}:{b+3}], 0", [lid, ld[b]])
        c0 = S.item(f"v_cvt_pk_f16_f32 v{d}, v{w}, v{w+1}", g + OPT["clat"], cv.get(n, []))
        cv[n] = [S.item(f"v_cvt_pk_f16_f32 v{d+1}, v{w+2}, v{w+3}", -1, [c0])]
    window(0, 0); window(0, 1)
    for n, (ti, jp) in enumerate(items):
        bands, bases, tbls, X, deltas, njp, TF = types[ti]
        if ti == 1 and jp < 5:
            r, lid = uload(256 * (jp + 3) - 1032)
            free[r] = accum(jp + 3, MB, r, [lid] + mb)
        if n + 1 < len(items):
            window(n + 1, 0); window(n + 1, 1)
        for di, D in enumerate(deltas):
            if jp + D <= 7:
                g = accum(jp + D, W[n % 2], TF[di], cv[n] + [ld[TF[di]]])
                if ti == 1 and di == 0: finish(jp + 2, g)
    S.run()
    if OPT["dbg"]: print("conv: slots over capacity", S.over, file=sys.stderr)
    asmlib.MFMA_TIME = False
    stamp(a, 5, 0); stamp(a, 5, 2)
    if OPT["csend"]:
        a(f"""s_setprio 3
              ds_read_b32 v5, v6 offset:{SY + 8}
              v_mov_b32 v4, {TAGP[1]:#x}
            K_CS:
              ds_read_b128 v[8:11], v6 offset:{SY + 48}
              ds_read_b128 v[16:19], v14 offset:{TB}
              s_waitcnt lgkmcnt(1)
              v_and_b32 v8, v8, v9
              v_bitop3_b32 v8, v8, v10, v11 bitop3:0x80
              v_readfirstlane_b32 s47, v5
              v_cmp_ne_u32 vcc, 8, v8
              s_cbranch_vccnz K_CS
              s_waitcnt lgkmcnt(0)
              v_xor_b32 v7, {TAGP[0]:#x}, v16
              v_bitop3_b32 v7, v7, v17, v4 bitop3:0xf6
              v_and_b32 v7, {TAGM:#x}, v7
              v_cmp_eq_u32 vcc, 0, v7
              v_addc_co_u32 v16, vcc, 0, v16, vcc""")
        both_modes(a, "K_CY", "buffer_store_dwordx4 v[16:19], v0, s[20:23], s72 offen @")
        stamp(a, 6, 0)
    stamp_flush(a, 8)

PX, F, U, WD, AF, BF = 8, 32, 48, 80, 100, 64
Z, ONE = "v126", "v127"

UE = ((24, 25), 64, 12, 16)
UC = ((88, 98), 4, 16, 36)
def unit(a, n, R=UE):
    va, sd, so, sm = R
    i, mat = n // 2, n % 2
    a(f"""s_add_u32 m0, s{sm}, {mat * 32768 + i * 1024}
          buffer_load_dwordx4 v{va[i // 2]}, s[{sd+4*mat}:{sd+3+4*mat}], s{so+i} offen {OPT['wfl']} lds""")

def unit_setup(a, R, vg, vc, vt):
    (v0, v1), sd, so, sm = R
    srd(a, sd, 20, 21, WBYTES); srd(a, sd + 4, 22, 23, WBYTES)
    a(f"""s_cmp_ge_u32 s29, 28                  ; no FFN tile: empty descriptors
          s_cselect_b32 s{sd+2}, 0, s{sd+2}
          s_cselect_b32 s{sd+6}, 0, s{sd+6}
          v_lshlrev_b32 v{v0}, 1, v{vg}
          v_xor_b32 v{v0}, v{v0}, v{vc}
          v_mul_u32_u24 v{vt}, 7168, v{vg}
          v_lshl_add_u32 v{v0}, v{v0}, 4, v{vt}
          v_xor_b32 v{v1}, 0x80, v{v0}
          s_lshl_b32 s{so}, s28, 3
          s_add_u32 s{so}, s{so}, s30
          s_mul_i32 s{so}, s{so}, {16 * 7168}
          s_lshl_b32 s{so+1}, s29, 8
          s_add_u32 s{so}, s{so}, s{so+1}
          s_add_u32 s{so+1}, s{so}, {4 * 7168}
          s_add_u32 s{so+2}, s{so}, {8 * 7168}
          s_add_u32 s{so+3}, s{so}, {12 * 7168}
          s_lshl_b32 s{sm}, s30, 12
          s_add_u32 s{sm}, s{sm}, {F_W}""")

def paced():
    if not OPT["kp"]: return []
    return [(int(x.split(":")[0]), x.split(":")[1]) for x in str(OPT["kp"]).split(",")]
def nC():
    return OPT["w0"] + sum(1 for _, u in paced() if u[0] != "t")

def first_channel(a, d, t):
    a(f"""s_lshr_b32 s{d}, s29, 3
          s_lshl_b32 s{d}, s{d}, 5
          s_and_b32 s{t}, s29, 7
          s_add_u32 s{d}, s{d}, s{t}
          s_lshl_b32 s{t}, s28, 7
          s_add_u32 s{d}, s{d}, s{t}""")

def unpk(t):
    import re
    m = re.match(r"v_pk_(\w+)_f32 (.*?)(?: (op_sel_hi|neg_lo).*)?$", t.strip())
    op, args = m.group(1), [x.strip() for x in m.group(2).split(",")]
    bc = "op_sel_hi:[1,0]" in t; neg = "neg_lo:[0,1]" in t
    out = []
    for h in (1, 0):
        r = []
        for n, x in enumerate(args):
            mm = re.match(r"([vs])\[(\d+):", x)
            r.append(x if not mm else "0x3fb8aa3b" if mm.group(1) == "s" else f"v{int(mm.group(2)) + (0 if bc and n == 2 else h)}")
        if not r[2].startswith("v"): r[1], r[2] = r[2], r[1]
        out.append(f"v_{'sub' if neg else op}_f32 " + ", ".join(r))
    return "\n".join(out)

def operands(a0, es, scalar=0):
    if OPT["exp"] & 256: return
    a = a0 if not scalar else lambda t: a0("\n".join(unpk(l) if l.strip().startswith("v_pk_") else l for l in t.split("\n")))
    T = lambda e: 8 + 2 * (e % 4)
    T2 = lambda e: 100 + 2 * (e % 4)
    p = lambda r: f"v[{r}:{r+1}]"
    for e in es: a(f"v_pk_mul_f32 {p(T(e))}, {p(U+2*e)}, s[58:59] op_sel_hi:[1,0]")
    for e in es:
        a(f"""v_exp_f32 v{T(e)}, -v{T(e)}
              {"v_and_b32" if e % 2 else "v_lshlrev_b32"} v{T2(e)}, {"0xffff0000" if e % 2 else "16"}, v{20 + e//2}
              v_exp_f32 v{T(e)+1}, -v{T(e)+1}
              v_pk_add_f32 {p(F+2*e)}, v[26:27], {p(F+2*e)} neg_lo:[0,1] neg_hi:[0,1]""")
    for e in es: a(f"v_pk_add_f32 {p(T(e))}, {p(T(e))}, 1.0 op_sel_hi:[1,0]")
    for e in es:
        a(f"""v_rcp_f32 v{T(e)}, v{T(e)}
              v_pk_mul_f32 {p(T2(e))}, {p(U+2*e)}, {p(T2(e))} op_sel_hi:[1,0]
              v_rcp_f32 v{T(e)+1}, v{T(e)+1}""")
    for e in es: a(f"v_pk_mul_f32 {p(T(e))}, {p(T(e))}, {p(U+2*e)}")
    for e in es:
        a(f"""v_pk_fma_f32 {p(F+2*e)}, {p(T2(e))}, {p(T(e))}, {p(F+2*e)}
              v_cvt_pk_bf16_f32 v{U+2*e}, v{T(e)}, 0
              v_cvt_pk_bf16_f32 v{U+2*e+1}, 0, v{T(e)+1}""")

def inbox(a, vo, vl, vt, so, st, tile="s30", row=UROW, tsh=9):
    a(f"""v_and_b32 v{vt}, 3, v1
          v_mul_u32_u24 v{vl}, {row}, v{vt}
          v_lshlrev_b32 v{vo}, 4, v{vt}
          v_lshrrev_b32 v{vt}, 2, v1
          v_lshl_add_u32 v{vl}, v{vt}, 4, v{vl}
          v_lshl_add_u32 v{vo}, v{vt}, 14, v{vo}
          s_lshl_b32 s{st}, {tile}, {tsh}
          v_add_u32 v{vl}, s{st}, v{vl}
          s_lshl_b32 s{so}, {tile}, 19
          s_lshl_b32 s{st}, s28, 8
          s_add_u32 s{so}, s{so}, s{st}
          s_and_b32 s{st}, s29, 3
          s_lshl_b32 s{st}, s{st}, 12
          s_add_u32 s{so}, s{so}, s{st}
          s_and_b32 s{st}, s29, 4
          s_lshl_b32 s{st}, s{st}, 9
          s_add_u32 s{so}, s{so}, s{st}
          s_lshr_b32 s{st}, s29, 3
          s_lshl_b32 s{st}, s{st}, 6
          s_add_u32 s{so}, s{so}, s{st}
          s_add_u32 s{so+1}, s{so}, 0x40000""")

def touch(a):
    a(f"""s_mov_b32 m0, {JUNK}
          s_add_u32 s78, s61, 2048
          buffer_load_dwordx4 v4, s[20:23], s61 offen sc1 lds
          buffer_load_dwordx4 v4, s[20:23], s78 offen sc1 lds""")

def e_path(a):
    W0, W1, W2 = nC(), OPT["w1"], OPT["w2"]
    T1, T2 = 2 * (OPT["pt"] == 1), 2 * (OPT["pt"] == 2)
    G = 88
    p = lambda r: f"v[{r}:{r+1}]"
    def esetup():
        a(f"s_setprio {OPT['sprio']}")
        unit_setup(a, UE, 2, 3, 7)
        srd(a, 40, 24, 25, WBYTES)
        a(f"""s_mov_b32 s42, s66
              v_mul_u32_u24 v7, {7168 - 2048}, v2
              v_sub_u32 v118, v24, v7
              v_sub_u32 v119, v25, v7
              s_lshl_b32 s18, s60, 15
              s_add_u32 s18, s18, s62
              s_lshl_b32 s19, s30, 12""")
        srd(a, 20, 26, 27, 0x400000)
        inbox(a, 96, 121, 7, 75, 78)
        a(f"""v_and_b32 v92, 7, v1
              v_lshlrev_b32 v92, 10, v92
              v_lshrrev_b32 v7, 3, v1
              v_lshl_add_u32 v92, v7, 4, v92        ; statistics gather offset
              v_and_b32 v93, 31, v1
              v_lshlrev_b32 v93, 3, v93
              v_mov_b32 v122, {TAGM:#x}
              v_mov_b32 v125, 0x80000000
              s_mov_b32 s17, 0
              s_mov_b32 s4, {TAGP[0]:#x}
              s_mov_b32 s5, {TAGP[1]:#x}
              s_mov_b32 s6, {TAGP[2]:#x}
              s_mov_b32 s7, {TAGP[3]:#x}
              s_mov_b32 s83, {SPIN:#x}
              s_lshl_b32 s78, s60, 4
              v_lshl_add_u32 v6, v2, 2, s78         ; 2 * row A
              v_lshrrev_b32 v7, 2, v1
              s_sub_u32 s78, 4094, s78
              v_sub_u32 v7, s78, v7
              s_lshl_b32 s78, s30, 6
              v_add_u32 v98, s78, v1""")
        a(f"""s_max_u32 s78, s30, 3
              s_sub_u32 s78, s78, 3
              s_lshl_b32 s78, s78, 10
              s_add_u32 s79, s78, K_BAND - K_PC
              s_add_u32 s48, s48, s79
              s_addc_u32 s49, s49, 0
              s_add_u32 s50, s78, {BAND}
              s_setprio {OPT['eprio']}""")
    a(f"""v_lshlrev_b32 v97, 4, v1
          v_lshrrev_b32 v2, 4, v1
          v_and_b32 v3, 15, v1
          v_lshlrev_b32 v5, 4, v3
          s_setprio {OPT['eprio']}
          s_getpc_b64 s[48:49]
        K_PC:
          s_cmp_lg_u32 s30, 0
          s_cbranch_scc1 K_NOPF
          ; the code is read once as data so that instruction fetches find it in L2 (each WG of a die takes a slice)
          s_lshl_b32 s50, s29, 10
          s_min_u32 s50, s50, K_END - K_PC - 1024
          s_add_u32 s50, s50, s48
          s_addc_u32 s51, s49, 0
          global_load_dwordx4 v[32:35], v97, s[50:51]
        K_NOPF:""")
    first_channel(a, 3, 63)
    a(f"""v_lshl_add_u32 v4, v2, 12, v5
          v_lshl_add_u32 v120, v2, 11, v5
          s_lshl_b32 s60, s29, 3
          s_add_u32 s60, s60, s30
          s_lshl_b32 s61, s60, 14
          s_lshl_b32 s62, s28, 8
          s_add_u32 s61, s61, s62
          v_add_u32 v6, s62, v5
          v_mov_b32 {Z}, 0
          v_mov_b32 {ONE}, 1
          v_lshlrev_b32 v7, 2, v1
          ds_write2st64_b32 v7, {Z}, {Z} offset0:0 offset1:2
          s_mov_b32 s38, 0x400000
          s_mov_b32 s39, 0x00020000
          s_lshl_b32 s63, s3, 8
          v_add_u32 v7, s63, v120
          s_lshl_b32 s3, s3, 1
          s_and_b32 s3, s3, -64
          s_mov_b32 m0, {PRM}
          s_cmp_lg_u32 s30, 0
          s_waitcnt lgkmcnt(0)
          s_load_dword s46, s[42:43], {WS_EP:#x}
          s_mov_b32 s36, s44
          s_mov_b32 s37, s45
          s_cbranch_scc1 K_NOPRM
          global_load_lds_dwordx4 v7, s[4:5]
          s_mov_b32 m0, {PRM + 1024}
          s_load_dword s47, s[12:13], s3
          global_load_lds_dwordx4 v7, s[6:7]
          s_mov_b32 m0, {PRM + 2048}
          global_load_lds_dwordx4 v7, s[8:9]
          s_mov_b32 m0, {PRM + 3072}
          global_load_lds_dwordx4 v7, s[10:11]
        K_NOPRM:
          s_cmp_lg_u32 s30, 1
          s_cbranch_scc1 K_NOSM
          global_load_dwordx4 v[48:51], v97, s[18:19]
          global_load_dwordx4 v[52:55], v97, s[18:19] offset:1024
        K_NOSM:
          buffer_load_dwordx4 v[8:11], v4, s[36:39], s61 offen {OPT['xfl']}
          buffer_load_dwordx4 v[12:15], v4, s[36:39], s61 offen offset:2048 {OPT['xfl']}
          global_load_dwordx4 v[16:19], v6, s[18:19]
          global_load_dwordx4 v[20:23], v6, s[14:15]""")
    stamp(a, 5, 3)
    a("s_barrier")
    stamp(a, 6, 3)
    srd(a, 32, 42, 43, WS_SIZE)
    a(f"""v_lshlrev_b32 v95, 1, v1
          s_lshl_b32 s63, s29, 13
          s_lshl_b32 s73, s30, 7
          s_add_u32 s63, s63, s73
          s_add_u32 s63, s63, {WS_PS:#x}
          s_lshl_b32 s73, s28, 10
          s_add_u32 s57, s73, {WS_KM:#x}
          s_add_u32 s73, s73, s63
          s_add_u32 s74, s62, {WS_CI:#x}
          s_getreg_b32 s56, hwreg(HW_REG_XCC_ID)
          v_mov_b32 v124, 0xffff0000
          s_mov_b32 s8, 0x0000bf80
          s_mov_b32 s9, 0xbf800000
          v_mov_b32 v84, 0
          v_mov_b32 v85, 0
          s_waitcnt lgkmcnt(0)
          s_add_u32 s46, s46, {STEP:#x}
          v_mov_b32 v{G+3}, s46
          s_cmp_lg_u32 s30, 0
          s_cbranch_scc1 K_NOPS
          s_mov_b64 exec, 1
          ds_write_b32 {Z}, v{G+3} offset:{SY}
          s_waitcnt vmcnt(4)
          ds_add_u32 {Z}, {ONE} offset:{SY + 12}
          s_mov_b64 exec, -1
        K_NOPS:""")
    if W1 + T1: esetup()
    stamp(a, 7, 3)
    a(f"""s_waitcnt vmcnt(3)
          v_and_b32_dpp v26, v8, v124 row_newbcast:0 row_mask:0xf bank_mask:0xf""")
    for e in range(8): a(f"v_dot2_f32_bf16 v{F+2*e}, v{8+e//2}, s{8+e%2}, v26")
    a(f"s_waitcnt vmcnt(2)")
    stamp(a, 1)
    if T1: touch(a)
    for n in range(W0, W0 + W1): unit(a, n)
    a("v_and_b32_dpp v27, v12, v124 row_newbcast:0 row_mask:0xf bank_mask:0xf")
    for e in range(8): a(f"v_dot2_f32_bf16 v{F+2*e+1}, v{12+e//2}, s{8+e%2}, v27")
    a(f"s_waitcnt vmcnt({1 + W1 + T1})")
    dots = [f"v_dot2c_f32_bf16 v{84 + e % 2}, v{8 + 4 * (e % 2) + e // 2}, v{16 + e // 2}" for e in range(8)]
    a(f"""v_pk_add_f32 v[28:29], {p(F)}, {p(F+2)}
          v_pk_mul_f32 v[30:31], {p(F)}, {p(F)}
          {dots[0]}
          v_pk_add_f32 v[80:81], {p(F+4)}, {p(F+6)}
          v_pk_mul_f32 v[82:83], {p(F+2)}, {p(F+2)}
          {dots[1]}""")
    for e in range(2, 8):
        d = 30 if e % 2 == 0 else 82
        a(f"v_pk_fma_f32 {p(d)}, {p(F+2*e)}, {p(F+2*e)}, {p(d)}")
        a(dots[e])
        if e >= 4:
            d = 28 if e % 2 == 0 else 80
            a(f"v_pk_add_f32 {p(d)}, {p(d)}, {p(F+2*e)}")
    a(f"""v_pk_add_f32 v[30:31], v[30:31], v[82:83]
          v_mov_b32 v86, v26
          v_pk_add_f32 v[28:29], v[28:29], v[80:81]
          v_add_f32_dpp v{G+2}, v84, v84 row_ror:8 row_mask:0xf bank_mask:0x3
          v_add_f32_dpp v{G+1}, v30, v30 row_ror:8 row_mask:0xf bank_mask:0x3
          v_add_f32_dpp v{G}, v28, v28 row_ror:8 row_mask:0xf bank_mask:0x3
          v_add_f32_dpp v{G+2}, v85, v85 row_ror:8 row_mask:0xf bank_mask:0xc
          v_add_f32_dpp v{G+1}, v31, v31 row_ror:8 row_mask:0xf bank_mask:0xc
          v_add_f32_dpp v{G}, v29, v29 row_ror:8 row_mask:0xf bank_mask:0xc
          v_mov_b32_dpp v86, v27 quad_perm:[0,1,2,3] row_mask:0xf bank_mask:0xc""")
    def red8(order):
        for mod in ("row_half_mirror", "quad_perm:[1,0,3,2]", "quad_perm:[2,3,0,1]"):
            for r in order:
                a(f"v_add_f32_dpp v{r}, v{r}, v{r} {mod} row_mask:0xf bank_mask:0xf")
    red8((G, G + 2, G + 1))
    a(f"""v_mul_f32 v87, 0x3c000000, v{G}
          s_mov_b32 exec_lo, 0x01010101
          s_mov_b32 exec_hi, 0x01010101
          v_fma_f32 v{G+1}, -v87, v{G}, v{G+1}
          v_sub_f32 v{G}, v86, v87
          buffer_store_dwordx4 v[{G}:{G+3}], v95, s[32:35], s73 offen sc1
          s_mov_b64 exec, -1""")
    stamp(a, 2)
    a(f"""s_mov_b64 exec, 1
          ds_add_u32 {Z}, {ONE} offset:{SY + 36}
          s_mov_b64 exec, -1
          s_setprio {OPT['sprio']}""") if OPT["pace"] == 2 else a(f"s_setprio {OPT['sprio']}")
    sumw(a)
    if not W1 + T1: esetup()
    a(f"s_setprio {OPT['eprio']}")
    if OPT["exp"] & 64: a("v_mov_b32 v94, s46\n v_mov_b32 v95, s56\n s_mov_b32 m0, s50\n global_load_lds_dwordx4 v97, s[48:49]\n s_branch K_P1D")
    if OPT["pace"] == 1:
        a(f"""s_waitcnt vmcnt(0)
              s_mov_b64 exec, 1
              ds_add_u32 {Z}, {ONE} offset:{SY + 36}
              s_mov_b64 exec, -1""")
    if OPT["pace"]: lds_wait(a, "K_AW", 80, Z, SY + 36, "v_cmp_gt_u32 vcc, 8, v80")
    if OPT["psl"]: a(f"s_sleep {OPT['psl']}")
    stamp(a, 5, 4)
    a(f"""buffer_load_dwordx4 v[{G}:{G+3}], v92, s[32:35], s63 offen sc1
          buffer_load_dwordx2 v[94:95], v93, s[32:35], s74 offen sc1""")
    a("""s_mov_b32 m0, s50
         global_load_lds_dwordx4 v97, s[48:49]""")
    if OPT["wsl"]: a(f"s_sleep {OPT['wsl']}")
    if T2: touch(a)
    for n in range(W0 + W1, W0 + W1 + W2): unit(a, n)
    a(f"""{"s_mov_b32 s80, 1" if OPT["dbg"] else ""}
          s_waitcnt vmcnt({W2 + T2 + 2})
          s_branch K_P1C
        K_P1:
          s_sleep {OPT['rsl']}
          buffer_load_dwordx4 v[{G}:{G+3}], v92, s[32:35], s63 offen sc1
          {"s_add_u32 s80, s80, 1" if OPT["dbg"] else ""}
          s_sub_u32 s83, s83, 1
          s_waitcnt vmcnt(0)
          s_cbranch_scc1 K_P1D
        K_P1C:
          v_cmp_ne_u32 vcc, s46, v{G+3}
          s_cbranch_vccnz K_P1
        K_P1D:
          ds_read_b32 v85, {Z} offset:{SY + 4}
          s_max_i32 s83, s83, 0""")
    stamp(a, 3)
    if OPT["pt"] == 3: touch(a); T2 = 2
    a(f"""v_mov_b32_dpp v80, v{G} row_newbcast:0 row_mask:0xf bank_mask:0x3
          v_mov_b32_dpp v80, v{G} row_newbcast:8 row_mask:0xf bank_mask:0xc
          v_sub_f32 v{G}, v{G}, v80
          v_mul_f32 v81, 0x43000000, v{G}
          v_fmac_f32 v{G+1}, v81, v{G}""")
    red8((G + 2, G, G + 1))
    a(f"""v_mul_f32 v81, 0x41800000, v{G}
          v_fmac_f32 v80, 0x3e000000, v{G}
          v_fma_f32 v{G+1}, -v81, v{G}, v{G+1}
          v_mul_f32 v{G+1}, 0x3a800000, v{G+1}
          v_max_f32 v{G+1}, 0, v{G+1}
          v_cvt_pk_bf16_f32 v81, v80, v{G+1}
          v_and_b32 v{G+1}, v124, v81
          v_lshlrev_b32 v80, 16, v81
          v_add_f32 v{G+1}, 0x3727c5ac, v{G+1}
          v_cvt_pk_bf16_f32 v{G+1}, 0, v{G+1}
          v_sub_f32 v86, v86, v80
          v_sqrt_f32 v{G+1}, v{G+1}
          s_waitcnt vmcnt({W2 + T2 + 1})
          v_cmp_ne_u32 s[78:79], s46, v94
          v_cvt_pk_bf16_f32 v83, v80, v{G+1}
          v_and_b32 v{G+1}, v124, v83
          v_rcp_f32 v81, v{G+1}
          s_waitcnt lgkmcnt(0)
          v_cmp_eq_u32 vcc, 0, v85
          v_mul_f32 v86, v86, v81
          s_or_b64 vcc, vcc, s[78:79]
          s_cbranch_vccnz K_RARE
        K_RB:
          v_cmp_ne_u32 vcc, s56, v95
          v_fma_f32 v82, -v80, v85, v{G+2}
          v_mov_b32_dpp v28, v81 row_newbcast:0 row_mask:0xf bank_mask:0xf
          v_mul_f32 v82, v82, v81
          v_mov_b32_dpp v29, v81 row_newbcast:8 row_mask:0xf bank_mask:0xf
          v_cvt_pk_bf16_f32 v82, v82, v82
          v_mov_b32_dpp v30, v86 row_newbcast:0 row_mask:0xf bank_mask:0xf
          v_ashrrev_i32 v81, 31, v82
          v_mov_b32_dpp v31, v86 row_newbcast:8 row_mask:0xf bank_mask:0xf
          v_bitop3_b32 v82, v82, v81, v125 bitop3:0x1e
          s_cmp_lg_u64 vcc, 0
          s_cselect_b32 s47, 1, {OPT['slow']}
          v_and_or_b32 v82, v82, v124, v7
          v_mov_b32 v80, s47
          s_mov_b32 exec_lo, 0x01010101
          s_mov_b32 exec_hi, 0x01010101
          ds_write_b64 v98, v[82:83] offset:{SY + 128}
          s_mov_b64 exec, 1
          ds_write_b32 {Z}, v80 offset:{SY + 8}
          ds_add_u32 {Z}, {ONE} offset:{SY + 20}
          s_mov_b64 exec, -1""")
    for e in range(8):
        a(f"v_pk_fma_f32 {p(U+2*e)}, {p(F+2*e)}, v[28:29], v[30:31] neg_lo:[1,0,0] neg_hi:[1,0,0]")
    for e in range(8):
        a(f"v_cvt_pk_f16_f32 v{64+e}, v{U+2*e}, v{U+2*e+1}")
    transpose4(a, 64, 68)
    for r in range(8): a(f"v_bfi_b32 v{64+r}, v122, s{4+r%4}, v{64+r}")
    both_modes(a, "K_US", """buffer_store_dwordx4 v[64:67], v4, s[20:23], s61 offen @
                             buffer_store_dwordx4 v[68:71], v4, s[20:23], s61 offen offset:2048 @""")
    stamp(a, 4)
    a(f"""{"s_mov_b32 s81, 0" if OPT["dbg"] else ""}
          s_branch K_P2A
        K_P2:
          {"s_sleep " + str(OPT["isl"]) if OPT["isl"] else ""}
        K_P2A:
          buffer_load_dwordx4 v[64:67], v96, s[20:23], s75 offen sc1
          buffer_load_dwordx4 v[68:71], v96, s[20:23], s76 offen sc1
          {"s_add_u32 s81, s81, 1" if OPT["dbg"] else ""}""")
    if OPT["early"]:
        a(f"""s_cmp_lg_u32 s17, 0
              s_cbranch_scc1 K_E2
              s_setprio {OPT['pprio']}""")
        operands(a, range(4))
        a(f"""s_mov_b32 s17, 1
              s_setprio {OPT['eprio']}
            K_E2:""")
    a(f"""s_sub_u32 s83, s83, 1
          s_waitcnt vmcnt(0)
          v_bitop3_b32 v80, v64, v68, s4 bitop3:0x7e
          v_bitop3_b32 v81, v65, v69, s5 bitop3:0x7e
          v_bitop3_b32 v82, v66, v70, s6 bitop3:0x7e
          v_bitop3_b32 v83, v67, v71, s7 bitop3:0x7e
          s_cbranch_scc1 K_P2D
          v_or3_b32 v80, v80, v81, v82
          v_bitop3_b32 v80, v80, v83, v122 bitop3:0xa8
          v_cmp_ne_u32 vcc, 0, v80
          s_cbranch_vccnz K_P2
        K_P2D:
          ds_write_b128 v121, v[64:67] offset:{UA + 2*UPAD}
          ds_write_b128 v121, v[68:71] offset:{UA + 2*UPAD + 256}
          s_max_i32 s83, s83, 0
          s_mov_b64 exec, 1
          ds_add_u32 {Z}, {ONE} offset:{SY + 16}
          s_mov_b64 exec, -1
          s_setprio 0""")
    stamp(a, 5, 0)
    if OPT["exp"] & 8: a("s_sleep 90")
    a("""s_cmp_ge_u32 s29, 28
         s_cbranch_scc1 K_NOTL""")
    if OPT["ugate"]: lds_wait(a, "K_UG", 64, Z, SY + 16, "v_cmp_gt_u32 vcc, 8, v64", OPT["gsl"])
    a("s_setprio 3")
    for n in range(W0 + W1 + W2, 8): unit(a, n)
    a(f"""s_waitcnt vmcnt({OPT['gwait']})
          s_branch K_HGB
        K_HG:
          s_sleep {OPT['gsl']}
        K_HGB:
          ds_read_b32 v64, {Z} offset:{SY + 16}
          ds_read2_b32 v[66:67], {Z} offset0:{(SY + 112)//4} offset1:{(SY + 120)//4}
          s_waitcnt lgkmcnt(0)
          v_add3_u32 v64, v64, v66, v67
          v_cmp_gt_u32 vcc, 17, v64
          s_cbranch_vccnz K_HG""")
    first = W0 + W1 + W2 == 8 or OPT["gwait"] == 0
    if first:
        a(f"""s_mov_b64 exec, 1
              ds_add_u32 {Z}, {ONE} offset:{SY + 24}
              s_mov_b64 exec, -1""")
    for i in range(4):
        a(f"""s_add_u32 m0, s19, {WDN + 1024*i}
              buffer_load_dwordx4 v{118 + i//2}, s[40:43], s18 offen {OPT['wfl']} lds""")
        if i < 3: a("s_add_u32 s18, s18, 8192")
    a(f"""s_mov_b64 exec, 1
          s_waitcnt vmcnt(4)
          {"" if first else "ds_add_u32 " + Z + ", " + ONE + " offset:" + str(SY + 24)}
          s_waitcnt vmcnt(0)
          ds_add_u32 {Z}, {ONE} offset:{SY + 124}
          s_mov_b64 exec, -1
          s_setprio 0
          s_branch K_TLD
        K_NOTL:""")
    lds_wait(a, "K_TL", 64, Z, SY + 120, "v_cmp_eq_u32 vcc, 0, v64", 8)
    a("K_TLD:")
    if OPT["exp"] & 32: a("s_sleep 70")
    halves = [h for h in range(2) if not (h == 0 and OPT["early"])]
    mid = halves[:OPT["mid"]]; late = halves[OPT["mid"]:]
    for h in mid: operands(a, range(4 * h, 4 * h + 4), OPT["scal"])
    stamp(a, 6, 0)
    a(f"""ds_read_b128 v[92:95], {Z} offset:{SY + 96}
          s_waitcnt lgkmcnt(0)
          v_readfirstlane_b32 s6, v92
          v_readfirstlane_b32 s7, v94
          s_andn2_b32 s6, 0xffe, s6             ; 2 * row
          s_andn2_b32 s7, 0xffe, s7
          s_lshr_b32 s77, s6, 4
          s_lshr_b32 s79, s7, 4
          v_cmp_ne_u32 s[52:53], s6, v6
          v_cmp_ne_u32 vcc, s7, v6
          v_add_u32 v6, 2, v6
          s_and_b64 s[52:53], s[52:53], vcc     ; rows that are not routed
          v_cmp_ne_u32 s[54:55], s6, v6
          v_cmp_ne_u32 vcc, s7, v6
          s_and_b64 s[54:55], s[54:55], vcc
          s_cmp_eq_u32 s77, s60
          s_cselect_b32 s77, 0x55555555, 0
          s_cmp_eq_u32 s79, s60
          s_cselect_b32 s79, 0xaaaaaaaa, 0
          s_or_b32 s77, s77, s79
          v_and_b32 v64, 3, v1
          v_mul_u32_u24 v64, {UROW - 4096}, v64
          v_sub_u32 v121, v121, v64
          s_and_b32 s78, s30, 3
          s_lshl_b32 s78, s78, 2
          s_lshr_b32 s78, 0xc480, s78
          s_and_b32 s78, s78, 15
          v_mov_b32 v123, s78
          s_or_b32 s78, s30, 3
          s_add_u32 s78, s78, 1""")
    lds_wait(a, "K_HW4", 64, "v123", SY + 48, "v_cmp_gt_u32 vcc, 4, v64", OPT["ywsl"])
    a(f"""v_cmp_le_u32 vcc, s78, v64
          s_cbranch_vccnz K_YWB
          s_sleep {OPT['lsl']}
          s_setprio 3
          s_branch K_YWB
        K_YW:
          s_sleep 1
        K_YWB:
          ds_read_b128 v[64:67], {Z} offset:{SY + 48}
          s_waitcnt lgkmcnt(0)
          v_min_u32 v64, v64, v65
          v_min3_u32 v64, v64, v66, v67
          v_cmp_gt_u32 vcc, s78, v64
          s_cbranch_vccnz K_YW
          ds_read_b128 v[64:67], v121 offset:{TB}
          ds_read_b128 v[68:71], v121 offset:{TB + 256}
          s_setprio 3""")
    for q in range(2):
        r = 64 + 4 * q
        a(f"""s_waitcnt lgkmcnt({1 - q})
              v_xor_b32 v72, {TAGP[0]:#x}, v{r}
              v_bitop3_b32 v72, v72, v{r+1}, s5 bitop3:0xf6
              v_and_b32 v72, v122, v72
              v_cmp_eq_u32 vcc, 0, v72
              v_addc_co_u32 v{r}, vcc, 0, v{r}, vcc   ; a granule that looks like u moves one value by one step""")
    both_modes(a, "K_YS", """buffer_store_dwordx4 v[64:67], v96, s[20:23], s75 offen @
                             buffer_store_dwordx4 v[68:71], v96, s[20:23], s76 offen @""")
    a(f"""s_setprio 0
          """)
    stamp(a, 7, 0)
    yload = """buffer_load_dwordx4 v[72:75], v4, s[20:23], s61 offen sc1
               buffer_load_dwordx4 v[76:79], v4, s[20:23], s61 offen offset:2048 sc1"""
    ycheck = """v_xor_b32 v64, s4, v72
                v_xor_b32 v65, s4, v76
                v_bitop3_b32 v64, v64, v73, s5 bitop3:0xf6
                v_bitop3_b32 v65, v65, v77, s5 bitop3:0xf6
                v_and_b32 v64, v122, v64
                v_and_b32 v65, v122, v65
                v_min_u32 v64, v64, v65
                v_cmp_eq_u32 vcc, 0, v64"""
    a(f"""s_cmp_eq_u32 s77, 0
          s_cbranch_scc1 K_NOOWN
          ; the owner of a routed row tells the WGs that finish this row that no granule will land in it any more""")
    for h in late: operands(a, range(4 * h, 4 * h + 4), OPT["scal"])
    a("""s_setprio 3
       K_PO:
         s_sleep 1""")
    a(yload)
    a(f"""s_sub_u32 s83, s83, 1
          s_waitcnt vmcnt(0)
          s_cbranch_scc1 K_POD""")
    a(ycheck)
    a(f"""s_cbranch_vccnz K_PO
        K_POD:
          v_mov_b32 v64, 0
          v_mov_b32 v65, 0
          v_mov_b32 v66, s46
          v_lshlrev_b32 v67, 5, v1
          s_mov_b32 exec_lo, s77
          s_mov_b32 exec_hi, s77
          s_lshl_b32 s78, s28, 16
          s_add_u32 s78, s78, {WS_DP + 28 * 2048:#x}""")
    both_modes(a, "K_OS", "buffer_store_dwordx3 v[64:66], v67, s[32:35], s78 offen @")
    a(f"""s_mov_b64 exec, -1
          s_branch K_PYD
        K_NOOWN:""")
    lds_wait(a, "K_DW", 64, "v123", SY + 48, "v_cmp_gt_u32 vcc, 8, v64", OPT["dsl"])
    stamp(a, 6, 2)
    a(f"s_setprio {OPT['lprio']}")
    for h in late[:-1]: operands(a, range(4 * h, 4 * h + 4))
    a(yload)
    for h in late[-1:]: operands(a, range(4 * h, 4 * h + 4))
    a(f"""s_waitcnt vmcnt(0)
          s_branch K_PYC
        K_PY:
          {"s_sleep " + str(OPT["ysl"]) if OPT["ysl"] else ""}""")
    a(yload)
    a(f"""s_sub_u32 s83, s83, 1
          s_waitcnt vmcnt(0)
          s_cbranch_scc1 K_PYD
        K_PYC:""")
    a(ycheck)
    a("""s_cbranch_vccnz K_PY
       K_PYD:""")
    stamp(a, 7, 2)
    transpose4(a, 72, 76)
    for h in range(2):
        for e in range(8): a(f"v_dot2c_f32_bf16 v{F+2*e+h}, v{72+e}, v{U+2*e+h}")
    for h in range(2):
        for k in range(4): a(f"v_cvt_pk_bf16_f32 v{8+4*h+k}, v{F+4*k+h}, v{F+4*k+2+h}")
        a(f"""s_mov_b64 exec, s[{52+2*h}:{53+2*h}]
              buffer_store_dwordx4 v[{8+4*h}:{11+4*h}], v4, s[20:23], s61 offen offset:{2048*h} {OPT['outfl']}
              s_mov_b64 exec, -1""")
    stamp_flush(a, 0)
    a(f"""K_RARE:
          s_sleep 2
          buffer_load_dwordx2 v[94:95], v93, s[32:35], s74 offen sc1
          ds_read_b32 v85, {Z} offset:{SY + 4}
          s_sub_u32 s83, s83, 1
          s_waitcnt vmcnt(0) lgkmcnt(0)
          s_cbranch_scc1 K_RE
          v_cmp_ne_u32 s[78:79], s46, v94
          v_cmp_eq_u32 vcc, 0, v85
          s_or_b64 vcc, vcc, s[78:79]
          s_cbranch_vccnz K_RARE
        K_RE:
          s_max_i32 s83, s83, 0
          s_branch K_RB""")

def c_path(a):
    W0 = OPT["w0"]
    a(f"""s_sub_u32 s30, s30, 8
          s_setprio {OPT['kprio']}""")
    first_channel(a, 3, 55)
    a(f"""s_lshr_b32 s59, s30, 1
          s_lshl_b32 s55, s59, 3
          s_add_u32 s56, s3, s55                ; d
          s_lshl_b32 s57, s56, 1
          s_and_b32 s57, s57, -4
          v_lshlrev_b32 v95, 4, v1
          v_and_b32 v96, 15, v1
          v_lshrrev_b32 v97, 4, v1
          v_mov_b32 v20, 0
          v_mov_b32 v21, 0
          v_mov_b32 v22, 0
          v_mov_b32 v23, 0
          s_mov_b32 s34, {WS_SIZE:#x}
          s_mov_b32 s35, 0x00020000
          s_waitcnt lgkmcnt(0)
          s_load_dword s47, s[12:13], s57
          s_mov_b32 s32, s42
          s_mov_b32 s33, s43
          s_barrier
          s_mov_b32 m0, {JUNK}
          s_cmp_lg_u32 s30, 2
          s_cbranch_scc1 K_NOT
          s_lshl_b32 s60, s28, 16
          s_lshl_b32 s61, s29, 11
          s_add_u32 s60, s60, s61
          s_add_u32 s60, s60, {WS_DP:#x}
          s_lshl_b32 s61, s28, 10
          s_add_u32 s61, s61, {WS_KM:#x}
          buffer_load_dwordx4 v95, s[32:35], s60 offen sc1 lds
          buffer_load_dwordx4 v95, s[32:35], s60 offen offset:1024 sc1 lds
          buffer_load_dwordx4 v95, s[32:35], s61 offen sc1 lds
        K_NOT:""")
    unit_setup(a, UC, 97, 96, 18)
    for n in range(W0): unit(a, n, UC)
    if any(u[0] == "t" for _, u in paced()) or OPT["pt"] == 4:
        srd(a, 20, 26, 27, 0x400000)
        a(f"""v_lshlrev_b32 v94, 4, v96
              v_lshl_add_u32 v94, v97, 12, v94
              s_lshl_b32 s38, s29, 3
              s_add_u32 s38, s38, s30
              s_lshl_b32 s38, s38, 14
              s_lshl_b32 s39, s28, 8
              s_add_u32 s38, s38, s39
              s_add_u32 s39, s38, 2048""")
        if OPT["pt"] == 4:
            a(f"""s_mov_b32 m0, {JUNK}
                  buffer_load_dwordx4 v94, s[20:23], s38 offen sc1 lds
                  buffer_load_dwordx4 v94, s[20:23], s39 offen sc1 lds""")
    a(f"""s_mov_b32 s52, s59
          s_lshr_b32 s53, s30, 2
          s_xor_b32 s53, s53, s30
          s_and_b32 s53, s53, 1
          s_mul_i32 s66, s52, {UROW}
          s_add_u32 s66, s66, {UA}
          v_add_u32 v11, s66, v95
          s_mov_b32 exec_hi, 3
          ds_write_b128 v11, v[20:23]
          s_mov_b32 exec_hi, -1""")
    kgen_setup(a)
    a(f"""s_lshl_b32 s60, s52, 8
          s_add_u32 s60, s60, {PRM}
          v_lshl_add_u32 v17, v1, 2, s60
          s_lshl_b32 s61, s53, 7
          s_add_u32 s60, s60, s61
          v_lshl_add_u32 v16, v1, 1, s60
          v_mov_b32 v2, 0
          v_mov_b32 v3, 0
          v_mov_b32 v4, 0
          v_mov_b32 v5, 0
          v_mov_b32 v42, 0x3c00
          s_mov_b32 s37, m0
          s_mov_b32 s72, -1
          s_mov_b32 s73, 0
          s_cmp_eq_u32 s53, 0
          s_cbranch_scc0 K_HA
          v_lshlrev_b32 v124, 8, v97
          v_lshl_add_u32 v124, v96, 4, v124
          v_sub_u32 v124, {2*(537-256)}, v124
          v_add_u32 v124, s68, v124                 ; 2*(537 - p0), p0 = 256 + 128g + 8j
          v_lshrrev_b32 v125, 1, v97
          v_lshlrev_b32 v125, 8, v125
          v_lshl_add_u32 v125, v96, 4, v125
          v_and_b32 v30, 1, v97
          v_lshl_add_u32 v125, v30, 3, v125
          v_sub_u32 v125, 1080, v125
          v_add_u32 v125, s68, v125                 ; 1080 - 2p, p = 128(g>>1) + 8j + 4(g&1)
          v_add_u32 v126, 2, v124
          v_add_u32 v127, {DELTA}, v124
          v_lshlrev_b32 v12, 5, v96
          v_lshl_add_u32 v9, v97, 3, v12
          v_lshl_add_u32 v12, v97, 4, v12
          v_add_u32 v12, s66, v12
          v_add_u32 v9, s68, v9
          v_add_u32 v13, {BAND}, v95
          v_and_b32 v11, 1, v96
          v_xor_b32 v11, 1, v11
          v_mul_u32_u24 v11, {DELTA}, v11
          v_lshlrev_b32 v10, 1, v96
          v_sub_u32 v11, v11, v10
          s_add_u32 s78, s68, 30
          v_add_u32 v11, s78, v11
          v_lshl_add_u32 v10, v97, 4, v11
          v_lshl_add_u32 v14, v97, 3, v11
          v_add_u32 v14, {R2B}, v14
          v_add_u32 v11, 512, v10
          s_lshl_b32 s79, s52, 2
          v_mov_b32 v15, s79
          v_mov_b32 v8, 0
          s_branch K_AD
        K_HA:
          v_and_b32 v28, 1, v96
          v_lshrrev_b32 v29, 1, v96
          v_lshlrev_b32 v124, 8, v28
          v_lshlrev_b32 v30, 1, v29
          v_sub_u32 v124, v124, v30
          v_lshlrev_b32 v125, 5, v97
          v_sub_u32 v124, v124, v125
          v_add_u32 v124, {R2B + 128 + 2*47 + 64 - 16}, v124
          v_add_u32 v124, s68, v124
          v_lshlrev_b32 v125, 1, v28
          v_sub_u32 v125, v124, v125
          v_add_u32 v125, {-128 + 2}, v125
          v_mul_u32_u24 v126, 158, v28
          v_sub_u32 v126, v126, v30
          v_lshlrev_b32 v31, 6, v97
          v_sub_u32 v126, v126, v31
          v_add_u32 v126, {R3B + 128 - 48}, v126
          v_add_u32 v126, s68, v126
          v_lshrrev_b32 v28, 2, v96
          v_lshl_add_u32 v11, v97, 3, v28
          v_lshlrev_b32 v11, 8, v11
          v_and_b32 v29, 1, v97
          v_lshl_or_b32 v28, v29, 2, v28
          v_lshl_or_b32 v11, v28, 5, v11
          v_and_b32 v28, 3, v1
          s_lshl_b32 s78, s52, 6
          v_xor_b32 v11, s78, v11
          v_lshlrev_b32 v9, 4, v28
          v_xor_b32 v9, v9, v11
          v_add_u32 v9, {WDN}, v9
          v_lshl_add_u32 v11, v28, 3, v11
          v_xor_b32 v12, 32, v11
          v_add_u32 v11, {F_W}, v11             ; w_gate / w_up: columns 32q + 16t + 0..15
          v_add_u32 v12, {F_W}, v12
          v_lshlrev_b32 v8, 6, v28
          v_and_b32 v29, 12, v1
          v_lshl_add_u32 v8, v29, 2, v8
          v_mul_u32_u24 v10, 320, v28
          v_lshl_add_u32 v10, v97, 4, v10
          v_add_u32 v10, {XS}, v10
          v_lshrrev_b32 v28, 5, v1
          v_and_b32 v29, 31, v1
          v_lshlrev_b32 v14, 4, v29
          v_lshl_add_u32 v14, v28, 11, v14       ; gate / up gather offset
          v_mul_u32_u24 v13, 320, v28
          v_lshl_add_u32 v13, v29, 1, v13
          s_add_u32 s78, s78, {HB}
          v_add_u32 v13, s78, v13
          v_mov_b32 v15, 0
        K_AD:
          s_waitcnt lgkmcnt(0)
          s_lshl_b32 s60, s47, 16
          s_and_b32 s61, s47, s31
          s_bitcmp1_b32 s56, 0
          s_cselect_b32 s60, s61, s60
          v_mov_b32 v116, s60""")
    exp_acc(a, 117, 116, 118, 119, 58, 67, 71)
    a(f"""v_cvt_pk_bf16_f32 v117, 0, v117       ; dt
          v_mul_f32 v91, s58, v117
          v_mul_f32 v90, 0.15915494, v117
          """)
    stamp(a, 2)
    lds_wait(a, "K_PW", 18, "v20", SY + 12, "v_cmp_eq_u32 vcc, 0, v18")
    stamp(a, 1)
    a(f"""s_cmp_lg_u32 s30, 0
          s_cbranch_scc1 K_NOCI
          ds_read_b32 v18, v20 offset:{SY}
          s_getreg_b32 s60, hwreg(HW_REG_XCC_ID)
          v_mov_b32 v19, s60
          s_lshl_b32 s60, s28, 8
          s_lshl_b32 s61, s29, 3
          s_add_u32 s60, s60, s61
          s_add_u32 s60, s60, {WS_CI:#x}
          s_waitcnt lgkmcnt(0)
          s_mov_b64 exec, 1
          buffer_store_dwordx2 v[18:19], v20, s[32:35], s60 offen sc1
          s_mov_b64 exec, -1
        K_NOCI:""")
    a(f"""ds_read_u16_d16_hi v2, v16
          ds_read_u16_d16_hi v3, v16 offset:1024
          ds_read_b32 v6, v17 offset:2048
          ds_read_b32 v7, v17 offset:3072
          ds_read_u16_d16_hi v4, v16 offset:2048
          ds_read_u16_d16_hi v5, v16 offset:3072""")
    kgen_main(a)
    stamp(a, 5, 1)
    a("""s_cmp_eq_u32 s53, 0
         s_cbranch_scc0 K_FAR""")
    near_table(a, "K")
    conv(a)
    a.raw(".p2align 6")
    a("K_FAR:")
    far_table(a, "K")
    a(f"""v_or_b32 v127, 0x10000, v89
          s_lshl_b32 s79, s52, 2
          v_mov_b32 v4, s79""")
    a(f"""v_mov_b32 v93, 1
          s_mov_b64 exec, 1
          ds_write_b32 v4, v127 offset:{SY + 640}
          s_waitcnt vmcnt(0)
          ds_add_u32 v15, v93 offset:{SY + 112}
          s_mov_b64 exec, -1
          s_setprio {OPT['hprio']}
          """)
    stamp(a, 3)
    XA = 48
    a(f"""          s_lshl_b32 s62, s29, 14
          s_lshl_b32 s79, s52, 9
          s_add_u32 s62, s62, s79
          s_add_u32 s62, s62, {WS_EX:#x}
          s_add_u32 s63, s62, 4096
          s_add_u32 s64, s62, 8192
          s_add_u32 s65, s62, 12288
          s_lshl_b32 s73, s28, 11
          s_add_u32 s73, s73, s62
          s_lshl_b32 s77, s28, 16
          s_add_u32 s77, s77, {WS_DP:#x}
          s_lshl_b32 s57, s29, 11
          s_add_u32 s57, s57, s79
          s_add_u32 s57, s57, s77
          s_mov_b64 s[54:55], s[14:15]
          s_mov_b32 s12, 0x07060503
          s_mov_b32 s13, 0x07060502
          s_mov_b32 s14, 0x07060501
          s_mov_b32 s15, 0x04000c0c
          s_mov_b32 s16, 0x0706000c
          s_lshl_b32 s18, s28, 8""")
    a(f"""s_cmp_lg_u32 s30, 1
          s_cbranch_scc1 K_NOKP
          ds_read_b32 v90, v15 offset:{SY}
          v_mov_b32 v92, 0x3f803f80
          v_mov_b32 v93, v92
          v_lshlrev_b32 v3, 3, v1
          v_add_u32 v3, {XS + 640}, v3
          ds_write_b64 v3, v[92:93]
          ds_write_b64 v3, v[92:93] offset:64
          v_lshlrev_b32 v2, 3, v1
          s_setprio 3
          s_lshl_b32 s60, s28, 10
          s_add_u32 s60, s60, {WS_KM:#x}
          s_mov_b32 s83, {SPIN:#x}
          v_add_u32 v3, s18, v95
          s_mov_b32 m0, {XS}""")
    lds_wait(a, "K_KW", 93, "v15", SY + 20, "v_cmp_gt_u32 vcc, 8, v93", 1)
    a(f"""ds_read_b64 v[72:73], v2 offset:{SY + 128}
          ds_read_b32 v5, v15 offset:{SY + 8}
          v_readfirstlane_b32 s46, v90
          v_mov_b32 v74, v90
          v_mov_b32 v75, v90
          s_lshl_b32 s61, s29, 5
          s_add_u32 s61, s61, s60
          s_waitcnt lgkmcnt(0)
          v_readfirstlane_b32 s47, v5""")
    top2(a, 72, 80, 78, 79, 66)
    a("""v_cndmask_b32 v80, 0, 16, s[66:67]
         v_cmp_le_u32 vcc, s79, v72
         s_mov_b64 exec, vcc""")
    both_modes(a, "K_KS", "buffer_store_dwordx4 v[72:75], v80, s[32:35], s61 offen @")
    a(f"""s_mov_b64 exec, -1
        K_P3:
          buffer_load_dwordx4 v[72:75], v95, s[32:35], s60 offen sc1
          s_sub_u32 s83, s83, 1
          s_waitcnt vmcnt(0)
          s_cbranch_scc1 K_P3D
          v_cmp_ne_u32 vcc, s46, v74
          s_cbranch_vccnz K_P3
        K_P3D:""")
    stamp(a, 4, 0)
    top2(a, 72, 80, 78, 79, 66)
    a(f"""s_andn2_b32 s78, 0xffe, s78
          s_andn2_b32 s61, 0xffe, s79
          v_cndmask_b32 v80, 0, 8, s[66:67]
          v_cmp_le_u32 vcc, s79, v72
          v_mov_b32 v92, s78
          s_mov_b32 exec_lo, 0xfff00000
          s_mov_b32 exec_hi, 15
          v_mov_b32 v92, s61
          v_add_u32 v3, -320, v3
          s_mov_b32 exec_lo, 0xfff0ffff
          v_lshl_add_u32 v3, v92, 10, v3
          global_load_lds_dwordx4 v3, s[44:45]
          s_mov_b64 exec, vcc
          ds_write_b64 v80, v[72:73] offset:{SY + 96}
          v_mov_b32 v93, 1
          s_waitcnt vmcnt(0)
          ds_write_b32 v15, v93 offset:{SY + 120}
          s_cmp_lg_u32 s2, 0
          s_cbranch_scc1 K_NOZ
          s_mov_b32 s78, {WS_EP:#x}
          buffer_store_dword v74, v15, s[32:35], s78 offen sc1
        K_NOZ:
          s_mov_b64 exec, -1
          s_setprio {OPT['hprio']}
        K_NOKP:""")
    stamp(a, 5, 0)
    if OPT["exp"] & 16: a("s_sleep 110")
    lds_wait(a, "K_XW", 92, "v15", SY + 120, "v_cmp_eq_u32 vcc, 0, v92", OPT["xwsl"])
    a(f"""ds_read_b32 v5, v15 offset:{SY + 8}
          ds_read_b128 v[40:43], v15 offset:{SY + 96}
          ds_read_b32 v90, v15 offset:{SY}""")
    for k in range(4): a(f"ds_read_b128 v[{XA+4*k}:{XA+4*k+3}], v10 offset:{64*k}")
    a(f"""v_mov_b32 v93, 1
          s_waitcnt lgkmcnt(4)
          v_and_b32 v44, 0xffff0000, v41
          v_and_b32 v45, 0xffff0000, v43
          v_lshlrev_b32 v46, 16, v41
          v_lshlrev_b32 v47, 16, v43
          v_rcp_f32 v44, v44
          v_rcp_f32 v45, v45
          v_readfirstlane_b32 s47, v5
          s_cmp_ge_u32 s29, 28
          s_cbranch_scc1 K_NOFFN
          s_setprio 3""")
    lds_wait(a, "K_GW", 92, "v15", SY + 24, "v_cmp_gt_u32 vcc, 8, v92", OPT["gsl"])
    stamp(a, 5, 2)
    P = Pipe(a, maxfly=14)
    for n in range(16):
        k, t, mat = n // 4, n // 2 % 2, n % 2
        b = 64 + 4 * (n % 6)
        P.load(f"ds_read_b64_tr_b16 v[{b}:{b+1}], v{11 + t} offset:{32768*mat + 8192*k}", n - 6)
        lid = P.load(f"ds_read_b64_tr_b16 v[{b+2}:{b+3}], v{11 + t} offset:{32768*mat + 8192*k + 1024}", n - 6)
        d = 16 + 8 * t + 4 * mat
        c = "0" if k == 0 else f"v[{d}:{d+3}]"
        P.step(f"v_mfma_f32_16x16x32_bf16 v[{d}:{d+3}], v[{XA+4*k}:{XA+4*k+3}], v[{b}:{b+3}], {c}", [lid])
    P.run()
    a("""
         s_mov_b32 exec_lo, 0xffff0000
         s_mov_b32 exec_hi, 0""")
    for r in (16, 17, 18, 20, 21, 22): a(f"v_mov_b32 v{r}, v{r+8}")
    a("""s_mov_b32 exec_lo, -1
         v_fma_f32 v16, -v46, v18, v16
         v_fma_f32 v17, -v47, v18, v17
         v_fma_f32 v18, -v46, v22, v20
         v_fma_f32 v19, -v47, v22, v21
         v_mul_f32 v16, v16, v44
         v_mul_f32 v17, v17, v45
         v_mul_f32 v18, v18, v44
         v_mul_f32 v19, v19, v45""")
    pack24(a, 16, "v90", 12)
    a(f"""buffer_store_dwordx4 v[16:19], v95, s[32:35], s73 offen sc1
          s_mov_b32 exec_hi, -1
        K_NOFFN:""")
    stamp(a, 6, 2)
    a(f"""s_cmp_lg_u32 s30, 1
          s_cbranch_scc1 K_NOFP
          s_setprio {OPT['fprio']}
          v_and_b32 v3, 16, v1
          v_lshrrev_b32 v3, 1, v3
          ds_read_b64 v[100:101], v3 offset:{SY + 96}
          v_and_b32 v7, 3, v1
          v_lshl_add_u32 v5, v7, 3, s3
          v_lshlrev_b32 v5, 1, v5               ; 2 * channel
          global_load_ushort v102, v5, s[54:55]
          v_lshrrev_b32 v106, 2, v1
          v_lshlrev_b32 v106, 11, v106
          v_lshl_add_u32 v106, v7, 4, v106
          s_lshl_b32 s61, s29, 6
          s_add_u32 s60, s77, s61
          s_add_u32 s61, s60, 0x8000
          s_waitcnt lgkmcnt(0)
          v_not_b32 v6, v100
          v_and_b32 v6, 0xffe, v6               ; 2 * row
          v_lshl_add_u32 v104, v7, 12, v6       ; y address
          v_lshl_add_u32 v107, v6, 10, v5
          global_load_ushort v103, v107, s[44:45]
          v_and_b32 v5, s31, v100
          v_ashrrev_i32 v3, 31, v5
          v_not_b32 v3, v3
          v_or_b32 v3, 0x80000000, v3
          v_xor_b32 v5, v5, v3
          v_and_b32 v5, s31, v5
          v_mul_f32 v105, s58, v5
          v_exp_f32 v105, -v105
          v_and_b32 v108, s31, v101
          v_lshlrev_b32 v101, 16, v101
          v_add_f32 v105, 1.0, v105
          v_rcp_f32 v105, v105
          v_rcp_f32 v109, v108
          v_fma_f32 v108, -v108, v109, 1.0
          v_fmac_f32 v109, v108, v109
          v_cvt_pk_bf16_f32 v105, 0, v105
          s_setprio 3
          s_branch K_FPD
        K_NOFP:
          {"s_sleep " + str(OPT["xsl"]) if OPT["xsl"] else ""}
        K_FPD:
          s_cmp_ge_u32 s29, 28
          s_cbranch_scc1 K_NOG2
          s_mov_b32 s83, {SPIN:#x}
          """)
    exl = "\n".join(f"buffer_load_dwordx4 v[{64+4*k}:{67+4*k}], v14, s[32:35], s{62+k} offen sc1" for k in range(4))
    WB = lambda n: (24, 28, 32, 36, 112, 116, 120, 124)[n]
    a(exl)
    a("s_waitcnt vmcnt(0)")
    lds_wait(a, "K_WW", 92, "v15", SY + 124, "v_cmp_gt_u32 vcc, 8, v92", OPT["hsl"])
    for n in range(8):
        a(f"""ds_read_b64_tr_b16 v[{WB(n)}:{WB(n)+1}], v9 offset:{8192*(n//2) + 8*(n%2)}
              ds_read_b64_tr_b16 v[{WB(n)+2}:{WB(n)+3}], v9 offset:{8192*(n//2) + 8*(n%2) + 1024}""")
        if n == 5: a("s_waitcnt lgkmcnt(8)")
    a(f"""s_branch K_P4B
        K_P4:
          s_sleep {OPT['rsl']}""")
    a(exl)
    a(f"""K_P4B:
          s_sub_u32 s83, s83, 1
          s_waitcnt vmcnt(0)
          v_bitop3_b32 v92, v67, v71, v90 bitop3:0x7e
          v_bitop3_b32 v80, v75, v79, v90 bitop3:0x7e
          s_cbranch_scc1 K_P4D
          v_or_b32 v92, v92, v80
          v_cmp_ne_u32 vcc, 0, v92
          s_cbranch_vccnz K_P4
        K_P4D:""")
    stamp(a, 7, 2)
    for k in range(4): a(f"v_perm_b32 v{67+4*k}, v{64+4*k}, v{65+4*k}, s15")
    for k in range(4): a(f"v_perm_b32 v{67+4*k}, v{67+4*k}, v{66+4*k}, s16")
    for r in range(8): a(f"v_add_f32 v{64+r}, v{64+r}, v{72+r}")
    for r in range(4): a(f"v_add_f32 v{64+r}, v{64+r}, v{68+r}")
    a(f"""v_permlane32_swap_b32 v64, v65
          v_permlane32_swap_b32 v66, v67
          v_add_f32 v64, v64, v65               ; lanes (tok, f): gate
          v_add_f32 v66, v66, v67               ; up
          v_cvt_pk_bf16_f32 v64, 0, v64
          v_cvt_pk_bf16_f32 v66, 0, v66
          v_mul_f32 v65, 0xbfb8aa3b, v64
          v_exp_f32 v65, v65
          v_add_f32 v65, 1.0, v65
          v_rcp_f32 v65, v65
          v_mul_f32 v65, v65, v64
          v_cvt_pk_bf16_f32 v65, 0, v65
          v_mul_f32 v65, v65, v66
          v_cvt_pk_bf16_f32 v65, v65, v65
          ds_write_b16 v13, v65
          s_mov_b64 exec, 1
          ds_add_u32 v15, v93 offset:{SY + 116}
          s_mov_b64 exec, -1""")
    lds_wait(a, "K_HW", 92, "v15", SY + 116, "v_cmp_gt_u32 vcc, 4, v92", 0)
    for k in range(4): a(f"ds_read_b128 v[{XA+4*k}:{XA+4*k+3}], v10 offset:{HB - XS + 64*k}")
    for n in range(8):
        k, t = n // 2, n % 2
        d = 16 + 4 * t
        if t == 0: a(f"s_waitcnt lgkmcnt({3 - k})")
        a(f"v_mfma_f32_16x16x32_bf16 v[{d}:{d+3}], v[{XA+4*k}:{XA+4*k+3}], v[{WB(n)}:{WB(n)+3}], {'0' if k == 0 else f'v[{d}:{d+3}]'}")
    a("""s_mov_b64 exec, 0xffff
         v_mov_b32 v18, v90
         v_mov_b32 v22, v90""")
    both_modes(a, "K_DS", """buffer_store_dwordx3 v[16:18], v8, s[32:35], s57 offen @
                             buffer_store_dwordx3 v[20:22], v8, s[32:35], s57 offen offset:256 @""")
    a("""s_mov_b64 exec, -1
       K_NOG2:""")
    stamp(a, 6, 0)
    dpl = """buffer_load_dwordx3 v[48:50], v106, s[32:35], s60 offen sc1
             s_mov_b32 exec_hi, 0x5ffff
             buffer_load_dwordx3 v[52:54], v106, s[32:35], s61 offen sc1
             s_mov_b32 exec_hi, -1"""
    a(f"""s_cmp_lg_u32 s30, 1
          s_cbranch_scc1 K_CDONE
          s_branch K_YAB
        K_YA:
          s_sleep 2
        K_YAB:
          ds_read_b128 v[32:35], v15 offset:{SY + 48}
          ds_read_u16 v40, v104 offset:{TB}
          s_waitcnt lgkmcnt(1)
          v_and_b32 v92, v32, v33
          v_bitop3_b32 v92, v92, v34, v35 bitop3:0x80
          v_cmp_ne_u32 vcc, 8, v92
          s_cbranch_vccnz K_YA
          v_mov_b32 v52, 0
          v_mov_b32 v53, 0
          v_mov_b32 v54, v90""")
    a(dpl)
    a(f"""s_mov_b32 s83, {SPIN:#x}
          s_waitcnt vmcnt(2) lgkmcnt(0)
          v_lshlrev_b32 v103, 16, v103
          v_lshlrev_b32 v102, 16, v102
          v_lshlrev_b32 v40, 16, v40
          v_sub_f32 v25, v103, v101
          v_cvt_pk_bf16_f32 v25, 0, v25
          v_mul_f32 v25, v25, v109
          v_cvt_pk_bf16_f32 v25, 0, v25         ; u
          v_mul_f32 v26, v25, v102
          v_cvt_pk_bf16_f32 v26, 0, v26
          v_add_f32 v26, v26, v40
          v_cvt_pk_bf16_f32 v26, 0, v26         ; s
          s_waitcnt vmcnt(0)
          s_branch K_DC
        K_DP:""")
    a(dpl)
    a(f"""s_sub_u32 s83, s83, 1
          s_waitcnt vmcnt(0)
          s_cbranch_scc1 K_DD
        K_DC:
          v_bitop3_b32 v92, v50, v54, v90 bitop3:0x7e
          v_cmp_ne_u32 vcc, 0, v92
          s_cbranch_vccnz K_DP
        K_DD:""")
    stamp(a, 7, 0)
    a("""v_pk_add_f32 v[48:49], v[48:49], v[52:53]
         v_permlane16_swap_b32 v48, v49
         v_add_f32 v48, v48, v49
         v_mov_b32 v49, v48
         v_permlane32_swap_b32 v48, v49
         v_add_f32 v48, v48, v49""")
    for mod in ("row_ror:4", "row_ror:8"):
        a(f"v_add_f32_dpp v48, v48, v48 {mod} row_mask:0xf bank_mask:0xf")
    a("""v_cvt_pk_bf16_f32 v48, 0, v48
         v_mul_f32 v20, v48, v105
         v_cvt_pk_bf16_f32 v20, 0, v20
         v_add_f32 v20, v20, v25
         v_cvt_pk_bf16_f32 v20, 0, v20
         v_mul_f32 v23, 0xbfb8aa3b, v20
         v_exp_f32 v23, v23
         v_add_f32 v23, 1.0, v23
         v_rcp_f32 v23, v23
         v_mul_f32 v23, v23, v20
         v_cvt_pk_bf16_f32 v23, 0, v23
         v_mul_f32 v23, v23, v26
         v_cvt_pk_bf16_f32 v23, 0, v23
         v_add_f32 v23, v23, v103
         v_cvt_pk_bf16_f32 v23, v23, v23
         s_mov_b64 exec, 0x000f000f
         global_store_short v107, v23, s[26:27]
       K_CDONE:""")
    stamp_flush(a, 8)

def sumw(a):
    a(f"""s_cmp_lg_u32 s30, 1
          s_cbranch_scc1 K_NOSW
          v_mov_b32 v56, 0""")
    for i in range(8): a(f"v_dot2c_f32_bf16 v56, 0x3f803f80, v{48+i}")
    wave_reduce(a, "v_add_f32", [56])
    a(f"""v_or_b32 v56, 1, v56
          s_mov_b32 exec_lo, 0
          s_mov_b32 exec_hi, 0x80000000
          ds_write_b32 {Z}, v56 offset:{SY + 4}
          s_mov_b64 exec, -1
        K_NOSW:""")

def k4():
    a = Asm()
    name = "recurrent_scan__ssm_conv_s4d__moe_arch_mod__prompt_kernel"
    a.raw(f".p2align 8\n.globl {name}\n.type {name},@function\n{name}:")
    a("""s_cmp_ge_u32 s2, 256
         s_cbranch_scc1 K_END""")
    if OPT["dbg"]:
        for i in range(80, 102): a(f"s_mov_b32 s{i}, 0")
    stamp(a, 0)
    a(f"""s_load_dwordx2 s[44:45], s[0:1], 0
          s_load_dwordx16 s[4:19], s[0:1], 8
          s_load_dwordx8 s[20:27], s[0:1], 72
          s_load_dwordx4 s[40:43], s[0:1], 104
          v_readfirstlane_b32 s30, v0
          v_and_b32 v1, 63, v0
          s_and_b32 s28, s2, 7
          s_lshr_b32 s29, s2, 3
          s_mov_b32 s31, 0xffff0000
          s_mov_b32 s58, {L2E_HI:#x}
          s_lshr_b32 s30, s30, 6
          s_cmp_ge_u32 s30, 8
          s_cbranch_scc1 K_C""")
    e_path(a)
    a.raw(".p2align 6")
    a("K_C:")
    c_path(a)
    a("""K_END:
         s_endpgm""")
    a.raw(".p2align 4\n.type K_BAND,@object\n.size K_BAND, 5120\nK_BAND:")
    for off, w in ((10, 4), (13, 2), (12, 8), (11, 6), (10, 6)):
        for lane in range(64):
            h = [0x3c00 if 0 <= (lane & 15) - 8 * (lane >> 4) + off - jj <= w else 0 for jj in range(8)]
            a.raw(".long " + ", ".join(f"{h[2*i] | h[2*i+1] << 16:#x}" for i in range(4)))
    return a.finish(), desc(name, 128, 102 if OPT["dbg"] else 96)

if __name__ == "__main__":
    for kv in sys.argv[2:]:
        k, v = kv.split("=")
        assert k in OPT, k
        OPT[k] = int(v) if v.lstrip("-").isdigit() else v.replace("+", " ")
    hdr = open("recurrent_scan__ssm_conv_s4d__moe_arch_mod__prompt.s.ref").read().split("\n")
    out = [l for l in hdr if l.startswith(";") and "@launch" not in l and "Override launch" not in l and "grid=ceil" not in l]
    out.append(f"; @launch grid=(256,1,1) block=(1024,1,1) lds={LDS}")
    out.append('.amdgcn_target "amdgcn-amd-amdhsa--gfx950"\n.text')
    b, d = k4()
    out += [b, '.section .rodata,"a"', d]
    open(sys.argv[1], "w").write("\n".join(out))
```

```python
import sys, os
sys.path.insert(0, os.path.dirname(os.path.abspath(__file__)))
import asmlib
from asmlib import Asm

WBYTES = 0 if any(x.startswith("exp=") and int(x[4:]) & 1 for x in sys.argv) else 1024 * 3584 * 2
WS_PS = 0x100000
WS_CI = 0x400000
WS_KM = 0x441000
WS_EX = 0x450000
WS_DP = 0x500000
WS_EP = 0x000000
STEP = 0x9e3779b9
WS_STAMP = 0x700000
WS_SIZE = 0x800000

OPT = dict(dbg=0, grp=0, w0=1, w1=0, w2=0, wdp=0, rsl=2, g1split=1, ncopy=3, tsl=0, uthr=8, wfirst=0, kearly=1, elate=0, kt=0, ku=0, usl=1, old=5, flate=12, lsl=0, xwsl=4, ugate=1,  mid=0, scal=1, lprio=2, wd0=2, wd1=8, csend=0, kprio=2, gwait=1, dsl=2, wsl=0, hp=0, hfly=1, hprio=3, gsl=1, hsl=1, xsl=8, clat=3, mt=1, cfly=12, fchk=-1, fstep=1, ywsl=6, kp="1:u,50:u,100:u,150:u", sprio=0, xpace=2, ysl=0, xfirst=1, wbat=8, klat=3, wfl="nt", xfl="", pace=0, slow=0, eprio=3, pprio=0, nprio=1, fprio=0, gprio=3, lean=0, ipf=1,
           psl=0, pt=0, isl=0, exp=0, early=1, cdone=8, outfl="", nsl=0)

L2E_HI, L2E_LO, LN2 = 0x3fb8aa3b, 0x32a57060, 0x3f317218
I2PI_LO = 0x31dc9c88
SY = 0
UA, UROW, UPAD = 768, 4640, 272
KG = UA + 4 * UROW
KGC = 9216
TB = (KG + 4 * KGC + 255) // 256 * 256
DELTA = 1986
R2B, R3B = 1120, 1632
BAND = TB + 16384
PRM = BAND + 5120
JUNK = PRM + 4096
WDN = KG
F_W = JUNK + 2048
XS = F_W + 65536
HB = XS + 1280
LDS = HB + 1280
KA = 76
TAGM = 0x00030003
SPIN = 0x20000

def stamp(a, i, group=None):
    if OPT["dbg"] and (group is None or group == OPT["grp"]):
        a(f"{'s_memtime' if OPT['dbg'] == 2 else 's_memrealtime'} s[{84+2*i}:{85+2*i}]")

def stamp_flush(a, add):
    if OPT["dbg"]:
        a(f"""s_waitcnt vmcnt(0)
              {'s_memtime' if OPT['dbg'] == 2 else 's_memrealtime'} s[100:101]
              s_mov_b64 exec, 1
              s_lshl_b32 s82, s2, 4
              s_add_u32 s82, s82, s30
              s_add_u32 s82, s82, {add}
              s_lshl_b32 s82, s82, 6
              s_add_u32 s82, s82, {WS_STAMP:#x}
              v_mov_b32 v2, 0
              s_waitcnt lgkmcnt(0)""")
        for i in range(9):
            a(f"v_mov_b32 v{4+i}, s{84+2*i}")
        a("""v_mov_b32 v13, s80
             v_mov_b32 v14, s81
             v_mov_b32 v15, s83""")
        for i in range(3):
            a(f"buffer_store_dwordx4 v[{4+4*i}:{7+4*i}], v2, s[32:35], s82 offen offset:{16*i}")
    a("s_endpgm")

def lds_wait(a, label, reg, addr, off, cond, sleep=1):
    a(f"""s_branch {label}B
        {label}:
          {"s_sleep " + str(sleep) if sleep else ""}
        {label}B:
          ds_read_b32 v{reg}, {addr} offset:{off}
          s_waitcnt lgkmcnt(0)
          {cond}
          s_cbranch_vccnz {label}""")

def both_modes(a, label, text, mode="s47"):
    a(f"""s_cmp_lg_u32 {mode}, 0
          s_cbranch_scc1 {label}_W""")
    a(text.replace("@", ""))
    a(f"""s_branch {label}_D
        {label}_W:""")
    a(text.replace("@", "sc1"))
    a(f"{label}_D:")

def transpose4(a, *bases):
    for b in bases:
        a(f"""v_permlane32_swap_b32 v{b}, v{b+2}
              v_permlane32_swap_b32 v{b+1}, v{b+3}""")
    for b in bases:
        a(f"""v_permlane16_swap_b32 v{b}, v{b+1}
              v_permlane16_swap_b32 v{b+2}, v{b+3}""")

def rows4(a, r):
    a(f"""v_permlane16_swap_b32 v{r}, v{r+1}
          v_permlane16_swap_b32 v{r+2}, v{r+3}
          v_add_f32 v{r}, v{r}, v{r+1}
          v_add_f32 v{r+2}, v{r+2}, v{r+3}
          v_permlane32_swap_b32 v{r}, v{r+2}
          v_add_f32 v{r}, v{r}, v{r+2}""")

def top2(a, k, t, s0, s1, m):
    a(f"v_mov_b32 v{t}, v{k}")
    wave_reduce(a, "v_max_u32", [t])
    a(f"""v_readlane_b32 s{s0}, v{t}, 63
          v_cmp_ne_u32 s[{m}:{m+1}], s{s0}, v{k}
          v_cndmask_b32 v{t}, 0, v{k}, s[{m}:{m+1}]""")
    wave_reduce(a, "v_max_u32", [t])
    a(f"v_readlane_b32 s{s1}, v{t}, 63")

def srd(a, d, lo, hi, size):
    a(f"""s_mov_b32 s{d}, s{lo}
          s_mov_b32 s{d+1}, s{hi}
          s_mov_b32 s{d+2}, {size:#x}
          s_mov_b32 s{d+3}, 0x00020000""")

def wave_reduce(a, op, regs):
    for mod in ("quad_perm:[1,0,3,2] row_mask:0xf", "quad_perm:[2,3,0,1] row_mask:0xf", "row_half_mirror row_mask:0xf",
                "row_mirror row_mask:0xf", "row_bcast:15 row_mask:0xa", "row_bcast:31 row_mask:0xc"):
        for r in regs:
            a(f"{op}_dpp v{r}, v{r}, v{r} {mod} bank_mask:0xf")

def desc(name, vgpr, sgpr):
    return f""".p2align 6
.amdhsa_kernel {name}
  .amdhsa_next_free_vgpr {vgpr}
  .amdhsa_next_free_sgpr {sgpr}
  .amdhsa_accum_offset {(vgpr + 3) // 4 * 4}
  .amdhsa_group_segment_fixed_size 0
  .amdhsa_kernarg_size 120
  .amdhsa_user_sgpr_count 2
  .amdhsa_user_sgpr_kernarg_segment_ptr 1
  .amdhsa_system_sgpr_workgroup_id_x 1
.end_amdhsa_kernel
"""

def exp_acc(a, d, x, t0, t1, sL2E, sL2ELO, sLN2):
    a(f"""v_mul_f32 v{t0}, s{sL2E}, v{x}
          v_fma_f32 v{t1}, v{x}, s{sL2E}, -v{t0}
          v_exp_f32 v{d}, v{t0}
          v_fmac_f32 v{t1}, s{sL2ELO}, v{x}
          v_mul_f32 v{t1}, s{sLN2}, v{t1}
          v_fmac_f32 v{d}, v{d}, v{t1}""")

def pair_sync(a, k, label):
    a(f"""v_mov_b32 v94, {k}
          ds_write_b32 v92, v94 offset:{SY + 64}
          s_branch {label}B
        {label}:
        {label}B:
          ds_read_b32 v94, v93 offset:{SY + 64}
          s_waitcnt lgkmcnt(0)
          v_cmp_gt_u32 vcc, {k}, v94
          s_cbranch_vccnz {label}""")
    stamp(a, 6, 1)
    for n in range(nC() - OPT["kt"] - OPT["ku"], nC() - OPT["ku"]): unit(a, n, UC)

def kgen_setup(a):
    a(f"""s_lshl_b32 s68, s52, 12
          s_add_u32 s68, s68, {TB}
          s_lshl_b32 s67, s53, 11
          s_add_u32 s67, s67, s68
          v_add_u32 v90, s67, v95
          ds_write_b128 v90, v[20:23]
          ds_write_b128 v90, v[20:23] offset:1024
          s_mov_b32 s67, {L2E_LO:#x}
          s_mov_b32 s71, {LN2:#x}
          s_lshl_b32 s61, s30, 2
          v_mov_b32 v92, s61
          s_xor_b32 s61, s61, 4
          v_mov_b32 v93, s61                    ; partner's
          ; scratch: role 1 wave uses [0,4608), role 0 wave [4608,9216) of the channel area
          s_mul_i32 s69, s52, {KGC}
          s_add_u32 s69, s69, {KG}
          s_xor_b32 s70, s53, 1
          s_mul_i32 s70, s70, 4608
          s_add_u32 s70, s70, s69
          s_sub_u32 m0, s70, 16384
          v_mul_u32_u24 v41, 288, v96
          v_lshl_add_u32 v41, v97, 4, v41
          v_add_u32 v41, s70, v41
          v_add_u32 v99, s69, v95""")

def near_table(a, tag):
    K0, K1, K2 = KA, KA + 4, KA + 8
    a(f"""
          ds_write_b128 v99, v[{K1}:{K1+3}] offset:5120
          ds_write_b128 v99, v[{K2}:{K2+3}] offset:6144
          """)
    pair_sync(a, 1, tag + "_PS1")
    a(f"""ds_read_b128 v[16:19], v99 offset:1024
          ds_read_b128 v[24:27], v99
          s_waitcnt lgkmcnt(1)
          v_pk_add_f32 v[{K1}:{K1+1}], v[{K1}:{K1+1}], v[16:17]
          v_pk_add_f32 v[{K1+2}:{K1+3}], v[{K1+2}:{K1+3}], v[18:19]
          s_waitcnt lgkmcnt(0)
          v_pk_add_f32 v[{K0}:{K0+1}], v[{K0}:{K0+1}], v[24:25]
          v_pk_add_f32 v[{K0+2}:{K0+3}], v[{K0+2}:{K0+3}], v[26:27]
          v_mov_b32_dpp v28, v{K1} row_shl:1 row_mask:0xf bank_mask:0xf
          v_writelane_b32 v28, 0, 33
          s_mov_b32 exec_hi, 3
          v_cndmask_b32 v29, v{K1}, v{K1+1}, s[72:73]
          v_cndmask_b32 v30, v{K1+1}, v{K1+2}, s[72:73]
          v_cndmask_b32 v28, v28, v{K1+3}, s[72:73]
          v_cvt_pk_f16_f32 v16, v28, v30
          v_cvt_pk_f16_f32 v17, v30, v30
          v_cvt_pk_f16_f32 v18, v29, v{K1}
          v_cvt_pk_f16_f32 v19, v{K1}, v{K1}
          v_cvt_pk_f16_f32 v20, v30, v29
          ds_write_b16 v124, v16
          ds_write2_b32 v126, v17, v20 offset0:0 offset1:1
          ds_write_b32 v126, v19 offset:8
          ds_write_b16 v124, v19 offset:14
          ds_write2_b32 v127, v16, v17 offset0:0 offset1:1
          ds_write2_b32 v127, v18, v19 offset0:2 offset1:3
          s_mov_b32 exec_hi, -1
          v_cvt_pk_f16_f32 v24, v{K0+3}, v{K0+2}
          v_cvt_pk_f16_f32 v25, v{K0+1}, v{K0}
          v_cvt_pk_f16_f32 v26, v{K0+2}, v{K0+1}
          ds_write_b64 v125, v[24:25]
          ds_write_b16 v125, v24 offset:{DELTA}
          ds_write_b32 v125, v26 offset:{DELTA+2}
          ds_write_b16_d16_hi v125, v25 offset:{DELTA+6}
          """)

def far_table(a, tag):
    K0, K1, K2 = KA, KA + 4, KA + 8
    a(f"""
          ds_write_b128 v99, v[{K0}:{K0+3}]
          ds_write_b128 v99, v[{K1}:{K1+3}] offset:1024
          s_nop 0""")
    pair_sync(a, 1, tag + "_PS2")
    a(f"""ds_read_b128 v[16:19], v99 offset:5120
          ds_read_b128 v[20:23], v99 offset:6144
          s_waitcnt lgkmcnt(1)
          v_pk_add_f32 v[{K1}:{K1+1}], v[{K1}:{K1+1}], v[16:17]
          v_pk_add_f32 v[{K1+2}:{K1+3}], v[{K1+2}:{K1+3}], v[18:19]
          s_waitcnt lgkmcnt(0)
          v_pk_add_f32 v[{K2}:{K2+1}], v[{K2}:{K2+1}], v[20:21]
          v_pk_add_f32 v[{K2+2}:{K2+3}], v[{K2+2}:{K2+3}], v[22:23]
          v_cvt_pk_f16_f32 v16, v{K1}, v{K1+1}
          v_cvt_pk_f16_f32 v17, v{K1+2}, v{K1+3}
          v_cvt_pk_f16_f32 v18, v{K2}, v{K2+1}
          v_cvt_pk_f16_f32 v19, v{K2+2}, v{K2+3}
          v_cvt_pk_f16_f32 v89, v{K2}, v{K2}
          s_mov_b32 exec_lo, 0
          ds_write_b16 v125, v17
          ds_write_b16 v125, v17 offset:{DELTA}
          ds_write_b16_d16_hi v124, v17
          ds_write_b16_d16_hi v124, v17 offset:{DELTA}
          s_mov_b32 exec_hi, -4
          ds_write_b16 v125, v16 offset:16
          ds_write_b16 v125, v16 offset:{DELTA+16}
          ds_write_b16_d16_hi v124, v16 offset:16
          ds_write_b16_d16_hi v124, v16 offset:{DELTA+16}
          s_mov_b32 exec_hi, 1
          s_mov_b32 exec_lo, -2
          ds_write_b16 v126, v18 offset:48
          ds_write_b16 v126, v18 offset:{DELTA+48}
          s_mov_b32 exec_hi, 0
          s_mov_b32 exec_lo, -1
          ds_write_b16_d16_hi v126, v18 offset:32
          ds_write_b16_d16_hi v126, v18 offset:{DELTA+32}
          ds_write_b16 v126, v19 offset:16
          ds_write_b16 v126, v19 offset:{DELTA+16}
          ds_write_b16_d16_hi v126, v19
          ds_write_b16_d16_hi v126, v19 offset:{DELTA}
          s_mov_b64 exec, -1
          """)

class Pipe:
    def __init__(self, a, maxfly=12):
        self.a = a; self.ops = []; self.steps = []; self.maxfly = maxfly
    def load(self, text, gate=-1, urgent=False):
        self.ops.append([text, gate, urgent]); return len(self.ops) - 1
    def step(self, text, need=()):
        self.steps.append((text, list(need))); return len(self.steps) - 1
    def last(self):
        return len(self.steps) - 1
    def run(self, per_step=99):
        a = self.a; seq = {}; done = [0]; pend = list(range(len(self.ops)))
        def issue(n):
            if len(seq) - done[0] >= 15:
                a("s_waitcnt lgkmcnt(8)"); done[0] = len(seq) - 8
            a(self.ops[n][0]); seq[n] = len(seq); pend.remove(n)
        for i, (text, need) in enumerate(self.steps + [("", [])]):
            for n in [n for n in pend if self.ops[n][2] and self.ops[n][1] < i]: issue(n)
            k = 0
            for n in [n for n in pend if not self.ops[n][2]]:
                if self.ops[n][1] >= i or len(seq) - done[0] >= self.maxfly or k >= per_step: break
                issue(n); k += 1
            for n in need:
                for m in [m for m in pend if m <= n and not self.ops[m][2]]:
                    assert self.ops[m][1] < i, "load gated behind its own consumer"
                    issue(m)
            if need:
                top = max(seq[n] for n in need)
                if done[0] <= top:
                    a(f"s_waitcnt lgkmcnt({len(seq) - top - 1})"); done[0] = top + 1
            a(text)
        assert not pend

def kgen_main(a):
    a("""s_waitcnt lgkmcnt(5)
         v_mul_f32 v2, 0x3fb8aa3b, v2
         s_waitcnt lgkmcnt(4)
         v_mul_f32 v118, v3, v90
         v_exp_f32 v116, v2
         v_mul_f32 v119, 0x43000000, v118
         v_fract_f32 v118, v118
         v_fract_f32 v119, v119
         s_waitcnt lgkmcnt(2)
         v_and_b32 v6, 0x7fff7fff, v6
         v_and_b32 v7, 0x7fff7fff, v7
         v_cvt_pk_bf16_f32 v116, v116, v116
         v_pk_max_u16 v6, v6, v7
         v_and_b32 v116, 0xffff0000, v116
         v_pk_max_u16 v6, v6, v6 op_sel:[0,1] op_sel_hi:[1,0]
         v_mul_f32 v116, v116, v91
         v_sin_f32 v26, v119
         v_mul_f32 v120, 0x43000000, v116
         v_max_u32_dpp v6, v6, v6 quad_perm:[1,0,3,2] row_mask:0xf bank_mask:0xf
         v_exp_f32 v116, -v116
         v_cos_f32 v27, v119
         v_max_u32_dpp v6, v6, v6 quad_perm:[2,3,0,1] row_mask:0xf bank_mask:0xf
         v_cos_f32 v119, v118
         v_sin_f32 v118, v118
         v_max_u32_dpp v6, v6, v6 row_half_mirror row_mask:0xf bank_mask:0xf
         v_exp_f32 v120, -v120
         v_mul_f32 v119, v119, v116
         v_max_u32_dpp v6, v6, v6 row_mirror row_mask:0xf bank_mask:0xf
         v_mul_f32 v118, v118, v116
         v_mul_f32 v26, v26, v120
         v_max_u32_dpp v6, v6, v6 row_bcast:15 row_mask:0xa bank_mask:0xf
         v_mul_f32 v27, v27, v120
         v_add_f32 v117, v117, v117
         v_max_u32_dpp v6, v6, v6 row_bcast:31 row_mask:0xc bank_mask:0xf
         v_pk_mul_f32 v[24:25], v[118:119], v[118:119] op_sel:[1,0] op_sel_hi:[1,1]
         v_mul_f32 v6, v6, v117
         v_pk_fma_f32 v[24:25], v[118:119], v[118:119], v[24:25] op_sel:[1,0,0] op_sel_hi:[0,0,1] neg_hi:[1,0,0]
         v_readlane_b32 s78, v6, 63
         s_lshr_b32 s78, s78, 23
         s_max_u32 s78, s78, 33
         s_min_u32 s78, s78, 233
         s_sub_u32 s70, s78, 6
         s_sub_u32 s78, 260, s78
         s_lshl_b32 s70, s70, 23                ; 1 / scale
         s_lshl_b32 s78, s78, 23
         v_mul_f32 v117, s78, v117
         s_waitcnt lgkmcnt(0)
         v_mul_f32 v33, v4, v117
         v_mul_f32 v32, v5, v117""")
    stamp(a, 4, 1)
    BF, AF = 44, 60
    pool2 = [120, 122, 16, 18, 20, 22, 28, 30, 34, 36, 38]
    pool1 = list(range(100, 118)) + [2, 3, 4, 5, 6, 7, 40, 43, 90, 91]
    ops = []
    val = {"E1": 118, "E2": 24, "V1": 26, "G0": 32}
    def cm(d, x, y): ops.append(("mul", d, (x, y))); ops.append(("fma", d, (x, y, d + "'")))
    def ch(d, x, y): ops.append(("hmul", d, (x, y))); ops.append(("hfma", d, (x, y, d + "'")))
    def cv(x, neg): ops.append(("cvn" if neg else "cvt", x.lower(), (x,)))
    cm("E4", "E2", "E2"); cm("E3", "E2", "E1"); cm("Y1", "E4", "E4"); cm("Y2", "Y1", "Y1"); cm("Y4", "Y2", "Y2"); cm("Y8", "Y4", "Y4")
    cm("Y3", "Y2", "Y1"); cm("Y12", "Y8", "Y4")
    cm("V2", "V1", "V1"); cm("V4", "V2", "V2"); cm("V3", "V2", "V1"); cm("G1", "G0", "V1")
    for i in (4, 8, 12, 16): cm(f"G{i}", f"G{i-4}", "V4")
    for n in (1, 2, 3, 4): cv(f"E{n}", True)
    for n in (1, 2, 3, 4, 8, 12): cv(f"Y{n}", False)
    for n in (1, 2, 3): cv(f"V{n}", True)
    for n in (0, 1, 4, 8, 12, 16): cv(f"G{n}", True)
    for n in (5, 6, 7): ch(f"e{n}", "e4", f"e{n-4}")
    for n in range(5, 16):
        if n % 4: ch(f"y{n}", f"y{n & 12}", f"y{n & 3}")
    for n in range(2, 16):
        if n % 4: ch(f"g{n}", f"g{n & 12}", f"v{n & 3}")
    groups = [[(f"y{jj}", jj) for jj in (1, 2, 4, 3, 8, 5, 6, 7, 12, 9, 10, 11, 13, 14, 15)]]
    plan = [[(0, range(8)), (1, range(8))],
            [(2, (0, 2, 4, 6)), (3, (0, 2, 4, 6)), (4, (0, 4)), (5, (0, 4)), (6, (0, 4)), (7, (0, 4))],
            [(i2, (0,)) for i2 in range(8, 17)]]
    for tile in range(3):
        g = []
        for i2, ks in plan[tile]:
            for k in ks:
                if k:
                    ch(f"x{i2}_{k}", f"g{i2}", f"e{k}")
                    g.append((f"x{i2}_{k}", len(g)))
                else:
                    g.append((f"g{i2}", len(g)))
        groups.append(g)
    if OPT["xfirst"]: groups[0], groups[1] = groups[1], groups[0]
    flat = [r for g in groups for r in g]
    prod = {d: list(srcs[:2]) for kind, d, srcs in ops if kind != "mul" and kind != "hmul"}
    prio = {}
    def mark(v, pr):
        if prio.get(v, 1 << 30) <= pr: return
        prio[v] = pr
        for x in prod.get(v, []): mark(x, pr)
    for n, (v, _) in enumerate(flat): mark(v, n)
    for v in ("E4", "Y1", "Y2", "Y4", "Y8"): prio[v] = -1
    uses = {}
    for kind, d, srcs in ops:
        for x in srcs[:2]: uses[x] = uses.get(x, 0) + 1
    for v, _ in flat: uses[v] = uses.get(v, 0) + 1
    ready_at = {v: 0 for v in val}
    LAT = OPT["klat"]
    slot = [0]
    todo = paced(); nu = [OPT["w0"]]
    def emit(t):
        if not (OPT["exp"] & 128 and t.startswith(("v_pk", "v_cvt", "ds_write"))): a(t)
        slot[0] += 1
        while todo and todo[0][0] <= slot[0]:
            u = todo.pop(0)[1]
            if u[0] == "t":
                a(f"""s_mov_b32 m0, {JUNK}
                      buffer_load_dwordx4 v94, s[20:23], s{38 + int(u[1])} offen sc1 lds""")
            else:
                unit(a, nu[0], UC); nu[0] += 1
            a("s_mov_b32 m0, s37")
    def release(x):
        uses[x] -= 1
        if uses[x] == 0: (pool2 if x[0].isupper() else pool1).append(val[x])
    pend = list(ops)
    gi = 0; left = list(groups[0])
    mf = []; have = set()
    tile_of = {0: 0, 2: 1, 3: 2} if OPT["xfirst"] else {1: 0, 2: 1, 3: 2}
    yg = 1 if OPT["xfirst"] else 0
    def mfma(tile):
        for k in range(4):
            c = "0" if k == 0 else f"v[{KA+4*tile}:{KA+4*tile+3}]"
            emit(f"v_mfma_f32_16x16x32_f16 v[{KA+4*tile}:{KA+4*tile+3}], v[{AF+4*k}:{AF+4*k+3}], v[{BF+4*k}:{BF+4*k+3}], {c}")
    lds_after = [0]; lastw = [-9]
    if yg == 0: emit("ds_write_addtid_b32 v42 offset:16384")
    while pend or gi < len(groups) or mf:
        did = False
        rdy = [r for r in left if r[0] in ready_at and ready_at[r[0]] <= slot[0]]
        if rdy and (len(rdy) >= OPT["wbat"] or len(rdy) == len(left)):
            for v, row in rdy:
                left.remove((v, row))
                emit(f"ds_write_addtid_b32 v{val[v]} offset:{16384 + 288*row}"); lds_after[0] += 1; release(v)
            did = True
        elif gi < len(groups) and not left and (gi == yg or not mf):
            base = BF if gi == yg else AF
            for k in range(4):
                emit(f"ds_read_b128 v[{base+4*k}:{base+4*k+3}], v41 offset:{64*k}")
            lds_after[0] = 0
            if gi == yg: have.add("y"); mf = [(t, slot[0]) for t, _ in mf]
            else: mf.append((tile_of[gi], slot[0]))
            gi += 1; left = list(groups[gi]) if gi < len(groups) else []
            if gi == yg: emit("ds_write_addtid_b32 v42 offset:16384"); lds_after[0] += 1
            did = True
        elif mf and "y" in have and (slot[0] - mf[0][1] >= 24 or (not pend and gi >= len(groups)) or (gi < len(groups) and not left)):
            emit(f"s_waitcnt lgkmcnt({min(lds_after[0], 15)})")
            mfma(mf.pop(0)[0]); did = True
        if not did:
            best = None
            for n, (kind, d, srcs) in enumerate(pend):
                room = pool2 if kind == "mul" else pool1 if kind in ("hmul", "cvt", "cvn") else True
                if all(x in ready_at and ready_at[x] <= slot[0] for x in srcs) and room:
                    key = (prio[d], 0 if kind.endswith("fma") else 1)
                    if best is None or key < best[0]: best = (key, n)
            if best is not None:
                kind, d, srcs = pend.pop(best[1])
                x = val[srcs[0]]; y = val[srcs[1]] if len(srcs) > 1 else None
                if kind == "mul":
                    val[d] = r = pool2.pop(0)
                    emit(f"v_pk_mul_f32 v[{r}:{r+1}], v[{x}:{x+1}], v[{y}:{y+1}] op_sel:[1,0] op_sel_hi:[1,1]")
                elif kind == "fma":
                    r = val[d]
                    emit(f"v_pk_fma_f32 v[{r}:{r+1}], v[{y}:{y+1}], v[{x}:{x+1}], v[{r}:{r+1}] op_sel:[1,0,0] op_sel_hi:[0,0,1] neg_hi:[1,0,0]")
                elif kind == "hmul":
                    val[d] = r = pool1.pop(0)
                    emit(f"v_pk_mul_f16 v{r}, v{x}, v{y} op_sel:[0,0] op_sel_hi:[0,1]")
                elif kind == "hfma":
                    r = val[d]
                    emit(f"v_pk_fma_f16 v{r}, v{x}, v{y}, v{r} op_sel:[1,1,0] op_sel_hi:[1,0,1] neg_lo:[1,0,0]")
                else:
                    val[d] = r = pool1.pop(0)
                    emit(f"v_cvt_pk_f16_f32 v{r}, v{x+1}, {'-' if kind == 'cvn' else ''}v{x}")
                ready_at[d + "'" if kind.endswith("mul") else d] = slot[0] + LAT - 1
                for xx in srcs[:2]: release(xx)
                did = True
        if not did:
            slot[0] += 1
    assert not todo, slot[0]

class Sched:
    CAP = 2
    def __init__(self, a, old=5, maxfly=12):
        self.a = a; self.m = []; self.it = []; self.old = old; self.maxfly = maxfly
    def mfma(self, text, need=()):
        self.m.append((text, [x for x in need if x is not None])); return len(self.m) - 1
    def item(self, text, gate=-1, need=(), cost=1, lds=False, pri=None):
        self.it.append(dict(text=text, gate=gate, need=[x for x in need if x is not None], cost=cost, lds=lds, pri=pri, at=None, seq=None))
        return len(self.it) - 1
    def run(self):
        a, it = self.a, self.it
        dl = [len(self.m) + 1] * len(it)
        for g, (_, need) in enumerate(self.m):
            for x in need: dl[x] = min(dl[x], g)
        for n in reversed(range(len(it))):
            if it[n]["pri"] is not None: dl[n] = min(dl[n], it[n]["pri"])
            for x in it[n]["need"] + ([it[n]["issued"]] if "issued" in it[n] else []):
                dl[x] = min(dl[x], dl[n] - (self.old + 1 if it[n]["lds"] and it[n]["cost"] == 1 else 0))
        lead = lambda n: dl[n] - (self.old + 1 if it[n]["lds"] else 1)
        issued = []; done = [0]; self.over = 0
        def wait_for(xs, g):
            top = max([it[x]["seq"] for x in xs if it[x]["lds"]], default=-1)
            if top < done[0]: return 0
            while top + 1 < len(issued) and it[issued[top + 1]]["at"] <= g - self.old: top += 1
            a(f"s_waitcnt lgkmcnt({len(issued) - top - 1})"); done[0] = top + 1
            return 1
        def needs_wait(xs): return any(it[x]["lds"] and it[x]["seq"] >= done[0] for x in xs)
        def emit(n, g):
            c = wait_for(it[n]["need"], g) if not it[n]["lds"] or it[n]["cost"] > 1 or True else 0
            if it[n]["lds"]:
                if len(issued) - done[0] >= 15:
                    a("s_waitcnt lgkmcnt(10)"); done[0] = len(issued) - 10; c += 1
                it[n]["seq"] = len(issued); issued.append(n)
            a(it[n]["text"]); it[n]["at"] = g
            return c + it[n]["cost"]
        def force(n, g):
            c = 0
            if it[n]["at"] is None:
                if "issued" in it[n]: c += force(it[n]["issued"], g)
                for x in it[n]["need"]: c += force(x, g)
                c += emit(n, g)
            return c
        for g in range(len(self.m) + 1):
            need = self.m[g][1] if g < len(self.m) else range(len(it))
            used = sum(force(x, g) for x in need)
            room = (self.CAP if g else 8) - used - (1 if needs_wait(need) else 0)
            while room > 0:
                c = [n for n in range(len(it)) if it[n]["at"] is None and it[n]["gate"] < g and ("issued" not in it[n] or it[it[n]["issued"]]["at"] is not None)
                     and all(it[x]["at"] is not None and (not it[x]["lds"] or it[x]["at"] <= g - self.old or it[x]["seq"] < done[0]) for x in it[n]["need"])
                     and it[n]["cost"] + needs_wait(it[n]["need"]) <= room and not (it[n]["lds"] and len(issued) - done[0] >= self.maxfly)]
                if not c: break
                room -= emit(min(c, key=lambda n: (lead(n), n)), g)
            if room < 0 and 0 < g < len(self.m): self.over -= room
            if g < len(self.m):
                wait_for(need, g)
                a(self.m[g][0] if not OPT["exp"] & 2 else "")

def conv_sync(a, label):
    a(f"""v_mov_b32 v6, 0
          v_mov_b32 v7, 1
          s_waitcnt vmcnt(0)
          s_mov_b64 exec, 1
          ds_add_u32 v6, v7 offset:{SY + 112}
          s_mov_b64 exec, -1""")
    stamp(a, 3)
    lds_wait(a, label, 7, "v6", SY + 16, "v_cmp_gt_u32 vcc, 8, v7")
    stamp(a, 4, 0); stamp(a, 4, 2)

def conv(a):
    ACC = lambda j: 16 + 4 * j
    TBUF, T16 = [96, 104], 92
    UN = [112, 116, 120, 124, 2]
    BN, MB = [88, 92, 16, 20], 2
    UF_ = [112, 116, 120, 124]
    W = [96, 104]
    types = [((0, 1), (-24, -24), (R2B + 0, R2B + 384), 79, (2, 3, 4), 6, (48, 52, 56)),
             ((1, 0), (-16, -16), (R2B + 128, R2B + 256), 79, (2, 3, 4), 6, (60, 64, 68)),
             ((2, 3), (-24, -16), (R3B, R3B + 160), 127, (4, 5, 6, 7), 4, (72, 76, 80, 84))]
    a(f"""v_mov_b32 v8, s70""")
    def tl(dst, s):
        base, off = (10, 16 * (16 - s)) if s >= 8 else (11, 16 * (8 - s))
        return [f"ds_read2_b32 v[{dst}:{dst+1}], v{base} offset0:{off} offset1:{off+1}",
                f"ds_read2_b32 v[{dst+2}:{dst+3}], v{base} offset0:{off+2} offset1:{off+3}"]
    for dst, s in ((96, 0), (100, 8), (T16, 16), (104, 1), (108, 9)):
        for t in tl(dst, s): a(t)
    far_loads = []
    for bands, bases, tbls, X, deltas, njp, TF in types:
        for di, D in enumerate(deltas):
            for i in range(2):
                imm = tbls[i] + 2 * (X - 16 * D) - 30 - R2B
                assert imm % 4 == 0 and 0 <= imm <= 1016
                far_loads.append((TF[di], f"ds_read2_b32 v[{TF[di]+2*i}:{TF[di]+2*i+1}], v14 offset0:{imm//4} offset1:{imm//4 + 1}"))
    for i in range(2): far_loads.append((BN[i], f"ds_read_b128 v[{BN[i]}:{BN[i]+3}], v13 offset:{1024*i}"))
    ld = {}
    if OPT["fchk"] < 0:
        lds_wait(a, "K_FW", 6, "v15", SY + 640, "v_cmp_eq_u32 vcc, 0, v6")
        a("v_readfirstlane_b32 s71, v6")
        for n, (r, t) in enumerate(far_loads[:-2]):
            a(t); ld[r] = None
            if n == 10: a("s_waitcnt lgkmcnt(4)")
        far_loads = far_loads[-2:]
    if OPT["csend"]:
        assert OPT["fchk"] < 0
        a("s_add_u32 s62, s52, 4")
        inbox(a, 0, 14, 6, 72, 61, "s62", 4096)
        srd(a, 20, 26, 27, 0x400000)
    a(f"s_setprio {OPT['nprio']}")
    conv_sync(a, "K_W1N")
    asmlib.MFMA_TIME = bool(OPT["mt"])
    S = Sched(a, OPT["old"], OPT["cfly"])
    started = set(); free = {}; fneed = {}
    def load(text, reg):
        return S.item(text, free.get(reg, -1), fneed.pop(reg, ()), lds=True)
    def accum(j, A, B, need=()):
        c = f"v[{ACC(j)}:{ACC(j)+3}]" if j in started else "0"
        started.add(j)
        return S.mfma(f"v_mfma_f32_16x16x32_f16 v[{ACC(j)}:{ACC(j)+3}], v[{A}:{A+3}], v[{B}:{B+3}], {c}", need)
    prev = []
    def finish(j, last):
        r = ACC(j); p = last + OPT["flate"]
        m = [S.item(f"v_mul_f32 v{r+k}, v{r+k}, v8", last + 3, pri=p) for k in range(4)]
        c0 = S.item(f"v_cvt_pk_bf16_f32 v{r}, v{r}, v{r+1}", -1, m, pri=p)
        c1 = S.item(f"v_cvt_pk_bf16_f32 v{r+1}, v{r+2}, v{r+3}", -1, [c0], pri=p)
        w = S.item(f"ds_write_b64 v9, v[{r}:{r+1}] offset:{512*j}", -1, [c1], cost=2, lds=True, pri=p)
        prev.append(w); fneed[r] = [mark(w)]
        if j % 4 == 3:
            mv = S.item(f"v_mov_b32 v7, {j + 1}", last, pri=p)
            S.item(f"ds_write_b32 v15, v7 offset:{SY + 48}", -1, [mv] + [mark(x) for x in prev], cost=2, lds=True, pri=p)
    def mark(w):
        n = S.item("", -1, [], cost=0); S.it[n]["issued"] = w
        return n
    nu = 0; tid = {0: [None, None], 1: [None, None]}
    for sl in range(8):
        tb = TBUF[sl % 2]
        if 1 <= sl <= 6:
            nb = TBUF[(sl + 1) % 2]
            tid[sl + 1] = [[load(t, nb) for t in tl(nb + 4 * h, sl + 1 + 8 * h)] for h in range(2)]
        if sl == 1:
            for r, t in far_loads: ld[r] = S.item(t, len(S.m) - 1, lds=True)
        for o in range(8):
            ub = UN[nu % len(UN)]; nu += 1
            ul = load(f"ds_read_b128 v[{ub}:{ub+3}], v12 offset:{2*(UPAD - 16 + 256*o - 32*sl)}", ub)
            last = free[ub] = accum(o, tb, ub, (tid[sl][0] or []) + [ul])
            if o + 1 <= 7: free[ub] = accum(o + 1, tb + 4, ub, tid[sl][1] or [])
            if sl == 0 and o + 2 <= 7: free[ub] = accum(o + 2, T16, ub)
            if sl == 7 and o < 2: finish(o, last)
        free[tb] = len(S.m) - 1
    ld[MB] = load(f"ds_read_b128 v[{MB}:{MB+3}], v13 offset:4096", MB)
    mb = [S.item(f"v_pk_mul_f16 v{MB+k}, v{MB+k}, s71 op_sel_hi:[1,0]", -1, [ld[MB]]) for k in range(4)]
    frag = {}; nf = [0]; cv = {}
    def uload(base):
        if base not in frag:
            r = UF_[nf[0] % len(UF_)]; nf[0] += 1
            frag[base] = (r, load(f"ds_read_b128 v[{r}:{r+3}], v12 offset:{2*(UPAD + base)}", r))
        return frag[base]
    items = [(ti, jp) for jp in range(6) for ti in (0, 2, 1) if jp < types[ti][5]]
    def window(n, i):
        ti, jp = items[n]
        bands, bases = types[ti][:2]
        w, d = W[n % 2] + 4 * i, W[n % 2] + 2 * i
        r, lid = uload(256 * jp + bases[i])
        b = BN[bands[i]]
        if b not in ld: ld[b] = load(f"ds_read_b128 v[{b}:{b+3}], v13 offset:{1024*bands[i]}", b)
        free[r] = g = S.mfma(f"v_mfma_f32_16x16x32_f16 v[{w}:{w+3}], v[{r}:{r+3}], v[{b}:{b+3}], 0", [lid, ld[b]])
        c0 = S.item(f"v_cvt_pk_f16_f32 v{d}, v{w}, v{w+1}", g + OPT["clat"], cv.get(n, []))
        cv[n] = [S.item(f"v_cvt_pk_f16_f32 v{d+1}, v{w+2}, v{w+3}", -1, [c0])]
    window(0, 0); window(0, 1)
    for n, (ti, jp) in enumerate(items):
        bands, bases, tbls, X, deltas, njp, TF = types[ti]
        if ti == 1 and jp < 5:
            r, lid = uload(256 * (jp + 3) - 1032)
            free[r] = accum(jp + 3, MB, r, [lid] + mb)
        if n + 1 < len(items):
            window(n + 1, 0); window(n + 1, 1)
        for di, D in enumerate(deltas):
            if jp + D <= 7:
                g = accum(jp + D, W[n % 2], TF[di], cv[n] + [ld[TF[di]]])
                if ti == 1 and di == 0: finish(jp + 2, g)
    S.run()
    if OPT["dbg"]: print("conv: slots over capacity", S.over, file=sys.stderr)
    asmlib.MFMA_TIME = False
    stamp(a, 5, 0); stamp(a, 5, 2)
    if OPT["csend"]:
        a(f"""s_setprio 3
              ds_read_b32 v5, v6 offset:{SY + 8}
              v_mov_b32 v4, {TAGM:#x}
            K_CS:
              ds_read_b128 v[8:11], v6 offset:{SY + 48}
              ds_read_b128 v[16:19], v14 offset:{TB}
              ds_read_b128 v[20:23], v14 offset:{TB + 256}
              s_waitcnt lgkmcnt(2)
              v_and_b32 v8, v8, v9
              v_bitop3_b32 v8, v8, v10, v11 bitop3:0x80
              v_readfirstlane_b32 s47, v5
          s_sub_u32 s47, s47, 1
              v_cmp_ne_u32 vcc, 8, v8
              s_cbranch_vccnz K_CS
              s_waitcnt lgkmcnt(0)
              v_bitop3_b32 v7, v16, v17, v4 bitop3:0xa2
              v_bitop3_b32 v8, v20, v21, v4 bitop3:0xa2
              v_cmp_eq_u32 vcc, 0, v7
              v_cmp_eq_u32 s[64:65], 0, v8
              v_addc_co_u32 v16, vcc, 0, v16, vcc
              v_addc_co_u32 v20, vcc, 0, v20, s[64:65]""")
        both_modes(a, "K_CY", """buffer_store_dwordx4 v[16:19], v0, s[20:23], s72 offen @
                                 buffer_store_dwordx4 v[20:23], v0, s[20:23], s73 offen @""")
        stamp(a, 6, 0)
    stamp_flush(a, 8)

PX, F, U, WD, AF, BF = 8, 32, 48, 80, 100, 64
Z, ONE = "v126", "v127"

UE = ((24, 25), 64, 12, 16)
UC = ((88, 98), 4, 16, 36)
def unit(a, n, R=UE):
    va, sd, so, sm = R
    k, mat = n // 2, n % 2
    a(f"""s_add_u32 m0, s{sm}, {mat * 32768 + k * 8192}
          buffer_load_dwordx4 v{va[0]}, s[{sd+4*mat}:{sd+3+4*mat}], s{so+k} offen {OPT['wfl']} lds""")

def unit_setup(a, R, vg, vc, vt):
    (v0, v1), sd, so, sm = R
    srd(a, sd, 20, 21, WBYTES); srd(a, sd + 4, 22, 23, WBYTES)
    a(f"""s_cmp_ge_u32 s29, 28                  ; no FFN tile: empty descriptors
          s_cselect_b32 s{sd+2}, 0, s{sd+2}
          s_cselect_b32 s{sd+6}, 0, s{sd+6}
          s_and_b32 s{so}, s30, 2
          s_lshl_b32 s{so}, s{so}, 2
          v_lshl_or_b32 v{v0}, v{vg}, 1, s{so}
          v_xor_b32 v{v0}, v{v0}, v{vc}
          v_mul_u32_u24 v{vt}, 7168, v{vg}
          v_lshl_add_u32 v{v0}, v{v0}, 4, v{vt}
          s_lshl_b32 s{so}, s28, 5
          s_add_u32 s{so}, s{so}, s30
          s_mul_i32 s{so}, s{so}, {4 * 7168}
          s_lshl_b32 s{so+1}, s29, 8
          s_add_u32 s{so}, s{so}, s{so+1}
          s_add_u32 s{so+1}, s{so}, {32 * 7168}
          s_add_u32 s{so+2}, s{so}, {64 * 7168}
          s_add_u32 s{so+3}, s{so}, {96 * 7168}
          s_lshl_b32 s{sm}, s30, 10
          s_add_u32 s{sm}, s{sm}, {F_W}""")

def paced():
    if not OPT["kp"]: return []
    return [(int(x.split(":")[0]), x.split(":")[1]) for x in str(OPT["kp"]).split(",")]
def nC():
    return OPT["w0"] + sum(1 for _, u in paced() if u[0] != "t") + OPT["kt"] + OPT["ku"]

def first_channel(a, d, t):
    a(f"""s_lshr_b32 s{d}, s29, 3
          s_lshl_b32 s{d}, s{d}, 5
          s_and_b32 s{t}, s29, 7
          s_add_u32 s{d}, s{d}, s{t}
          s_lshl_b32 s{t}, s28, 7
          s_add_u32 s{d}, s{d}, s{t}""")

def unpk(t):
    import re
    m = re.match(r"v_pk_(\w+)_f32 (.*?)(?: (op_sel_hi|neg_lo).*)?$", t.strip())
    op, args = m.group(1), [x.strip() for x in m.group(2).split(",")]
    bc = "op_sel_hi:[1,0]" in t; neg = "neg_lo:[0,1]" in t
    out = []
    for h in (1, 0):
        r = []
        for n, x in enumerate(args):
            mm = re.match(r"([vs])\[(\d+):", x)
            r.append(x if not mm else "0x3fb8aa3b" if mm.group(1) == "s" else f"v{int(mm.group(2)) + (0 if bc and n == 2 else h)}")
        if not r[2].startswith("v"): r[1], r[2] = r[2], r[1]
        out.append(f"v_{'sub' if neg else op}_f32 " + ", ".join(r))
    return "\n".join(out)

def operands(a0, es, scalar=0):
    if OPT["exp"] & 256: return
    a = a0 if not scalar else lambda t: a0("\n".join(unpk(l) if l.strip().startswith("v_pk_") else l for l in t.split("\n")))
    T = lambda e: 8 + 2 * (e % 4)
    T2 = lambda e: 100 + 2 * (e % 4)
    p = lambda r: f"v[{r}:{r+1}]"
    for e in es: a(f"v_pk_mul_f32 {p(T(e))}, {p(U+2*e)}, s[58:59] op_sel_hi:[1,0]")
    for e in es:
        a(f"""v_exp_f32 v{T(e)}, -v{T(e)}
              {"v_and_b32" if e % 2 else "v_lshlrev_b32"} v{T2(e)}, {"0xffff0000" if e % 2 else "16"}, v{20 + e//2}
              v_exp_f32 v{T(e)+1}, -v{T(e)+1}
              v_pk_add_f32 {p(F+2*e)}, v[26:27], {p(F+2*e)} neg_lo:[0,1] neg_hi:[0,1]""")
    for e in es: a(f"v_pk_add_f32 {p(T(e))}, {p(T(e))}, 1.0 op_sel_hi:[1,0]")
    for e in es:
        a(f"""v_rcp_f32 v{T(e)}, v{T(e)}
              v_pk_mul_f32 {p(T2(e))}, {p(U+2*e)}, {p(T2(e))} op_sel_hi:[1,0]
              v_rcp_f32 v{T(e)+1}, v{T(e)+1}""")
    for e in es: a(f"v_pk_mul_f32 {p(T(e))}, {p(T(e))}, {p(U+2*e)}")
    for e in es:
        a(f"""v_pk_fma_f32 {p(F+2*e)}, {p(T2(e))}, {p(T(e))}, {p(F+2*e)}
              v_cvt_pk_bf16_f32 v{U+2*e}, v{T(e)}, 0
              v_cvt_pk_bf16_f32 v{U+2*e+1}, 0, v{T(e)+1}""")

def inbox(a, vo, vl, vt, so, st, tile="s30", row=UROW, tsh=9):
    a(f"""v_and_b32 v{vt}, 3, v1
          v_mul_u32_u24 v{vl}, {row}, v{vt}
          v_lshlrev_b32 v{vo}, 4, v{vt}
          v_lshrrev_b32 v{vt}, 2, v1
          v_lshl_add_u32 v{vl}, v{vt}, 4, v{vl}
          v_lshl_add_u32 v{vo}, v{vt}, 14, v{vo}
          s_lshl_b32 s{st}, {tile}, {tsh}
          v_add_u32 v{vl}, s{st}, v{vl}
          s_lshl_b32 s{so}, {tile}, 19
          s_lshl_b32 s{st}, s28, 8
          s_add_u32 s{so}, s{so}, s{st}
          s_and_b32 s{st}, s29, 3
          s_lshl_b32 s{st}, s{st}, 12
          s_add_u32 s{so}, s{so}, s{st}
          s_and_b32 s{st}, s29, 4
          s_lshl_b32 s{st}, s{st}, 9
          s_add_u32 s{so}, s{so}, s{st}
          s_lshr_b32 s{st}, s29, 3
          s_lshl_b32 s{st}, s{st}, 6
          s_add_u32 s{so}, s{so}, s{st}
          s_add_u32 s{so+1}, s{so}, 0x40000""")

def touch(a):
    a(f"""s_mov_b32 m0, {JUNK}
          s_add_u32 s78, s61, 2048
          buffer_load_dwordx4 v4, s[20:23], s61 offen sc1 lds
          buffer_load_dwordx4 v4, s[20:23], s78 offen sc1 lds""")

def e_path(a):
    W0, W1, W2 = nC(), OPT["w1"], OPT["w2"]
    T1, T2 = 2 * (OPT["pt"] == 1), 2 * (OPT["pt"] == 2)
    G = 88
    WF = OPT["wfirst"]
    p = lambda r: f"v[{r}:{r+1}]"
    def esetup():
        a(f"s_setprio {OPT['sprio']}")
        unit_setup(a, UE, 2, 3, 7)
        srd(a, 40, 24, 25, WBYTES)
        a(f"""s_mov_b32 s42, s66
              v_mul_u32_u24 v7, {7168 - 2048}, v2
              v_sub_u32 v118, v24, v7
              s_lshl_b32 s18, s29, 5
              s_add_u32 s18, s18, s30
              s_lshl_b32 s18, s18, 13
              s_add_u32 s18, s18, s62
              s_lshl_b32 s19, s30, 10""")
        srd(a, 20, 26, 27, 0x400000)
        inbox(a, 96, 121, 7, 75, 78)
        a(f"""              v_mov_b32 v122, {TAGM:#x}
              v_mov_b32 v125, 0x80000000
              s_mov_b32 s17, 0
              v_mov_b32 v123, {TAGM ^ 0xffffffff:#x}
          s_mov_b32 s83, {SPIN:#x}
              s_lshl_b32 s78, s60, 4
              v_lshl_add_u32 v6, v2, 2, s78         ; 2 * row A
              v_lshrrev_b32 v7, 2, v1
              s_sub_u32 s78, 4094, s78
              v_sub_u32 v7, s78, v7
              s_lshl_b32 s78, s30, 6
              v_add_u32 v98, s78, v1""")
        a(f"""s_max_u32 s78, s30, 3
              s_sub_u32 s78, s78, 3
              s_lshl_b32 s78, s78, 10
              s_add_u32 s79, s78, K_BAND - K_PC
              s_add_u32 s48, s48, s79
              s_addc_u32 s49, s49, 0
              s_add_u32 s50, s78, {BAND}
              s_setprio {OPT['eprio']}""")
    a(f"""v_lshlrev_b32 v97, 4, v1
          v_lshrrev_b32 v2, 4, v1
          v_and_b32 v3, 15, v1
          v_lshlrev_b32 v5, 4, v3
          s_setprio {OPT['eprio']}
          s_getpc_b64 s[48:49]
        K_PC:
          s_cmp_lg_u32 s30, 0
          s_cbranch_scc1 K_NOPF
          ; the code is read once as data so that instruction fetches find it in L2 (each WG of a die takes a slice)
          s_lshl_b32 s50, s29, 10
          s_min_u32 s50, s50, K_END - K_PC - 1024
          s_add_u32 s50, s50, s48
          s_addc_u32 s51, s49, 0
          global_load_dwordx4 v[32:35], v97, s[50:51]
        K_NOPF:""")
    first_channel(a, 3, 63)
    a(f"""v_lshl_add_u32 v4, v2, 12, v5
          v_lshl_add_u32 v120, v2, 11, v5
          s_lshl_b32 s60, s29, 3
          s_add_u32 s60, s60, s30
          s_lshl_b32 s61, s60, 14
          s_lshl_b32 s62, s28, 8
          s_add_u32 s61, s61, s62
          v_add_u32 v6, s62, v5
          v_mov_b32 {Z}, 0
          v_mov_b32 {ONE}, 1
          v_lshlrev_b32 v7, 2, v1
          ds_write2st64_b32 v7, {Z}, {Z} offset0:0 offset1:2
          s_mov_b32 s38, 0x400000
          s_mov_b32 s39, 0x00020000
          s_lshl_b32 s63, s3, 8
          v_add_u32 v7, s63, v120
          s_lshl_b32 s3, s3, 1
          s_and_b32 s3, s3, -64
          s_mov_b32 m0, {PRM}
          s_cmp_lg_u32 s30, 0
          s_waitcnt lgkmcnt(0)
          s_load_dword s46, s[42:43], {WS_EP:#x}
          s_mov_b32 s36, s44
          s_mov_b32 s37, s45
          s_cbranch_scc1 K_NOPRM
          global_load_lds_dwordx4 v7, s[4:5]
          s_mov_b32 m0, {PRM + 1024}
          s_load_dword s47, s[12:13], s3
          global_load_lds_dwordx4 v7, s[6:7]
          s_mov_b32 m0, {PRM + 2048}
          global_load_lds_dwordx4 v7, s[8:9]
          s_mov_b32 m0, {PRM + 3072}
          global_load_lds_dwordx4 v7, s[10:11]
        K_NOPRM:
          s_cmp_lg_u32 s30, 1
          s_cbranch_scc1 K_NOSM
          global_load_dwordx4 v[48:51], v97, s[18:19]
          global_load_dwordx4 v[52:55], v97, s[18:19] offset:1024
        K_NOSM:
          {"global_load_dwordx4 v[16:19], v6, s[18:19]" if WF else ""}
          buffer_load_dwordx4 v[8:11], v4, s[36:39], s61 offen {OPT['xfl']}
          buffer_load_dwordx4 v[12:15], v4, s[36:39], s61 offen offset:2048 {OPT['xfl']}
          {"" if WF else "global_load_dwordx4 v[16:19], v6, s[18:19]"}
          global_load_dwordx4 v[20:23], v6, s[14:15]""")
    stamp(a, 5, 3)
    a("s_barrier")
    stamp(a, 6, 3)
    srd(a, 32, 42, 43, WS_SIZE)
    NC = OPT["ncopy"]
    a(f"""
          s_lshl_b32 s63, s29, 13
          s_lshl_b32 s73, s30, 7
          s_add_u32 s63, s63, s73
          s_add_u32 s63, s63, {WS_PS:#x}
          s_lshl_b32 s73, s28, 10
          s_add_u32 s57, s73, {WS_KM:#x}
          s_add_u32 s73, s73, s63
          s_lshl_b32 s74, s28, 12
          s_add_u32 s74, s74, {WS_CI:#x}
          s_getreg_b32 s56, hwreg(HW_REG_XCC_ID, 0, 4)
          v_mov_b32 v124, 0xffff0000
          s_mov_b32 s8, 0x0000bf80
          s_mov_b32 s9, 0xbf800000
          v_mov_b32 v84, 0
          v_mov_b32 v85, 0
          v_and_b32 v92, 7, v1
          v_lshrrev_b32 v94, 3, v1
          v_lshlrev_b32 v95, 18, v92
          v_lshl_add_u32 v95, v94, 4, v95
          v_lshlrev_b32 v92, 10, v92
          s_lshl_b32 s10, 0x01010101, s28
          s_not_b32 s10, s10
          s_mov_b32 s11, s10                    ; lanes that gather from the other dies
          s_add_u32 s72, s63, {(NC - 1) * 0x40000:#x}
          v_lshl_add_u32 v92, v94, 4, v92        ; statistics gather offset
          v_and_b32 v93, 31, v1
          v_lshlrev_b32 v93, 2, v93
          s_waitcnt lgkmcnt(0)
          s_add_u32 s46, s46, {STEP:#x}
          v_mov_b32 v{G+3}, s46
          s_cmp_lg_u32 s30, 3
          s_cbranch_scc1 K_NOCI
          v_add_u32 v80, s56, v{G+3}
          s_lshl_b32 s78, s29, 7
          s_add_u32 s78, s78, s74
          s_mov_b32 exec_hi, 0
          buffer_store_dword v80, v93, s[32:35], s78 offen sc1
          s_mov_b32 exec_hi, -1
        K_NOCI:
          s_cmp_lg_u32 s30, 0
          s_cbranch_scc1 K_NOPS
          s_mov_b64 exec, 1
          ds_write_b32 {Z}, v{G+3} offset:{SY}
          s_waitcnt vmcnt(4)
          ds_add_u32 {Z}, {ONE} offset:{SY + 12}
          s_mov_b64 exec, -1
        K_NOPS:""")
    if W1 + T1: esetup(); sumw(a)
    stamp(a, 7, 3)
    a(f"""s_waitcnt vmcnt({3 - WF})
          v_and_b32_dpp v26, v8, v124 row_newbcast:0 row_mask:0xf bank_mask:0xf""")
    for e in range(8): a(f"v_dot2_f32_bf16 v{F+2*e}, v{8+e//2}, s{8+e%2}, v26")
    for k in range(4 * WF): a(f"v_dot2c_f32_bf16 v84, v{8 + k}, v{16 + k}")
    a(f"s_waitcnt vmcnt({2 - WF})")
    stamp(a, 1)
    if T1: touch(a)
    for n in range(W0, W0 + W1): unit(a, n)
    a("v_and_b32_dpp v27, v12, v124 row_newbcast:0 row_mask:0xf bank_mask:0xf")
    for e in range(8): a(f"v_dot2_f32_bf16 v{F+2*e+1}, v{12+e//2}, s{8+e%2}, v27")
    dots = [f"v_dot2c_f32_bf16 v85, v{12 + e}, v{16 + e}" if e < 4 else "" for e in range(8)]
    late_dots = ""
    if not WF:
        dots = [""] * 8
        late_dots = f"s_waitcnt vmcnt({1 + W1 + T1})\n" + "\n".join(f"v_dot2c_f32_bf16 v{84 + e % 2}, v{8 + 4 * (e % 2) + e // 2}, v{16 + e // 2}" for e in range(8))
    a(f"""v_pk_add_f32 v[28:29], {p(F)}, {p(F+2)}
          v_pk_mul_f32 v[30:31], {p(F)}, {p(F)}
          {dots[0]}
          v_pk_add_f32 v[80:81], {p(F+4)}, {p(F+6)}
          v_pk_mul_f32 v[82:83], {p(F+2)}, {p(F+2)}
          {dots[1]}""")
    for e in range(2, 8):
        d = 30 if e % 2 == 0 else 82
        a(f"v_pk_fma_f32 {p(d)}, {p(F+2*e)}, {p(F+2*e)}, {p(d)}")
        a(dots[e])
        if e >= 4:
            d = 28 if e % 2 == 0 else 80
            a(f"v_pk_add_f32 {p(d)}, {p(d)}, {p(F+2*e)}")
    a(late_dots)
    a(f"""v_pk_add_f32 v[30:31], v[30:31], v[82:83]
          v_mov_b32 v86, v26
          v_pk_add_f32 v[28:29], v[28:29], v[80:81]
          v_add_f32_dpp v{G+2}, v84, v84 row_ror:8 row_mask:0xf bank_mask:0x3
          v_add_f32_dpp v{G+1}, v30, v30 row_ror:8 row_mask:0xf bank_mask:0x3
          v_add_f32_dpp v{G}, v28, v28 row_ror:8 row_mask:0xf bank_mask:0x3
          v_add_f32_dpp v{G+2}, v85, v85 row_ror:8 row_mask:0xf bank_mask:0xc
          v_add_f32_dpp v{G+1}, v31, v31 row_ror:8 row_mask:0xf bank_mask:0xc
          v_add_f32_dpp v{G}, v29, v29 row_ror:8 row_mask:0xf bank_mask:0xc
          v_mov_b32_dpp v86, v27 quad_perm:[0,1,2,3] row_mask:0xf bank_mask:0xc""")
    def red8(order):
        for mod in ("row_half_mirror", "quad_perm:[1,0,3,2]", "quad_perm:[2,3,0,1]"):
            for r in order:
                a(f"v_add_f32_dpp v{r}, v{r}, v{r} {mod} row_mask:0xf bank_mask:0xf")
    red8((G, G + 2, G + 1))
    a(f"""v_mul_f32 v87, 0x3c000000, v{G}
          v_fma_f32 v{G+1}, -v87, v{G}, v{G+1}
          v_sub_f32 v{G}, v86, v87
          s_mov_b32 exec_lo, {0x01010101 * ((1 << NC) - 1):#x}
          s_mov_b32 exec_hi, exec_lo
          buffer_store_dwordx4 v[{G}:{G+3}], v95, s[32:35], s73 offen sc1
          s_mov_b64 exec, -1""")
    stamp(a, 2)
    a(f"""s_mov_b64 exec, 1
          ds_add_u32 {Z}, {ONE} offset:{SY + 36}
          s_mov_b64 exec, -1
          s_setprio {OPT['sprio']}""") if OPT["pace"] >= 2 else a(f"s_setprio {OPT['sprio']}")
    if not (W1 + T1) and (W2 + T2 or not OPT["elate"]): sumw(a); esetup()
    a(f"s_setprio {OPT['eprio']}")
    if OPT["pace"] == 1:
        a(f"""s_waitcnt vmcnt(0)
              s_mov_b64 exec, 1
              ds_add_u32 {Z}, {ONE} offset:{SY + 36}
              s_mov_b64 exec, -1""")
    if OPT["pace"] in (1, 2): lds_wait(a, "K_AW", 80, Z, SY + 36, "v_cmp_gt_u32 vcc, 8, v80")
    if OPT["psl"]: a(f"s_sleep {OPT['psl']}")
    stamp(a, 5, 4)
    a(f"""s_mov_b64 exec, s[10:11]
          buffer_load_dwordx4 v[{G}:{G+3}], v92, s[32:35], s63 offen sc1
          s_mov_b64 exec, -1
          s_cmp_lg_u32 s30, 2
          s_cbranch_scc1 K_NOCR
          v_lshlrev_b32 v93, 5, v93
          s_mov_b32 s83, {SPIN:#x}
        K_CR:
          buffer_load_dword v94, v93, s[32:35], s74 offen sc1
          s_sub_u32 s83, s83, 1
          s_waitcnt vmcnt(0)
          v_subrev_u32 v94, s46, v94
          s_cbranch_scc1 K_CRD
          v_cmp_lt_u32 vcc, 15, v94
          s_cbranch_vccnz K_CR
        K_CRD:
          v_cmp_ne_u32 vcc, s56, v94
          s_cmp_lg_u64 vcc, 0
          s_cselect_b32 s78, 2, {1 + OPT['slow']}
          v_mov_b32 v94, s78
          ds_write_b32 {Z}, v94 offset:{SY + 8}
        K_NOCR:""")
    if not (W1 + T1) and not (W2 + T2) and OPT["elate"]: sumw(a); esetup()
    a("""s_mov_b32 m0, s50
         global_load_lds_dwordx4 v97, s[48:49]""")
    if OPT["wsl"]: a(f"s_sleep {OPT['wsl']}")
    if T2: touch(a)
    for n in range(W0 + W1, W0 + W1 + W2): unit(a, n)
    a(f"""{"s_mov_b32 s80, 1" if OPT["dbg"] else ""}
          s_waitcnt vmcnt({W2 + T2 + 1}) 
          s_branch K_P1C
        K_P1:
          s_mov_b64 s[10:11], vcc""")
    if OPT["pace"] == 3:
        lds_wait(a, "K_AW", 80, Z, SY + 36, "v_cmp_gt_u32 vcc, 8, v80")
    a(f"""{"s_sleep " + str(OPT["tsl"]) if OPT["tsl"] else ""}
          s_add_u32 s63, s63, 0x40000
          s_min_u32 s63, s63, s72
          s_mov_b64 exec, s[10:11]
          buffer_load_dwordx4 v[{G}:{G+3}], v92, s[32:35], s63 offen sc1
          s_mov_b64 exec, -1
          {"s_add_u32 s80, s80, 1" if OPT["dbg"] else ""}
          s_sub_u32 s83, s83, 1
          s_waitcnt vmcnt(0)
          s_cbranch_scc1 K_P1D
        K_P1C:
          v_cmp_ne_u32 vcc, s46, v{G+3}
          s_cbranch_vccnz K_P1
        K_P1D:
          ds_read2_b32 v[84:85], {Z} offset0:{(SY + 8)//4} offset1:{(SY + 4)//4}
          s_max_i32 s83, s83, 0""")
    stamp(a, 3)
    if OPT["pt"] == 3: touch(a); T2 = 2
    a(f"""v_mov_b32_dpp v80, v{G} row_newbcast:0 row_mask:0xf bank_mask:0x3
          v_mov_b32_dpp v80, v{G} row_newbcast:8 row_mask:0xf bank_mask:0xc
          v_sub_f32 v{G}, v{G}, v80
          v_mul_f32 v81, 0x43000000, v{G}
          v_fmac_f32 v{G+1}, v81, v{G}""")
    red8((G + 2, G, G + 1))
    a(f"""v_mul_f32 v81, 0x41800000, v{G}
          v_fmac_f32 v80, 0x3e000000, v{G}
          v_fma_f32 v{G+1}, -v81, v{G}, v{G+1}
          v_mul_f32 v{G+1}, 0x3a800000, v{G+1}
          v_max_f32 v{G+1}, 0, v{G+1}
          v_cvt_pk_bf16_f32 v81, v80, v{G+1}
          v_and_b32 v{G+1}, v124, v81
          v_lshlrev_b32 v80, 16, v81
          v_add_f32 v{G+1}, 0x3727c5ac, v{G+1}
          v_cvt_pk_bf16_f32 v{G+1}, 0, v{G+1}
          v_sub_f32 v86, v86, v80
          v_sqrt_f32 v{G+1}, v{G+1}
          v_cvt_pk_bf16_f32 v83, v80, v{G+1}
          v_and_b32 v{G+1}, v124, v83
          v_rcp_f32 v81, v{G+1}
          s_waitcnt lgkmcnt(0)
          v_readfirstlane_b32 s47, v84
          v_readfirstlane_b32 s78, v85
          v_mul_f32 v86, v86, v81
          s_min_u32 s78, s78, s47
          s_cmp_eq_u32 s78, 0
          s_cbranch_scc1 K_RARE
        K_RB:
          s_sub_u32 s47, s47, 1
          v_mov_b32_dpp v28, v81 row_newbcast:0 row_mask:0xf bank_mask:0xf
          v_mov_b32_dpp v29, v81 row_newbcast:8 row_mask:0xf bank_mask:0xf
          v_mov_b32_dpp v30, v86 row_newbcast:0 row_mask:0xf bank_mask:0xf
          v_mov_b32_dpp v31, v86 row_newbcast:8 row_mask:0xf bank_mask:0xf
          """)
    keys = f"""s_setprio 2
          v_fma_f32 v82, -v80, v85, v{G+2}
          v_mul_f32 v82, v82, v81
          v_cvt_pk_bf16_f32 v82, v82, v82
          v_ashrrev_i32 v81, 31, v82
          v_bitop3_b32 v82, v82, v81, v125 bitop3:0x1e
          v_and_or_b32 v82, v82, v124, v7
          s_mov_b32 exec_lo, 0x01010101
          s_mov_b32 exec_hi, 0x01010101
          ds_write_b64 v98, v[82:83] offset:{SY + 128}
          s_mov_b64 exec, 1
          ds_add_u32 {Z}, {ONE} offset:{SY + 20}
          s_mov_b64 exec, -1
          s_setprio {OPT['eprio']}"""
    if OPT["kearly"]: a(keys.replace("s_setprio 2", ""))
    for e in range(8):
        a(f"v_pk_fma_f32 {p(U+2*e)}, {p(F+2*e)}, v[28:29], v[30:31] neg_lo:[1,0,0] neg_hi:[1,0,0]")
    for e in range(8):
        a(f"v_cvt_pk_f16_f32 v{64+e}, v{U+2*e}, v{U+2*e+1}")
    transpose4(a, 64, 68)
    for r in range(8): a(f"v_or_b32 v{64+r}, v122, v{64+r}" if r % 4 in (1, 2) else f"v_and_b32 v{64+r}, v123, v{64+r}")
    both_modes(a, "K_US", """buffer_store_dwordx4 v[64:67], v4, s[20:23], s61 offen @
                             buffer_store_dwordx4 v[68:71], v4, s[20:23], s61 offen offset:2048 @""")
    stamp(a, 4)
    a(f"""buffer_load_dwordx4 v[64:67], v96, s[20:23], s75 offen sc1
          buffer_load_dwordx4 v[68:71], v96, s[20:23], s76 offen sc1
          {"" if OPT["kearly"] else keys}
          s_branch K_P2A
        K_P2:
          {"s_sleep " + str(OPT["isl"]) if OPT["isl"] else ""}
          buffer_load_dwordx4 v[64:67], v96, s[20:23], s75 offen sc1
          buffer_load_dwordx4 v[68:71], v96, s[20:23], s76 offen sc1
        K_P2A:
          {"s_add_u32 s81, s81, 1" if OPT["dbg"] else ""}""")
    if OPT["early"]:
        a(f"""s_cmp_lg_u32 s17, 0
              s_cbranch_scc1 K_E2
              s_setprio {OPT['pprio']}""")
        operands(a, range(4))
        a(f"""s_mov_b32 s17, 1
              s_setprio {OPT['eprio']}
            K_E2:""")
    a(f"""s_sub_u32 s83, s83, 1
          s_waitcnt vmcnt(0)
          v_or3_b32 v80, v64, v67, v68
          v_bitop3_b32 v81, v65, v66, v69 bitop3:0x80
          v_bitop3_b32 v80, v80, v71, v70 bitop3:0xfd
          s_cbranch_scc1 K_P2D
          v_bitop3_b32 v80, v80, v81, v122 bitop3:0xa2
          v_cmp_ne_u32 vcc, 0, v80
          s_cbranch_vccnz K_P2
        K_P2D:
          ds_write_b128 v121, v[64:67] offset:{UA + 2*UPAD}
          ds_write_b128 v121, v[68:71] offset:{UA + 2*UPAD + 256}
          s_max_i32 s83, s83, 0
          s_mov_b64 exec, 1
          ds_add_u32 {Z}, {ONE} offset:{SY + 16}
          s_mov_b64 exec, -1
          s_setprio 0""")
    stamp(a, 5, 0)
    if OPT["exp"] & 8: a("s_sleep 90")
    a("""s_cmp_ge_u32 s29, 28
         s_cbranch_scc1 K_NOTL""")
    if OPT["ugate"] == 1: lds_wait(a, "K_UG", 64, Z, SY + 16, f"v_cmp_gt_u32 vcc, {OPT['uthr']}, v64", OPT["usl"])
    if OPT["ugate"] == 2:
        a(f"""s_branch K_UGB
            K_UG:
              s_sleep {OPT['usl']}
            K_UGB:
              ds_read2_b32 v[64:65], {Z} offset0:{(SY + 16)//4} offset1:{(SY + 40)//4}
              s_waitcnt lgkmcnt(0)
              v_add_u32 v64, v64, v65
              v_cmp_gt_u32 vcc, 9, v64
              s_cbranch_vccnz K_UG""")
    a("s_setprio 3")
    for n in range(W0 + W1 + W2, 8): unit(a, n)
    a(f"""s_cmp_ge_u32 s30, 4
          s_cbranch_scc1 K_NOWD
          s_waitcnt vmcnt({OPT['gwait']})
          s_branch K_HGB
        K_HG:
          s_sleep {OPT['gsl']}
        K_HGB:
          ds_read_b32 v64, {Z} offset:{SY + 16}
          ds_read2_b32 v[66:67], {Z} offset0:{(SY + 112)//4} offset1:{(SY + 120)//4}
          s_waitcnt lgkmcnt(0)
          v_add3_u32 v64, v64, v66, v67
          v_cmp_gt_u32 vcc, 17, v64
          s_cbranch_vccnz K_HG""")
    for i in range(8):
        if i == OPT["wd0"]:
            a(f"""s_mov_b64 exec, 1
                  s_waitcnt vmcnt({i})
                  ds_add_u32 {Z}, {ONE} offset:{SY + 24}
                  s_mov_b64 exec, -1""")
        if i == OPT["wd1"]: lds_wait(a, "K_XG", 64, Z, SY + 44, "v_cmp_gt_u32 vcc, 4, v64", OPT["gsl"])
        a(f"""s_add_u32 m0, s19, {WDN + 4096*i}
              buffer_load_dwordx4 v118, s[40:43], s18 offen {OPT['wfl']} lds""")
        if i < 7: a("s_add_u32 s18, s18, 32768")
    a(f"""s_mov_b64 exec, 1
          s_waitcnt vmcnt(0)
          ds_add_u32 {Z}, {ONE} offset:{SY + 124}
          s_mov_b64 exec, -1
          s_setprio 0
          s_branch K_TLD
        K_NOWD:
          s_mov_b64 exec, 1
          s_waitcnt vmcnt(0)
          ds_add_u32 {Z}, {ONE} offset:{SY + 24}
          s_mov_b64 exec, -1
          s_setprio 0
        K_NOTL:""")
    lds_wait(a, "K_TL", 64, Z, SY + 120, "v_cmp_eq_u32 vcc, 0, v64", 8)
    a("K_TLD:")
    if OPT["exp"] & 32: a("s_sleep 70")
    halves = [h for h in range(2) if not (h == 0 and OPT["early"])]
    mid = halves[:OPT["mid"]]; late = halves[OPT["mid"]:]
    for h in mid: operands(a, range(4 * h, 4 * h + 4), OPT["scal"])
    stamp(a, 6, 0)
    a(f"""ds_read_b128 v[92:95], {Z} offset:{SY + 96}
          s_waitcnt lgkmcnt(0)
          v_readfirstlane_b32 s6, v92
          v_readfirstlane_b32 s7, v94
          s_andn2_b32 s6, 0xffe, s6             ; 2 * row
          s_andn2_b32 s7, 0xffe, s7
          s_lshr_b32 s77, s6, 4
          s_lshr_b32 s79, s7, 4
          v_cmp_ne_u32 s[52:53], s6, v6
          v_cmp_ne_u32 vcc, s7, v6
          v_add_u32 v6, 2, v6
          s_and_b64 s[52:53], s[52:53], vcc     ; rows that are not routed
          v_cmp_ne_u32 s[54:55], s6, v6
          v_cmp_ne_u32 vcc, s7, v6
          s_and_b64 s[54:55], s[54:55], vcc
          s_cmp_eq_u32 s77, s60
          s_cselect_b32 s77, 0x55555555, 0
          s_cmp_eq_u32 s79, s60
          s_cselect_b32 s79, 0xaaaaaaaa, 0
          s_or_b32 s77, s77, s79
          v_and_b32 v64, 3, v1
          v_mul_u32_u24 v64, {UROW - 4096}, v64
          v_sub_u32 v121, v121, v64
          s_and_b32 s78, s30, 3
          s_lshl_b32 s78, s78, 2
          s_lshr_b32 s78, 0xc480, s78
          s_and_b32 s78, s78, 15
          v_mov_b32 v123, s78
          s_mov_b32 s78, 4
          s_sub_u32 s75, s75, 0x200000
          s_sub_u32 s76, s76, 0x200000""")
    a("""s_cmp_eq_u32 s77, 0
         s_cbranch_scc1 K_NOOW1""")
    for h in late: operands(a, range(4 * h, 4 * h + 4), OPT["scal"])
    a("K_NOOW1:")
    lds_wait(a, "K_HW4", 64, "v123", SY + 48, "v_cmp_gt_u32 vcc, 4, v64", OPT["ywsl"])
    a(f"""s_cmp_lt_u32 s30, 4
          s_cbranch_scc1 K_NOSEND
          s_branch K_YWB
        K_YW:
          s_sleep 1
        K_YWB:
          ds_read_b128 v[64:67], {Z} offset:{SY + 48}
          s_waitcnt lgkmcnt(0)
          v_min_u32 v64, v64, v65
          v_min3_u32 v64, v64, v66, v67
          v_cmp_gt_u32 vcc, s78, v64
          s_cbranch_vccnz K_YW
          ds_read_b128 v[64:67], v121 offset:{TB - 2048}
          ds_read_b128 v[68:71], v121 offset:{TB - 2048 + 256}
          s_setprio 3""")
    for q in range(2):
        r = 64 + 4 * q
        a(f"""s_waitcnt lgkmcnt({1 - q})
              v_bitop3_b32 v72, v{r}, v{r+1}, v122 bitop3:0xa2
              v_cmp_eq_u32 vcc, 0, v72
              v_addc_co_u32 v{r}, vcc, 0, v{r}, vcc   ; a granule that looks like u moves one value by one step""")
    both_modes(a, "K_YS", """buffer_store_dwordx4 v[64:67], v96, s[20:23], s75 offen @
                             buffer_store_dwordx4 v[68:71], v96, s[20:23], s76 offen @""")
    a(f"""s_add_u32 s75, s75, 0x200000
          s_add_u32 s76, s76, 0x200000
          v_add_u32 v121, 2048, v121
          s_add_u32 s78, s78, 4
          s_cmp_gt_u32 s78, 8
          s_cbranch_scc1 K_SENT
          {"s_sleep " + str(OPT["lsl"]) if OPT["lsl"] else ""}
          s_branch K_YWB
        K_SENT:
          s_setprio 0
        K_NOSEND:""")
    stamp(a, 7, 0)
    yload = """buffer_load_dwordx4 v[72:75], v4, s[20:23], s61 offen sc1
               buffer_load_dwordx4 v[76:79], v4, s[20:23], s61 offen offset:2048 sc1"""
    ycheck = """v_bitop3_b32 v64, v72, v73, v122 bitop3:0xa2
                v_bitop3_b32 v65, v76, v77, v122 bitop3:0xa2
                v_min_u32 v64, v64, v65
                v_cmp_eq_u32 vcc, 0, v64"""
    a(f"""s_cmp_eq_u32 s77, 0
          s_cbranch_scc1 K_NOOWN
          ; the owner of a routed row tells the WGs that finish this row that no granule will land in it any more""")
    a("""s_setprio 3
       K_PO:""")
    a(yload)
    a(f"""s_sub_u32 s83, s83, 1
          s_waitcnt vmcnt(0)
          s_cbranch_scc1 K_POD
          v_bitop3_b32 v64, v72, v73, v122 bitop3:0xa2
          v_bitop3_b32 v65, v76, v77, v122 bitop3:0xa2
          v_cmp_eq_u32 s[8:9], 0, v64
          v_cmp_eq_u32 s[10:11], 0, v65
          s_andn2_b64 s[8:9], s[8:9], s[52:53]
          s_andn2_b64 s[10:11], s[10:11], s[54:55]
          s_or_b64 s[8:9], s[8:9], s[10:11]
          s_cbranch_scc1 K_PO
        K_POD:
          s_max_i32 s83, s83, 0
          v_mov_b32 v64, 0
          v_mov_b32 v65, 0
          v_mov_b32 v66, s46
          v_lshlrev_b32 v67, 5, v1
          s_mov_b32 exec_lo, s77
          s_mov_b32 exec_hi, s77
          s_lshl_b32 s78, s28, 16
          s_add_u32 s78, s78, {WS_DP + 28 * 2048:#x}""")
    both_modes(a, "K_OS", "buffer_store_dwordx3 v[64:66], v67, s[32:35], s78 offen @")
    a(f"""s_mov_b64 exec, -1
          s_branch K_PYC
        K_NOOWN:""")
    lds_wait(a, "K_DW", 64, "v123", SY + 48, "v_cmp_gt_u32 vcc, 8, v64", OPT["dsl"])
    stamp(a, 6, 2)
    a(f"s_setprio {OPT['lprio']}")
    for h in late[:-1]: operands(a, range(4 * h, 4 * h + 4))
    a(yload)
    for h in late[-1:]: operands(a, range(4 * h, 4 * h + 4))
    a(f"""s_waitcnt vmcnt(0)
          s_branch K_PYC
        K_PY:
          {"s_sleep " + str(OPT["ysl"]) if OPT["ysl"] else ""}
          s_mov_b64 exec, s[52:53]              ; an owner keeps what it has read from a routed row
          buffer_load_dwordx4 v[72:75], v4, s[20:23], s61 offen sc1
          s_mov_b64 exec, s[54:55]
          buffer_load_dwordx4 v[76:79], v4, s[20:23], s61 offen offset:2048 sc1
          s_mov_b64 exec, -1""")
    a(f"""s_sub_u32 s83, s83, 1
          s_waitcnt vmcnt(0)
          s_cbranch_scc1 K_PYD
        K_PYC:""")
    a(ycheck)
    a("""s_cbranch_vccnz K_PY
       K_PYD:""")
    stamp(a, 7, 2)
    transpose4(a, 72, 76)
    for h in range(2):
        for e in range(8): a(f"v_dot2c_f32_bf16 v{F+2*e+h}, v{72+e}, v{U+2*e+h}")
    for h in range(2):
        for k in range(4): a(f"v_cvt_pk_bf16_f32 v{8+4*h+k}, v{F+4*k+h}, v{F+4*k+2+h}")
        a(f"""s_mov_b64 exec, s[{52+2*h}:{53+2*h}]
              buffer_store_dwordx4 v[{8+4*h}:{11+4*h}], v4, s[20:23], s61 offen offset:{2048*h} {OPT['outfl']}
              s_mov_b64 exec, -1""")
    stamp_flush(a, 0)
    a(f"""K_RARE:
          s_sleep 1
          ds_read2_b32 v[84:85], {Z} offset0:{(SY + 8)//4} offset1:{(SY + 4)//4}
          s_waitcnt lgkmcnt(0)
          v_readfirstlane_b32 s47, v84
          v_readfirstlane_b32 s78, v85
          s_min_u32 s78, s78, s47
          s_cmp_eq_u32 s78, 0
          s_cbranch_scc1 K_RARE
          s_branch K_RB""")

def c_path(a):
    W0 = OPT["w0"]
    a(f"""s_sub_u32 s30, s30, 8
          s_setprio {OPT['kprio']}""")
    first_channel(a, 3, 55)
    a(f"""s_lshr_b32 s59, s30, 1
          s_lshl_b32 s55, s59, 3
          s_add_u32 s56, s3, s55                ; d
          s_lshl_b32 s57, s56, 1
          s_and_b32 s57, s57, -4
          v_lshlrev_b32 v95, 4, v1
          v_and_b32 v96, 15, v1
          v_lshrrev_b32 v97, 4, v1
          v_mov_b32 v20, 0
          v_mov_b32 v21, 0
          v_mov_b32 v22, 0
          v_mov_b32 v23, 0
          s_mov_b32 s34, {WS_SIZE:#x}
          s_mov_b32 s35, 0x00020000
          s_waitcnt lgkmcnt(0)
          s_load_dword s47, s[12:13], s57
          s_mov_b32 s32, s42
          s_mov_b32 s33, s43
          s_barrier
          s_mov_b32 m0, {JUNK}
          s_cmp_lg_u32 s30, 2
          s_cbranch_scc1 K_NOT
          s_lshl_b32 s60, s28, 16
          s_lshl_b32 s61, s29, 11
          s_add_u32 s60, s60, s61
          s_add_u32 s60, s60, {WS_DP:#x}
          s_lshl_b32 s61, s28, 10
          s_add_u32 s61, s61, {WS_KM:#x}
          buffer_load_dwordx4 v95, s[32:35], s60 offen sc1 lds
          buffer_load_dwordx4 v95, s[32:35], s60 offen offset:1024 sc1 lds
          buffer_load_dwordx4 v95, s[32:35], s61 offen sc1 lds
        K_NOT:""")
    unit_setup(a, UC, 97, 96, 18)
    for n in range(W0): unit(a, n, UC)
    if any(u[0] == "t" for _, u in paced()) or OPT["pt"] == 4:
        srd(a, 20, 26, 27, 0x400000)
        a(f"""v_lshlrev_b32 v94, 4, v96
              v_lshl_add_u32 v94, v97, 12, v94
              s_lshl_b32 s38, s29, 3
              s_add_u32 s38, s38, s30
              s_lshl_b32 s38, s38, 14
              s_lshl_b32 s39, s28, 8
              s_add_u32 s38, s38, s39
              s_add_u32 s39, s38, 2048""")
        if OPT["pt"] == 4:
            a(f"""s_mov_b32 m0, {JUNK}
                  buffer_load_dwordx4 v94, s[20:23], s38 offen sc1 lds
                  buffer_load_dwordx4 v94, s[20:23], s39 offen sc1 lds""")
    a(f"""s_mov_b32 s52, s59
          s_lshr_b32 s53, s30, 2
          s_xor_b32 s53, s53, s30
          s_and_b32 s53, s53, 1
          s_mul_i32 s66, s52, {UROW}
          s_add_u32 s66, s66, {UA}
          v_add_u32 v11, s66, v95
          s_mov_b32 exec_hi, 3
          ds_write_b128 v11, v[20:23]
          s_mov_b32 exec_hi, -1""")
    kgen_setup(a)
    a(f"""s_lshl_b32 s60, s52, 8
          s_add_u32 s60, s60, {PRM}
          v_lshl_add_u32 v17, v1, 2, s60
          s_lshl_b32 s61, s53, 7
          s_add_u32 s60, s60, s61
          v_lshl_add_u32 v16, v1, 1, s60
          v_mov_b32 v2, 0
          v_mov_b32 v3, 0
          v_mov_b32 v4, 0
          v_mov_b32 v5, 0
          v_mov_b32 v42, 0x3c00
          s_mov_b32 s37, m0
          s_mov_b32 s72, -1
          s_mov_b32 s73, 0
          s_cmp_eq_u32 s53, 0
          s_cbranch_scc0 K_HA
          v_lshlrev_b32 v124, 8, v97
          v_lshl_add_u32 v124, v96, 4, v124
          v_sub_u32 v124, {2*(537-256)}, v124
          v_add_u32 v124, s68, v124                 ; 2*(537 - p0), p0 = 256 + 128g + 8j
          v_lshrrev_b32 v125, 1, v97
          v_lshlrev_b32 v125, 8, v125
          v_lshl_add_u32 v125, v96, 4, v125
          v_and_b32 v30, 1, v97
          v_lshl_add_u32 v125, v30, 3, v125
          v_sub_u32 v125, 1080, v125
          v_add_u32 v125, s68, v125                 ; 1080 - 2p, p = 128(g>>1) + 8j + 4(g&1)
          v_add_u32 v126, 2, v124
          v_add_u32 v127, {DELTA}, v124
          v_lshlrev_b32 v12, 5, v96
          v_lshl_add_u32 v9, v97, 3, v12
          v_lshl_add_u32 v12, v97, 4, v12
          v_add_u32 v12, s66, v12
          v_add_u32 v9, s68, v9
          v_add_u32 v13, {BAND}, v95
          v_and_b32 v11, 1, v96
          v_xor_b32 v11, 1, v11
          v_mul_u32_u24 v11, {DELTA}, v11
          v_lshlrev_b32 v10, 1, v96
          v_sub_u32 v11, v11, v10
          s_add_u32 s78, s68, 30
          v_add_u32 v11, s78, v11
          v_lshl_add_u32 v10, v97, 4, v11
          v_lshl_add_u32 v14, v97, 3, v11
          v_add_u32 v14, {R2B}, v14
          v_add_u32 v11, 512, v10
          s_lshl_b32 s79, s52, 2
          v_mov_b32 v15, s79
          v_mov_b32 v8, 0
          s_branch K_AD
        K_HA:
          v_and_b32 v28, 1, v96
          v_lshrrev_b32 v29, 1, v96
          v_lshlrev_b32 v124, 8, v28
          v_lshlrev_b32 v30, 1, v29
          v_sub_u32 v124, v124, v30
          v_lshlrev_b32 v125, 5, v97
          v_sub_u32 v124, v124, v125
          v_add_u32 v124, {R2B + 128 + 2*47 + 64 - 16}, v124
          v_add_u32 v124, s68, v124
          v_lshlrev_b32 v125, 1, v28
          v_sub_u32 v125, v124, v125
          v_add_u32 v125, {-128 + 2}, v125
          v_mul_u32_u24 v126, 158, v28
          v_sub_u32 v126, v126, v30
          v_lshlrev_b32 v31, 6, v97
          v_sub_u32 v126, v126, v31
          v_add_u32 v126, {R3B + 128 - 48}, v126
          v_add_u32 v126, s68, v126
          v_lshrrev_b32 v28, 2, v96
          v_lshl_add_u32 v11, v97, 3, v28
          v_lshlrev_b32 v11, 8, v11
          v_and_b32 v29, 1, v97
          v_lshl_or_b32 v28, v29, 2, v28
          v_lshl_or_b32 v11, v28, 5, v11
          v_and_b32 v28, 3, v1
          s_lshl_b32 s78, s52, 6
          v_xor_b32 v11, s78, v11
          v_lshlrev_b32 v9, 4, v28
          v_xor_b32 v9, v9, v11
          v_add_u32 v9, {WDN}, v9
          v_lshl_add_u32 v11, v28, 3, v11
          v_xor_b32 v12, 32, v11
          v_add_u32 v11, {F_W}, v11             ; w_gate / w_up: columns 32q + 16t + 0..15
          v_add_u32 v12, {F_W}, v12
          v_lshlrev_b32 v8, 6, v28
          v_and_b32 v29, 12, v1
          v_lshl_add_u32 v8, v29, 2, v8
          v_mul_u32_u24 v10, 320, v28
          v_lshl_add_u32 v10, v97, 4, v10
          v_add_u32 v10, {XS}, v10
          v_lshrrev_b32 v28, 5, v1
          v_and_b32 v29, 31, v1
          v_lshlrev_b32 v14, 4, v29
          v_lshl_add_u32 v14, v28, 11, v14       ; gate / up gather offset
          v_mul_u32_u24 v13, 320, v28
          v_lshl_add_u32 v13, v29, 1, v13
          s_add_u32 s78, s78, {HB}
          v_add_u32 v13, s78, v13
          v_mov_b32 v15, 0
        K_AD:
          s_waitcnt lgkmcnt(0)
          s_lshl_b32 s60, s47, 16
          s_and_b32 s61, s47, s31
          s_bitcmp1_b32 s56, 0
          s_cselect_b32 s60, s61, s60
          v_mov_b32 v116, s60""")
    exp_acc(a, 117, 116, 118, 119, 58, 67, 71)
    a(f"""v_cvt_pk_bf16_f32 v117, 0, v117       ; dt
          v_mul_f32 v91, s58, v117
          v_mul_f32 v90, 0.15915494, v117
          """)
    stamp(a, 2)
    lds_wait(a, "K_PW", 18, "v20", SY + 12, "v_cmp_eq_u32 vcc, 0, v18")
    stamp(a, 1)
    a(f"""ds_read_u16_d16_hi v2, v16
          ds_read_u16_d16_hi v3, v16 offset:1024
          ds_read_b32 v6, v17 offset:2048
          ds_read_b32 v7, v17 offset:3072
          ds_read_u16_d16_hi v4, v16 offset:2048
          ds_read_u16_d16_hi v5, v16 offset:3072""")
    kgen_main(a)
    stamp(a, 5, 1)
    a("""s_cmp_eq_u32 s53, 0
         s_cbranch_scc0 K_FAR""")
    near_table(a, "K")
    for n in range(nC() - OPT["ku"], nC()): unit(a, n, UC)
    conv(a)
    a.raw(".p2align 6")
    a("K_FAR:")
    far_table(a, "K")
    a(f"""v_or_b32 v127, 0x10000, v89
          s_lshl_b32 s79, s52, 2
          v_mov_b32 v4, s79""")
    a(f"""v_mov_b32 v93, 1
          s_mov_b64 exec, 1
          ds_write_b32 v4, v127 offset:{SY + 640}
          s_mov_b64 exec, -1""")
    for n in range(nC() - OPT["ku"], nC()): unit(a, n, UC)
    a(f"""s_cmp_eq_u32 s30, 1
          s_cbranch_scc1 K_LATER
          s_mov_b64 exec, 1
          s_waitcnt vmcnt(0)
          ds_add_u32 v15, v93 offset:{SY + 112}
          s_mov_b64 exec, -1
        K_LATER:
          s_setprio {OPT['hprio']}
          """)
    stamp(a, 3)
    XA = 48
    a(f"""          s_lshl_b32 s62, s29, 14
          s_lshl_b32 s79, s52, 9
          s_add_u32 s62, s62, s79
          s_add_u32 s62, s62, {WS_EX:#x}
          s_add_u32 s63, s62, 4096
          s_add_u32 s64, s62, 8192
          s_add_u32 s65, s62, 12288
          s_lshl_b32 s73, s28, 11
          s_add_u32 s73, s73, s62
          s_lshl_b32 s77, s28, 16
          s_add_u32 s77, s77, {WS_DP:#x}
          s_lshl_b32 s57, s29, 11
          s_add_u32 s57, s57, s79
          s_add_u32 s57, s57, s77
          s_mov_b64 s[54:55], s[14:15]
          s_mov_b32 s12, 0x07060503
          s_mov_b32 s13, 0x07060502
          s_mov_b32 s14, 0x07060501
          s_mov_b32 s15, 0x04000c0c
          s_mov_b32 s16, 0x0706000c
          s_lshl_b32 s18, s28, 8""")
    a(f"""s_cmp_lg_u32 s30, 1
          s_cbranch_scc1 K_NOKP
          ds_read_b32 v90, v15 offset:{SY}
          v_mov_b32 v92, 0x3f803f80
          v_mov_b32 v93, v92
          v_lshlrev_b32 v3, 3, v1
          v_add_u32 v3, {XS + 640}, v3
          ds_write_b64 v3, v[92:93]
          ds_write_b64 v3, v[92:93] offset:64
          v_lshlrev_b32 v2, 3, v1
          s_setprio 3
          s_lshl_b32 s60, s28, 10
          s_add_u32 s60, s60, {WS_KM:#x}
          s_mov_b32 s83, {SPIN:#x}
          v_add_u32 v3, s18, v95
          s_mov_b32 m0, {XS}""")
    lds_wait(a, "K_KW", 93, "v15", SY + 20, "v_cmp_gt_u32 vcc, 8, v93", 1)
    a(f"""ds_read_b64 v[72:73], v2 offset:{SY + 128}
          ds_read_b32 v5, v15 offset:{SY + 8}
          v_readfirstlane_b32 s46, v90
          v_mov_b32 v74, v90
          v_mov_b32 v75, v90
          s_lshl_b32 s61, s29, 5
          s_add_u32 s61, s61, s60
          s_waitcnt lgkmcnt(0)
          v_readfirstlane_b32 s47, v5
          s_sub_u32 s47, s47, 1""")
    top2(a, 72, 80, 78, 79, 66)
    a("""v_cndmask_b32 v80, 0, 16, s[66:67]
         v_cmp_le_u32 vcc, s79, v72
         s_mov_b64 exec, vcc""")
    both_modes(a, "K_KS", "buffer_store_dwordx4 v[72:75], v80, s[32:35], s61 offen @")
    a(f"""s_mov_b64 exec, -1
          s_mov_b32 exec_lo, 0xfff00000
          v_add_u32 v3, -320, v3
          s_mov_b32 exec_lo, -1
          s_mov_b64 s[70:71], 0
          ; the rows of the two best keys seen so far are requested at once, so that they do not queue behind the tile loads
        K_P3:
          buffer_load_dwordx4 v[72:75], v95, s[32:35], s60 offen sc1
          s_waitcnt vmcnt(0)
          v_cmp_eq_u32 s[68:69], s46, v74
          v_cndmask_b32 v72, 0, v72, s[68:69]""")
    top2(a, 72, 80, 78, 79, 66)
    a(f"""s_cmp_eq_u64 s[78:79], s[70:71]
          s_cbranch_scc1 K_P3S
          s_mov_b64 s[70:71], s[78:79]
          s_andn2_b32 s78, 0xffe, s78
          s_andn2_b32 s61, 0xffe, s79
          v_mov_b32 v92, s78
          s_mov_b32 exec_lo, 0xfff00000
          s_mov_b32 exec_hi, 15
          v_mov_b32 v92, s61
          s_mov_b32 exec_lo, 0xfff0ffff
          v_lshl_add_u32 v92, v92, 10, v3
          global_load_lds_dwordx4 v92, s[44:45]
          s_mov_b64 exec, -1
        K_P3S:
          s_sub_u32 s83, s83, 1
          s_cbranch_scc1 K_P3D
          s_cmp_lg_u64 s[68:69], -1
          s_cbranch_scc1 K_P3
        K_P3D:""")
    stamp(a, 4, 0)
    a(f"""v_cndmask_b32 v80, 0, 8, s[66:67]
          v_cmp_le_u32 vcc, s79, v72
          s_mov_b64 exec, vcc
          v_mov_b32 v93, 1
          ds_write_b32 v15, v93 offset:{SY + 40}
          ds_write_b64 v80, v[72:73] offset:{SY + 96}
          s_waitcnt vmcnt(0)
          ds_write_b32 v15, v93 offset:{SY + 120}
          s_mov_b64 exec, 1
          v_mov_b32 v93, 1
          ds_add_u32 v15, v93 offset:{SY + 112}
          s_cmp_lg_u32 s2, 0
          s_cbranch_scc1 K_NOZ
          s_mov_b32 s78, {WS_EP:#x}
          buffer_store_dword v74, v15, s[32:35], s78 offen sc1
        K_NOZ:
          s_mov_b64 exec, -1
          s_setprio {OPT['hprio']}
        K_NOKP:""")
    stamp(a, 5, 0)
    if OPT["exp"] & 16: a("s_sleep 110")
    lds_wait(a, "K_XW", 92, "v15", SY + 120, "v_cmp_eq_u32 vcc, 0, v92", OPT["xwsl"])
    a(f"""ds_read_b32 v5, v15 offset:{SY + 8}
          ds_read_b128 v[40:43], v15 offset:{SY + 96}
          ds_read_b32 v90, v15 offset:{SY}""")
    for k in range(4): a(f"ds_read_b128 v[{XA+4*k}:{XA+4*k+3}], v10 offset:{64*k}")
    a(f"""s_waitcnt lgkmcnt(4)
          v_mov_b32 v93, 1
          v_mov_b32 v35, v90
          v_and_b32 v44, 0xffff0000, v41
          v_and_b32 v45, 0xffff0000, v43
          v_lshlrev_b32 v46, 16, v41
          v_lshlrev_b32 v47, 16, v43
          v_rcp_f32 v44, v44
          v_rcp_f32 v45, v45
          v_readfirstlane_b32 s47, v5
          s_sub_u32 s47, s47, 1
          s_cmp_ge_u32 s29, 28
          s_cbranch_scc1 K_NOFFN
          s_setprio 3""")
    stamp(a, 4, 2)
    NE = nC() if OPT["g1split"] else 0
    def gemv1(us):
        P = Pipe(a, maxfly=14)
        for n, (u, t) in enumerate((u, t) for u in us for t in range(2)):
            k, mat = u // 2, u % 2
            b = 64 + 4 * (n % 6)
            P.load(f"ds_read_b64_tr_b16 v[{b}:{b+1}], v{11 + t} offset:{32768*mat + 8192*k}", n - 6)
            lid = P.load(f"ds_read_b64_tr_b16 v[{b+2}:{b+3}], v{11 + t} offset:{32768*mat + 8192*k + 1024}", n - 6)
            d = 16 + 8 * t + 4 * mat
            c = "0" if k == 0 else f"v[{d}:{d+3}]"
            P.step(f"v_mfma_f32_16x16x32_bf16 v[{d}:{d+3}], v[{XA+4*k}:{XA+4*k+3}], v[{b}:{b+3}], {c}", [lid])
        P.run()
    if True:
        lds_wait(a, "K_EW", 92, "v15", SY + 112, "v_cmp_gt_u32 vcc, 8, v92", OPT["gsl"])
        gemv1(range(NE))
    lds_wait(a, "K_GW", 92, "v15", SY + 24, "v_cmp_gt_u32 vcc, 8, v92", OPT["gsl"])
    stamp(a, 5, 2)
    gemv1(range(NE, 8))
    a("""s_mov_b32 exec_lo, 0xffff0000
         s_mov_b32 exec_hi, 0""")
    for r in (16, 17, 18, 20, 21, 22): a(f"v_mov_b32 v{r}, v{r+8}")
    a(f"""s_mov_b32 exec_lo, -1
          v_fma_f32 v16, -v46, v18, v16
          v_fma_f32 v17, -v47, v18, v17
          v_fma_f32 v18, -v46, v22, v20
          v_fma_f32 v19, -v47, v22, v21
          v_mul_f32 v16, v16, v44
          v_mul_f32 v17, v17, v45
          v_mul_f32 v19, v19, v45
          v_mul_f32 v18, v18, v44
          v_perm_b32 v32, v16, v19, s12
          v_perm_b32 v33, v17, v19, s13
          v_perm_b32 v34, v18, v19, s14
          buffer_store_dwordx4 v[32:35], v95, s[32:35], s73 offen sc1
          s_mov_b32 exec_hi, -1
        K_NOFFN:""")
    stamp(a, 6, 2)
    a(f"""s_cmp_lg_u32 s30, 1
          s_cbranch_scc1 K_NOFP
          s_setprio {OPT['fprio']}
          v_and_b32 v3, 16, v1
          v_lshrrev_b32 v3, 1, v3
          ds_read_b64 v[100:101], v3 offset:{SY + 96}
          v_and_b32 v7, 3, v1
          v_lshl_add_u32 v5, v7, 3, s3
          v_lshlrev_b32 v5, 1, v5               ; 2 * channel
          global_load_ushort v102, v5, s[54:55]
          v_lshrrev_b32 v106, 2, v1
          v_lshlrev_b32 v106, 11, v106
          v_lshl_add_u32 v106, v7, 4, v106
          s_lshl_b32 s61, s29, 6
          s_add_u32 s60, s77, s61
          s_add_u32 s61, s60, 0x8000
          s_waitcnt lgkmcnt(0)
          v_not_b32 v6, v100
          v_and_b32 v6, 0xffe, v6               ; 2 * row
          v_lshl_add_u32 v104, v7, 12, v6       ; y address
          v_lshl_add_u32 v107, v6, 10, v5
          global_load_ushort v103, v107, s[44:45]
          v_and_b32 v5, s31, v100
          v_ashrrev_i32 v3, 31, v5
          v_not_b32 v3, v3
          v_or_b32 v3, 0x80000000, v3
          v_xor_b32 v5, v5, v3
          v_and_b32 v5, s31, v5
          v_mul_f32 v105, s58, v5
          v_exp_f32 v105, -v105
          v_and_b32 v108, s31, v101
          v_lshlrev_b32 v101, 16, v101
          v_add_f32 v105, 1.0, v105
          v_rcp_f32 v105, v105
          v_rcp_f32 v109, v108
          v_fma_f32 v108, -v108, v109, 1.0
          v_fmac_f32 v109, v108, v109
          v_cvt_pk_bf16_f32 v105, 0, v105
          s_setprio 3
          s_branch K_FPD
        K_NOFP:
          {"s_sleep " + str(OPT["xsl"]) if OPT["xsl"] else ""}
        K_FPD:
          s_cmp_ge_u32 s29, 28
          s_cbranch_scc1 K_NOG2
          s_mov_b32 s83, {SPIN:#x}
          """)
    exl = "\n".join(f"buffer_load_dwordx4 v[{64+4*k}:{67+4*k}], v14, s[32:35], s{62+k} offen sc1" for k in range(4))
    WB = lambda n: (40, 44, 80, 84, 112, 116, 120, 124)[n]
    stamp(a, 5, 4)
    a(exl)
    if OPT["wd1"] < 8:
        a(f"""s_mov_b64 exec, 1
              ds_add_u32 v15, v93 offset:{SY + 44}
              s_mov_b64 exec, -1""")
    a("s_waitcnt vmcnt(0)")
    stamp(a, 6, 4)
    lds_wait(a, "K_WW", 92, "v15", SY + 124, "v_cmp_gt_u32 vcc, 4, v92", OPT["hsl"])
    for n in range(8):
        a(f"""ds_read_b64_tr_b16 v[{WB(n)}:{WB(n)+1}], v9 offset:{8192*(n//2) + 8*(n%2)}
              ds_read_b64_tr_b16 v[{WB(n)+2}:{WB(n)+3}], v9 offset:{8192*(n//2) + 8*(n%2) + 1024}""")
        if n == 5: a("s_waitcnt lgkmcnt(8)")
    a(f"""{"s_mov_b32 s80, 1" if OPT["dbg"] else ""}
          v_bitop3_b32 v92, v67, v71, v90 bitop3:0x7e
          v_bitop3_b32 v88, v75, v79, v90 bitop3:0x7e
          v_or_b32 v92, v92, v88
          v_cmp_ne_u32 vcc, 0, v92
          s_cbranch_vccnz K_P4
        K_P4D:""")
    stamp(a, 7, 2)
    for k in range(4): a(f"v_perm_b32 v{67+4*k}, v{64+4*k}, v{65+4*k}, s15")
    for k in range(4): a(f"v_perm_b32 v{67+4*k}, v{67+4*k}, v{66+4*k}, s16")
    for r in range(8): a(f"v_add_f32 v{64+r}, v{64+r}, v{72+r}")
    for r in range(4): a(f"v_add_f32 v{64+r}, v{64+r}, v{68+r}")
    a(f"""v_permlane32_swap_b32 v64, v65
          v_permlane32_swap_b32 v66, v67
          v_add_f32 v64, v64, v65               ; lanes (tok, f): gate
          v_add_f32 v66, v66, v67               ; up
          v_cvt_pk_bf16_f32 v64, 0, v64
          v_cvt_pk_bf16_f32 v66, 0, v66
          v_mul_f32 v65, 0xbfb8aa3b, v64
          v_exp_f32 v65, v65
          v_add_f32 v65, 1.0, v65
          v_rcp_f32 v65, v65
          v_mul_f32 v65, v65, v64
          v_cvt_pk_bf16_f32 v65, 0, v65
          v_mul_f32 v65, v65, v66
          v_cvt_pk_bf16_f32 v65, v65, v65
          ds_write_b16 v13, v65
          s_mov_b64 exec, 1
          ds_add_u32 v15, v93 offset:{SY + 116}
          s_mov_b64 exec, -1""")
    lds_wait(a, "K_HW", 92, "v15", SY + 116, "v_cmp_gt_u32 vcc, 4, v92", 0)
    stamp(a, 7, 4)
    for k in range(4): a(f"ds_read_b128 v[{XA+4*k}:{XA+4*k+3}], v10 offset:{HB - XS + 64*k}")
    for n in range(8):
        k, t = n // 2, n % 2
        d = 16 + 4 * t
        if t == 0: a(f"s_waitcnt lgkmcnt({3 - k})")
        a(f"v_mfma_f32_16x16x32_bf16 v[{d}:{d+3}], v[{XA+4*k}:{XA+4*k+3}], v[{WB(n)}:{WB(n)+3}], {'0' if k == 0 else f'v[{d}:{d+3}]'}")
    a("""s_mov_b64 exec, 0xffff
         v_mov_b32 v18, v90
         v_mov_b32 v22, v90""")
    both_modes(a, "K_DS", """buffer_store_dwordx3 v[16:18], v8, s[32:35], s57 offen @
                             buffer_store_dwordx3 v[20:22], v8, s[32:35], s57 offen offset:256 @""")
    a("""s_mov_b64 exec, -1
       K_NOG2:""")
    stamp(a, 6, 0)
    dpl = """buffer_load_dwordx3 v[48:50], v106, s[32:35], s60 offen sc1
             s_mov_b32 exec_hi, 0x5ffff
             buffer_load_dwordx3 v[52:54], v106, s[32:35], s61 offen sc1
             s_mov_b32 exec_hi, -1"""
    a(f"""s_cmp_lg_u32 s30, 1
          s_cbranch_scc1 K_CDONE
          s_branch K_YAB
        K_YA:
          s_sleep 2
        K_YAB:
          ds_read_b128 v[32:35], v15 offset:{SY + 48}
          ds_read_u16 v40, v104 offset:{TB}
          s_waitcnt lgkmcnt(1)
          v_and_b32 v92, v32, v33
          v_bitop3_b32 v92, v92, v34, v35 bitop3:0x80
          v_cmp_ne_u32 vcc, 8, v92
          s_cbranch_vccnz K_YA
          v_mov_b32 v52, 0
          v_mov_b32 v53, 0
          v_mov_b32 v54, v90""")
    a(dpl)
    a(f"""s_mov_b32 s83, {SPIN:#x}
          s_waitcnt vmcnt(2) lgkmcnt(0)
          v_lshlrev_b32 v103, 16, v103
          v_lshlrev_b32 v102, 16, v102
          v_lshlrev_b32 v40, 16, v40
          v_sub_f32 v25, v103, v101
          v_cvt_pk_bf16_f32 v25, 0, v25
          v_mul_f32 v25, v25, v109
          v_cvt_pk_bf16_f32 v25, 0, v25         ; u
          v_mul_f32 v26, v25, v102
          v_cvt_pk_bf16_f32 v26, 0, v26
          v_add_f32 v26, v26, v40
          v_cvt_pk_bf16_f32 v26, 0, v26         ; s
          s_waitcnt vmcnt(0)
          s_branch K_DC
        K_DP:""")
    a(dpl)
    a(f"""s_sub_u32 s83, s83, 1
          s_waitcnt vmcnt(0)
          s_cbranch_scc1 K_DD
        K_DC:
          v_bitop3_b32 v92, v50, v54, v90 bitop3:0x7e
          v_cmp_ne_u32 vcc, 0, v92
          s_cbranch_vccnz K_DP
        K_DD:""")
    stamp(a, 7, 0)
    a("""v_pk_add_f32 v[48:49], v[48:49], v[52:53]
         v_permlane16_swap_b32 v48, v49
         v_add_f32 v48, v48, v49
         v_mov_b32 v49, v48
         v_permlane32_swap_b32 v48, v49
         v_add_f32 v48, v48, v49""")
    for mod in ("row_ror:4", "row_ror:8"):
        a(f"v_add_f32_dpp v48, v48, v48 {mod} row_mask:0xf bank_mask:0xf")
    a("""v_cvt_pk_bf16_f32 v48, 0, v48
         v_mul_f32 v20, v48, v105
         v_cvt_pk_bf16_f32 v20, 0, v20
         v_add_f32 v20, v20, v25
         v_cvt_pk_bf16_f32 v20, 0, v20
         v_mul_f32 v23, 0xbfb8aa3b, v20
         v_exp_f32 v23, v23
         v_add_f32 v23, 1.0, v23
         v_rcp_f32 v23, v23
         v_mul_f32 v23, v23, v20
         v_cvt_pk_bf16_f32 v23, 0, v23
         v_mul_f32 v23, v23, v26
         v_cvt_pk_bf16_f32 v23, 0, v23
         v_add_f32 v23, v23, v103
         v_cvt_pk_bf16_f32 v23, v23, v23
         s_mov_b64 exec, 0x000f000f
         global_store_short v107, v23, s[26:27]
       K_CDONE:""")
    stamp_flush(a, 8)
    a(f"""K_P4:
          {"s_sleep " + str(OPT["rsl"]) if OPT["rsl"] else ""}
          {"s_add_u32 s80, s80, 1" if OPT["dbg"] else ""}""")
    for k in range(4):
        a(f"""v_cmp_ne_u32 vcc, v{67+4*k}, v90
              s_cbranch_vccz K_P4_{k}
              s_mov_b64 exec, vcc
              buffer_load_dwordx4 v[{64+4*k}:{67+4*k}], v14, s[32:35], s{62+k} offen sc1
              s_mov_b64 exec, -1
            K_P4_{k}:""")
    a("""s_sub_u32 s83, s83, 1
         s_waitcnt vmcnt(0)
         v_bitop3_b32 v92, v67, v71, v90 bitop3:0x7e
         v_bitop3_b32 v88, v75, v79, v90 bitop3:0x7e
         s_cbranch_scc1 K_P4D
         v_or_b32 v92, v92, v88
         v_cmp_ne_u32 vcc, 0, v92
         s_cbranch_vccnz K_P4
         s_branch K_P4D""")

def sumw(a):
    a(f"""s_cmp_lg_u32 s30, 1
          s_cbranch_scc1 K_NOSW
          v_mov_b32 v56, 0""")
    for i in range(8): a(f"v_dot2c_f32_bf16 v56, 0x3f803f80, v{48+i}")
    wave_reduce(a, "v_add_f32", [56])
    a(f"""v_or_b32 v56, 1, v56
          s_mov_b32 exec_lo, 0
          s_mov_b32 exec_hi, 0x80000000
          ds_write_b32 {Z}, v56 offset:{SY + 4}
          s_mov_b64 exec, -1
        K_NOSW:""")

def k4():
    a = Asm()
    name = "recurrent_scan__ssm_conv_s4d__moe_arch_mod__prompt_kernel"
    a.raw(f".p2align 8\n.globl {name}\n.type {name},@function\n{name}:")
    a("""s_cmp_ge_u32 s2, 256
         s_cbranch_scc1 K_END""")
    if OPT["dbg"]:
        for i in range(80, 102): a(f"s_mov_b32 s{i}, 0")
    stamp(a, 0)
    a(f"""s_load_dwordx2 s[44:45], s[0:1], 0
          s_load_dwordx16 s[4:19], s[0:1], 8
          s_load_dwordx8 s[20:27], s[0:1], 72
          s_load_dwordx4 s[40:43], s[0:1], 104
          v_readfirstlane_b32 s30, v0
          v_and_b32 v1, 63, v0
          s_and_b32 s28, s2, 7
          s_lshr_b32 s29, s2, 3
          s_mov_b32 s31, 0xffff0000
          s_mov_b32 s58, {L2E_HI:#x}
          s_lshr_b32 s30, s30, 6
          s_cmp_ge_u32 s30, 8
          s_cbranch_scc1 K_C""")
    e_path(a)
    a.raw(".p2align 6")
    a("K_C:")
    c_path(a)
    a("""K_END:
         s_endpgm""")
    a.raw(".p2align 4\n.type K_BAND,@object\n.size K_BAND, 5120\nK_BAND:")
    for off, w in ((10, 4), (13, 2), (12, 8), (11, 6), (10, 6)):
        for lane in range(64):
            h = [0x3c00 if 0 <= (lane & 15) - 8 * (lane >> 4) + off - jj <= w else 0 for jj in range(8)]
            a.raw(".long " + ", ".join(f"{h[2*i] | h[2*i+1] << 16:#x}" for i in range(4)))
    return a.finish(), desc(name, 128, 102 if OPT["dbg"] else 96)

if __name__ == "__main__":
    for kv in sys.argv[2:]:
        k, v = kv.split("=")
        assert k in OPT, k
        OPT[k] = int(v) if v.lstrip("-").isdigit() else v.replace("+", " ")
    hdr = open("recurrent_scan__ssm_conv_s4d__moe_arch_mod__prompt.s.ref").read().split("\n")
    out = [l for l in hdr if l.startswith(";") and "@launch" not in l and "Override launch" not in l and "grid=ceil" not in l]
    out.append(f"; @launch grid=(256,1,1) block=(1024,1,1) lds={LDS}")
    out.append('.amdgcn_target "amdgcn-amd-amdhsa--gfx950"\n.text')
    b, d = k4()
    out += [b, '.section .rodata,"a"', d]
    open(sys.argv[1], "w").write("\n".join(out))
```

```python
import sys, os
sys.path.insert(0, os.path.dirname(os.path.abspath(__file__)))
import asmlib
from asmlib import Asm

WBYTES = 0 if any(x.startswith("exp=") and int(x[4:]) & 1 for x in sys.argv) else 1024 * 3584 * 2
WS_PS = 0x100000
WS_CI = 0x400000
WS_KM = 0x441000
WS_EX = 0x450000
WS_DP = 0x500000
WS_EP = 0x000000
STEP = 0x9e3779b9
WS_STAMP = 0x700000
WS_SIZE = 0x800000

OPT = dict(dbg=0, grp=0, w0=1, w1=0, w2=0, wdp=0, rsl=2, ko=0, ptn=4, ppos=1, sws=90, npre=4, cie=0, dpl=0, tlb=0, csl=1, wb=0, wbsl=0, g1split=1, ncopy=3, tsl=0, uthr=8, wfirst=0, kearly=0, elate=0, kt=0, ku=0, usl=1, old=5, flate=12, lsl=0, xwsl=4, ugate=1,  mid=0, scal=1, lprio=2, wd0=2, wd1=8, csend=0, kprio=2, gwait=2, dsl=2, wsl=0, hp=0, hfly=1, hprio=3, gsl=1, hsl=1, xsl=8, clat=3, mt=1, cfly=12, fchk=-1, fstep=1, ywsl=6, kp="1:u,50:u,100:u,150:u", sprio=0, xpace=2, ysl=0, xfirst=1, wbat=8, klat=3, wfl="nt", xfl="", pace=2, slow=0, eprio=3, pprio=0, nprio=1, fprio=0, gprio=3, lean=0, ipf=1,
           psl=0, pt=0, isl=0, exp=0, early=2, cdone=8, outfl="", nsl=0)

L2E_HI, L2E_LO, LN2 = 0x3fb8aa3b, 0x32a57060, 0x3f317218
I2PI_LO = 0x31dc9c88
SY = 0
UA, UROW, UPAD = 768, 4640, 272
KG = UA + 4 * UROW
KGC = 9216
TB = (KG + 4 * KGC + 255) // 256 * 256
DELTA = 1986
R2B, R3B = 1120, 1632
BAND = TB + 16384
PRM = BAND + 5120
JUNK = PRM + 4096
WDN = KG
F_W = JUNK + 2048
XS = F_W + 65536
HB = XS + 1280
LDS = HB + 1280
KA = 76
TAGM = 0x00030003
SPIN = 0x20000

def stamp(a, i, group=None):
    if OPT["dbg"] and (group is None or group == OPT["grp"]):
        a(f"{'s_memtime' if OPT['dbg'] == 2 else 's_memrealtime'} s[{84+2*i}:{85+2*i}]")

def stamp_flush(a, add):
    if OPT["dbg"]:
        a(f"""s_waitcnt vmcnt(0)
              {'s_memtime' if OPT['dbg'] == 2 else 's_memrealtime'} s[100:101]
              s_mov_b64 exec, 1
              s_lshl_b32 s82, s2, 4
              s_add_u32 s82, s82, s30
              s_add_u32 s82, s82, {add}
              s_lshl_b32 s82, s82, 6
              s_add_u32 s82, s82, {WS_STAMP:#x}
              v_mov_b32 v2, 0
              s_waitcnt lgkmcnt(0)""")
        for i in range(9):
            a(f"v_mov_b32 v{4+i}, s{84+2*i}")
        a("""v_mov_b32 v13, s80
             v_mov_b32 v14, s81
             v_mov_b32 v15, s83""")
        for i in range(3):
            a(f"buffer_store_dwordx4 v[{4+4*i}:{7+4*i}], v2, s[32:35], s82 offen offset:{16*i}")
    a("s_endpgm")

def lds_wait(a, label, reg, addr, off, cond, sleep=1):
    a(f"""s_branch {label}B
        {label}:
          {"s_sleep " + str(sleep) if sleep else ""}
        {label}B:
          ds_read_b32 v{reg}, {addr} offset:{off}
          s_waitcnt lgkmcnt(0)
          {cond}
          s_cbranch_vccnz {label}""")

def both_modes(a, label, text, mode="s47"):
    a(f"""s_cmp_lg_u32 {mode}, 0
          s_cbranch_scc1 {label}_W""")
    a(text.replace("@", ""))
    a(f"""s_branch {label}_D
        {label}_W:""")
    a(text.replace("@", "sc1"))
    a(f"{label}_D:")

def transpose4(a, *bases):
    for b in bases:
        a(f"""v_permlane32_swap_b32 v{b}, v{b+2}
              v_permlane32_swap_b32 v{b+1}, v{b+3}""")
    for b in bases:
        a(f"""v_permlane16_swap_b32 v{b}, v{b+1}
              v_permlane16_swap_b32 v{b+2}, v{b+3}""")

def rows4(a, r):
    a(f"""v_permlane16_swap_b32 v{r}, v{r+1}
          v_permlane16_swap_b32 v{r+2}, v{r+3}
          v_add_f32 v{r}, v{r}, v{r+1}
          v_add_f32 v{r+2}, v{r+2}, v{r+3}
          v_permlane32_swap_b32 v{r}, v{r+2}
          v_add_f32 v{r}, v{r}, v{r+2}""")

def top2(a, k, t, s0, s1, m):
    a(f"v_mov_b32 v{t}, v{k}")
    wave_reduce(a, "v_max_u32", [t])
    a(f"""v_readlane_b32 s{s0}, v{t}, 63
          v_cmp_ne_u32 s[{m}:{m+1}], s{s0}, v{k}
          v_cndmask_b32 v{t}, 0, v{k}, s[{m}:{m+1}]""")
    wave_reduce(a, "v_max_u32", [t])
    a(f"v_readlane_b32 s{s1}, v{t}, 63")

def srd(a, d, lo, hi, size):
    a(f"""s_mov_b32 s{d}, s{lo}
          s_mov_b32 s{d+1}, s{hi}
          s_mov_b32 s{d+2}, {size:#x}
          s_mov_b32 s{d+3}, 0x00020000""")

def wave_reduce(a, op, regs):
    for mod in ("quad_perm:[1,0,3,2] row_mask:0xf", "quad_perm:[2,3,0,1] row_mask:0xf", "row_half_mirror row_mask:0xf",
                "row_mirror row_mask:0xf", "row_bcast:15 row_mask:0xa", "row_bcast:31 row_mask:0xc"):
        for r in regs:
            a(f"{op}_dpp v{r}, v{r}, v{r} {mod} bank_mask:0xf")

def desc(name, vgpr, sgpr):
    return f""".p2align 6
.amdhsa_kernel {name}
  .amdhsa_next_free_vgpr {vgpr}
  .amdhsa_next_free_sgpr {sgpr}
  .amdhsa_accum_offset {(vgpr + 3) // 4 * 4}
  .amdhsa_group_segment_fixed_size 0
  .amdhsa_kernarg_size 120
  .amdhsa_user_sgpr_count 2
  .amdhsa_user_sgpr_kernarg_segment_ptr 1
  .amdhsa_system_sgpr_workgroup_id_x 1
.end_amdhsa_kernel
"""

def exp_acc(a, d, x, t0, t1, sL2E, sL2ELO, sLN2):
    a(f"""v_mul_f32 v{t0}, s{sL2E}, v{x}
          v_fma_f32 v{t1}, v{x}, s{sL2E}, -v{t0}
          v_exp_f32 v{d}, v{t0}
          v_fmac_f32 v{t1}, s{sL2ELO}, v{x}
          v_mul_f32 v{t1}, s{sLN2}, v{t1}
          v_fmac_f32 v{d}, v{d}, v{t1}""")

def pair_sync(a, k, label):
    a(f"""v_mov_b32 v94, {k}
          ds_write_b32 v92, v94 offset:{SY + 64}
          s_branch {label}B
        {label}:
        {label}B:
          ds_read_b32 v94, v93 offset:{SY + 64}
          s_waitcnt lgkmcnt(0)
          v_cmp_gt_u32 vcc, {k}, v94
          s_cbranch_vccnz {label}""")
    stamp(a, 6, 1)
    for n in range(nC() - OPT["kt"] - OPT["ku"], nC() - OPT["ku"]): unit(a, n, UC)
    if OPT["ko"]:
        assert not OPT["kt"] + OPT["ku"]
        a(f"""s_cmp_ge_u32 s30, 4
              s_cbranch_scc1 {label}_NO""")
        for n in range(nC() - OPT["ko"], nC()):
            k, mat = n // 2, n % 2
            unit(a, n, UC)
            a(f"""s_add_u32 m0, s36, {mat * 32768 + k * 8192 + 4096}
                  s_add_u32 s60, s{16+k}, {16 * 7168}
                  buffer_load_dwordx4 v88, s[{4+4*mat}:{7+4*mat}], s60 offen {OPT['wfl']} lds""")
        a(f"{label}_NO:")

def kgen_setup(a):
    a(f"""s_lshl_b32 s68, s52, 12
          s_add_u32 s68, s68, {TB}
          s_lshl_b32 s67, s53, 11
          s_add_u32 s67, s67, s68
          v_add_u32 v90, s67, v95
          ds_write_b128 v90, v[20:23]
          ds_write_b128 v90, v[20:23] offset:1024
          s_mov_b32 s67, {L2E_LO:#x}
          s_mov_b32 s71, {LN2:#x}
          s_lshl_b32 s61, s30, 2
          v_mov_b32 v92, s61
          s_xor_b32 s61, s61, 4
          v_mov_b32 v93, s61                    ; partner's
          ; scratch: role 1 wave uses [0,4608), role 0 wave [4608,9216) of the channel area
          s_mul_i32 s69, s52, {KGC}
          s_add_u32 s69, s69, {KG}
          s_xor_b32 s70, s53, 1
          s_mul_i32 s70, s70, 4608
          s_add_u32 s70, s70, s69
          s_sub_u32 m0, s70, 16384
          v_mul_u32_u24 v41, 288, v96
          v_lshl_add_u32 v41, v97, 4, v41
          v_add_u32 v41, s70, v41
          v_add_u32 v99, s69, v95""")

def near_table(a, tag):
    K0, K1, K2 = KA, KA + 4, KA + 8
    a(f"""
          ds_write_b128 v99, v[{K1}:{K1+3}] offset:5120
          ds_write_b128 v99, v[{K2}:{K2+3}] offset:6144
          """)
    pair_sync(a, 1, tag + "_PS1")
    a(f"""ds_read_b128 v[16:19], v99 offset:1024
          ds_read_b128 v[24:27], v99
          s_waitcnt lgkmcnt(1)
          v_pk_add_f32 v[{K1}:{K1+1}], v[{K1}:{K1+1}], v[16:17]
          v_pk_add_f32 v[{K1+2}:{K1+3}], v[{K1+2}:{K1+3}], v[18:19]
          s_waitcnt lgkmcnt(0)
          v_pk_add_f32 v[{K0}:{K0+1}], v[{K0}:{K0+1}], v[24:25]
          v_pk_add_f32 v[{K0+2}:{K0+3}], v[{K0+2}:{K0+3}], v[26:27]
          v_mov_b32_dpp v28, v{K1} row_shl:1 row_mask:0xf bank_mask:0xf
          v_writelane_b32 v28, 0, 33
          s_mov_b32 exec_hi, 3
          v_cndmask_b32 v29, v{K1}, v{K1+1}, s[72:73]
          v_cndmask_b32 v30, v{K1+1}, v{K1+2}, s[72:73]
          v_cndmask_b32 v28, v28, v{K1+3}, s[72:73]
          v_cvt_pk_f16_f32 v16, v28, v30
          v_cvt_pk_f16_f32 v17, v30, v30
          v_cvt_pk_f16_f32 v18, v29, v{K1}
          v_cvt_pk_f16_f32 v19, v{K1}, v{K1}
          v_cvt_pk_f16_f32 v20, v30, v29
          ds_write_b16 v124, v16
          ds_write2_b32 v126, v17, v20 offset0:0 offset1:1
          ds_write_b32 v126, v19 offset:8
          ds_write_b16 v124, v19 offset:14
          ds_write2_b32 v127, v16, v17 offset0:0 offset1:1
          ds_write2_b32 v127, v18, v19 offset0:2 offset1:3
          s_mov_b32 exec_hi, -1
          v_cvt_pk_f16_f32 v24, v{K0+3}, v{K0+2}
          v_cvt_pk_f16_f32 v25, v{K0+1}, v{K0}
          v_cvt_pk_f16_f32 v26, v{K0+2}, v{K0+1}
          ds_write_b64 v125, v[24:25]
          ds_write_b16 v125, v24 offset:{DELTA}
          ds_write_b32 v125, v26 offset:{DELTA+2}
          ds_write_b16_d16_hi v125, v25 offset:{DELTA+6}
          """)

def far_table(a, tag):
    K0, K1, K2 = KA, KA + 4, KA + 8
    a(f"""
          ds_write_b128 v99, v[{K0}:{K0+3}]
          ds_write_b128 v99, v[{K1}:{K1+3}] offset:1024
          s_nop 0""")
    pair_sync(a, 1, tag + "_PS2")
    a(f"""ds_read_b128 v[16:19], v99 offset:5120
          ds_read_b128 v[20:23], v99 offset:6144
          s_waitcnt lgkmcnt(1)
          v_pk_add_f32 v[{K1}:{K1+1}], v[{K1}:{K1+1}], v[16:17]
          v_pk_add_f32 v[{K1+2}:{K1+3}], v[{K1+2}:{K1+3}], v[18:19]
          s_waitcnt lgkmcnt(0)
          v_pk_add_f32 v[{K2}:{K2+1}], v[{K2}:{K2+1}], v[20:21]
          v_pk_add_f32 v[{K2+2}:{K2+3}], v[{K2+2}:{K2+3}], v[22:23]
          v_cvt_pk_f16_f32 v16, v{K1}, v{K1+1}
          v_cvt_pk_f16_f32 v17, v{K1+2}, v{K1+3}
          v_cvt_pk_f16_f32 v18, v{K2}, v{K2+1}
          v_cvt_pk_f16_f32 v19, v{K2+2}, v{K2+3}
          v_cvt_pk_f16_f32 v89, v{K2}, v{K2}
          s_mov_b32 exec_lo, 0
          ds_write_b16 v125, v17
          ds_write_b16 v125, v17 offset:{DELTA}
          ds_write_b16_d16_hi v124, v17
          ds_write_b16_d16_hi v124, v17 offset:{DELTA}
          s_mov_b32 exec_hi, -4
          ds_write_b16 v125, v16 offset:16
          ds_write_b16 v125, v16 offset:{DELTA+16}
          ds_write_b16_d16_hi v124, v16 offset:16
          ds_write_b16_d16_hi v124, v16 offset:{DELTA+16}
          s_mov_b32 exec_hi, 1
          s_mov_b32 exec_lo, -2
          ds_write_b16 v126, v18 offset:48
          ds_write_b16 v126, v18 offset:{DELTA+48}
          s_mov_b32 exec_hi, 0
          s_mov_b32 exec_lo, -1
          ds_write_b16_d16_hi v126, v18 offset:32
          ds_write_b16_d16_hi v126, v18 offset:{DELTA+32}
          ds_write_b16 v126, v19 offset:16
          ds_write_b16 v126, v19 offset:{DELTA+16}
          ds_write_b16_d16_hi v126, v19
          ds_write_b16_d16_hi v126, v19 offset:{DELTA}
          s_mov_b64 exec, -1
          """)

class Pipe:
    def __init__(self, a, maxfly=12):
        self.a = a; self.ops = []; self.steps = []; self.maxfly = maxfly
    def load(self, text, gate=-1, urgent=False):
        self.ops.append([text, gate, urgent]); return len(self.ops) - 1
    def step(self, text, need=()):
        self.steps.append((text, list(need))); return len(self.steps) - 1
    def last(self):
        return len(self.steps) - 1
    def run(self, per_step=99):
        a = self.a; seq = {}; done = [0]; pend = list(range(len(self.ops)))
        def issue(n):
            if len(seq) - done[0] >= 15:
                a("s_waitcnt lgkmcnt(8)"); done[0] = len(seq) - 8
            a(self.ops[n][0]); seq[n] = len(seq); pend.remove(n)
        for i, (text, need) in enumerate(self.steps + [("", [])]):
            for n in [n for n in pend if self.ops[n][2] and self.ops[n][1] < i]: issue(n)
            k = 0
            for n in [n for n in pend if not self.ops[n][2]]:
                if self.ops[n][1] >= i or len(seq) - done[0] >= self.maxfly or k >= per_step: break
                issue(n); k += 1
            for n in need:
                for m in [m for m in pend if m <= n and not self.ops[m][2]]:
                    assert self.ops[m][1] < i, "load gated behind its own consumer"
                    issue(m)
            if need:
                top = max(seq[n] for n in need)
                if done[0] <= top:
                    a(f"s_waitcnt lgkmcnt({len(seq) - top - 1})"); done[0] = top + 1
            a(text)
        assert not pend

def kgen_main(a):
    a("""s_waitcnt lgkmcnt(5)
         v_mul_f32 v2, 0x3fb8aa3b, v2
         s_waitcnt lgkmcnt(4)
         v_mul_f32 v118, v3, v90
         v_exp_f32 v116, v2
         v_mul_f32 v119, 0x43000000, v118
         v_fract_f32 v118, v118
         v_fract_f32 v119, v119
         s_waitcnt lgkmcnt(2)
         v_and_b32 v6, 0x7fff7fff, v6
         v_and_b32 v7, 0x7fff7fff, v7
         v_cvt_pk_bf16_f32 v116, v116, v116
         v_pk_max_u16 v6, v6, v7
         v_and_b32 v116, 0xffff0000, v116
         v_pk_max_u16 v6, v6, v6 op_sel:[0,1] op_sel_hi:[1,0]
         v_mul_f32 v116, v116, v91
         v_sin_f32 v26, v119
         v_mul_f32 v120, 0x43000000, v116
         v_max_u32_dpp v6, v6, v6 quad_perm:[1,0,3,2] row_mask:0xf bank_mask:0xf
         v_exp_f32 v116, -v116
         v_cos_f32 v27, v119
         v_max_u32_dpp v6, v6, v6 quad_perm:[2,3,0,1] row_mask:0xf bank_mask:0xf
         v_cos_f32 v119, v118
         v_sin_f32 v118, v118
         v_max_u32_dpp v6, v6, v6 row_half_mirror row_mask:0xf bank_mask:0xf
         v_exp_f32 v120, -v120
         v_mul_f32 v119, v119, v116
         v_max_u32_dpp v6, v6, v6 row_mirror row_mask:0xf bank_mask:0xf
         v_mul_f32 v118, v118, v116
         v_mul_f32 v26, v26, v120
         v_max_u32_dpp v6, v6, v6 row_bcast:15 row_mask:0xa bank_mask:0xf
         v_mul_f32 v27, v27, v120
         v_add_f32 v117, v117, v117
         v_max_u32_dpp v6, v6, v6 row_bcast:31 row_mask:0xc bank_mask:0xf
         v_pk_mul_f32 v[24:25], v[118:119], v[118:119] op_sel:[1,0] op_sel_hi:[1,1]
         v_mul_f32 v6, v6, v117
         v_pk_fma_f32 v[24:25], v[118:119], v[118:119], v[24:25] op_sel:[1,0,0] op_sel_hi:[0,0,1] neg_hi:[1,0,0]
         v_readlane_b32 s78, v6, 63
         s_lshr_b32 s78, s78, 23
         s_max_u32 s78, s78, 33
         s_min_u32 s78, s78, 233
         s_sub_u32 s70, s78, 6
         s_sub_u32 s78, 260, s78
         s_lshl_b32 s70, s70, 23                ; 1 / scale
         s_lshl_b32 s78, s78, 23
         v_mul_f32 v117, s78, v117
         s_waitcnt lgkmcnt(0)
         v_mul_f32 v33, v4, v117
         v_mul_f32 v32, v5, v117""")
    stamp(a, 4, 1)
    BF, AF = 44, 60
    pool2 = [120, 122, 16, 18, 20, 22, 28, 30, 34, 36, 38]
    pool1 = list(range(100, 118)) + [2, 3, 4, 5, 6, 7, 40, 43, 90, 91]
    ops = []
    val = {"E1": 118, "E2": 24, "V1": 26, "G0": 32}
    def cm(d, x, y): ops.append(("mul", d, (x, y))); ops.append(("fma", d, (x, y, d + "'")))
    def ch(d, x, y): ops.append(("hmul", d, (x, y))); ops.append(("hfma", d, (x, y, d + "'")))
    def cv(x, neg): ops.append(("cvn" if neg else "cvt", x.lower(), (x,)))
    cm("E4", "E2", "E2"); cm("E3", "E2", "E1"); cm("Y1", "E4", "E4"); cm("Y2", "Y1", "Y1"); cm("Y4", "Y2", "Y2"); cm("Y8", "Y4", "Y4")
    cm("Y3", "Y2", "Y1"); cm("Y12", "Y8", "Y4")
    cm("V2", "V1", "V1"); cm("V4", "V2", "V2"); cm("V3", "V2", "V1"); cm("G1", "G0", "V1")
    for i in (4, 8, 12, 16): cm(f"G{i}", f"G{i-4}", "V4")
    for n in (1, 2, 3, 4): cv(f"E{n}", True)
    for n in (1, 2, 3, 4, 8, 12): cv(f"Y{n}", False)
    for n in (1, 2, 3): cv(f"V{n}", True)
    for n in (0, 1, 4, 8, 12, 16): cv(f"G{n}", True)
    for n in (5, 6, 7): ch(f"e{n}", "e4", f"e{n-4}")
    for n in range(5, 16):
        if n % 4: ch(f"y{n}", f"y{n & 12}", f"y{n & 3}")
    for n in range(2, 16):
        if n % 4: ch(f"g{n}", f"g{n & 12}", f"v{n & 3}")
    groups = [[(f"y{jj}", jj) for jj in (1, 2, 4, 3, 8, 5, 6, 7, 12, 9, 10, 11, 13, 14, 15)]]
    plan = [[(0, range(8)), (1, range(8))],
            [(2, (0, 2, 4, 6)), (3, (0, 2, 4, 6)), (4, (0, 4)), (5, (0, 4)), (6, (0, 4)), (7, (0, 4))],
            [(i2, (0,)) for i2 in range(8, 17)]]
    for tile in range(3):
        g = []
        for i2, ks in plan[tile]:
            for k in ks:
                if k:
                    ch(f"x{i2}_{k}", f"g{i2}", f"e{k}")
                    g.append((f"x{i2}_{k}", len(g)))
                else:
                    g.append((f"g{i2}", len(g)))
        groups.append(g)
    if OPT["xfirst"]: groups[0], groups[1] = groups[1], groups[0]
    flat = [r for g in groups for r in g]
    prod = {d: list(srcs[:2]) for kind, d, srcs in ops if kind != "mul" and kind != "hmul"}
    prio = {}
    def mark(v, pr):
        if prio.get(v, 1 << 30) <= pr: return
        prio[v] = pr
        for x in prod.get(v, []): mark(x, pr)
    for n, (v, _) in enumerate(flat): mark(v, n)
    for v in ("E4", "Y1", "Y2", "Y4", "Y8"): prio[v] = -1
    uses = {}
    for kind, d, srcs in ops:
        for x in srcs[:2]: uses[x] = uses.get(x, 0) + 1
    for v, _ in flat: uses[v] = uses.get(v, 0) + 1
    ready_at = {v: 0 for v in val}
    LAT = OPT["klat"]
    slot = [0]
    todo = paced(); nu = [OPT["w0"]]; sw = []
    def emit(t):
        if not sw and slot[0] >= OPT["sws"]:
            sw.append(1); sumw(a, OPT["w0"] + len(paced()) - len(todo) + 2 * (OPT["pt"] == 4))
        if not (OPT["exp"] & 128 and t.startswith(("v_pk", "v_cvt", "ds_write"))): a(t)
        slot[0] += 1
        while todo and todo[0][0] <= slot[0]:
            u = todo.pop(0)[1]
            if u[0] == "t":
                a(f"""s_mov_b32 m0, {JUNK}
                      buffer_load_dwordx4 v94, s[20:23], s{38 + int(u[1])} offen sc1 lds""")
            else:
                unit(a, nu[0], UC); nu[0] += 1
            a("s_mov_b32 m0, s37")
    def release(x):
        uses[x] -= 1
        if uses[x] == 0: (pool2 if x[0].isupper() else pool1).append(val[x])
    pend = list(ops)
    gi = 0; left = list(groups[0])
    mf = []; have = set()
    tile_of = {0: 0, 2: 1, 3: 2} if OPT["xfirst"] else {1: 0, 2: 1, 3: 2}
    yg = 1 if OPT["xfirst"] else 0
    def mfma(tile):
        for k in range(4):
            c = "0" if k == 0 else f"v[{KA+4*tile}:{KA+4*tile+3}]"
            emit(f"v_mfma_f32_16x16x32_f16 v[{KA+4*tile}:{KA+4*tile+3}], v[{AF+4*k}:{AF+4*k+3}], v[{BF+4*k}:{BF+4*k+3}], {c}")
    lds_after = [0]; lastw = [-9]
    if yg == 0: emit("ds_write_addtid_b32 v42 offset:16384")
    while pend or gi < len(groups) or mf:
        did = False
        rdy = [r for r in left if r[0] in ready_at and ready_at[r[0]] <= slot[0]]
        if rdy and (len(rdy) >= OPT["wbat"] or len(rdy) == len(left)):
            for v, row in rdy:
                left.remove((v, row))
                emit(f"ds_write_addtid_b32 v{val[v]} offset:{16384 + 288*row}"); lds_after[0] += 1; release(v)
            did = True
        elif gi < len(groups) and not left and (gi == yg or not mf):
            base = BF if gi == yg else AF
            for k in range(4):
                emit(f"ds_read_b128 v[{base+4*k}:{base+4*k+3}], v41 offset:{64*k}")
            lds_after[0] = 0
            if gi == yg: have.add("y"); mf = [(t, slot[0]) for t, _ in mf]
            else: mf.append((tile_of[gi], slot[0]))
            gi += 1; left = list(groups[gi]) if gi < len(groups) else []
            if gi == yg: emit("ds_write_addtid_b32 v42 offset:16384"); lds_after[0] += 1
            did = True
        elif mf and "y" in have and (slot[0] - mf[0][1] >= 24 or (not pend and gi >= len(groups)) or (gi < len(groups) and not left)):
            emit(f"s_waitcnt lgkmcnt({min(lds_after[0], 15)})")
            mfma(mf.pop(0)[0]); did = True
        if not did:
            best = None
            for n, (kind, d, srcs) in enumerate(pend):
                room = pool2 if kind == "mul" else pool1 if kind in ("hmul", "cvt", "cvn") else True
                if all(x in ready_at and ready_at[x] <= slot[0] for x in srcs) and room:
                    key = (prio[d], 0 if kind.endswith("fma") else 1)
                    if best is None or key < best[0]: best = (key, n)
            if best is not None:
                kind, d, srcs = pend.pop(best[1])
                x = val[srcs[0]]; y = val[srcs[1]] if len(srcs) > 1 else None
                if kind == "mul":
                    val[d] = r = pool2.pop(0)
                    emit(f"v_pk_mul_f32 v[{r}:{r+1}], v[{x}:{x+1}], v[{y}:{y+1}] op_sel:[1,0] op_sel_hi:[1,1]")
                elif kind == "fma":
                    r = val[d]
                    emit(f"v_pk_fma_f32 v[{r}:{r+1}], v[{y}:{y+1}], v[{x}:{x+1}], v[{r}:{r+1}] op_sel:[1,0,0] op_sel_hi:[0,0,1] neg_hi:[1,0,0]")
                elif kind == "hmul":
                    val[d] = r = pool1.pop(0)
                    emit(f"v_pk_mul_f16 v{r}, v{x}, v{y} op_sel:[0,0] op_sel_hi:[0,1]")
                elif kind == "hfma":
                    r = val[d]
                    emit(f"v_pk_fma_f16 v{r}, v{x}, v{y}, v{r} op_sel:[1,1,0] op_sel_hi:[1,0,1] neg_lo:[1,0,0]")
                else:
                    val[d] = r = pool1.pop(0)
                    emit(f"v_cvt_pk_f16_f32 v{r}, v{x+1}, {'-' if kind == 'cvn' else ''}v{x}")
                ready_at[d + "'" if kind.endswith("mul") else d] = slot[0] + LAT - 1
                for xx in srcs[:2]: release(xx)
                did = True
        if not did:
            slot[0] += 1
    assert not todo, slot[0]

class Sched:
    CAP = 2
    def __init__(self, a, old=5, maxfly=12):
        self.a = a; self.m = []; self.it = []; self.old = old; self.maxfly = maxfly
    def mfma(self, text, need=()):
        self.m.append((text, [x for x in need if x is not None])); return len(self.m) - 1
    def item(self, text, gate=-1, need=(), cost=1, lds=False, pri=None):
        self.it.append(dict(text=text, gate=gate, need=[x for x in need if x is not None], cost=cost, lds=lds, pri=pri, at=None, seq=None))
        return len(self.it) - 1
    def run(self):
        a, it = self.a, self.it
        dl = [len(self.m) + 1] * len(it)
        for g, (_, need) in enumerate(self.m):
            for x in need: dl[x] = min(dl[x], g)
        for n in reversed(range(len(it))):
            if it[n]["pri"] is not None: dl[n] = min(dl[n], it[n]["pri"])
            for x in it[n]["need"] + ([it[n]["issued"]] if "issued" in it[n] else []):
                dl[x] = min(dl[x], dl[n] - (self.old + 1 if it[n]["lds"] and it[n]["cost"] == 1 else 0))
        lead = lambda n: dl[n] - (self.old + 1 if it[n]["lds"] else 1)
        issued = []; done = [0]; self.over = 0
        def wait_for(xs, g):
            top = max([it[x]["seq"] for x in xs if it[x]["lds"]], default=-1)
            if top < done[0]: return 0
            while top + 1 < len(issued) and it[issued[top + 1]]["at"] <= g - self.old: top += 1
            a(f"s_waitcnt lgkmcnt({len(issued) - top - 1})"); done[0] = top + 1
            return 1
        def needs_wait(xs): return any(it[x]["lds"] and it[x]["seq"] >= done[0] for x in xs)
        def emit(n, g):
            c = wait_for(it[n]["need"], g) if not it[n]["lds"] or it[n]["cost"] > 1 or True else 0
            if it[n]["lds"]:
                if len(issued) - done[0] >= 15:
                    a("s_waitcnt lgkmcnt(10)"); done[0] = len(issued) - 10; c += 1
                it[n]["seq"] = len(issued); issued.append(n)
            a(it[n]["text"]); it[n]["at"] = g
            return c + it[n]["cost"]
        def force(n, g):
            c = 0
            if it[n]["at"] is None:
                if "issued" in it[n]: c += force(it[n]["issued"], g)
                for x in it[n]["need"]: c += force(x, g)
                c += emit(n, g)
            return c
        for g in range(len(self.m) + 1):
            need = self.m[g][1] if g < len(self.m) else range(len(it))
            used = sum(force(x, g) for x in need)
            room = (self.CAP if g else 8) - used - (1 if needs_wait(need) else 0)
            while room > 0:
                c = [n for n in range(len(it)) if it[n]["at"] is None and it[n]["gate"] < g and ("issued" not in it[n] or it[it[n]["issued"]]["at"] is not None)
                     and all(it[x]["at"] is not None and (not it[x]["lds"] or it[x]["at"] <= g - self.old or it[x]["seq"] < done[0]) for x in it[n]["need"])
                     and it[n]["cost"] + needs_wait(it[n]["need"]) <= room and not (it[n]["lds"] and len(issued) - done[0] >= self.maxfly)]
                if not c: break
                room -= emit(min(c, key=lambda n: (lead(n), n)), g)
            if room < 0 and 0 < g < len(self.m): self.over -= room
            if g < len(self.m):
                wait_for(need, g)
                a(self.m[g][0] if not OPT["exp"] & 2 else "")

def conv_sync(a, label):
    a(f"""v_mov_b32 v6, 0
          v_mov_b32 v7, 1
          s_waitcnt vmcnt(0)
          s_mov_b64 exec, 1
          ds_add_u32 v6, v7 offset:{SY + 112}
          s_mov_b64 exec, -1""")
    stamp(a, 3)
    lds_wait(a, label, 7, "v6", SY + 16, "v_cmp_gt_u32 vcc, 4, v7", OPT["csl"])
    stamp(a, 4, 0); stamp(a, 4, 2)

def conv(a):
    ACC = lambda j: 16 + 4 * j
    TBUF, T16 = [96, 104], 92
    NP = OPT["npre"]
    UN = [112, 116, 120, 124, 2] + list(range(128 + 8 * NP, 168, 4))
    TBP = lambda sl: 128 + 8 * (sl - 2) if 2 <= sl < 2 + NP else TBUF[(sl - NP * (sl >= 2)) % 2]
    assert NP == 4
    BN, MB = [88, 92, 128, 132], 136
    UF_ = [140, 144, 148, 116, 120]
    W = [152, 96]
    types = [((0, 1), (-24, -24), (R2B + 0, R2B + 384), 79, (2, 3, 4), 6, (48, 52, 56)),
             ((1, 0), (-16, -16), (R2B + 128, R2B + 256), 79, (2, 3, 4), 6, (60, 64, 68)),
             ((2, 3), (-24, -16), (R3B, R3B + 160), 127, (4, 5, 6, 7), 4, (72, 76, 80, 84))]
    a(f"""v_mov_b32 v8, s70""")
    def tl(dst, s):
        base, off = (10, 16 * (16 - s)) if s >= 8 else (11, 16 * (8 - s))
        return [f"ds_read2_b32 v[{dst}:{dst+1}], v{base} offset0:{off} offset1:{off+1}",
                f"ds_read2_b32 v[{dst+2}:{dst+3}], v{base} offset0:{off+2} offset1:{off+3}"]
    for dst, s in ((96, 0), (100, 8), (T16, 16), (104, 1), (108, 9)):
        for t in tl(dst, s): a(t)
    for sl in range(2, 2 + NP):
        a("s_waitcnt lgkmcnt(8)")
        for h in range(2):
            for t in tl(TBP(sl) + 4 * h, sl + 8 * h): a(t)
    far_loads = []
    for bands, bases, tbls, X, deltas, njp, TF in types:
        for di, D in enumerate(deltas):
            for i in range(2):
                imm = tbls[i] + 2 * (X - 16 * D) - 30 - R2B
                assert imm % 4 == 0 and 0 <= imm <= 1016
                far_loads.append((TF[di], f"ds_read2_b32 v[{TF[di]+2*i}:{TF[di]+2*i+1}], v14 offset0:{imm//4} offset1:{imm//4 + 1}"))
    for i in range(2): far_loads.append((BN[i], f"ds_read_b128 v[{BN[i]}:{BN[i]+3}], v13 offset:{1024*i}"))
    ld = {}
    if OPT["fchk"] < 0:
        lds_wait(a, "K_FW", 6, "v15", SY + 640, "v_cmp_eq_u32 vcc, 0, v6")
        a("v_readfirstlane_b32 s71, v6")
        for n, (r, t) in enumerate(far_loads[:-2]):
            a(t); ld[r] = None
            if n == 10: a("s_waitcnt lgkmcnt(4)")
        far_loads = far_loads[-2:]
    if OPT["csend"]:
        assert OPT["fchk"] < 0
        a("s_add_u32 s62, s52, 4")
        inbox(a, 0, 14, 6, 72, 61, "s62", 4096)
        srd(a, 20, 26, 27, 0x400000)
    a("v_mov_b32 v6, 0")
    lds_wait(a, "K_BW", 7, "v6", SY + 28, "v_cmp_gt_u32 vcc, 8, v7")
    a(f"s_setprio {OPT['nprio']}")
    conv_sync(a, "K_W1N")
    asmlib.MFMA_TIME = bool(OPT["mt"])
    S = Sched(a, OPT["old"], OPT["cfly"])
    started = set(); free = {}; fneed = {}
    def load(text, reg):
        return S.item(text, free.get(reg, -1), fneed.pop(reg, ()), lds=True)
    def accum(j, A, B, need=()):
        c = f"v[{ACC(j)}:{ACC(j)+3}]" if j in started else "0"
        started.add(j)
        return S.mfma(f"v_mfma_f32_16x16x32_f16 v[{ACC(j)}:{ACC(j)+3}], v[{A}:{A+3}], v[{B}:{B+3}], {c}", need)
    prev = []
    def finish(j, last):
        r = ACC(j); p = last + OPT["flate"]
        m = [S.item(f"v_mul_f32 v{r+k}, v{r+k}, v8", last + 3, pri=p) for k in range(4)]
        c0 = S.item(f"v_cvt_pk_bf16_f32 v{r}, v{r}, v{r+1}", -1, m, pri=p)
        c1 = S.item(f"v_cvt_pk_bf16_f32 v{r+1}, v{r+2}, v{r+3}", -1, [c0], pri=p)
        w = S.item(f"ds_write_b64 v9, v[{r}:{r+1}] offset:{512*j}", -1, [c1], cost=2, lds=True, pri=p)
        prev.append(w); fneed[r] = [mark(w)]
        if j % 4 == 3:
            mv = S.item(f"v_mov_b32 v7, {j + 1}", last, pri=p)
            S.item(f"ds_write_b32 v15, v7 offset:{SY + 48}", -1, [mv] + [mark(x) for x in prev], cost=2, lds=True, pri=p)
    def mark(w):
        n = S.item("", -1, [], cost=0); S.it[n]["issued"] = w
        return n
    frag = {}; nf = [0]; cv = {}
    def uload(base):
        if base not in frag:
            r = UF_[nf[0] % len(UF_)]; nf[0] += 1
            frag[base] = (r, load(f"ds_read_b128 v[{r}:{r+3}], v12 offset:{2*(UPAD + base)}", r))
        return frag[base]
    items = [(ti, jp) for jp in range(6) for ti in (0, 2, 1) if jp < types[ti][5]]
    def window(n, i):
        ti, jp = items[n]
        bands, bases = types[ti][:2]
        w, d = W[n % 2] + 4 * i, W[n % 2] + 2 * i
        r, lid = uload(256 * jp + bases[i])
        b = BN[bands[i]]
        if b not in ld: ld[b] = load(f"ds_read_b128 v[{b}:{b+3}], v13 offset:{1024*bands[i]}", b)
        free[r] = g = S.mfma(f"v_mfma_f32_16x16x32_f16 v[{w}:{w+3}], v[{r}:{r+3}], v[{b}:{b+3}], 0", [lid, ld[b]])
        c0 = S.item(f"v_cvt_pk_f16_f32 v{d}, v{w}, v{w+1}", g + OPT["clat"], cv.get(n, []))
        cv[n] = [S.item(f"v_cvt_pk_f16_f32 v{d+1}, v{w+2}, v{w+3}", -1, [c0])]
    nu = 0; tid = {sl: [None, None] for sl in range(2 + NP)}
    for sl in range(8):
        tb = TBP(sl)
        if sl + 1 not in tid and sl < 7:
            nb = TBP(sl + 1)
            tid[sl + 1] = [[load(t, nb) for t in tl(nb + 4 * h, sl + 1 + 8 * h)] for h in range(2)]
        if sl == 1:
            for r, t in far_loads: ld[r] = S.item(t, len(S.m) - 1, lds=True)
        for o in range(8):
            ub = UN[nu % len(UN)]; nu += 1
            ul = load(f"ds_read_b128 v[{ub}:{ub+3}], v12 offset:{2*(UPAD - 16 + 256*o - 32*sl)}", ub)
            last = free[ub] = accum(o, tb, ub, (tid[sl][0] or []) + [ul])
            if o + 1 <= 7: free[ub] = accum(o + 1, tb + 4, ub, tid[sl][1] or [])
            if sl == 0 and o + 2 <= 7: free[ub] = accum(o + 2, T16, ub)
            if sl == 7 and o < 2: finish(o, last)
            if (sl, o) == (7, 5): window(0, 0); window(0, 1)
        free[tb] = free[tb + 4] = len(S.m) - 1
    ld[MB] = load(f"ds_read_b128 v[{MB}:{MB+3}], v13 offset:4096", MB)
    mb = [S.item(f"v_pk_mul_f16 v{MB+k}, v{MB+k}, s71 op_sel_hi:[1,0]", -1, [ld[MB]]) for k in range(4)]
    for n, (ti, jp) in enumerate(items):
        bands, bases, tbls, X, deltas, njp, TF = types[ti]
        if ti == 1 and jp < 5:
            r, lid = uload(256 * (jp + 3) - 1032)
            free[r] = accum(jp + 3, MB, r, [lid] + mb)
        if n + 1 < len(items):
            window(n + 1, 0); window(n + 1, 1)
        for di, D in enumerate(deltas):
            if jp + D <= 7:
                g = accum(jp + D, W[n % 2], TF[di], cv[n] + [ld[TF[di]]])
                if ti == 1 and di == 0: finish(jp + 2, g)
    S.run()
    if OPT["dbg"]: print("conv: slots over capacity", S.over, file=sys.stderr)
    asmlib.MFMA_TIME = False
    stamp(a, 5, 0); stamp(a, 5, 2)
    if OPT["csend"]:
        a(f"""s_setprio 3
              ds_read_b32 v5, v6 offset:{SY + 8}
              v_mov_b32 v4, {TAGM:#x}
            K_CS:
              ds_read_b128 v[8:11], v6 offset:{SY + 48}
              ds_read_b128 v[16:19], v14 offset:{TB}
              ds_read_b128 v[20:23], v14 offset:{TB + 256}
              s_waitcnt lgkmcnt(2)
              v_and_b32 v8, v8, v9
              v_bitop3_b32 v8, v8, v10, v11 bitop3:0x80
              v_readfirstlane_b32 s47, v5
          s_sub_u32 s47, s47, 1
              v_cmp_ne_u32 vcc, 8, v8
              s_cbranch_vccnz K_CS
              s_waitcnt lgkmcnt(0)
              v_bitop3_b32 v7, v16, v17, v4 bitop3:0xa2
              v_bitop3_b32 v8, v20, v21, v4 bitop3:0xa2
              v_cmp_eq_u32 vcc, 0, v7
              v_cmp_eq_u32 s[64:65], 0, v8
              v_addc_co_u32 v16, vcc, 0, v16, vcc
              v_addc_co_u32 v20, vcc, 0, v20, s[64:65]""")
        both_modes(a, "K_CY", """buffer_store_dwordx4 v[16:19], v0, s[20:23], s72 offen @
                                 buffer_store_dwordx4 v[20:23], v0, s[20:23], s73 offen @""")
        stamp(a, 6, 0)
    stamp_flush(a, 8)

F, U, CS = 32, 64, 140
Z, ONE = "v166", "v167"

UE = ((24, 25), 64, 12, 16)
UC = ((88, 98), 4, 16, 36)
def unit(a, n, R=UE):
    va, sd, so, sm = R
    k, mat = n // 2, n % 2
    a(f"""s_add_u32 m0, s{sm}, {mat * 32768 + k * 8192}
          buffer_load_dwordx4 v{va[0]}, s[{sd+4*mat}:{sd+3+4*mat}], s{so+k} offen {OPT['wfl']} lds""")

def unit_setup(a, R, vg, vc, vt):
    (v0, v1), sd, so, sm = R
    srd(a, sd, 20, 21, WBYTES); srd(a, sd + 4, 22, 23, WBYTES)
    a(f"""s_cmp_ge_u32 s29, 28                  ; no FFN tile: empty descriptors
          s_cselect_b32 s{sd+2}, 0, s{sd+2}
          s_cselect_b32 s{sd+6}, 0, s{sd+6}
          s_and_b32 s{so}, s30, 2
          s_lshl_b32 s{so}, s{so}, 2
          v_lshl_or_b32 v{v0}, v{vg}, 1, s{so}
          v_xor_b32 v{v0}, v{v0}, v{vc}
          v_mul_u32_u24 v{vt}, 7168, v{vg}
          v_lshl_add_u32 v{v0}, v{v0}, 4, v{vt}
          s_lshl_b32 s{so}, s28, 5
          s_add_u32 s{so}, s{so}, s30
          s_mul_i32 s{so}, s{so}, {4 * 7168}
          s_lshl_b32 s{so+1}, s29, 8
          s_add_u32 s{so}, s{so}, s{so+1}
          s_add_u32 s{so+1}, s{so}, {32 * 7168}
          s_add_u32 s{so+2}, s{so}, {64 * 7168}
          s_add_u32 s{so+3}, s{so}, {96 * 7168}
          s_lshl_b32 s{sm}, s30, 10
          s_add_u32 s{sm}, s{sm}, {F_W}""")

def paced():
    if not OPT["kp"]: return []
    return [(int(x.split(":")[0]), x.split(":")[1]) for x in str(OPT["kp"]).split(",")]
def nC():
    return OPT["w0"] + sum(1 for _, u in paced() if u[0] != "t") + OPT["kt"] + OPT["ku"] + OPT["ko"]

def first_channel(a, d, t):
    a(f"""s_lshr_b32 s{d}, s29, 3
          s_lshl_b32 s{d}, s{d}, 5
          s_and_b32 s{t}, s29, 7
          s_add_u32 s{d}, s{d}, s{t}
          s_lshl_b32 s{t}, s28, 7
          s_add_u32 s{d}, s{d}, s{t}""")

def unpk(t):
    import re
    m = re.match(r"v_pk_(\w+)_f32 (.*?)(?: (op_sel_hi|neg_lo).*)?$", t.strip())
    op, args = m.group(1), [x.strip() for x in m.group(2).split(",")]
    bc = "op_sel_hi:[1,0]" in t; neg = "neg_lo:[0,1]" in t
    out = []
    for h in (1, 0):
        r = []
        for n, x in enumerate(args):
            mm = re.match(r"([vs])\[(\d+):", x)
            r.append(x if not mm else "0x3fb8aa3b" if mm.group(1) == "s" else f"v{int(mm.group(2)) + (0 if bc and n == 2 else h)}")
        if not r[2].startswith("v"): r[1], r[2] = r[2], r[1]
        out.append(f"v_{'sub' if neg else op}_f32 " + ", ".join(r))
    return "\n".join(out)

def inbox(a, vo, vl, vt, so, st, tile="s30", row=UROW, tsh=9):
    a(f"""v_and_b32 v{vt}, 3, v1
          v_mul_u32_u24 v{vl}, {row}, v{vt}
          v_lshlrev_b32 v{vo}, 4, v{vt}
          v_lshrrev_b32 v{vt}, 2, v1
          v_lshl_add_u32 v{vl}, v{vt}, 4, v{vl}
          v_lshl_add_u32 v{vo}, v{vt}, 14, v{vo}
          s_lshl_b32 s{st}, {tile}, {tsh}
          v_add_u32 v{vl}, s{st}, v{vl}
          s_lshl_b32 s{so}, {tile}, 19
          s_lshl_b32 s{st}, s28, 8
          s_add_u32 s{so}, s{so}, s{st}
          s_and_b32 s{st}, s29, 3
          s_lshl_b32 s{st}, s{st}, 12
          s_add_u32 s{so}, s{so}, s{st}
          s_and_b32 s{st}, s29, 4
          s_lshl_b32 s{st}, s{st}, 9
          s_add_u32 s{so}, s{so}, s{st}
          s_lshr_b32 s{st}, s29, 3
          s_lshl_b32 s{st}, s{st}, 6
          s_add_u32 s{so}, s{so}, s{st}
          s_add_u32 s{so+1}, s{so}, 0x40000""")

def operands(a0, h, es, scalar=0):
    if OPT["exp"] & 256: return
    a = a0 if not scalar else lambda t: a0("\n".join(unpk(l) if l.strip().startswith("v_pk_") else l for l in t.split("\n")))
    T = lambda e: 8 + 2 * (e % 4)
    T2 = lambda e: 16 + 2 * (e % 4)
    p = lambda r: f"v[{r}:{r+1}]"
    Fh, Uh = F + 16 * h, U + 16 * h
    for e in es: a(f"v_pk_mul_f32 {p(T(e))}, {p(Uh+2*e)}, s[58:59] op_sel_hi:[1,0]")
    for e in es:
        a(f"""v_exp_f32 v{T(e)}, -v{T(e)}
              {"v_and_b32" if e % 2 else "v_lshlrev_b32"} v{T2(e)}, {"0xffff0000" if e % 2 else "16"}, v{28 + e//2}
              v_exp_f32 v{T(e)+1}, -v{T(e)+1}
              v_pk_add_f32 {p(Fh+2*e)}, {p(CS+2*h)}, {p(Fh+2*e)} neg_lo:[0,1] neg_hi:[0,1]""")
    for e in es: a(f"v_pk_add_f32 {p(T(e))}, {p(T(e))}, 1.0 op_sel_hi:[1,0]")
    for e in es:
        a(f"""v_rcp_f32 v{T(e)}, v{T(e)}
              v_pk_mul_f32 {p(T2(e))}, {p(Uh+2*e)}, {p(T2(e))} op_sel_hi:[1,0]
              v_rcp_f32 v{T(e)+1}, v{T(e)+1}""")
    for e in es: a(f"v_pk_mul_f32 {p(T(e))}, {p(T(e))}, {p(Uh+2*e)}")
    for e in es:
        a(f"""v_pk_fma_f32 {p(Fh+2*e)}, {p(T2(e))}, {p(T(e))}, {p(Fh+2*e)}
              v_cvt_pk_bf16_f32 v{Uh+2*e}, v{T(e)}, 0
              v_cvt_pk_bf16_f32 v{Uh+2*e+1}, 0, v{T(e)+1}""")

def dpp(op, d, s, mod, bank=0xf):
    return f"{op}_dpp v{d}, v{s}{', v' + str(s) if op != 'v_mov_b32' else ''} {mod} row_mask:0xf bank_mask:{bank:#x}"

def e_path(a):
    W0 = nC(); NC = OPT["ncopy"]
    G, H = 112, 116
    R = 96
    L16, XO, PUB, GAT, CIO, INB, LDA, KIX, KAD, RW2, TM, TN, HM, SG, WA, WDA = range(148, 164)
    p = lambda r: f"v[{r}:{r+1}]"
    row = lambda n: f"s{61 + Q[n // 2]} offen offset:{2048 * (n % 2)}"
    PL = "global_load_lds_dwordx4 v7, s[64:65]"
    Q = (0, 16)
    a(f"""v_lshlrev_b32 v{L16}, 4, v1
          v_lshrrev_b32 v2, 4, v1
          v_and_b32 v3, 15, v1
          v_lshlrev_b32 v5, 4, v3
          v_lshl_add_u32 v7, v2, 11, v5
          s_lshl3_add_u32 s63, s30, 8
          s_load_dwordx2 s[64:65], s[0:1], s63
          s_setprio {OPT['eprio']}
          s_cmp_lg_u32 s30, 0
          s_cbranch_scc1 K_NOPF
          ; the code is read once as data so that instruction fetches find it in L2 (each WG of a die takes a slice)
          s_getpc_b64 s[48:49]
        K_PC:
          s_lshl_b32 s50, s29, 10
          s_min_u32 s50, s50, K_BAND - K_PC + 4096
          s_add_u32 s50, s50, s48
          s_addc_u32 s51, s49, 0
          global_load_dwordx4 v[32:35], v{L16}, s[50:51]
        K_NOPF:""")
    first_channel(a, 3, 63)
    a(f"""s_lshl_b32 s63, s3, 8
          v_add_u32 v7, s63, v7
          s_lshl_b32 s3, s3, 1
          s_and_b32 s3, s3, -64
          s_lshl_b32 s63, s30, 10
          s_add_u32 m0, s63, {PRM}
          s_lshl2_add_u32 s60, s29, s30
          s_lshl_b32 s61, s60, 15
          s_lshl_b32 s62, s28, 8
          s_add_u32 s61, s61, s62
          v_lshl_add_u32 v{XO}, v2, 12, v5
          v_add_u32 v6, s62, v5
          v_add_u32 v4, s61, v{XO}
          v_add_u32 v96, 0x4000, v4
          v_mov_b32 {Z}, 0
          v_lshlrev_b32 v97, 2, v1
          ds_write2st64_b32 v97, {Z}, {Z} offset0:0 offset1:2
          s_waitcnt lgkmcnt(0)
          {PL if OPT["ppos"] < 2 else ""}
          s_load_dword s46, s[42:43], {WS_EP:#x}
          s_load_dword s47, s[12:13], s3
          {"s_sleep 1" if OPT["ppos"] == 1 else ""}
          global_load_dwordx4 v[8:11], v4, s[44:45]
          global_load_dwordx4 v[12:15], v4, s[44:45] offset:2048
          global_load_dwordx4 v[16:19], v96, s[44:45]
          global_load_dwordx4 v[20:23], v96, s[44:45] offset:2048
          global_load_dwordx4 v[24:27], v6, s[18:19]
          global_load_dwordx4 v[28:31], v6, s[14:15]""")
    stamp(a, 5, 3)
    a("s_barrier")
    stamp(a, 6, 3)
    srd(a, 32, 42, 43, WS_SIZE)
    a(f"""s_lshl_b32 s63, s29, 13
          s_lshl_b32 s73, s30, 8
          s_add_u32 s63, s63, s73
          s_add_u32 s63, s63, {WS_PS:#x}
          s_lshl_b32 s73, s28, 10
          s_add_u32 s73, s73, s63
          s_lshl_b32 s74, s28, 12
          s_add_u32 s74, s74, {WS_CI:#x}
          s_getreg_b32 s56, hwreg(HW_REG_XCC_ID, 0, 4)
          v_mov_b32 {ONE}, 1
          v_mov_b32 v{HM}, 0xffff0000
          s_mov_b32 s8, 0x0000bf80
          s_mov_b32 s9, 0xbf800000
          v_mov_b32 v132, 0
          v_mov_b32 v133, 0
          v_mov_b32 v134, 0
          v_mov_b32 v135, 0
          v_and_b32 v7, 3, v1
          v_and_b32 v{GAT}, 0xf0, v97
          v_lshl_add_u32 v{PUB}, v7, 18, v{GAT}
          v_lshl_add_u32 v{GAT}, v7, 10, v{GAT} ; gather offset: lane 4q + s reads sources s and s + 4
          v_and_b32 v{CIO}, 0x7c, v97
          s_and_b32 s10, s28, 3
          s_lshl_b32 s10, 0x11111111, s10
          s_not_b32 s10, s10
          s_cmp_lt_u32 s28, 4
          s_cselect_b32 s4, s10, -1             ; lanes that gather from the other dies
          s_cselect_b32 s6, -1, s10
          s_mov_b32 s5, s4
          s_mov_b32 s7, s6
          s_add_u32 s72, s63, {(NC - 1) * 0x40000:#x}
          s_mov_b64 exec, 1
          s_waitcnt vmcnt(6)
          ds_add_u32 {Z}, {ONE} offset:{SY + 12}
          s_mov_b64 exec, -1
          s_waitcnt lgkmcnt(0)
          s_add_u32 s46, s46, {STEP:#x}
          v_mov_b32 v{G+3}, s46
          v_mov_b32 v{H+3}, s46
          s_cmp_lg_u32 s30, 3
          s_cbranch_scc1 K_NOCI
          v_add_u32 v7, s56, v{G+3}
          s_lshl_b32 s78, s29, 7
          s_add_u32 s78, s78, s74
          s_mov_b32 exec_hi, 0
          buffer_store_dword v7, v{CIO}, s[32:35], s78 offen sc1
          ds_write_b32 {Z}, v{G+3} offset:{SY}
          s_mov_b32 exec_hi, -1
        K_NOCI:""")
    stamp(a, 7, 3)
    S1 = lambda h: 120 + 2 * h
    S2 = lambda h: 124 + 2 * h
    for h in range(2):
        Fh = F + 16 * h
        for k in range(2):
            x = 8 + 8 * h + 4 * k
            a(f"""s_waitcnt vmcnt({5 - 2 * h - k})
                  v_and_b32_dpp v{CS+2*h+k}, v{x}, v{HM} row_newbcast:0 row_mask:0xf bank_mask:0xf""")
            if (h, k) == (1, 1): stamp(a, 1)
            for e in range(8): a(f"v_dot2_f32_bf16 v{Fh+2*e+k}, v{x+e//2}, s{8+e%2}, v{CS+2*h+k}")
        a(f"""v_pk_add_f32 {p(S1(h))}, {p(Fh)}, {p(Fh+2)}
              v_pk_mul_f32 {p(S2(h))}, {p(Fh)}, {p(Fh)}
              v_pk_add_f32 v[128:129], {p(Fh+4)}, {p(Fh+6)}
              v_pk_mul_f32 v[130:131], {p(Fh+2)}, {p(Fh+2)}""")
        for e in range(2, 8):
            d = S2(h) if e % 2 == 0 else 130
            a(f"v_pk_fma_f32 {p(d)}, {p(Fh+2*e)}, {p(Fh+2*e)}, {p(d)}")
            if e >= 4:
                d = S1(h) if e % 2 == 0 else 128
                a(f"v_pk_add_f32 {p(d)}, {p(d)}, {p(Fh+2*e)}")
        a(f"""v_pk_add_f32 {p(S2(h))}, {p(S2(h))}, v[130:131]
              v_pk_add_f32 {p(S1(h))}, {p(S1(h))}, v[128:129]""")
    a("s_waitcnt vmcnt(1)")
    for k in range(4):
        for n in range(4): a(f"v_dot2c_f32_bf16 v{132+n}, v{8+4*n+k}, v{24+k}")
    a(f"v_mov_b32 v136, v{CS}")
    for b in (120, 124): a("\n".join([dpp("v_add_f32", b + 2*h, b + 2*h, "row_ror:8", 0x3) for h in range(2)]))
    a(dpp("v_mov_b32", 136, CS + 2, "quad_perm:[0,1,2,3]", 0x2))
    for b in (120, 124): a("\n".join([dpp("v_add_f32", b + 2*h, b + 2*h + 1, "row_ror:8", 0xc) for h in range(2)]))
    a("\n".join([dpp("v_add_f32", 132 + 2*h, 132 + 2*h, "row_ror:8", 0x3) for h in range(2)]))
    a(dpp("v_mov_b32", 136, CS + 1, "quad_perm:[0,1,2,3]", 0x4))
    a("\n".join([dpp("v_add_f32", 132 + 2*h, 132 + 2*h + 1, "row_ror:8", 0xc) for h in range(2)]))
    for h in range(2):
        for d, b in ((G, 120), (G + 1, 124), (G + 2, 132)): a(dpp("v_add_f32", d, b + 2*h, "row_half_mirror", 0x5 << h))
    a(dpp("v_mov_b32", 136, CS + 3, "quad_perm:[0,1,2,3]", 0x8))
    def red4(order):
        for mod in ("quad_perm:[1,0,3,2]", "quad_perm:[2,3,0,1]"):
            for r in order: a(dpp("v_add_f32", r, r, mod))
    red4((G, G + 1, G + 2))
    a(f"""v_mul_f32 v137, 0x3c000000, v{G}
          v_fma_f32 v{G+1}, -v137, v{G}, v{G+1}
          v_sub_f32 v{G}, v136, v137
          s_mov_b32 exec_lo, {0x11111111 * ((1 << NC) - 1):#x}
          s_mov_b32 exec_hi, exec_lo
          buffer_store_dwordx4 v[{G}:{G+3}], v{PUB}, s[32:35], s73 offen sc1
          s_mov_b64 exec, 1
          ds_add_u32 {Z}, {ONE} offset:{SY + 36}
          s_mov_b64 exec, -1""")
    stamp(a, 2)
    a(f"""s_setprio {OPT['sprio']}
          v_mov_b32 v{H}, v{G}
          v_mov_b32 v{H+1}, v{G+1}
          v_mov_b32 v{H+2}, v{G+2}""")
    unit_setup(a, ((WA, 0), 64, 12, 16), 2, 3, 7)
    srd(a, 40, 24, 25, WBYTES)
    srd(a, 20, 26, 27, 0x400000)
    a("s_lshl_b32 s79, s30, 1")
    inbox(a, INB, LDA, 7, 75, 78, "s79")
    a(f"""s_add_u32 s36, s75, 0x80000
          s_add_u32 s37, s75, 0xc0000
          s_add_u32 s77, s61, 0x4000
          v_mul_u32_u24 v7, {7168 - 2048}, v2
          v_sub_u32 v{WDA}, v{WA}, v7
          s_lshl_b32 s18, s29, 5
          s_add_u32 s18, s18, s30
          s_lshl_b32 s18, s18, 13
          s_add_u32 s18, s18, s62
          s_lshl_b32 s19, s30, 10
          v_mov_b32 v{TM}, {TAGM:#x}
          v_mov_b32 v{TN}, {TAGM ^ 0xffffffff:#x}
          v_mov_b32 v{SG}, 0x80000000
          s_mov_b32 s17, 0
          s_mov_b32 s83, {SPIN:#x}
          s_lshl_b32 s78, s60, 5
          v_lshl_add_u32 v{RW2}, v2, 2, s78
          v_and_b32 v7, 4, v1
          v_lshl_add_u32 v{KIX}, v7, 2, v{RW2}
          v_bfe_u32 v7, v1, 3, 1
          v_lshl_add_u32 v{KIX}, v7, 1, v{KIX}
          v_sub_u32 v{KIX}, 4094, v{KIX}
          s_lshl_b32 s78, s30, 7
          v_lshl_add_u32 v{KAD}, v1, 1, s78
          v_lshlrev_b32 v{CIO}, 5, v{CIO}
          s_setprio {OPT['eprio']}""")
    if OPT["pace"]: lds_wait(a, "K_AW", 7, Z, SY + 36, "v_cmp_gt_u32 vcc, 4, v7")
    if OPT["psl"]: a(f"s_sleep {OPT['psl']}")
    stamp(a, 5, 4)
    gather = f"""s_add_u32 s78, s63, 4096
                 s_mov_b64 exec, s[4:5]
                 s_cbranch_execz K_G@0
                 buffer_load_dwordx4 v[{G}:{G+3}], v{GAT}, s[32:35], s63 offen sc1
               K_G@0:
                 s_mov_b64 exec, s[6:7]
                 s_cbranch_execz K_G@1
                 buffer_load_dwordx4 v[{H}:{H+3}], v{GAT}, s[32:35], s78 offen sc1
               K_G@1:
                 s_mov_b64 exec, -1"""
    a(gather.replace("@", "A"))
    touch = "\n".join(f"buffer_load_dwordx4 v[{8+4*n}:{11+4*n}], v{XO}, s[20:23], {row(n)} sc1" for n in range(OPT["ptn"]))
    TW = OPT["ptn"] * (OPT["pt"] == 2)
    if TW: a(f"s_sleep {OPT['wsl']}\n" + touch)
    a(f"""; wave 2 finds out whether the X group shares a die
          s_cmp_lg_u32 s30, 2
          s_cbranch_scc1 K_NOCR
        K_CR:
          buffer_load_dword v7, v{CIO}, s[32:35], s74 offen sc1
          s_sub_u32 s83, s83, 1
          s_waitcnt vmcnt(0)
          v_subrev_u32 v7, s46, v7
          s_cbranch_scc1 K_CRD
          v_cmp_lt_u32 vcc, 15, v7
          s_cbranch_vccnz K_CR
        K_CRD:
          v_cmp_ne_u32 vcc, s56, v7
          s_max_i32 s83, s83, 0
          s_cmp_lg_u64 vcc, 0
          s_cselect_b32 s78, 2, {1 + OPT['slow']}
          v_mov_b32 v7, s78
          ds_write_b32 {Z}, v7 offset:{SY + 8}
        K_NOCR:
          {"s_mov_b32 s80, 1" if OPT["dbg"] else ""}
          s_waitcnt vmcnt({TW})
          s_branch K_P1C
        K_P1:
          {"s_sleep " + str(OPT["tsl"]) if OPT["tsl"] else ""}
          s_add_u32 s63, s63, 0x40000
          s_min_u32 s63, s63, s72""")
    a(gather.replace("@", "B"))
    a(f"""{"s_add_u32 s80, s80, 1" if OPT["dbg"] else ""}
          s_sub_u32 s83, s83, 1
          s_waitcnt vmcnt(0)
          s_cbranch_scc1 K_P1D
        K_P1C:
          v_cmp_ne_u32 s[4:5], s46, v{G+3}
          v_cmp_ne_u32 s[6:7], s46, v{H+3}
          s_or_b64 s[78:79], s[4:5], s[6:7]
          s_cbranch_scc1 K_P1
        K_P1D:
          s_max_i32 s83, s83, 0""")
    stamp(a, 3)
    if OPT["pt"] == 3: a(touch)
    a(f"""{dpp("v_mov_b32", 128, G, "quad_perm:[0,0,0,0]")}
          v_add_f32 v{G+1}, v{G+1}, v{H+1}
          v_add_f32 v{G+2}, v{G+2}, v{H+2}
          v_sub_f32 v{G}, v{G}, v128
          v_sub_f32 v{H}, v{H}, v128
          v_mul_f32 v129, v{G}, v{G}
          v_add_f32 v{G}, v{G}, v{H}
          v_fmac_f32 v129, v{H}, v{H}
          v_fmac_f32 v{G+1}, 0x43000000, v129""")
    red4((G + 2, G, G + 1))
    a(f"""v_mul_f32 v129, 0x41800000, v{G}
          v_fmac_f32 v128, 0x3e000000, v{G}
          v_fma_f32 v{G+1}, -v129, v{G}, v{G+1}
          v_mul_f32 v{G+1}, 0x3a800000, v{G+1}
          v_max_f32 v{G+1}, 0, v{G+1}
          v_cvt_pk_bf16_f32 v129, v128, v{G+1}
          v_and_b32 v{G+1}, v{HM}, v129
          v_lshlrev_b32 v128, 16, v129
          v_add_f32 v{G+1}, 0x3727c5ac, v{G+1}
          v_cvt_pk_bf16_f32 v{G+1}, 0, v{G+1}
          v_sub_f32 v136, v136, v128
          v_sqrt_f32 v{G+1}, v{G+1}
          v_cvt_pk_bf16_f32 v131, v128, v{G+1}
          v_and_b32 v{G+1}, v{HM}, v131
          v_rcp_f32 v129, v{G+1}
          v_mul_f32 v136, v136, v129""")
    keys = f"""v_fma_f32 v130, -v128, v133, v{G+2}
          v_mul_f32 v130, v130, v129
          v_cvt_pk_bf16_f32 v130, v130, v130
          v_ashrrev_i32 v134, 31, v130
          v_bitop3_b32 v130, v130, v134, v{SG} bitop3:0x1e
          v_and_or_b32 v130, v130, v{HM}, v{KIX}
          s_mov_b32 exec_lo, 0x11111111
          s_mov_b32 exec_hi, 0x11111111
          ds_write_b64 v{KAD}, v[130:131] offset:{SY + 128}
          s_mov_b64 exec, 1
          ds_add_u32 {Z}, {ONE} offset:{SY + 20}
          s_mov_b64 exec, -1"""
    for h in range(2):
        for k in range(2):
            a(dpp("v_mov_b32", 120 + 4*h + k, 129, f"row_newbcast:{8*k + 4*h}"))
            a(dpp("v_mov_b32", 122 + 4*h + k, 136, f"row_newbcast:{8*k + 4*h}"))
        for e in range(8):
            a(f"v_pk_fma_f32 {p(U+16*h+2*e)}, {p(F+16*h+2*e)}, {p(120+4*h)}, {p(122+4*h)} neg_lo:[1,0,0] neg_hi:[1,0,0]")
        for e in range(8):
            a(f"v_cvt_pk_f16_f32 v{R+8*h+e}, v{U+16*h+2*e}, v{U+16*h+2*e+1}")
        if h == 0: a(f"ds_read2_b32 v[132:133], {Z} offset0:{(SY + 8)//4} offset1:{(SY + 4)//4}")
        transpose4(a, R + 8*h, R + 8*h + 4)
        if h == 0:
            a("""s_waitcnt lgkmcnt(0)
                 v_readfirstlane_b32 s47, v132
                 v_readfirstlane_b32 s78, v133""")
        for r in range(R + 8*h, R + 8*h + 8): a(f"v_or_b32 v{r}, v{TM}, v{r}" if r % 4 in (1, 2) else f"v_and_b32 v{r}, v{TN}, v{r}")
        if h == 0:
            a("""s_min_u32 s78, s78, s47
                 s_cmp_eq_u32 s78, 0
                 s_cbranch_scc1 K_RARE
               K_RB:
                 s_sub_u32 s47, s47, 1""")
        both_modes(a, f"K_US{h}", "\n".join(f"buffer_store_dwordx4 v[{R+4*n}:{R+4*n+3}], v{XO}, s[20:23], {row(n)} @" for n in (2*h, 2*h + 1)))
        if h == 0 and OPT["kearly"]: a(keys)
    stamp(a, 4)
    iload = "\n".join(f"buffer_load_dwordx4 v[{R+4*n}:{R+4*n+3}], v{INB}, s[20:23], s{(75, 76, 36, 37)[n]} offen sc1" for n in range(4))
    quarters = [(h, range(4 * q, 4 * q + 4)) for h in range(2) for q in range(2)]
    a(iload)
    if not OPT["kearly"]: a(keys)
    a(f"s_setprio {OPT['pprio']}")
    if OPT["pt"] in (2, 3): a("s_waitcnt vmcnt(8)")
    for h, es in quarters[:OPT["early"]]: operands(a, h, es)
    a(f"""s_setprio {OPT['eprio']}
          s_branch K_P2A
        K_P2:
          {"s_sleep " + str(OPT["isl"]) if OPT["isl"] else ""}""")
    a(iload)
    a(f"""K_P2A:
          {"s_add_u32 s81, s81, 1" if OPT["dbg"] else ""}
          s_sub_u32 s83, s83, 1
          s_waitcnt vmcnt(2)
          v_or3_b32 v128, v{R}, v{R+3}, v{R+4}
          v_bitop3_b32 v129, v{R+1}, v{R+2}, v{R+5} bitop3:0x80
          v_bitop3_b32 v128, v128, v{R+7}, v{R+6} bitop3:0xfd
          s_waitcnt vmcnt(0)
          v_or3_b32 v128, v128, v{R+8}, v{R+11}
          v_bitop3_b32 v129, v129, v{R+9}, v{R+10} bitop3:0x80
          v_or3_b32 v128, v128, v{R+12}, v{R+15}
          v_bitop3_b32 v129, v129, v{R+13}, v{R+14} bitop3:0x80
          s_cbranch_scc1 K_P2D
          v_bitop3_b32 v128, v128, v129, v{TM} bitop3:0xa2
          v_cmp_ne_u32 vcc, 0, v128
          s_cbranch_vccnz K_P2
        K_P2D:""")
    for n in range(4): a(f"ds_write_b128 v{LDA}, v[{R+4*n}:{R+4*n+3}] offset:{UA + 2*UPAD + 256*n}")
    a(f"""s_max_i32 s83, s83, 0
          s_mov_b64 exec, 1
          ds_add_u32 {Z}, {ONE} offset:{SY + 16}
          s_mov_b64 exec, -1""")
    stamp(a, 5, 0)
    a("""s_cmp_ge_u32 s29, 28
         s_cbranch_scc1 K_NOTL""")
    lds_wait(a, "K_UG", 7, Z, SY + 16, "v_cmp_gt_u32 vcc, 4, v7", OPT["usl"])
    for n in range(W0, 8):
        k, mat = n // 2, n % 2
        a(f"""s_add_u32 m0, s16, {mat * 32768 + k * 8192}
              s_add_u32 s78, s{12+k}, {16 * 7168}
              buffer_load_dwordx4 v{WA}, s[{64+4*mat}:{67+4*mat}], s{12+k} offen {OPT['wfl']} lds
              s_add_u32 m0, s16, {mat * 32768 + k * 8192 + 4096}
              buffer_load_dwordx4 v{WA}, s[{64+4*mat}:{67+4*mat}], s78 offen {OPT['wfl']} lds""")
    a(f"""s_waitcnt vmcnt({OPT['gwait']})
          s_branch K_HGB
        K_HG:
          {"s_sleep " + str(OPT["gsl"]) if OPT["gsl"] else ""}
        K_HGB:
          ds_read2_b32 v[128:129], {Z} offset0:{(SY + 112)//4} offset1:{(SY + 120)//4}
          s_waitcnt lgkmcnt(0)
          v_add_u32 v128, v128, v129
          v_cmp_gt_u32 vcc, 9, v128
          s_cbranch_vccnz K_HG""")
    for i in range(8):
        if i == OPT["wd0"]:
            a(f"""s_mov_b64 exec, 1
                  s_waitcnt vmcnt({i})
                  ds_add_u32 {Z}, {ONE} offset:{SY + 24}
                  s_mov_b64 exec, -1""")
        a(f"""s_add_u32 m0, s19, {WDN + 4096*i}
              buffer_load_dwordx4 v{WDA}, s[40:43], s18 offen {OPT['wfl']} lds""")
        if i < 7: a("s_add_u32 s18, s18, 32768")
    a(f"""s_branch K_TLD
        K_NOTL:""")
    lds_wait(a, "K_TL", 7, Z, SY + 120, "v_cmp_eq_u32 vcc, 0, v7", 8)
    late = quarters[OPT["early"]:]
    a(f"""K_TLD:
          s_setprio 0
          ds_read_b128 v[128:131], {Z} offset:{SY + 96}
          s_waitcnt lgkmcnt(0)
          v_readfirstlane_b32 s6, v128
          v_readfirstlane_b32 s7, v130
          s_andn2_b32 s6, 0xffe, s6             ; 2 * row
          s_andn2_b32 s7, 0xffe, s7
          s_lshr_b32 s78, s6, 5
          s_lshr_b32 s79, s7, 5
          s_cmp_eq_u32 s78, s60
          s_cselect_b32 s57, 0x55555555, 0
          s_cmp_eq_u32 s79, s60
          s_cselect_b32 s79, 0xaaaaaaaa, 0
          s_mov_b64 s[48:49], -1
          s_mov_b64 s[50:51], -1
          s_mov_b64 s[52:53], -1
          s_mov_b64 s[54:55], -1
          s_or_b32 s57, s57, s79
          s_cbranch_scc0 K_NOOW1""")
    for n in range(4):
        a(f"""v_add_u32 v7, {16 * (n // 2) + 2 * (n % 2)}, v{RW2}
              v_cmp_ne_u32 s[{48+2*n}:{49+2*n}], s6, v7
              v_cmp_ne_u32 vcc, s7, v7
              s_and_b64 s[{48+2*n}:{49+2*n}], s[{48+2*n}:{49+2*n}], vcc     ; rows that are not routed""")
    for h, es in late: operands(a, h, es, OPT["scal"])
    a(f"""K_NOOW1:
          ; wave v sends tiles v and v + 4 of y; the waits are sparse because every poll costs the conv wave of the SIMD issue slots
          v_and_b32 v7, 3, v1
          v_mul_u32_u24 v7, {UROW - 4096}, v7
          v_sub_u32 v{LDA}, v{LDA}, v7
          s_lshl_b32 s78, s30, 9
          v_subrev_u32 v{LDA}, s78, v{LDA}
          s_lshl_b32 s78, s30, 19
          s_sub_u32 s75, s75, s78
          s_sub_u32 s76, s76, s78
          s_lshl_b32 s78, s30, 2
          s_lshr_b32 s78, 0xc480, s78
          s_and_b32 s78, s78, 15
          v_mov_b32 v{TN}, s78
          s_mov_b32 s78, 4
          s_mov_b64 exec, 1
          s_waitcnt vmcnt(0)
          ds_add_u32 {Z}, {ONE} offset:{SY + 124}
          s_mov_b64 exec, -1""")
    stamp(a, 6, 0)
    lds_wait(a, "K_HW4", 7, f"v{TN}", SY + 48, "v_cmp_gt_u32 vcc, 4, v7", OPT["ywsl"])
    a(f"""s_branch K_YWB
        K_YW:
          s_sleep 1
        K_YWB:
          ds_read_b128 v[128:131], {Z} offset:{SY + 48}
          s_waitcnt lgkmcnt(0)
          v_min_u32 v128, v128, v129
          v_min3_u32 v128, v128, v130, v131
          v_cmp_gt_u32 vcc, s78, v128
          s_cbranch_vccnz K_YW
          ds_read_b128 v[120:123], v{LDA} offset:{TB}
          ds_read_b128 v[124:127], v{LDA} offset:{TB + 256}
          s_setprio 3""")
    for q in range(2):
        r = 120 + 4 * q
        a(f"""s_waitcnt lgkmcnt({1 - q})
              v_bitop3_b32 v7, v{r}, v{r+1}, v{TM} bitop3:0xa2
              v_cmp_eq_u32 vcc, 0, v7
              v_addc_co_u32 v{r}, vcc, 0, v{r}, vcc   ; a granule that looks like u moves one value by one step""")
    both_modes(a, "K_YS", f"""buffer_store_dwordx4 v[120:123], v{INB}, s[20:23], s75 offen @
                              buffer_store_dwordx4 v[124:127], v{INB}, s[20:23], s76 offen @""")
    a(f"""s_add_u32 s75, s75, 0x200000
          s_add_u32 s76, s76, 0x200000
          v_add_u32 v{LDA}, 2048, v{LDA}
          s_add_u32 s78, s78, 4
          s_cmp_le_u32 s78, {4 if OPT["csend"] else 8}
          s_cbranch_scc1 K_YWB""")
    stamp(a, 7, 0)
    yload = "\n".join(f"buffer_load_dwordx4 v[{R+4*n}:{R+4*n+3}], v{XO}, s[20:23], {row(n)} sc1" for n in range(4))
    ybits = "\n".join(f"v_bitop3_b32 v{128+n}, v{R+4*n}, v{R+4*n+1}, v{TM} bitop3:0xa2" for n in range(4))
    a(f"""s_cmp_eq_u32 s57, 0
          s_cbranch_scc1 K_NOOWN
          ; the owner of a routed row tells the WGs that finish this row that no granule will land in it any more
        K_PO:""")
    a(yload)
    a(f"""s_sub_u32 s83, s83, 1
          s_waitcnt vmcnt(0)
          s_cbranch_scc1 K_POD""")
    a(ybits)
    for n in range(4): a(f"v_cmp_eq_u32 s[{4+2*n}:{5+2*n}], 0, v{128+n}")
    for n in range(4): a(f"s_andn2_b64 s[{4+2*n}:{5+2*n}], s[{4+2*n}:{5+2*n}], s[{48+2*n}:{49+2*n}]")
    a(f"""s_or_b64 s[4:5], s[4:5], s[6:7]
          s_or_b64 s[8:9], s[8:9], s[10:11]
          s_or_b64 s[4:5], s[4:5], s[8:9]
          s_cbranch_scc1 K_PO
        K_POD:
          s_max_i32 s83, s83, 0
          v_mov_b32 v132, 0
          v_mov_b32 v133, 0
          v_mov_b32 v134, s46
          v_lshlrev_b32 v7, 5, v1
          s_mov_b32 exec_lo, s57
          s_mov_b32 exec_hi, s57
          s_lshl_b32 s78, s28, 16
          s_add_u32 s78, s78, {WS_DP + 28 * 2048:#x}""")
    both_modes(a, "K_OS", "buffer_store_dwordx3 v[132:134], v7, s[32:35], s78 offen @")
    a(f"""s_mov_b64 exec, -1
          s_branch K_PYC
        K_NOOWN:""")
    if OPT["csend"]:
        a("s_setprio 0")
        lds_wait(a, "K_DW", 7, f"v{TN}", SY + 48, "v_cmp_gt_u32 vcc, 8, v7", OPT["dsl"])
    stamp(a, 6, 2)
    a(f"s_setprio {OPT['lprio']}")
    for h, es in late[:-1]: operands(a, h, es)
    a(yload)
    for h, es in late[-1:]: operands(a, h, es)
    a(f"""s_waitcnt vmcnt(0)
          s_branch K_PYC
        K_PY:""")
    for n in range(4):
        a(f"""s_mov_b64 exec, s[{48+2*n}:{49+2*n}]
              buffer_load_dwordx4 v[{R+4*n}:{R+4*n+3}], v{XO}, s[20:23], {row(n)} sc1""")
    a(f"""s_mov_b64 exec, -1
          s_sub_u32 s83, s83, 1
          s_waitcnt vmcnt(0)
          s_cbranch_scc1 K_PYD
        K_PYC:""")
    a(ybits)
    a("""v_min_u32 v128, v128, v129
         v_min3_u32 v128, v128, v130, v131
         v_cmp_eq_u32 vcc, 0, v128
         s_cbranch_vccnz K_PY
       K_PYD:""")
    stamp(a, 7, 2)
    for h in range(2):
        transpose4(a, R + 8*h, R + 8*h + 4)
        for k in range(2):
            for e in range(8): a(f"v_dot2c_f32_bf16 v{F+16*h+2*e+k}, v{R+8*h+e}, v{U+16*h+2*e+k}")
        for k in range(2):
            n = 2 * h + k
            for q in range(4): a(f"v_cvt_pk_bf16_f32 v{8+4*n+q}, v{F+16*h+4*q+k}, v{F+16*h+4*q+2+k}")
            a(f"""s_mov_b64 exec, s[{48+2*n}:{49+2*n}]
                  buffer_store_dwordx4 v[{8+4*n}:{11+4*n}], v{XO}, s[20:23], {row(n)} {OPT['outfl']}
                  s_mov_b64 exec, -1""")
    stamp_flush(a, 0)
    a(f"""K_RARE:
          s_sleep 1
          ds_read2_b32 v[132:133], {Z} offset0:{(SY + 8)//4} offset1:{(SY + 4)//4}
          s_waitcnt lgkmcnt(0)
          v_readfirstlane_b32 s47, v132
          v_readfirstlane_b32 s78, v133
          s_min_u32 s78, s78, s47
          s_cmp_eq_u32 s78, 0
          s_cbranch_scc1 K_RARE
          s_branch K_RB""")

def c_path(a):
    W0 = OPT["w0"]
    a(f"""s_sub_u32 s30, s30, 4
          s_setprio {OPT['kprio']}""")
    first_channel(a, 3, 55)
    a(f"""s_lshr_b32 s59, s30, 1
          s_lshl_b32 s55, s59, 3
          s_add_u32 s56, s3, s55                ; d
          s_lshl_b32 s57, s56, 1
          s_and_b32 s57, s57, -4
          v_lshlrev_b32 v95, 4, v1
          v_and_b32 v96, 15, v1
          v_lshrrev_b32 v97, 4, v1
          v_mov_b32 v20, 0
          v_mov_b32 v21, 0
          v_mov_b32 v22, 0
          v_mov_b32 v23, 0
          s_mov_b32 s34, {WS_SIZE:#x}
          s_mov_b32 s35, 0x00020000
          s_waitcnt lgkmcnt(0)
          s_load_dword s47, s[12:13], s57
          s_mov_b32 s32, s42
          s_mov_b32 s33, s43
          s_barrier
          s_mov_b32 m0, {JUNK}
          s_cmp_lg_u32 s30, 2
          s_cbranch_scc1 K_NOT
          s_lshl_b32 s60, s28, 16
          s_lshl_b32 s61, s29, 11
          s_add_u32 s60, s60, s61
          s_add_u32 s60, s60, {WS_DP:#x}
          {"" if OPT["dpl"] else "buffer_load_dwordx4 v95, s[32:35], s60 offen sc1 lds"}
          {"" if OPT["dpl"] else "buffer_load_dwordx4 v95, s[32:35], s60 offen offset:1024 sc1 lds"}
          s_lshl_b32 s61, s28, 10
          s_add_u32 s61, s61, {WS_KM:#x}
          buffer_load_dwordx4 v95, s[32:35], s61 offen sc1 lds
        K_NOT:""")
    a(f"""s_cmp_lg_u32 s30, 1
          s_cbranch_scc1 K_NOSM
          global_load_dwordx4 v[128:131], v95, s[18:19]
          global_load_dwordx4 v[132:135], v95, s[18:19] offset:1024
        K_NOSM:
          s_cmp_lt_u32 s30, 3
          s_cbranch_scc1 K_NOBD
          s_getpc_b64 s[60:61]
        K_PC2:
          s_lshl_b32 s62, s30, 10
          s_add_u32 m0, s62, {BAND - 3072}
          s_add_u32 s62, s62, K_BAND - K_PC2 - 3072
          s_add_u32 s60, s60, s62
          s_addc_u32 s61, s61, 0
          global_load_lds_dwordx4 v95, s[60:61]
        K_NOBD:""")
    unit_setup(a, UC, 97, 96, 18)
    for n in range(W0): unit(a, n, UC)
    if any(u[0] == "t" for _, u in paced()) or OPT["pt"] == 4:
        srd(a, 20, 26, 27, 0x400000)
        a(f"""v_lshlrev_b32 v94, 4, v96
              v_lshl_add_u32 v94, v97, 12, v94
              s_lshl_b32 s38, s29, 3
              s_add_u32 s38, s38, s30
              s_lshl_b32 s38, s38, 14
              s_lshl_b32 s39, s28, 8
              s_add_u32 s38, s38, s39
              s_add_u32 s39, s38, 2048""")
        if OPT["pt"] == 4:
            a(f"""s_mov_b32 m0, {JUNK}
                  buffer_load_dwordx4 v94, s[20:23], s38 offen sc1 lds
                  buffer_load_dwordx4 v94, s[20:23], s39 offen sc1 lds""")
    a(f"""s_mov_b32 s52, s59
          s_lshr_b32 s53, s30, 2
          s_xor_b32 s53, s53, s30
          s_and_b32 s53, s53, 1
          s_mul_i32 s66, s52, {UROW}
          s_add_u32 s66, s66, {UA}
          v_add_u32 v11, s66, v95
          s_mov_b32 exec_hi, 3
          ds_write_b128 v11, v[20:23]
          s_mov_b32 exec_hi, -1""")
    kgen_setup(a)
    a(f"""s_lshl_b32 s60, s52, 8
          s_add_u32 s60, s60, {PRM}
          v_lshl_add_u32 v17, v1, 2, s60
          s_lshl_b32 s61, s53, 7
          s_add_u32 s60, s60, s61
          v_lshl_add_u32 v16, v1, 1, s60
          v_mov_b32 v2, 0
          v_mov_b32 v3, 0
          v_mov_b32 v4, 0
          v_mov_b32 v5, 0
          v_mov_b32 v42, 0x3c00
          s_mov_b32 s37, m0
          s_mov_b32 s72, -1
          s_mov_b32 s73, 0
          s_cmp_eq_u32 s53, 0
          s_cbranch_scc0 K_HA
          v_lshlrev_b32 v124, 8, v97
          v_lshl_add_u32 v124, v96, 4, v124
          v_sub_u32 v124, {2*(537-256)}, v124
          v_add_u32 v124, s68, v124                 ; 2*(537 - p0), p0 = 256 + 128g + 8j
          v_lshrrev_b32 v125, 1, v97
          v_lshlrev_b32 v125, 8, v125
          v_lshl_add_u32 v125, v96, 4, v125
          v_and_b32 v30, 1, v97
          v_lshl_add_u32 v125, v30, 3, v125
          v_sub_u32 v125, 1080, v125
          v_add_u32 v125, s68, v125                 ; 1080 - 2p, p = 128(g>>1) + 8j + 4(g&1)
          v_add_u32 v126, 2, v124
          v_add_u32 v127, {DELTA}, v124
          v_lshlrev_b32 v12, 5, v96
          v_lshl_add_u32 v9, v97, 3, v12
          v_lshl_add_u32 v12, v97, 4, v12
          v_add_u32 v12, s66, v12
          v_add_u32 v9, s68, v9
          v_add_u32 v13, {BAND}, v95
          v_and_b32 v11, 1, v96
          v_xor_b32 v11, 1, v11
          v_mul_u32_u24 v11, {DELTA}, v11
          v_lshlrev_b32 v10, 1, v96
          v_sub_u32 v11, v11, v10
          s_add_u32 s78, s68, 30
          v_add_u32 v11, s78, v11
          v_lshl_add_u32 v10, v97, 4, v11
          v_lshl_add_u32 v14, v97, 3, v11
          v_add_u32 v14, {R2B}, v14
          v_add_u32 v11, 512, v10
          s_lshl_b32 s79, s52, 2
          v_mov_b32 v15, s79
          v_mov_b32 v8, 0
          s_branch K_AD
        K_HA:
          v_and_b32 v28, 1, v96
          v_lshrrev_b32 v29, 1, v96
          v_lshlrev_b32 v124, 8, v28
          v_lshlrev_b32 v30, 1, v29
          v_sub_u32 v124, v124, v30
          v_lshlrev_b32 v125, 5, v97
          v_sub_u32 v124, v124, v125
          v_add_u32 v124, {R2B + 128 + 2*47 + 64 - 16}, v124
          v_add_u32 v124, s68, v124
          v_lshlrev_b32 v125, 1, v28
          v_sub_u32 v125, v124, v125
          v_add_u32 v125, {-128 + 2}, v125
          v_mul_u32_u24 v126, 158, v28
          v_sub_u32 v126, v126, v30
          v_lshlrev_b32 v31, 6, v97
          v_sub_u32 v126, v126, v31
          v_add_u32 v126, {R3B + 128 - 48}, v126
          v_add_u32 v126, s68, v126
          v_lshrrev_b32 v28, 2, v96
          v_lshl_add_u32 v11, v97, 3, v28
          v_lshlrev_b32 v11, 8, v11
          v_and_b32 v29, 1, v97
          v_lshl_or_b32 v28, v29, 2, v28
          v_lshl_or_b32 v11, v28, 5, v11
          v_and_b32 v28, 3, v1
          s_lshl_b32 s78, s52, 6
          v_xor_b32 v11, s78, v11
          v_lshlrev_b32 v9, 4, v28
          v_xor_b32 v9, v9, v11
          v_add_u32 v9, {WDN}, v9
          v_lshl_add_u32 v11, v28, 3, v11
          v_xor_b32 v12, 32, v11
          v_add_u32 v11, {F_W}, v11             ; w_gate / w_up: columns 32q + 16t + 0..15
          v_add_u32 v12, {F_W}, v12
          v_lshlrev_b32 v8, 6, v28
          v_and_b32 v29, 12, v1
          v_lshl_add_u32 v8, v29, 2, v8
          v_mul_u32_u24 v10, 320, v28
          v_lshl_add_u32 v10, v97, 4, v10
          v_add_u32 v10, {XS}, v10
          v_lshrrev_b32 v28, 5, v1
          v_and_b32 v29, 31, v1
          v_lshlrev_b32 v14, 4, v29
          v_lshl_add_u32 v14, v28, 11, v14       ; gate / up gather offset
          v_mul_u32_u24 v13, 320, v28
          v_lshl_add_u32 v13, v29, 1, v13
          s_add_u32 s78, s78, {HB}
          v_add_u32 v13, s78, v13
          v_mov_b32 v15, 0
        K_AD:
          s_waitcnt lgkmcnt(0)
          s_lshl_b32 s60, s47, 16
          s_and_b32 s61, s47, s31
          s_bitcmp1_b32 s56, 0
          s_cselect_b32 s60, s61, s60
          v_mov_b32 v116, s60""")
    exp_acc(a, 117, 116, 118, 119, 58, 67, 71)
    a(f"""v_cvt_pk_bf16_f32 v117, 0, v117       ; dt
          v_mul_f32 v91, s58, v117
          v_mul_f32 v90, 0.15915494, v117
          """)
    stamp(a, 2)
    lds_wait(a, "K_PW", 18, "v20", SY + 12, "v_cmp_gt_u32 vcc, 4, v18")
    stamp(a, 1)
    a(f"""ds_read_u16_d16_hi v2, v16
          ds_read_u16_d16_hi v3, v16 offset:1024
          ds_read_b32 v6, v17 offset:2048
          ds_read_b32 v7, v17 offset:3072
          ds_read_u16_d16_hi v4, v16 offset:2048
          ds_read_u16_d16_hi v5, v16 offset:3072""")
    kgen_main(a)
    stamp(a, 5, 1)
    a("""s_cmp_eq_u32 s53, 0
         s_cbranch_scc0 K_FAR""")
    near_table(a, "K")
    for n in range(nC() - OPT["ku"], nC()): unit(a, n, UC)
    conv(a)
    a.raw(".p2align 6")
    a("K_FAR:")
    far_table(a, "K")
    a(f"""v_or_b32 v127, 0x10000, v89
          s_lshl_b32 s79, s52, 2
          v_mov_b32 v4, s79""")
    a(f"""v_mov_b32 v93, 1
          s_mov_b64 exec, 1
          ds_write_b32 v4, v127 offset:{SY + 640}
          s_mov_b64 exec, -1""")
    for n in range(nC() - OPT["ku"], nC()): unit(a, n, UC)
    a(f"""s_cmp_eq_u32 s30, 1
          s_cbranch_scc1 K_LATER
          s_mov_b64 exec, 1
          s_waitcnt vmcnt(0)
          ds_add_u32 v15, v93 offset:{SY + 112}
          s_mov_b64 exec, -1
        K_LATER:
          s_setprio {OPT['hprio']}
          """)
    stamp(a, 3)
    XA = 48
    a(f"""          s_lshl_b32 s62, s29, 14
          s_lshl_b32 s79, s52, 9
          s_add_u32 s62, s62, s79
          s_add_u32 s62, s62, {WS_EX:#x}
          s_add_u32 s63, s62, 4096
          s_add_u32 s64, s62, 8192
          s_add_u32 s65, s62, 12288
          s_lshl_b32 s73, s28, 11
          s_add_u32 s73, s73, s62
          s_lshl_b32 s77, s28, 16
          s_add_u32 s77, s77, {WS_DP:#x}
          s_lshl_b32 s57, s29, 11
          s_add_u32 s57, s57, s79
          s_add_u32 s57, s57, s77
          s_mov_b64 s[54:55], s[14:15]
          s_mov_b32 s12, 0x07060503
          s_mov_b32 s13, 0x07060502
          s_mov_b32 s14, 0x07060501
          s_mov_b32 s15, 0x04000c0c
          s_mov_b32 s16, 0x0706000c
          s_lshl_b32 s18, s28, 8""")
    a(f"""s_cmp_lg_u32 s30, 1
          s_cbranch_scc1 K_NOKP
          v_mov_b32 v92, 0x3f803f80
          v_mov_b32 v93, v92
          v_lshlrev_b32 v3, 3, v1
          v_add_u32 v3, {XS + 640}, v3
          ds_write_b64 v3, v[92:93]
          ds_write_b64 v3, v[92:93] offset:64
          v_lshlrev_b32 v2, 3, v1
          s_setprio 3
          s_lshl_b32 s60, s28, 10
          s_add_u32 s60, s60, {WS_KM:#x}
          s_mov_b32 s83, {SPIN:#x}
          v_add_u32 v3, s18, v95
          s_mov_b32 m0, {XS}""")
    lds_wait(a, "K_KW", 93, "v15", SY + 20, "v_cmp_gt_u32 vcc, 4, v93", 1)
    a(f"""ds_read_b64 v[72:73], v2 offset:{SY + 128}
          ds_read_b32 v5, v15 offset:{SY + 8}
          ds_read2_b32 v[74:75], v15 offset0:{SY//4} offset1:{SY//4}
          s_lshl_b32 s61, s29, 5
          s_add_u32 s61, s61, s60
          s_waitcnt lgkmcnt(0)
          v_readfirstlane_b32 s46, v74
          v_readfirstlane_b32 s47, v5
          s_sub_u32 s47, s47, 1""")
    top2(a, 72, 80, 78, 79, 66)
    a("""v_cndmask_b32 v80, 0, 16, s[66:67]
         v_cmp_le_u32 vcc, s79, v72
         s_mov_b64 exec, vcc""")
    both_modes(a, "K_KS", "buffer_store_dwordx4 v[72:75], v80, s[32:35], s61 offen @")
    a(f"""s_mov_b64 exec, -1
          s_mov_b32 exec_lo, 0xfff00000
          v_add_u32 v3, -320, v3
          s_mov_b32 exec_lo, -1
          s_mov_b64 s[70:71], 0
          ; the rows of the two best keys seen so far are requested at once, so that they do not queue behind the tile loads
        K_P3:
          buffer_load_dwordx4 v[72:75], v95, s[32:35], s60 offen sc1
          s_waitcnt vmcnt(0)
          v_cmp_eq_u32 s[68:69], s46, v74
          v_cndmask_b32 v72, 0, v72, s[68:69]""")
    top2(a, 72, 80, 78, 79, 66)
    a(f"""s_cmp_eq_u64 s[78:79], s[70:71]
          s_cbranch_scc1 K_P3S
          s_mov_b64 s[70:71], s[78:79]
          s_andn2_b32 s78, 0xffe, s78
          s_andn2_b32 s61, 0xffe, s79
          v_mov_b32 v92, s78
          s_mov_b32 exec_lo, 0xfff00000
          s_mov_b32 exec_hi, 15
          v_mov_b32 v92, s61
          s_mov_b32 exec_lo, 0xfff0ffff
          v_lshl_add_u32 v92, v92, 10, v3
          global_load_lds_dwordx4 v92, s[44:45]
          s_mov_b64 exec, -1
        K_P3S:
          s_sub_u32 s83, s83, 1
          s_cbranch_scc1 K_P3D
          s_cmp_lg_u64 s[68:69], -1
          s_cbranch_scc1 K_P3
        K_P3D:""")
    stamp(a, 4, 0)
    a(f"""v_cndmask_b32 v80, 0, 8, s[66:67]
          v_cmp_le_u32 vcc, s79, v72
          s_mov_b64 exec, vcc
          v_mov_b32 v93, 1
          ds_write_b32 v15, v93 offset:{SY + 40}
          ds_write_b64 v80, v[72:73] offset:{SY + 96}
          s_waitcnt vmcnt(0)
          ds_write_b32 v15, v93 offset:{SY + 120}
          s_mov_b64 exec, 1
          v_mov_b32 v93, 1
          ds_add_u32 v15, v93 offset:{SY + 112}
          s_cmp_lg_u32 s2, 0
          s_cbranch_scc1 K_NOZ
          s_mov_b32 s78, {WS_EP:#x}
          buffer_store_dword v74, v15, s[32:35], s78 offen sc1
        K_NOZ:
          s_mov_b64 exec, -1
          s_setprio {OPT['hprio']}
        K_NOKP:""")
    stamp(a, 5, 0)
    if OPT["exp"] & 16: a("s_sleep 110")
    lds_wait(a, "K_XW", 92, "v15", SY + 120, "v_cmp_eq_u32 vcc, 0, v92", OPT["xwsl"])
    a(f"""s_mov_b32 m0, {JUNK}
          s_mov_b32 exec_hi, 0
          {"buffer_load_dwordx4 v95, s[32:35], s57 offen sc1 lds" if OPT["dpl"] else ""}
          s_mov_b32 exec_hi, -1
          ds_read_b32 v5, v15 offset:{SY + 8}
          ds_read_b128 v[40:43], v15 offset:{SY + 96}
          ds_read_b32 v90, v15 offset:{SY}""")
    for k in range(4): a(f"ds_read_b128 v[{XA+4*k}:{XA+4*k+3}], v10 offset:{64*k}")
    a(f"""s_waitcnt lgkmcnt(4)
          v_mov_b32 v93, 1
          v_mov_b32 v35, v90
          v_and_b32 v44, 0xffff0000, v41
          v_and_b32 v45, 0xffff0000, v43
          v_lshlrev_b32 v46, 16, v41
          v_lshlrev_b32 v47, 16, v43
          v_rcp_f32 v44, v44
          v_rcp_f32 v45, v45
          v_readfirstlane_b32 s47, v5
          s_sub_u32 s47, s47, 1
          s_cmp_ge_u32 s29, 28
          s_cbranch_scc1 K_NOFFN
          s_setprio 3""")
    stamp(a, 4, 2)
    NE = nC() if OPT["g1split"] else 0
    def gemv1(us):
        P = Pipe(a, maxfly=14)
        for n, (u, t) in enumerate((u, t) for u in us for t in range(2)):
            k, mat = u // 2, u % 2
            b = 64 + 4 * (n % 6)
            P.load(f"ds_read_b64_tr_b16 v[{b}:{b+1}], v{11 + t} offset:{32768*mat + 8192*k}", n - 6)
            lid = P.load(f"ds_read_b64_tr_b16 v[{b+2}:{b+3}], v{11 + t} offset:{32768*mat + 8192*k + 1024}", n - 6)
            d = 16 + 8 * t + 4 * mat
            c = "0" if k == 0 else f"v[{d}:{d+3}]"
            P.step(f"v_mfma_f32_16x16x32_bf16 v[{d}:{d+3}], v[{XA+4*k}:{XA+4*k+3}], v[{b}:{b+3}], {c}", [lid])
        P.run()
    if True:
        lds_wait(a, "K_EW", 92, "v15", SY + 112, "v_cmp_gt_u32 vcc, 8, v92", OPT["gsl"])
        gemv1(range(NE))
    lds_wait(a, "K_GW", 92, "v15", SY + 24, "v_cmp_gt_u32 vcc, 4, v92", OPT["gsl"])
    stamp(a, 5, 2)
    gemv1(range(NE, 8))
    a("""s_mov_b32 exec_lo, 0xffff0000
         s_mov_b32 exec_hi, 0""")
    for r in (16, 17, 18, 20, 21, 22): a(f"v_mov_b32 v{r}, v{r+8}")
    a(f"""s_mov_b32 exec_lo, -1
          v_fma_f32 v16, -v46, v18, v16
          v_fma_f32 v17, -v47, v18, v17
          v_fma_f32 v18, -v46, v22, v20
          v_fma_f32 v19, -v47, v22, v21
          v_mul_f32 v16, v16, v44
          v_mul_f32 v17, v17, v45
          v_mul_f32 v19, v19, v45
          v_mul_f32 v18, v18, v44
          v_perm_b32 v32, v16, v19, s12
          v_perm_b32 v33, v17, v19, s13
          v_perm_b32 v34, v18, v19, s14
          buffer_store_dwordx4 v[32:35], v95, s[32:35], s73 offen sc1
          s_mov_b32 exec_hi, -1
        K_NOFFN:""")
    stamp(a, 6, 2)
    a(f"""s_cmp_lg_u32 s30, 1
          s_cbranch_scc1 K_NOFP
          s_setprio {OPT['fprio']}
          v_and_b32 v3, 16, v1
          v_lshrrev_b32 v3, 1, v3
          ds_read_b64 v[100:101], v3 offset:{SY + 96}
          v_and_b32 v7, 3, v1
          v_lshl_add_u32 v5, v7, 3, s3
          v_lshlrev_b32 v5, 1, v5               ; 2 * channel
          global_load_ushort v102, v5, s[54:55]
          v_lshrrev_b32 v106, 2, v1
          v_lshlrev_b32 v106, 11, v106
          v_lshl_add_u32 v106, v7, 4, v106
          s_lshl_b32 s61, s29, 6
          s_add_u32 s60, s77, s61
          s_add_u32 s61, s60, 0x8000
          s_waitcnt lgkmcnt(0)
          v_not_b32 v6, v100
          v_and_b32 v6, 0xffe, v6               ; 2 * row
          v_lshl_add_u32 v104, v7, 12, v6       ; y address
          v_lshl_add_u32 v107, v6, 10, v5
          global_load_ushort v103, v107, s[44:45]
          v_and_b32 v5, s31, v100
          v_ashrrev_i32 v3, 31, v5
          v_not_b32 v3, v3
          v_or_b32 v3, 0x80000000, v3
          v_xor_b32 v5, v5, v3
          v_and_b32 v5, s31, v5
          v_mul_f32 v105, s58, v5
          v_exp_f32 v105, -v105
          v_and_b32 v108, s31, v101
          v_lshlrev_b32 v101, 16, v101
          v_add_f32 v105, 1.0, v105
          v_rcp_f32 v105, v105
          v_rcp_f32 v109, v108
          v_fma_f32 v108, -v108, v109, 1.0
          v_fmac_f32 v109, v108, v109
          v_cvt_pk_bf16_f32 v105, 0, v105
          s_setprio 3
          s_branch K_FPD
        K_NOFP:
          {"s_sleep " + str(OPT["xsl"]) if OPT["xsl"] else ""}
        K_FPD:
          s_cmp_ge_u32 s29, 28
          s_cbranch_scc1 K_NOG2
          s_mov_b32 s83, {SPIN:#x}
          """)
    exl = "\n".join(f"buffer_load_dwordx4 v[{64+4*k}:{67+4*k}], v14, s[32:35], s{62+k} offen sc1" for k in range(4))
    WB = lambda n: (40, 44, 80, 84, 112, 116, 120, 124)[n]
    stamp(a, 5, 4)
    a(exl)
    if OPT["wd1"] < 8:
        a(f"""s_mov_b64 exec, 1
              ds_add_u32 v15, v93 offset:{SY + 44}
              s_mov_b64 exec, -1""")
    a("s_waitcnt vmcnt(0)")
    stamp(a, 6, 4)
    lds_wait(a, "K_WW", 92, "v15", SY + 124, "v_cmp_gt_u32 vcc, 4, v92", OPT["hsl"])
    for n in range(8):
        a(f"""ds_read_b64_tr_b16 v[{WB(n)}:{WB(n)+1}], v9 offset:{8192*(n//2) + 8*(n%2)}
              ds_read_b64_tr_b16 v[{WB(n)+2}:{WB(n)+3}], v9 offset:{8192*(n//2) + 8*(n%2) + 1024}""")
        if n == 5: a("s_waitcnt lgkmcnt(8)")
    a(f"""{"s_mov_b32 s80, 1" if OPT["dbg"] else ""}
          v_bitop3_b32 v92, v67, v71, v90 bitop3:0x7e
          v_bitop3_b32 v88, v75, v79, v90 bitop3:0x7e
          v_or_b32 v92, v92, v88
          v_cmp_ne_u32 vcc, 0, v92
          s_cbranch_vccnz K_P4
        K_P4D:""")
    stamp(a, 7, 2)
    for k in range(4): a(f"v_perm_b32 v{67+4*k}, v{64+4*k}, v{65+4*k}, s15")
    for k in range(4): a(f"v_perm_b32 v{67+4*k}, v{67+4*k}, v{66+4*k}, s16")
    for r in range(8): a(f"v_add_f32 v{64+r}, v{64+r}, v{72+r}")
    for r in range(4): a(f"v_add_f32 v{64+r}, v{64+r}, v{68+r}")
    a(f"""v_permlane32_swap_b32 v64, v65
          v_permlane32_swap_b32 v66, v67
          v_add_f32 v64, v64, v65               ; lanes (tok, f): gate
          v_add_f32 v66, v66, v67               ; up
          v_cvt_pk_bf16_f32 v64, 0, v64
          v_cvt_pk_bf16_f32 v66, 0, v66
          v_mul_f32 v65, 0xbfb8aa3b, v64
          v_exp_f32 v65, v65
          v_add_f32 v65, 1.0, v65
          v_rcp_f32 v65, v65
          v_mul_f32 v65, v65, v64
          v_cvt_pk_bf16_f32 v65, 0, v65
          v_mul_f32 v65, v65, v66
          v_cvt_pk_bf16_f32 v65, v65, v65
          ds_write_b16 v13, v65
          s_mov_b64 exec, 1
          ds_add_u32 v15, v93 offset:{SY + 116}
          s_mov_b64 exec, -1""")
    lds_wait(a, "K_HW", 92, "v15", SY + 116, "v_cmp_gt_u32 vcc, 4, v92", 0)
    stamp(a, 7, 4)
    for k in range(4): a(f"ds_read_b128 v[{XA+4*k}:{XA+4*k+3}], v10 offset:{HB - XS + 64*k}")
    for n in range(8):
        k, t = n // 2, n % 2
        d = 16 + 4 * t
        if t == 0: a(f"s_waitcnt lgkmcnt({3 - k})")
        a(f"v_mfma_f32_16x16x32_bf16 v[{d}:{d+3}], v[{XA+4*k}:{XA+4*k+3}], v[{WB(n)}:{WB(n)+3}], {'0' if k == 0 else f'v[{d}:{d+3}]'}")
    a("""s_mov_b64 exec, 0xffff
         v_mov_b32 v18, v90
         v_mov_b32 v22, v90""")
    both_modes(a, "K_DS", """buffer_store_dwordx3 v[16:18], v8, s[32:35], s57 offen @
                             buffer_store_dwordx3 v[20:22], v8, s[32:35], s57 offen offset:256 @""")
    a("""s_mov_b64 exec, -1
       K_NOG2:""")
    stamp(a, 6, 0)
    dpl = """buffer_load_dwordx3 v[48:50], v106, s[32:35], s60 offen sc1
             s_mov_b32 exec_hi, 0x5ffff
             buffer_load_dwordx3 v[52:54], v106, s[32:35], s61 offen sc1
             s_mov_b32 exec_hi, -1"""
    a(f"""s_cmp_lg_u32 s30, 1
          s_cbranch_scc1 K_CDONE
          s_branch K_YAB
        K_YA:
          s_sleep 2
        K_YAB:
          ds_read_b128 v[32:35], v15 offset:{SY + 48}
          ds_read_u16 v40, v104 offset:{TB}
          s_waitcnt lgkmcnt(1)
          v_and_b32 v92, v32, v33
          v_bitop3_b32 v92, v92, v34, v35 bitop3:0x80
          v_cmp_ne_u32 vcc, 8, v92
          s_cbranch_vccnz K_YA
          v_mov_b32 v52, 0
          v_mov_b32 v53, 0
          v_mov_b32 v54, v90""")
    a(dpl)
    a(f"""s_mov_b32 s83, {SPIN:#x}
          s_waitcnt vmcnt(2) lgkmcnt(0)
          v_lshlrev_b32 v103, 16, v103
          v_lshlrev_b32 v102, 16, v102
          v_lshlrev_b32 v40, 16, v40
          v_sub_f32 v25, v103, v101
          v_cvt_pk_bf16_f32 v25, 0, v25
          v_mul_f32 v25, v25, v109
          v_cvt_pk_bf16_f32 v25, 0, v25         ; u
          v_mul_f32 v26, v25, v102
          v_cvt_pk_bf16_f32 v26, 0, v26
          v_add_f32 v26, v26, v40
          v_cvt_pk_bf16_f32 v26, 0, v26         ; s
          s_waitcnt vmcnt(0)
          s_branch K_DC
        K_DP:""")
    a(dpl)
    a(f"""s_sub_u32 s83, s83, 1
          s_waitcnt vmcnt(0)
          s_cbranch_scc1 K_DD
        K_DC:
          v_bitop3_b32 v92, v50, v54, v90 bitop3:0x7e
          v_cmp_ne_u32 vcc, 0, v92
          s_cbranch_vccnz K_DP
        K_DD:""")
    stamp(a, 7, 0)
    a("""v_pk_add_f32 v[48:49], v[48:49], v[52:53]
         v_permlane16_swap_b32 v48, v49
         v_add_f32 v48, v48, v49
         v_mov_b32 v49, v48
         v_permlane32_swap_b32 v48, v49
         v_add_f32 v48, v48, v49""")
    for mod in ("row_ror:4", "row_ror:8"):
        a(f"v_add_f32_dpp v48, v48, v48 {mod} row_mask:0xf bank_mask:0xf")
    a("""v_cvt_pk_bf16_f32 v48, 0, v48
         v_mul_f32 v20, v48, v105
         v_cvt_pk_bf16_f32 v20, 0, v20
         v_add_f32 v20, v20, v25
         v_cvt_pk_bf16_f32 v20, 0, v20
         v_mul_f32 v23, 0xbfb8aa3b, v20
         v_exp_f32 v23, v23
         v_add_f32 v23, 1.0, v23
         v_rcp_f32 v23, v23
         v_mul_f32 v23, v23, v20
         v_cvt_pk_bf16_f32 v23, 0, v23
         v_mul_f32 v23, v23, v26
         v_cvt_pk_bf16_f32 v23, 0, v23
         v_add_f32 v23, v23, v103
         v_cvt_pk_bf16_f32 v23, v23, v23
         s_mov_b64 exec, 0x000f000f
         global_store_short v107, v23, s[26:27]
       K_CDONE:""")
    stamp_flush(a, 8)
    a(f"""K_P4:
          {"s_sleep " + str(OPT["rsl"]) if OPT["rsl"] else ""}
          {"s_add_u32 s80, s80, 1" if OPT["dbg"] else ""}""")
    for k in range(4):
        a(f"""v_cmp_ne_u32 vcc, v{67+4*k}, v90
              s_cbranch_vccz K_P4_{k}
              s_mov_b64 exec, vcc
              buffer_load_dwordx4 v[{64+4*k}:{67+4*k}], v14, s[32:35], s{62+k} offen sc1
              s_mov_b64 exec, -1
            K_P4_{k}:""")
    a("""s_sub_u32 s83, s83, 1
         s_waitcnt vmcnt(0)
         v_bitop3_b32 v92, v67, v71, v90 bitop3:0x7e
         v_bitop3_b32 v88, v75, v79, v90 bitop3:0x7e
         s_cbranch_scc1 K_P4D
         v_or_b32 v92, v92, v88
         v_cmp_ne_u32 vcc, 0, v92
         s_cbranch_vccnz K_P4
         s_branch K_P4D""")

def sumw(a, younger):
    a(f"""v_mov_b32 v136, 0
          v_mov_b32 v137, 1
          s_waitcnt vmcnt({younger})
          s_mov_b64 exec, 1
          ds_add_u32 v136, v137 offset:{SY + 28}
          s_mov_b64 exec, -1
          s_cmp_lg_u32 s30, 1
          s_cbranch_scc1 K_NOSW
          v_mov_b32 v138, 0""")
    for i in range(8): a(f"v_dot2c_f32_bf16 v138, 0x3f803f80, v{128+i}")
    wave_reduce(a, "v_add_f32", [138])
    a(f"""v_or_b32 v138, 1, v138
          s_mov_b32 exec_lo, 0
          s_mov_b32 exec_hi, 0x80000000
          ds_write_b32 v136, v138 offset:{SY + 4}
          s_mov_b64 exec, -1
        K_NOSW:""")

def k4():
    a = Asm()
    name = "recurrent_scan__ssm_conv_s4d__moe_arch_mod__prompt_kernel"
    a.raw(f".p2align 8\n.globl {name}\n.type {name},@function\n{name}:")
    a("""s_cmp_ge_u32 s2, 256
         s_cbranch_scc1 K_END""")
    if OPT["dbg"]:
        for i in range(80, 102): a(f"s_mov_b32 s{i}, 0")
    stamp(a, 0)
    a(f"""s_load_dwordx2 s[44:45], s[0:1], 0
          s_load_dwordx16 s[4:19], s[0:1], 8
          s_load_dwordx8 s[20:27], s[0:1], 72
          s_load_dwordx4 s[40:43], s[0:1], 104
          v_readfirstlane_b32 s30, v0
          v_and_b32 v1, 63, v0
          s_and_b32 s28, s2, 7
          s_lshr_b32 s29, s2, 3
          s_mov_b32 s31, 0xffff0000
          s_mov_b32 s58, {L2E_HI:#x}
          s_lshr_b32 s30, s30, 6
          s_cmp_ge_u32 s30, 4
          s_cbranch_scc1 K_C""")
    e_path(a)
    a.raw(".p2align 6")
    a("K_C:")
    c_path(a)
    a("""K_END:
         s_endpgm""")
    a.raw(".p2align 4\n.type K_BAND,@object\n.size K_BAND, 5120\nK_BAND:")
    for off, w in ((10, 4), (13, 2), (12, 8), (11, 6), (10, 6)):
        for lane in range(64):
            h = [0x3c00 if 0 <= (lane & 15) - 8 * (lane >> 4) + off - jj <= w else 0 for jj in range(8)]
            a.raw(".long " + ", ".join(f"{h[2*i] | h[2*i+1] << 16:#x}" for i in range(4)))
    return a.finish(), desc(name, 168, 102 if OPT["dbg"] else 96)

if __name__ == "__main__":
    for kv in sys.argv[2:]:
        k, v = kv.split("=")
        assert k in OPT, k
        OPT[k] = int(v) if v.lstrip("-").isdigit() else v.replace("+", " ")
    hdr = open("recurrent_scan__ssm_conv_s4d__moe_arch_mod__prompt.s.ref").read().split("\n")
    out = [l for l in hdr if l.startswith(";") and "@launch" not in l and "Override launch" not in l and "grid=ceil" not in l]
    out.append(f"; @launch grid=(256,1,1) block=(768,1,1) lds={LDS}")
    out.append('.amdgcn_target "amdgcn-amd-amdhsa--gfx950"\n.text')
    b, d = k4()
    out += [b, '.section .rodata,"a"', d]
    open(sys.argv[1], "w").write("\n".join(out))
```

```python
from mblib import *
def probe(off, stride, base, st=""):
    a = Asm()
    a.raw(".p2align 8\n.globl probe_kernel\n.type probe_kernel,@function\nprobe_kernel:")
    a(f"""s_cmp_ge_u32 s2, 256
         s_cbranch_scc1 P_END
         s_load_dwordx2 s[4:5], s[0:1], {off}
         v_lshlrev_b32 v5, 4, v0
         v_readfirstlane_b32 s20, v0
         s_cmp_lg_u32 s20, 0
         s_cbranch_scc1 P_END
         s_waitcnt lgkmcnt(0)""")
    srd(a, 36, 4, 5, 0x400000 + base)
    a(f"s_mul_i32 s26, s2, {stride}\n s_add_u32 s26, s26, {base}")
    for k in range(16 if stride else 0):
        if st: a(f"buffer_store_dwordx4 v[8:11], v5, s[36:39], s26 offen {st}\n s_add_u32 s26, s26, 1024\n s_waitcnt vmcnt(0)")
        else: a(f"buffer_load_dwordx4 v[8:11], v5, s[36:39], s26 offen\n s_add_u32 s26, s26, 1024\n s_waitcnt vmcnt(0)")
    a("P_END:\n s_endpgm")
    return a.finish()
def gen(path, *args):
    s = open("fl0.s").read()
    s = s.replace("; @launch grid=(256,1,1) block=(1024,1,1) lds=152064",
      "; @launch kernel=probe_kernel grid=(256,1,1) block=(1024,1,1) lds=152064\n; @launch kernel=%s grid=(256,1,1) block=(1024,1,1) lds=152064" % NAME)
    s = s.replace('.section .rodata,"a"', probe(*args) + '.section .rodata,"a"\n' + '''.p2align 6
.amdhsa_kernel probe_kernel
  .amdhsa_next_free_vgpr 128
  .amdhsa_next_free_sgpr 96
  .amdhsa_accum_offset 128
  .amdhsa_group_segment_fixed_size 0
  .amdhsa_kernarg_size 120
  .amdhsa_user_sgpr_count 2
  .amdhsa_user_sgpr_kernarg_segment_ptr 1
  .amdhsa_system_sgpr_workgroup_id_x 1
.end_amdhsa_kernel
''')
    open(path, "w").write(s)
W = "work/"
gen(W + "mb14_e.s", 96, 0, 0)
gen(W + "mb14_out.s", 96, 16384, 0)
gen(W + "mb14_ws.s", 112, 16384, 0x100000)
gen(W + "mb14_x.s", 0, 16384, 0)
gen(W + "mb14_wss.s", 112, 16384, 0x800000, "sc1")
gen(W + "mb14_wse.s", 112, 16384, 0xfc00000)
open(W + "s50.txt", "w").write("mb14_e\nmb14_out\nmb14_ws\nmb14_x\nmb14_wss\nmb14_wse\n")
```

```python
import sys, os
sys.path.insert(0, os.path.dirname(os.path.abspath(__file__)))
import asmlib
from asmlib import Asm

WBYTES = 0 if any(x.startswith("exp=") and int(x[4:]) & 1 for x in sys.argv) else 1024 * 3584 * 2
WS_PS = 0x100000
WS_CI = 0x400000
WS_KM = 0x441000
WS_EX = 0x450000
WS_DP = 0x500000
WS_DN = 0x002000
WS_EP = 0x000000
WS_EP2 = 0x580000
STEP = 0x9e3779b9
WS_STAMP = 0x700000
WS_SIZE = 0x800000

OPT = dict(dbg=0, grp=0, w0=1, w1=0, w2=0, wdp=0, rsl=2, h8=1, wbi=0, kgate=0, kpos=1, pre=0, bi=0, ylead=0, psly=0, part=1, ifl="sc1", igate=0, dnsl=0, hint=0, ko=2, ptn=4, ppos=1, sws=90, npre=4, cie=0, dpl=0, tlb=0, csl=1, wb=0, wbsl=0, g1split=1, ncopy=3, tsl=0, uthr=8, wfirst=0, kearly=0, elate=0, kt=0, ku=0, usl=1, old=5, flate=12, lsl=1, xwsl=4, ugate=1,  mid=0, scal=1, lprio=2, wd0=2, wd1=8, csend=0, kprio=2, gwait=0, dsl=2, wsl=0, hp=0, hfly=1, hprio=3, gsl=1, hsl=1, xsl=8, clat=3, mt=1, cfly=12, fchk=-1, fstep=3, ywsl=6, kp="1:u,50:u,100:u,150:u", sprio=0, xpace=2, ysl=0, xfirst=1, wbat=8, klat=3, wfl="nt", xfl="", pace=2, slow=0, eprio=3, pprio=0, nprio=1, fprio=0, gprio=3, lean=0, ipf=1,
           psl=3, pt=0, isl=0, exp=0, early=3, cdone=8, outfl="", nsl=0)

L2E_HI, L2E_LO, LN2 = 0x3fb8aa3b, 0x32a57060, 0x3f317218
I2PI_LO = 0x31dc9c88
SY = 0
UA, UROW, UPAD = 768, 4640, 272
KG = UA + 4 * UROW
KGC = 9216
TB = (KG + 4 * KGC + 255) // 256 * 256
DELTA = 1986
R2B, R3B = 1120, 1632
TBS = 4096 + 64
BAND = TB + 4 * TBS
PRM = BAND + 5120
JUNK = PRM + 4096
WDN = KG
F_W = JUNK + 2048
XS = F_W + 65536
HB = XS + 1280
LDS = HB + 1280
KA = 76
TAGM = 0x00030003
SPIN = 0x20000

def stamp(a, i, group=None):
    if OPT["dbg"] and (group is None or group == OPT["grp"]):
        a(f"{'s_memtime' if OPT['dbg'] == 2 else 's_memrealtime'} s[{84+2*i}:{85+2*i}]")

def stamp_flush(a, add):
    if OPT["dbg"]:
        a(f"""s_waitcnt vmcnt(0)
              {'s_memtime' if OPT['dbg'] == 2 else 's_memrealtime'} s[100:101]
              s_mov_b64 exec, 1
              s_lshl_b32 s82, s2, 4
              s_add_u32 s82, s82, s30
              s_add_u32 s82, s82, {add}
              s_lshl_b32 s82, s82, 6
              s_add_u32 s82, s82, {WS_STAMP:#x}
              v_mov_b32 v2, 0
              s_waitcnt lgkmcnt(0)""")
        for i in range(9):
            a(f"v_mov_b32 v{4+i}, s{84+2*i}")
        a("""v_mov_b32 v13, s80
             v_mov_b32 v14, s81
             v_mov_b32 v15, s83""")
        for i in range(3):
            a(f"buffer_store_dwordx4 v[{4+4*i}:{7+4*i}], v2, s[32:35], s82 offen offset:{16*i}")
    a("s_endpgm")

def lds_wait(a, label, reg, addr, off, cond, sleep=1):
    a(f"""s_branch {label}B
        {label}:
          {"s_sleep " + str(sleep) if sleep else ""}
        {label}B:
          ds_read_b32 v{reg}, {addr} offset:{off}
          s_waitcnt lgkmcnt(0)
          {cond}
          s_cbranch_vccnz {label}""")

def both_modes(a, label, text, mode="s47"):
    a(f"""s_cmp_lg_u32 {mode}, 0
          s_cbranch_scc1 {label}_W""")
    a(text.replace("@", ""))
    a(f"""s_branch {label}_D
        {label}_W:""")
    a(text.replace("@", "sc1"))
    a(f"{label}_D:")

def transpose4(a, *bases):
    for b in bases:
        a(f"""v_permlane32_swap_b32 v{b}, v{b+2}
              v_permlane32_swap_b32 v{b+1}, v{b+3}""")
    for b in bases:
        a(f"""v_permlane16_swap_b32 v{b}, v{b+1}
              v_permlane16_swap_b32 v{b+2}, v{b+3}""")

def rows4(a, r):
    a(f"""v_permlane16_swap_b32 v{r}, v{r+1}
          v_permlane16_swap_b32 v{r+2}, v{r+3}
          v_add_f32 v{r}, v{r}, v{r+1}
          v_add_f32 v{r+2}, v{r+2}, v{r+3}
          v_permlane32_swap_b32 v{r}, v{r+2}
          v_add_f32 v{r}, v{r}, v{r+2}""")

def top2(a, k, t, s0, s1, m):
    a(f"v_mov_b32 v{t}, v{k}")
    wave_reduce(a, "v_max_u32", [t])
    a(f"""v_readlane_b32 s{s0}, v{t}, 63
          v_cmp_ne_u32 s[{m}:{m+1}], s{s0}, v{k}
          v_cndmask_b32 v{t}, 0, v{k}, s[{m}:{m+1}]""")
    wave_reduce(a, "v_max_u32", [t])
    a(f"v_readlane_b32 s{s1}, v{t}, 63")

def srd(a, d, lo, hi, size):
    a(f"""s_mov_b32 s{d}, s{lo}
          s_mov_b32 s{d+1}, s{hi}
          s_mov_b32 s{d+2}, {size:#x}
          s_mov_b32 s{d+3}, 0x00020000""")

def wave_reduce(a, op, regs):
    for mod in ("quad_perm:[1,0,3,2] row_mask:0xf", "quad_perm:[2,3,0,1] row_mask:0xf", "row_half_mirror row_mask:0xf",
                "row_mirror row_mask:0xf", "row_bcast:15 row_mask:0xa", "row_bcast:31 row_mask:0xc"):
        for r in regs:
            a(f"{op}_dpp v{r}, v{r}, v{r} {mod} bank_mask:0xf")

def desc(name, vgpr, sgpr):
    return f""".p2align 6
.amdhsa_kernel {name}
  .amdhsa_next_free_vgpr {vgpr}
  .amdhsa_next_free_sgpr {sgpr}
  .amdhsa_accum_offset {(vgpr + 3) // 4 * 4}
  .amdhsa_group_segment_fixed_size 0
  .amdhsa_kernarg_size 120
  .amdhsa_user_sgpr_count 2
  .amdhsa_user_sgpr_kernarg_segment_ptr 1
  .amdhsa_system_sgpr_workgroup_id_x 1
.end_amdhsa_kernel
"""

def exp_acc(a, d, x, t0, t1, sL2E, sL2ELO, sLN2):
    a(f"""v_mul_f32 v{t0}, s{sL2E}, v{x}
          v_fma_f32 v{t1}, v{x}, s{sL2E}, -v{t0}
          v_exp_f32 v{d}, v{t0}
          v_fmac_f32 v{t1}, s{sL2ELO}, v{x}
          v_mul_f32 v{t1}, s{sLN2}, v{t1}
          v_fmac_f32 v{d}, v{d}, v{t1}""")

def pair_sync(a, k, label):
    a(f"""v_mov_b32 v94, {k}
          ds_write_b32 v92, v94 offset:{SY + 64}
          s_branch {label}B
        {label}:
        {label}B:
          ds_read_b32 v94, v93 offset:{SY + 64}
          s_waitcnt lgkmcnt(0)
          v_cmp_gt_u32 vcc, {k}, v94
          s_cbranch_vccnz {label}""")
    stamp(a, 6, 1)
    for n in range(nC() - OPT["kt"] - OPT["ku"], nC() - OPT["ku"]): unit(a, n, UC)
    if OPT["ko"]:
        assert not OPT["kt"] + OPT["ku"]
        a(f"""s_cmp_ge_u32 s30, 4
              s_cbranch_scc1 {label}_NO""")
        for n in range(nC() - OPT["ko"], nC()):
            k, mat = n // 2, n % 2
            unit(a, n, UC)
            a(f"""s_add_u32 m0, s36, {mat * 32768 + k * 8192 + 4096}
                  s_add_u32 s60, s{16+k}, {16 * 7168}
                  buffer_load_dwordx4 v88, s[{4+4*mat}:{7+4*mat}], s60 offen {OPT['wfl']} lds""")
        a(f"{label}_NO:")

def kgen_setup(a):
    a(f"""s_mul_i32 s68, s52, {TBS}
          s_add_u32 s68, s68, {TB}
          s_lshl_b32 s67, s53, 11
          s_add_u32 s67, s67, s68
          v_add_u32 v90, s67, v95
          ds_write_b128 v90, v[20:23]
          ds_write_b128 v90, v[20:23] offset:1024
          s_mov_b32 s67, {L2E_LO:#x}
          s_mov_b32 s71, {LN2:#x}
          s_lshl_b32 s61, s30, 2
          v_mov_b32 v92, s61
          s_xor_b32 s61, s61, 4
          v_mov_b32 v93, s61                    ; partner's
          ; scratch: role 1 wave uses [0,4608), role 0 wave [4608,9216) of the channel area
          s_mul_i32 s69, s52, {KGC}
          s_add_u32 s69, s69, {KG}
          s_xor_b32 s70, s53, 1
          s_mul_i32 s70, s70, 4608
          s_add_u32 s70, s70, s69
          s_sub_u32 m0, s70, 16384
          v_mul_u32_u24 v41, 288, v96
          v_lshl_add_u32 v41, v97, 4, v41
          v_add_u32 v41, s70, v41
          v_add_u32 v99, s69, v95""")

def near_table(a, tag):
    K0, K1, K2 = KA, KA + 4, KA + 8
    a(f"""
          ds_write_b128 v99, v[{K1}:{K1+3}] offset:5120
          ds_write_b128 v99, v[{K2}:{K2+3}] offset:6144
          """)
    pair_sync(a, 1, tag + "_PS1")
    a(f"""ds_read_b128 v[16:19], v99 offset:1024
          ds_read_b128 v[24:27], v99
          s_waitcnt lgkmcnt(1)
          v_pk_add_f32 v[{K1}:{K1+1}], v[{K1}:{K1+1}], v[16:17]
          v_pk_add_f32 v[{K1+2}:{K1+3}], v[{K1+2}:{K1+3}], v[18:19]
          s_waitcnt lgkmcnt(0)
          v_pk_add_f32 v[{K0}:{K0+1}], v[{K0}:{K0+1}], v[24:25]
          v_pk_add_f32 v[{K0+2}:{K0+3}], v[{K0+2}:{K0+3}], v[26:27]
          v_mov_b32_dpp v28, v{K1} row_shl:1 row_mask:0xf bank_mask:0xf
          v_writelane_b32 v28, 0, 33
          s_mov_b32 exec_hi, 3
          v_cndmask_b32 v29, v{K1}, v{K1+1}, s[72:73]
          v_cndmask_b32 v30, v{K1+1}, v{K1+2}, s[72:73]
          v_cndmask_b32 v28, v28, v{K1+3}, s[72:73]
          v_cvt_pk_f16_f32 v16, v28, v30
          v_cvt_pk_f16_f32 v17, v30, v30
          v_cvt_pk_f16_f32 v18, v29, v{K1}
          v_cvt_pk_f16_f32 v19, v{K1}, v{K1}
          v_cvt_pk_f16_f32 v20, v30, v29
          ds_write_b16 v124, v16
          ds_write2_b32 v126, v17, v20 offset0:0 offset1:1
          ds_write_b32 v126, v19 offset:8
          ds_write_b16 v124, v19 offset:14
          ds_write2_b32 v127, v16, v17 offset0:0 offset1:1
          ds_write2_b32 v127, v18, v19 offset0:2 offset1:3
          s_mov_b32 exec_hi, -1
          v_cvt_pk_f16_f32 v24, v{K0+3}, v{K0+2}
          v_cvt_pk_f16_f32 v25, v{K0+1}, v{K0}
          v_cvt_pk_f16_f32 v26, v{K0+2}, v{K0+1}
          ds_write_b64 v125, v[24:25]
          ds_write_b16 v125, v24 offset:{DELTA}
          ds_write_b32 v125, v26 offset:{DELTA+2}
          ds_write_b16_d16_hi v125, v25 offset:{DELTA+6}
          """)

def far_table(a, tag):
    K0, K1, K2 = KA, KA + 4, KA + 8
    a(f"""
          ds_write_b128 v99, v[{K0}:{K0+3}]
          ds_write_b128 v99, v[{K1}:{K1+3}] offset:1024
          s_nop 0""")
    pair_sync(a, 1, tag + "_PS2")
    a(f"""ds_read_b128 v[16:19], v99 offset:5120
          ds_read_b128 v[20:23], v99 offset:6144
          s_waitcnt lgkmcnt(1)
          v_pk_add_f32 v[{K1}:{K1+1}], v[{K1}:{K1+1}], v[16:17]
          v_pk_add_f32 v[{K1+2}:{K1+3}], v[{K1+2}:{K1+3}], v[18:19]
          s_waitcnt lgkmcnt(0)
          v_pk_add_f32 v[{K2}:{K2+1}], v[{K2}:{K2+1}], v[20:21]
          v_pk_add_f32 v[{K2+2}:{K2+3}], v[{K2+2}:{K2+3}], v[22:23]
          v_cvt_pk_f16_f32 v16, v{K1}, v{K1+1}
          v_cvt_pk_f16_f32 v17, v{K1+2}, v{K1+3}
          v_cvt_pk_f16_f32 v18, v{K2}, v{K2+1}
          v_cvt_pk_f16_f32 v19, v{K2+2}, v{K2+3}
          v_cvt_pk_f16_f32 v89, v{K2}, v{K2}
          s_mov_b32 exec_lo, 0
          ds_write_b16 v125, v17
          ds_write_b16 v125, v17 offset:{DELTA}
          ds_write_b16_d16_hi v124, v17
          ds_write_b16_d16_hi v124, v17 offset:{DELTA}
          s_mov_b32 exec_hi, -4
          ds_write_b16 v125, v16 offset:16
          ds_write_b16 v125, v16 offset:{DELTA+16}
          ds_write_b16_d16_hi v124, v16 offset:16
          ds_write_b16_d16_hi v124, v16 offset:{DELTA+16}
          s_mov_b32 exec_hi, 1
          s_mov_b32 exec_lo, -2
          ds_write_b16 v126, v18 offset:48
          ds_write_b16 v126, v18 offset:{DELTA+48}
          s_mov_b32 exec_hi, 0
          s_mov_b32 exec_lo, -1
          ds_write_b16_d16_hi v126, v18 offset:32
          ds_write_b16_d16_hi v126, v18 offset:{DELTA+32}
          ds_write_b16 v126, v19 offset:16
          ds_write_b16 v126, v19 offset:{DELTA+16}
          ds_write_b16_d16_hi v126, v19
          ds_write_b16_d16_hi v126, v19 offset:{DELTA}
          s_mov_b64 exec, -1
          """)

class Pipe:
    def __init__(self, a, maxfly=12):
        self.a = a; self.ops = []; self.steps = []; self.maxfly = maxfly
    def load(self, text, gate=-1, urgent=False):
        self.ops.append([text, gate, urgent]); return len(self.ops) - 1
    def step(self, text, need=()):
        self.steps.append((text, list(need))); return len(self.steps) - 1
    def last(self):
        return len(self.steps) - 1
    def run(self, per_step=99):
        a = self.a; seq = {}; done = [0]; pend = list(range(len(self.ops)))
        def issue(n):
            if len(seq) - done[0] >= 15:
                a("s_waitcnt lgkmcnt(8)"); done[0] = len(seq) - 8
            a(self.ops[n][0]); seq[n] = len(seq); pend.remove(n)
        for i, (text, need) in enumerate(self.steps + [("", [])]):
            for n in [n for n in pend if self.ops[n][2] and self.ops[n][1] < i]: issue(n)
            k = 0
            for n in [n for n in pend if not self.ops[n][2]]:
                if self.ops[n][1] >= i or len(seq) - done[0] >= self.maxfly or k >= per_step: break
                issue(n); k += 1
            for n in need:
                for m in [m for m in pend if m <= n and not self.ops[m][2]]:
                    assert self.ops[m][1] < i, "load gated behind its own consumer"
                    issue(m)
            if need:
                top = max(seq[n] for n in need)
                if done[0] <= top:
                    a(f"s_waitcnt lgkmcnt({len(seq) - top - 1})"); done[0] = top + 1
            a(text)
        assert not pend

def kgen_main(a):
    a("""s_waitcnt lgkmcnt(5)
         v_mul_f32 v2, 0x3fb8aa3b, v2
         s_waitcnt lgkmcnt(4)
         v_mul_f32 v118, v3, v90
         v_exp_f32 v116, v2
         v_mul_f32 v119, 0x43000000, v118
         v_fract_f32 v118, v118
         v_fract_f32 v119, v119
         s_waitcnt lgkmcnt(2)
         v_and_b32 v6, 0x7fff7fff, v6
         v_and_b32 v7, 0x7fff7fff, v7
         v_cvt_pk_bf16_f32 v116, v116, v116
         v_pk_max_u16 v6, v6, v7
         v_and_b32 v116, 0xffff0000, v116
         v_pk_max_u16 v6, v6, v6 op_sel:[0,1] op_sel_hi:[1,0]
         v_mul_f32 v116, v116, v91
         v_sin_f32 v26, v119
         v_mul_f32 v120, 0x43000000, v116
         v_max_u32_dpp v6, v6, v6 quad_perm:[1,0,3,2] row_mask:0xf bank_mask:0xf
         v_exp_f32 v116, -v116
         v_cos_f32 v27, v119
         v_max_u32_dpp v6, v6, v6 quad_perm:[2,3,0,1] row_mask:0xf bank_mask:0xf
         v_cos_f32 v119, v118
         v_sin_f32 v118, v118
         v_max_u32_dpp v6, v6, v6 row_half_mirror row_mask:0xf bank_mask:0xf
         v_exp_f32 v120, -v120
         v_mul_f32 v119, v119, v116
         v_max_u32_dpp v6, v6, v6 row_mirror row_mask:0xf bank_mask:0xf
         v_mul_f32 v118, v118, v116
         v_mul_f32 v26, v26, v120
         v_max_u32_dpp v6, v6, v6 row_bcast:15 row_mask:0xa bank_mask:0xf
         v_mul_f32 v27, v27, v120
         v_add_f32 v117, v117, v117
         v_max_u32_dpp v6, v6, v6 row_bcast:31 row_mask:0xc bank_mask:0xf
         v_pk_mul_f32 v[24:25], v[118:119], v[118:119] op_sel:[1,0] op_sel_hi:[1,1]
         v_mul_f32 v6, v6, v117
         v_pk_fma_f32 v[24:25], v[118:119], v[118:119], v[24:25] op_sel:[1,0,0] op_sel_hi:[0,0,1] neg_hi:[1,0,0]
         v_readlane_b32 s78, v6, 63
         s_lshr_b32 s78, s78, 23
         s_max_u32 s78, s78, 33
         s_min_u32 s78, s78, 233
         s_sub_u32 s70, s78, 6
         s_sub_u32 s78, 260, s78
         s_lshl_b32 s70, s70, 23                ; 1 / scale
         s_lshl_b32 s78, s78, 23
         v_mul_f32 v117, s78, v117
         s_waitcnt lgkmcnt(0)
         v_mul_f32 v33, v4, v117
         v_mul_f32 v32, v5, v117""")
    stamp(a, 4, 1)
    BF, AF = 44, 60
    pool2 = [120, 122, 16, 18, 20, 22, 28, 30, 34, 36, 38]
    pool1 = list(range(100, 118)) + [2, 3, 4, 5, 6, 7, 40, 43, 90, 91]
    ops = []
    val = {"E1": 118, "E2": 24, "V1": 26, "G0": 32}
    def cm(d, x, y): ops.append(("mul", d, (x, y))); ops.append(("fma", d, (x, y, d + "'")))
    def ch(d, x, y): ops.append(("hmul", d, (x, y))); ops.append(("hfma", d, (x, y, d + "'")))
    def cv(x, neg): ops.append(("cvn" if neg else "cvt", x.lower(), (x,)))
    cm("E4", "E2", "E2"); cm("E3", "E2", "E1"); cm("Y1", "E4", "E4"); cm("Y2", "Y1", "Y1"); cm("Y4", "Y2", "Y2"); cm("Y8", "Y4", "Y4")
    cm("Y3", "Y2", "Y1"); cm("Y12", "Y8", "Y4")
    cm("V2", "V1", "V1"); cm("V4", "V2", "V2"); cm("V3", "V2", "V1"); cm("G1", "G0", "V1")
    for i in (4, 8, 12, 16): cm(f"G{i}", f"G{i-4}", "V4")
    for n in (1, 2, 3, 4): cv(f"E{n}", True)
    for n in (1, 2, 3, 4, 8, 12): cv(f"Y{n}", False)
    for n in (1, 2, 3): cv(f"V{n}", True)
    for n in (0, 1, 4, 8, 12, 16): cv(f"G{n}", True)
    for n in (5, 6, 7): ch(f"e{n}", "e4", f"e{n-4}")
    for n in range(5, 16):
        if n % 4: ch(f"y{n}", f"y{n & 12}", f"y{n & 3}")
    for n in range(2, 16):
        if n % 4: ch(f"g{n}", f"g{n & 12}", f"v{n & 3}")
    groups = [[(f"y{jj}", jj) for jj in (1, 2, 4, 3, 8, 5, 6, 7, 12, 9, 10, 11, 13, 14, 15)]]
    plan = [[(0, range(8)), (1, range(8))],
            [(2, (0, 2, 4, 6)), (3, (0, 2, 4, 6)), (4, (0, 4)), (5, (0, 4)), (6, (0, 4)), (7, (0, 4))],
            [(i2, (0,)) for i2 in range(8, 17)]]
    for tile in range(3):
        g = []
        for i2, ks in plan[tile]:
            for k in ks:
                if k:
                    ch(f"x{i2}_{k}", f"g{i2}", f"e{k}")
                    g.append((f"x{i2}_{k}", len(g)))
                else:
                    g.append((f"g{i2}", len(g)))
        groups.append(g)
    if OPT["xfirst"]: groups[0], groups[1] = groups[1], groups[0]
    flat = [r for g in groups for r in g]
    prod = {d: list(srcs[:2]) for kind, d, srcs in ops if kind != "mul" and kind != "hmul"}
    prio = {}
    def mark(v, pr):
        if prio.get(v, 1 << 30) <= pr: return
        prio[v] = pr
        for x in prod.get(v, []): mark(x, pr)
    for n, (v, _) in enumerate(flat): mark(v, n)
    for v in ("E4", "Y1", "Y2", "Y4", "Y8"): prio[v] = -1
    uses = {}
    for kind, d, srcs in ops:
        for x in srcs[:2]: uses[x] = uses.get(x, 0) + 1
    for v, _ in flat: uses[v] = uses.get(v, 0) + 1
    ready_at = {v: 0 for v in val}
    LAT = OPT["klat"]
    slot = [0]
    todo = paced(); nu = [OPT["w0"]]; sw = []
    def emit(t):
        if not sw and slot[0] >= OPT["sws"]:
            sw.append(1); sumw(a, OPT["w0"] + len(paced()) - len(todo) + 2 * (OPT["pt"] == 4))
        if not (OPT["exp"] & 128 and t.startswith(("v_pk", "v_cvt", "ds_write"))): a(t)
        slot[0] += 1
        while todo and todo[0][0] <= slot[0]:
            u = todo.pop(0)[1]
            if u[0] == "t":
                a(f"""s_mov_b32 m0, {JUNK}
                      buffer_load_dwordx4 v94, s[20:23], s{38 + int(u[1])} offen sc1 lds""")
            else:
                unit(a, nu[0], UC); nu[0] += 1
            a("s_mov_b32 m0, s37")
    def release(x):
        uses[x] -= 1
        if uses[x] == 0: (pool2 if x[0].isupper() else pool1).append(val[x])
    pend = list(ops)
    gi = 0; left = list(groups[0])
    mf = []; have = set()
    tile_of = {0: 0, 2: 1, 3: 2} if OPT["xfirst"] else {1: 0, 2: 1, 3: 2}
    yg = 1 if OPT["xfirst"] else 0
    def mfma(tile):
        for k in range(4):
            c = "0" if k == 0 else f"v[{KA+4*tile}:{KA+4*tile+3}]"
            emit(f"v_mfma_f32_16x16x32_f16 v[{KA+4*tile}:{KA+4*tile+3}], v[{AF+4*k}:{AF+4*k+3}], v[{BF+4*k}:{BF+4*k+3}], {c}")
    lds_after = [0]; lastw = [-9]
    if yg == 0: emit("ds_write_addtid_b32 v42 offset:16384")
    while pend or gi < len(groups) or mf:
        did = False
        rdy = [r for r in left if r[0] in ready_at and ready_at[r[0]] <= slot[0]]
        if rdy and (len(rdy) >= OPT["wbat"] or len(rdy) == len(left)):
            for v, row in rdy:
                left.remove((v, row))
                emit(f"ds_write_addtid_b32 v{val[v]} offset:{16384 + 288*row}"); lds_after[0] += 1; release(v)
            did = True
        elif gi < len(groups) and not left and (gi == yg or not mf):
            base = BF if gi == yg else AF
            for k in range(4):
                emit(f"ds_read_b128 v[{base+4*k}:{base+4*k+3}], v41 offset:{64*k}")
            lds_after[0] = 0
            if gi == yg: have.add("y"); mf = [(t, slot[0]) for t, _ in mf]
            else: mf.append((tile_of[gi], slot[0]))
            gi += 1; left = list(groups[gi]) if gi < len(groups) else []
            if gi == yg: emit("ds_write_addtid_b32 v42 offset:16384"); lds_after[0] += 1
            did = True
        elif mf and "y" in have and (slot[0] - mf[0][1] >= 24 or (not pend and gi >= len(groups)) or (gi < len(groups) and not left)):
            emit(f"s_waitcnt lgkmcnt({min(lds_after[0], 15)})")
            mfma(mf.pop(0)[0]); did = True
        if not did:
            best = None
            for n, (kind, d, srcs) in enumerate(pend):
                room = pool2 if kind == "mul" else pool1 if kind in ("hmul", "cvt", "cvn") else True
                if all(x in ready_at and ready_at[x] <= slot[0] for x in srcs) and room:
                    key = (prio[d], 0 if kind.endswith("fma") else 1)
                    if best is None or key < best[0]: best = (key, n)
            if best is not None:
                kind, d, srcs = pend.pop(best[1])
                x = val[srcs[0]]; y = val[srcs[1]] if len(srcs) > 1 else None
                if kind == "mul":
                    val[d] = r = pool2.pop(0)
                    emit(f"v_pk_mul_f32 v[{r}:{r+1}], v[{x}:{x+1}], v[{y}:{y+1}] op_sel:[1,0] op_sel_hi:[1,1]")
                elif kind == "fma":
                    r = val[d]
                    emit(f"v_pk_fma_f32 v[{r}:{r+1}], v[{y}:{y+1}], v[{x}:{x+1}], v[{r}:{r+1}] op_sel:[1,0,0] op_sel_hi:[0,0,1] neg_hi:[1,0,0]")
                elif kind == "hmul":
                    val[d] = r = pool1.pop(0)
                    emit(f"v_pk_mul_f16 v{r}, v{x}, v{y} op_sel:[0,0] op_sel_hi:[0,1]")
                elif kind == "hfma":
                    r = val[d]
                    emit(f"v_pk_fma_f16 v{r}, v{x}, v{y}, v{r} op_sel:[1,1,0] op_sel_hi:[1,0,1] neg_lo:[1,0,0]")
                else:
                    val[d] = r = pool1.pop(0)
                    emit(f"v_cvt_pk_f16_f32 v{r}, v{x+1}, {'-' if kind == 'cvn' else ''}v{x}")
                ready_at[d + "'" if kind.endswith("mul") else d] = slot[0] + LAT - 1
                for xx in srcs[:2]: release(xx)
                did = True
        if not did:
            slot[0] += 1
    assert not todo, slot[0]

class Sched:
    CAP = 2
    def __init__(self, a, old=5, maxfly=12):
        self.a = a; self.m = []; self.it = []; self.old = old; self.maxfly = maxfly
    def mfma(self, text, need=()):
        self.m.append((text, [x for x in need if x is not None])); return len(self.m) - 1
    def item(self, text, gate=-1, need=(), cost=1, lds=False, pri=None):
        self.it.append(dict(text=text, gate=gate, need=[x for x in need if x is not None], cost=cost, lds=lds, pri=pri, at=None, seq=None))
        return len(self.it) - 1
    def run(self):
        a, it = self.a, self.it
        dl = [len(self.m) + 1] * len(it)
        for g, (_, need) in enumerate(self.m):
            for x in need: dl[x] = min(dl[x], g)
        for n in reversed(range(len(it))):
            if it[n]["pri"] is not None: dl[n] = min(dl[n], it[n]["pri"])
            for x in it[n]["need"] + ([it[n]["issued"]] if "issued" in it[n] else []):
                dl[x] = min(dl[x], dl[n] - (self.old + 1 if it[n]["lds"] and it[n]["cost"] == 1 else 0))
        lead = lambda n: dl[n] - (self.old + 1 if it[n]["lds"] else 1)
        issued = []; done = [0]; self.over = 0
        def wait_for(xs, g):
            top = max([it[x]["seq"] for x in xs if it[x]["lds"]], default=-1)
            if top < done[0]: return 0
            while top + 1 < len(issued) and it[issued[top + 1]]["at"] <= g - self.old: top += 1
            a(f"s_waitcnt lgkmcnt({len(issued) - top - 1})"); done[0] = top + 1
            return 1
        def needs_wait(xs): return any(it[x]["lds"] and it[x]["seq"] >= done[0] for x in xs)
        def emit(n, g):
            c = wait_for(it[n]["need"], g) if not it[n]["lds"] or it[n]["cost"] > 1 or True else 0
            if it[n]["lds"]:
                if len(issued) - done[0] >= 15:
                    a("s_waitcnt lgkmcnt(10)"); done[0] = len(issued) - 10; c += 1
                it[n]["seq"] = len(issued); issued.append(n)
            a(it[n]["text"]); it[n]["at"] = g
            return c + it[n]["cost"]
        def force(n, g):
            c = 0
            if it[n]["at"] is None:
                if "issued" in it[n]: c += force(it[n]["issued"], g)
                for x in it[n]["need"]: c += force(x, g)
                c += emit(n, g)
            return c
        for g in range(len(self.m) + 1):
            need = self.m[g][1] if g < len(self.m) else range(len(it))
            used = sum(force(x, g) for x in need)
            room = (self.CAP if g else 8) - used - (1 if needs_wait(need) else 0)
            while room > 0:
                c = [n for n in range(len(it)) if it[n]["at"] is None and it[n]["gate"] < g and ("issued" not in it[n] or it[it[n]["issued"]]["at"] is not None)
                     and all(it[x]["at"] is not None and (not it[x]["lds"] or it[x]["at"] <= g - self.old or it[x]["seq"] < done[0]) for x in it[n]["need"])
                     and it[n]["cost"] + needs_wait(it[n]["need"]) <= room and not (it[n]["lds"] and len(issued) - done[0] >= self.maxfly)]
                if not c: break
                room -= emit(min(c, key=lambda n: (lead(n), n)), g)
            if room < 0 and 0 < g < len(self.m): self.over -= room
            if g < len(self.m):
                wait_for(need, g)
                a(self.m[g][0] if not OPT["exp"] & 2 else "")

def conv_sync(a, label):
    a(f"""v_mov_b32 v6, 0
          v_mov_b32 v7, 1
          s_waitcnt vmcnt(0)
          s_mov_b64 exec, 1
          ds_add_u32 v6, v7 offset:{SY + 112}
          s_mov_b64 exec, -1""")
    stamp(a, 3)
    lds_wait(a, label, 7, "v6", SY + 16, "v_cmp_gt_u32 vcc, 4, v7", OPT["csl"])
    stamp(a, 4, 0); stamp(a, 4, 2)

def conv(a):
    ACC = lambda j: 16 + 4 * j
    TBUF, T16 = [96, 104], 92
    NP = OPT["npre"]
    UN = [112, 116, 120, 124, 2] + list(range(128 + 8 * NP, 168, 4))
    TBP = lambda sl: 128 + 8 * (sl - 2) if 2 <= sl < 2 + NP else TBUF[(sl - NP * (sl >= 2)) % 2]
    assert NP == 4
    BN, MB = [88, 92, 128, 132], 136
    UF_ = [140, 144, 148, 116, 120]
    W = [152, 96]
    types = [((0, 1), (-24, -24), (R2B + 0, R2B + 384), 79, (2, 3, 4), 6, (48, 52, 56)),
             ((1, 0), (-16, -16), (R2B + 128, R2B + 256), 79, (2, 3, 4), 6, (60, 64, 68)),
             ((2, 3), (-24, -16), (R3B, R3B + 160), 127, (4, 5, 6, 7), 4, (72, 76, 80, 84))]
    a(f"""v_mov_b32 v8, s70""")
    def tl(dst, s):
        base, off = (10, 16 * (16 - s)) if s >= 8 else (11, 16 * (8 - s))
        return [f"ds_read2_b32 v[{dst}:{dst+1}], v{base} offset0:{off} offset1:{off+1}",
                f"ds_read2_b32 v[{dst+2}:{dst+3}], v{base} offset0:{off+2} offset1:{off+3}"]
    for dst, s in ((96, 0), (100, 8), (T16, 16), (104, 1), (108, 9)):
        for t in tl(dst, s): a(t)
    for sl in range(2, 2 + NP):
        a("s_waitcnt lgkmcnt(8)")
        for h in range(2):
            for t in tl(TBP(sl) + 4 * h, sl + 8 * h): a(t)
    far_loads = []
    for bands, bases, tbls, X, deltas, njp, TF in types:
        for di, D in enumerate(deltas):
            for i in range(2):
                imm = tbls[i] + 2 * (X - 16 * D) - 30 - R2B
                assert imm % 4 == 0 and 0 <= imm <= 1016
                far_loads.append((TF[di], f"ds_read2_b32 v[{TF[di]+2*i}:{TF[di]+2*i+1}], v14 offset0:{imm//4} offset1:{imm//4 + 1}"))
    for i in range(2): far_loads.append((BN[i], f"ds_read_b128 v[{BN[i]}:{BN[i]+3}], v13 offset:{1024*i}"))
    ld = {}
    if OPT["fchk"] < 0:
        lds_wait(a, "K_FW", 6, "v15", SY + 640, "v_cmp_eq_u32 vcc, 0, v6")
        a("v_readfirstlane_b32 s71, v6")
        for n, (r, t) in enumerate(far_loads[:-2]):
            a(t); ld[r] = None
            if n == 10: a("s_waitcnt lgkmcnt(4)")
        far_loads = far_loads[-2:]
    if OPT["csend"]:
        assert OPT["fchk"] < 0
        a("s_add_u32 s62, s52, 4")
        inbox(a, 0, 14, 6, 72, 61, "s62", TBS)
        a("""s_sub_u32 s74, s72, 0x200000
             s_sub_u32 s75, s73, 0x200000""")
        srd(a, 20, 26, 27, 0x400000)
    a("v_mov_b32 v6, 0")
    lds_wait(a, "K_BW", 7, "v6", SY + 28, "v_cmp_gt_u32 vcc, 8, v7")
    a(f"s_setprio {OPT['nprio']}")
    conv_sync(a, "K_W1N")
    asmlib.MFMA_TIME = bool(OPT["mt"])
    S = Sched(a, OPT["old"], OPT["cfly"])
    started = set(); free = {}; fneed = {}
    def load(text, reg):
        return S.item(text, free.get(reg, -1), fneed.pop(reg, ()), lds=True)
    def accum(j, A, B, need=()):
        c = f"v[{ACC(j)}:{ACC(j)+3}]" if j in started else "0"
        started.add(j)
        return S.mfma(f"v_mfma_f32_16x16x32_f16 v[{ACC(j)}:{ACC(j)+3}], v[{A}:{A+3}], v[{B}:{B+3}], {c}", need)
    prev = []
    def finish(j, last):
        r = ACC(j); p = last + OPT["flate"]
        m = [S.item(f"v_mul_f32 v{r+k}, v{r+k}, v8", last + 3, pri=p) for k in range(4)]
        c0 = S.item(f"v_cvt_pk_bf16_f32 v{r}, v{r}, v{r+1}", -1, m, pri=p)
        c1 = S.item(f"v_cvt_pk_bf16_f32 v{r+1}, v{r+2}, v{r+3}", -1, [c0], pri=p)
        w = S.item(f"ds_write_b64 v9, v[{r}:{r+1}] offset:{512*j}", -1, [c1], cost=2, lds=True, pri=p)
        prev.append(w); fneed[r] = [mark(w)]
        if j % 4 == 3:
            mv = S.item(f"v_mov_b32 v7, {j + 1}", last, pri=p)
            S.item(f"ds_write_b32 v15, v7 offset:{SY + 48}", -1, [mv] + [mark(x) for x in prev], cost=2, lds=True, pri=p)
    def mark(w):
        n = S.item("", -1, [], cost=0); S.it[n]["issued"] = w
        return n
    frag = {}; nf = [0]; cv = {}
    def uload(base):
        if base not in frag:
            r = UF_[nf[0] % len(UF_)]; nf[0] += 1
            frag[base] = (r, load(f"ds_read_b128 v[{r}:{r+3}], v12 offset:{2*(UPAD + base)}", r))
        return frag[base]
    items = [(ti, jp) for jp in range(6) for ti in (0, 2, 1) if jp < types[ti][5]]
    def window(n, i):
        ti, jp = items[n]
        bands, bases = types[ti][:2]
        w, d = W[n % 2] + 4 * i, W[n % 2] + 2 * i
        r, lid = uload(256 * jp + bases[i])
        b = BN[bands[i]]
        if b not in ld: ld[b] = load(f"ds_read_b128 v[{b}:{b+3}], v13 offset:{1024*bands[i]}", b)
        free[r] = g = S.mfma(f"v_mfma_f32_16x16x32_f16 v[{w}:{w+3}], v[{r}:{r+3}], v[{b}:{b+3}], 0", [lid, ld[b]])
        c0 = S.item(f"v_cvt_pk_f16_f32 v{d}, v{w}, v{w+1}", g + OPT["clat"], cv.get(n, []))
        cv[n] = [S.item(f"v_cvt_pk_f16_f32 v{d+1}, v{w+2}, v{w+3}", -1, [c0])]
    nu = 0; tid = {sl: [None, None] for sl in range(2 + NP)}
    for sl in range(8):
        tb = TBP(sl)
        if sl + 1 not in tid and sl < 7:
            nb = TBP(sl + 1)
            tid[sl + 1] = [[load(t, nb) for t in tl(nb + 4 * h, sl + 1 + 8 * h)] for h in range(2)]
        if sl == 1 and OPT["fchk"] < 0:
            for r, t in far_loads: ld[r] = S.item(t, len(S.m) - 1, lds=True)
        if sl == OPT["fchk"]:
            g0 = len(S.m) - 1
            fl = S.item(f"ds_read_b32 v6, v15 offset:{SY + 640}", g0, lds=True)
            rf = S.item("v_readfirstlane_b32 s71, v6", g0, [fl])
            ck = S.item("s_cmp_eq_u32 s71, 0\n s_cbranch_scc1 K_FR\n K_FB:", g0 + 8, [rf], cost=2)
            for n, (r, t) in enumerate(far_loads):
                x = S.item(t, g0 + 8 + OPT["fstep"] * n, [ck], lds=True)
                ld[r] = S.item("", -1, [x] + ([ld[r]] if r in ld else []), cost=0)
        for o in range(8):
            ub = UN[nu % len(UN)]; nu += 1
            ul = load(f"ds_read_b128 v[{ub}:{ub+3}], v12 offset:{2*(UPAD - 16 + 256*o - 32*sl)}", ub)
            last = free[ub] = accum(o, tb, ub, (tid[sl][0] or []) + [ul])
            if o + 1 <= 7: free[ub] = accum(o + 1, tb + 4, ub, tid[sl][1] or [])
            if sl == 0 and o + 2 <= 7: free[ub] = accum(o + 2, T16, ub)
            if sl == 7 and o < 2: finish(o, last)
            if (sl, o) == (7, 5): window(0, 0); window(0, 1)
        free[tb] = free[tb + 4] = len(S.m) - 1
    ld[MB] = load(f"ds_read_b128 v[{MB}:{MB+3}], v13 offset:4096", MB)
    mb = [S.item(f"v_pk_mul_f16 v{MB+k}, v{MB+k}, s71 op_sel_hi:[1,0]", -1, [ld[MB]]) for k in range(4)]
    for n, (ti, jp) in enumerate(items):
        bands, bases, tbls, X, deltas, njp, TF = types[ti]
        if ti == 1 and jp < 5:
            r, lid = uload(256 * (jp + 3) - 1032)
            free[r] = accum(jp + 3, MB, r, [lid] + mb)
        if n + 1 < len(items):
            window(n + 1, 0); window(n + 1, 1)
        for di, D in enumerate(deltas):
            if jp + D <= 7:
                g = accum(jp + D, W[n % 2], TF[di], cv[n] + [ld[TF[di]]])
                if ti == 1 and di == 0: finish(jp + 2, g)
    S.run()
    assert max(x["seq"] for x in S.it if "ds_read2" in x["text"]) < min(x["seq"] for x in S.it if "ds_write_b64" in x["text"])
    if OPT["dbg"]: print("conv: slots over capacity", S.over, file=sys.stderr)
    asmlib.MFMA_TIME = False
    stamp(a, 5, 0); stamp(a, 5, 2)
    if OPT["csend"]:
        a(f"""s_setprio 3
              ds_read_b32 v5, v6 offset:{SY + 8}
              v_mov_b32 v4, {TAGM:#x}
            K_CS:
              ds_read_b128 v[8:11], v6 offset:{SY + 48}
              ds_read_b128 v[16:19], v14 offset:{TB}
              ds_read_b128 v[20:23], v14 offset:{TB + 256}
              s_waitcnt lgkmcnt(2)
              v_and_b32 v8, v8, v9
              v_bitop3_b32 v8, v8, v10, v11 bitop3:0x80
              v_readfirstlane_b32 s47, v5
          s_sub_u32 s47, s47, 1
              v_cmp_ne_u32 vcc, 8, v8
              s_cbranch_vccnz K_CS
              {f"ds_read_b128 v[24:27], v14 offset:{TB - 2048}" if OPT["csend"] == 2 else ""}
              {f"ds_read_b128 v[28:31], v14 offset:{TB - 2048 + 256}" if OPT["csend"] == 2 else ""}
              s_waitcnt lgkmcnt({2 if OPT["csend"] == 2 else 0})
              v_bitop3_b32 v7, v16, v17, v4 bitop3:0xa2
              v_bitop3_b32 v8, v20, v21, v4 bitop3:0xa2
              v_cmp_eq_u32 vcc, 0, v7
              v_cmp_eq_u32 s[64:65], 0, v8
              v_addc_co_u32 v16, vcc, 0, v16, vcc
              v_addc_co_u32 v20, vcc, 0, v20, s[64:65]""")
        both_modes(a, "K_CY", """buffer_store_dwordx4 v[16:19], v0, s[20:23], s72 offen @
                                 buffer_store_dwordx4 v[20:23], v0, s[20:23], s73 offen @""")
        if OPT["csend"] == 2:
            a(f"""s_waitcnt lgkmcnt(0)
                  v_bitop3_b32 v7, v24, v25, v4 bitop3:0xa2
                  v_bitop3_b32 v8, v28, v29, v4 bitop3:0xa2
                  v_cmp_eq_u32 vcc, 0, v7
                  v_cmp_eq_u32 s[64:65], 0, v8
                  v_addc_co_u32 v24, vcc, 0, v24, vcc
                  v_addc_co_u32 v28, vcc, 0, v28, s[64:65]""")
            both_modes(a, "K_CZ", """buffer_store_dwordx4 v[24:27], v0, s[20:23], s74 offen @
                                     buffer_store_dwordx4 v[28:31], v0, s[20:23], s75 offen @""")
        stamp(a, 6, 0)
    stamp_flush(a, 8)
    if OPT["fchk"] >= 0:
        a(f"""K_FR:
              s_sleep 1
              ds_read_b32 v6, v15 offset:{SY + 640}
              s_waitcnt lgkmcnt(0)
              v_readfirstlane_b32 s71, v6
              s_cmp_eq_u32 s71, 0
              s_cbranch_scc1 K_FR
              s_branch K_FB""")

F, U, CS = 32, 64, 140
Z, ONE = "v166", "v167"

UE = ((24, 25), 64, 12, 16)
UC = ((88, 98), 4, 16, 36)
def unit(a, n, R=UE):
    va, sd, so, sm = R
    k, mat = n // 2, n % 2
    a(f"""s_add_u32 m0, s{sm}, {mat * 32768 + k * 8192}
          buffer_load_dwordx4 v{va[0]}, s[{sd+4*mat}:{sd+3+4*mat}], s{so+k} offen {OPT['wfl']} lds""")

def unit_setup(a, R, vg, vc, vt):
    (v0, v1), sd, so, sm = R
    srd(a, sd, 20, 21, WBYTES); srd(a, sd + 4, 22, 23, WBYTES)
    a(f"""s_cmp_ge_u32 s29, 28                  ; no FFN tile: empty descriptors
          s_cselect_b32 s{sd+2}, 0, s{sd+2}
          s_cselect_b32 s{sd+6}, 0, s{sd+6}
          s_and_b32 s{so}, s30, 2
          s_lshl_b32 s{so}, s{so}, 2
          v_lshl_or_b32 v{v0}, v{vg}, 1, s{so}
          v_xor_b32 v{v0}, v{v0}, v{vc}
          v_mul_u32_u24 v{vt}, 7168, v{vg}
          v_lshl_add_u32 v{v0}, v{v0}, 4, v{vt}
          s_lshl_b32 s{so}, s28, 5
          s_add_u32 s{so}, s{so}, s30
          s_mul_i32 s{so}, s{so}, {4 * 7168}
          s_lshl_b32 s{so+1}, s29, 8
          s_add_u32 s{so}, s{so}, s{so+1}
          s_add_u32 s{so+1}, s{so}, {32 * 7168}
          s_add_u32 s{so+2}, s{so}, {64 * 7168}
          s_add_u32 s{so+3}, s{so}, {96 * 7168}
          s_lshl_b32 s{sm}, s30, 10
          s_add_u32 s{sm}, s{sm}, {F_W}""")

def paced():
    if not OPT["kp"]: return []
    return [(int(x.split(":")[0]), x.split(":")[1]) for x in str(OPT["kp"]).split(",")]
def nC():
    return OPT["w0"] + sum(1 for _, u in paced() if u[0] != "t") + OPT["kt"] + OPT["ku"] + OPT["ko"]

def first_channel(a, d, t):
    a(f"""s_lshr_b32 s{d}, s29, 3
          s_lshl_b32 s{d}, s{d}, 5
          s_and_b32 s{t}, s29, 7
          s_add_u32 s{d}, s{d}, s{t}
          s_lshl_b32 s{t}, s28, 7
          s_add_u32 s{d}, s{d}, s{t}""")

def unpk(t):
    import re
    m = re.match(r"v_pk_(\w+)_f32 (.*?)(?: (op_sel_hi|neg_lo).*)?$", t.strip())
    op, args = m.group(1), [x.strip() for x in m.group(2).split(",")]
    bc = "op_sel_hi:[1,0]" in t; neg = "neg_lo:[0,1]" in t
    out = []
    for h in (1, 0):
        r = []
        for n, x in enumerate(args):
            mm = re.match(r"([vs])\[(\d+):", x)
            r.append(x if not mm else "0x3fb8aa3b" if mm.group(1) == "s" else f"v{int(mm.group(2)) + (0 if bc and n == 2 else h)}")
        if not r[2].startswith("v"): r[1], r[2] = r[2], r[1]
        out.append(f"v_{'sub' if neg else op}_f32 " + ", ".join(r))
    return "\n".join(out)

def inbox(a, vo, vl, vt, so, st, tile="s30", row=UROW, tsh=9):
    a(f"""v_and_b32 v{vt}, 3, v1
          v_mul_u32_u24 v{vl}, {row}, v{vt}
          v_lshlrev_b32 v{vo}, 4, v{vt}
          v_lshrrev_b32 v{vt}, 2, v1
          v_lshl_add_u32 v{vl}, v{vt}, 4, v{vl}
          v_lshl_add_u32 v{vo}, v{vt}, 14, v{vo}
          s_lshl_b32 s{st}, {tile}, {tsh}
          v_add_u32 v{vl}, s{st}, v{vl}
          s_lshl_b32 s{so}, {tile}, 19
          s_lshl_b32 s{st}, s28, 8
          s_add_u32 s{so}, s{so}, s{st}
          s_and_b32 s{st}, s29, 3
          s_lshl_b32 s{st}, s{st}, 12
          s_add_u32 s{so}, s{so}, s{st}
          s_and_b32 s{st}, s29, 4
          s_lshl_b32 s{st}, s{st}, 9
          s_add_u32 s{so}, s{so}, s{st}
          s_lshr_b32 s{st}, s29, 3
          s_lshl_b32 s{st}, s{st}, 6
          s_add_u32 s{so}, s{so}, s{st}
          s_add_u32 s{so+1}, s{so}, 0x40000""")

def operands(a0, h, es, scalar=0):
    if OPT["exp"] & 256: return
    a = a0 if not scalar else lambda t: a0("\n".join(unpk(l) if l.strip().startswith("v_pk_") else l for l in t.split("\n")))
    T = lambda e: 8 + 2 * (e % 4)
    T2 = lambda e: 16 + 2 * (e % 4)
    p = lambda r: f"v[{r}:{r+1}]"
    Fh, Uh = F + 16 * h, U + 16 * h
    for e in es: a(f"v_pk_mul_f32 {p(T(e))}, {p(Uh+2*e)}, s[58:59] op_sel_hi:[1,0]")
    for e in es:
        a(f"""v_exp_f32 v{T(e)}, -v{T(e)}
              {"v_and_b32" if e % 2 else "v_lshlrev_b32"} v{T2(e)}, {"0xffff0000" if e % 2 else "16"}, v{28 + e//2}
              v_exp_f32 v{T(e)+1}, -v{T(e)+1}
              v_pk_add_f32 {p(Fh+2*e)}, {p(CS+2*h)}, {p(Fh+2*e)} neg_lo:[0,1] neg_hi:[0,1]""")
    for e in es: a(f"v_pk_add_f32 {p(T(e))}, {p(T(e))}, 1.0 op_sel_hi:[1,0]")
    for e in es:
        a(f"""v_rcp_f32 v{T(e)}, v{T(e)}
              v_pk_mul_f32 {p(T2(e))}, {p(Uh+2*e)}, {p(T2(e))} op_sel_hi:[1,0]
              v_rcp_f32 v{T(e)+1}, v{T(e)+1}""")
    for e in es: a(f"v_pk_mul_f32 {p(T(e))}, {p(T(e))}, {p(Uh+2*e)}")
    for e in es:
        a(f"""v_pk_fma_f32 {p(Fh+2*e)}, {p(T2(e))}, {p(T(e))}, {p(Fh+2*e)}
              v_cvt_pk_bf16_f32 v{Uh+2*e}, v{T(e)}, 0
              v_cvt_pk_bf16_f32 v{Uh+2*e+1}, 0, v{T(e)+1}""")

def dpp(op, d, s, mod, bank=0xf):
    return f"{op}_dpp v{d}, v{s}{', v' + str(s) if op != 'v_mov_b32' else ''} {mod} row_mask:0xf bank_mask:{bank:#x}"

def e_path(a):
    W0 = nC(); NC = OPT["ncopy"]
    G, H = 112, 116
    R = 96
    L16, XO, PUB, GAT, CIO, INB, LDA, KIX, KAD, RW2, TM, TN, HM, SG, WA, WDA = range(148, 164)
    p = lambda r: f"v[{r}:{r+1}]"
    row = lambda n: f"s{61 + Q[n // 2]} offen offset:{2048 * (n % 2)}"
    PL = "global_load_lds_dwordx4 v7, s[64:65]"
    Q = (0, 16)
    a(f"""v_lshlrev_b32 v{L16}, 4, v1
          v_lshrrev_b32 v2, 4, v1
          v_and_b32 v3, 15, v1
          v_lshlrev_b32 v5, 4, v3
          v_lshl_add_u32 v7, v2, 11, v5
          s_lshl3_add_u32 s63, s30, 8
          s_load_dwordx2 s[64:65], s[0:1], s63
          s_setprio {OPT['eprio']}
          s_cmp_lg_u32 s30, 0
          s_cbranch_scc1 K_NOPF
          ; the code is read once as data so that instruction fetches find it in L2 (each WG of a die takes a slice)
          s_getpc_b64 s[48:49]
        K_PC:
          s_lshl_b32 s50, s29, 10
          s_min_u32 s50, s50, K_BAND - K_PC + 4096
          s_add_u32 s50, s50, s48
          s_addc_u32 s51, s49, 0
          global_load_dwordx4 v[32:35], v{L16}, s[50:51]
        K_NOPF:""")
    first_channel(a, 3, 63)
    a(f"""s_lshl_b32 s63, s3, 8
          v_add_u32 v7, s63, v7
          s_lshl_b32 s3, s3, 1
          s_and_b32 s3, s3, -64
          s_lshl_b32 s63, s30, 10
          s_add_u32 m0, s63, {PRM}
          s_lshl2_add_u32 s60, s29, s30
          s_lshl_b32 s61, s60, 15
          s_lshl_b32 s62, s28, 8
          s_add_u32 s61, s61, s62
          v_lshl_add_u32 v{XO}, v2, 12, v5
          v_add_u32 v6, s62, v5
          v_add_u32 v4, s61, v{XO}
          v_add_u32 v96, 0x4000, v4
          v_mov_b32 {Z}, 0
          v_lshlrev_b32 v97, 2, v1
          s_mov_b32 s38, {WS_EP2:#x}
          ds_write2st64_b32 v97, {Z}, {Z} offset0:0 offset1:2
          s_waitcnt lgkmcnt(0)
          {PL if OPT["ppos"] < 2 else ""}
          s_load_dword s46, s[42:43], {WS_EP:#x}
          s_load_dword s39, s[42:43], s38
          s_load_dword s47, s[12:13], s3
          {"s_sleep 1" if OPT["ppos"] == 1 else ""}
          global_load_dwordx4 v[8:11], v4, s[44:45] {OPT['xfl']}
          global_load_dwordx4 v[12:15], v4, s[44:45] offset:2048 {OPT['xfl']}
          global_load_dwordx4 v[16:19], v96, s[44:45] {OPT['xfl']}
          global_load_dwordx4 v[20:23], v96, s[44:45] offset:2048 {OPT['xfl']}
          global_load_dwordx4 v[24:27], v6, s[18:19]
          global_load_dwordx4 v[28:31], v6, s[14:15]""")
    stamp(a, 5, 3)
    a("s_barrier")
    stamp(a, 6, 3)
    srd(a, 32, 42, 43, WS_SIZE)
    a(f"""s_lshl_b32 s63, s29, 13
          s_lshl_b32 s73, s30, 8
          s_add_u32 s63, s63, s73
          s_add_u32 s63, s63, {WS_PS:#x}
          s_lshl_b32 s73, s28, 10
          s_add_u32 s73, s73, s63
          s_lshl_b32 s74, s28, 12
          s_add_u32 s74, s74, {WS_CI:#x}
          s_getreg_b32 s56, hwreg(HW_REG_XCC_ID, 0, 4)
          v_mov_b32 {ONE}, 1
          v_mov_b32 v{HM}, 0xffff0000
          s_mov_b32 s8, 0x0000bf80
          s_mov_b32 s9, 0xbf800000
          v_mov_b32 v132, 0
          v_mov_b32 v133, 0
          v_mov_b32 v134, 0
          v_mov_b32 v135, 0
          v_and_b32 v7, 3, v1
          v_and_b32 v{GAT}, 0xf0, v97
          v_lshl_add_u32 v{PUB}, v7, 18, v{GAT}
          v_lshl_add_u32 v{GAT}, v7, 10, v{GAT} ; gather offset: lane 4q + s reads sources s and s + 4
          v_and_b32 v{CIO}, 0x7c, v97
          s_and_b32 s10, s28, 3
          s_lshl_b32 s10, 0x11111111, s10
          s_not_b32 s10, s10
          s_cmp_lt_u32 s28, 4
          s_cselect_b32 s4, s10, -1             ; lanes that gather from the other dies
          s_cselect_b32 s6, -1, s10
          s_mov_b32 s5, s4
          s_mov_b32 s7, s6
          s_add_u32 s72, s63, {(NC - 1) * 0x40000:#x}
          s_mov_b64 exec, 1
          s_waitcnt vmcnt(6)
          ds_add_u32 {Z}, {ONE} offset:{SY + 12}
          s_mov_b64 exec, -1
          s_waitcnt lgkmcnt(0)
          s_add_u32 s46, s46, s39
          s_add_u32 s46, s46, {STEP:#x}
          v_mov_b32 v{G+3}, s46
          v_mov_b32 v{H+3}, s46
          s_cmp_lg_u32 s30, 3
          s_cbranch_scc1 K_NOCI
          v_add_u32 v7, s56, v{G+3}
          s_lshl_b32 s78, s29, 7
          s_add_u32 s78, s78, s74
          s_mov_b32 exec_hi, 0
          buffer_store_dword v7, v{CIO}, s[32:35], s78 offen sc1
          ds_write_b32 {Z}, v{G+3} offset:{SY}
          s_mov_b32 exec_hi, -1
        K_NOCI:""")
    stamp(a, 7, 3)
    S1 = lambda h: 120 + 2 * h
    S2 = lambda h: 124 + 2 * h
    for h in range(2):
        Fh = F + 16 * h
        for k in range(2):
            x = 8 + 8 * h + 4 * k
            a(f"""s_waitcnt vmcnt({5 - 2 * h - k})
                  v_and_b32_dpp v{CS+2*h+k}, v{x}, v{HM} row_newbcast:0 row_mask:0xf bank_mask:0xf""")
            if (h, k) == (1, 1): stamp(a, 1)
            for e in range(8): a(f"v_dot2_f32_bf16 v{Fh+2*e+k}, v{x+e//2}, s{8+e%2}, v{CS+2*h+k}")
        a(f"""v_pk_add_f32 {p(S1(h))}, {p(Fh)}, {p(Fh+2)}
              v_pk_mul_f32 {p(S2(h))}, {p(Fh)}, {p(Fh)}
              v_pk_add_f32 v[128:129], {p(Fh+4)}, {p(Fh+6)}
              v_pk_mul_f32 v[130:131], {p(Fh+2)}, {p(Fh+2)}""")
        for e in range(2, 8):
            d = S2(h) if e % 2 == 0 else 130
            a(f"v_pk_fma_f32 {p(d)}, {p(Fh+2*e)}, {p(Fh+2*e)}, {p(d)}")
            if e >= 4:
                d = S1(h) if e % 2 == 0 else 128
                a(f"v_pk_add_f32 {p(d)}, {p(d)}, {p(Fh+2*e)}")
        a(f"""v_pk_add_f32 {p(S2(h))}, {p(S2(h))}, v[130:131]
              v_pk_add_f32 {p(S1(h))}, {p(S1(h))}, v[128:129]""")
    a("s_waitcnt vmcnt(1)")
    for k in range(4):
        for n in range(4): a(f"v_dot2c_f32_bf16 v{132+n}, v{8+4*n+k}, v{24+k}")
    a(f"v_mov_b32 v136, v{CS}")
    for b in (120, 124): a("\n".join([dpp("v_add_f32", b + 2*h, b + 2*h, "row_ror:8", 0x3) for h in range(2)]))
    a(dpp("v_mov_b32", 136, CS + 2, "quad_perm:[0,1,2,3]", 0x2))
    for b in (120, 124): a("\n".join([dpp("v_add_f32", b + 2*h, b + 2*h + 1, "row_ror:8", 0xc) for h in range(2)]))
    a("\n".join([dpp("v_add_f32", 132 + 2*h, 132 + 2*h, "row_ror:8", 0x3) for h in range(2)]))
    a(dpp("v_mov_b32", 136, CS + 1, "quad_perm:[0,1,2,3]", 0x4))
    a("\n".join([dpp("v_add_f32", 132 + 2*h, 132 + 2*h + 1, "row_ror:8", 0xc) for h in range(2)]))
    for h in range(2):
        for d, b in ((G, 120), (G + 1, 124), (G + 2, 132)): a(dpp("v_add_f32", d, b + 2*h, "row_half_mirror", 0x5 << h))
    a(dpp("v_mov_b32", 136, CS + 3, "quad_perm:[0,1,2,3]", 0x8))
    def red4(order):
        for mod in ("quad_perm:[1,0,3,2]", "quad_perm:[2,3,0,1]"):
            for r in order: a(dpp("v_add_f32", r, r, mod))
    red4((G, G + 1, G + 2))
    a(f"""v_mul_f32 v137, 0x3c000000, v{G}
          v_fma_f32 v{G+1}, -v137, v{G}, v{G+1}
          v_sub_f32 v{G}, v136, v137
          s_mov_b32 exec_lo, {0x11111111 * ((1 << NC) - 1):#x}
          s_mov_b32 exec_hi, exec_lo
          buffer_store_dwordx4 v[{G}:{G+3}], v{PUB}, s[32:35], s73 offen sc1
          s_mov_b64 exec, 1
          ds_add_u32 {Z}, {ONE} offset:{SY + 36}
          s_mov_b64 exec, -1""")
    stamp(a, 2)
    a(f"""s_setprio {OPT['sprio']}
          v_mov_b32 v{H}, v{G}
          v_mov_b32 v{H+1}, v{G+1}
          v_mov_b32 v{H+2}, v{G+2}""")
    unit_setup(a, ((WA, 0), 64, 12, 16), 2, 3, 7)
    srd(a, 40, 24, 25, WBYTES)
    a("s_mov_b32 s42, s66")
    srd(a, 20, 26, 27, 0x400000)
    a("s_lshl_b32 s79, s30, 1")
    inbox(a, INB, LDA, 7, 75, 78, "s79")
    a(f"""s_add_u32 s36, s75, 0x80000
          s_add_u32 s37, s75, 0xc0000
          s_add_u32 s77, s61, 0x4000
          v_mul_u32_u24 v7, {7168 - 2048}, v2
          v_sub_u32 v{WDA}, v{WA}, v7
          s_lshl_b32 s18, s29, 5
          s_add_u32 s18, s18, s30
          s_lshl_b32 s18, s18, 13
          s_add_u32 s18, s18, s62
          s_lshl_b32 s19, s30, 10
          v_mov_b32 v{TM}, {TAGM:#x}
          v_mov_b32 v{TN}, {TAGM ^ 0xffffffff:#x}
          v_mov_b32 v{SG}, 0x80000000
          s_cmp_ge_u32 s29, 28
          s_cselect_b32 s17, 1, 0               ; tile loads issued (or none to issue)
          s_mov_b32 s83, {SPIN:#x}
          s_lshl_b32 s78, s60, 5
          v_lshl_add_u32 v{RW2}, v2, 2, s78
          v_and_b32 v7, 4, v1
          v_lshl_add_u32 v{KIX}, v7, 2, v{RW2}
          v_bfe_u32 v7, v1, 3, 1
          v_lshl_add_u32 v{KIX}, v7, 1, v{KIX}
          v_sub_u32 v{KIX}, 4094, v{KIX}
          s_lshl_b32 s78, s30, 7
          v_lshl_add_u32 v{KAD}, v1, 1, s78
          v_lshlrev_b32 v{CIO}, 5, v{CIO}
          s_setprio {OPT['eprio']}""")
    if OPT["pace"]: lds_wait(a, "K_AW", 7, Z, SY + 36, "v_cmp_gt_u32 vcc, 4, v7")
    if OPT["psl"]: a(f"s_sleep {OPT['psl']}")
    stamp(a, 5, 4)
    gather = f"""s_add_u32 s78, s63, 4096
                 s_mov_b64 exec, s[4:5]
                 s_cbranch_execz K_G@0
                 buffer_load_dwordx4 v[{G}:{G+3}], v{GAT}, s[32:35], s63 offen sc1
               K_G@0:
                 s_mov_b64 exec, s[6:7]
                 s_cbranch_execz K_G@1
                 buffer_load_dwordx4 v[{H}:{H+3}], v{GAT}, s[32:35], s78 offen sc1
               K_G@1:
                 s_mov_b64 exec, -1"""
    a(gather.replace("@", "A"))
    touch = "\n".join(f"buffer_load_dwordx4 v[{8+4*n}:{11+4*n}], v{XO}, s[20:23], {row(n)} sc1" for n in range(OPT["ptn"]))
    TW = OPT["ptn"] * (OPT["pt"] == 2)
    if TW: a(f"s_sleep {OPT['wsl']}\n" + touch)
    a(f"""; wave 2 finds out whether the X group shares a die
          s_cmp_lg_u32 s30, 2
          s_cbranch_scc1 K_NOCR
        K_CR:
          buffer_load_dword v7, v{CIO}, s[32:35], s74 offen sc1
          s_sub_u32 s83, s83, 1
          s_waitcnt vmcnt(0)
          v_subrev_u32 v7, s46, v7
          s_cbranch_scc1 K_CRD
          v_cmp_lt_u32 vcc, 15, v7
          s_cbranch_vccnz K_CR
        K_CRD:
          v_cmp_ne_u32 vcc, s56, v7
          s_max_i32 s83, s83, 0
          s_cmp_lg_u64 vcc, 0
          s_cselect_b32 s78, 2, {1 + OPT['slow']}
          v_mov_b32 v7, s78
          ds_write_b32 {Z}, v7 offset:{SY + 8}
        K_NOCR:
          {"s_mov_b32 s80, 1" if OPT["dbg"] else ""}
          s_waitcnt vmcnt({TW})
          s_branch K_P1C
        K_P1:
          {"s_sleep " + str(OPT["tsl"]) if OPT["tsl"] else ""}
          s_add_u32 s63, s63, 0x40000
          s_min_u32 s63, s63, s72""")
    a(gather.replace("@", "B"))
    a(f"""{"s_add_u32 s80, s80, 1" if OPT["dbg"] else ""}
          s_sub_u32 s83, s83, 1
          s_waitcnt vmcnt(0)
          s_cbranch_scc1 K_P1D
        K_P1C:
          v_cmp_ne_u32 s[4:5], s46, v{G+3}
          v_cmp_ne_u32 s[6:7], s46, v{H+3}
          s_or_b64 s[78:79], s[4:5], s[6:7]
          s_cbranch_scc1 K_P1
        K_P1D:
          s_max_i32 s83, s83, 0""")
    stamp(a, 3)
    if OPT["pt"] == 3: a(touch)
    a(f"""{dpp("v_mov_b32", 128, G, "quad_perm:[0,0,0,0]")}
          v_add_f32 v{G+1}, v{G+1}, v{H+1}
          v_add_f32 v{G+2}, v{G+2}, v{H+2}
          v_sub_f32 v{G}, v{G}, v128
          v_sub_f32 v{H}, v{H}, v128
          v_mul_f32 v129, v{G}, v{G}
          v_add_f32 v{G}, v{G}, v{H}
          v_fmac_f32 v129, v{H}, v{H}
          v_fmac_f32 v{G+1}, 0x43000000, v129""")
    red4((G + 2, G, G + 1))
    MR = f"ds_read2_b32 v[132:133], {Z} offset0:{(SY + 8)//4} offset1:{(SY + 4)//4}"
    MC = """s_min_u32 s78, s78, s47
            s_cmp_eq_u32 s78, 0
            s_cbranch_scc1 K_RARE
          K_RB:
            s_sub_u32 s47, s47, 1"""
    K2 = OPT["kearly"] == 2
    if K2: a(MR)
    a(f"""v_mul_f32 v129, 0x41800000, v{G}
          v_fmac_f32 v128, 0x3e000000, v{G}
          v_fma_f32 v{G+1}, -v129, v{G}, v{G+1}
          v_mul_f32 v{G+1}, 0x3a800000, v{G+1}
          v_max_f32 v{G+1}, 0, v{G+1}
          v_cvt_pk_bf16_f32 v129, v128, v{G+1}
          v_and_b32 v{G+1}, v{HM}, v129
          v_lshlrev_b32 v128, 16, v129
          v_add_f32 v{G+1}, 0x3727c5ac, v{G+1}
          v_cvt_pk_bf16_f32 v{G+1}, 0, v{G+1}
          v_sub_f32 v136, v136, v128
          v_sqrt_f32 v{G+1}, v{G+1}
          v_cvt_pk_bf16_f32 v131, v128, v{G+1}
          v_and_b32 v{G+1}, v{HM}, v131
          v_rcp_f32 v129, v{G+1}
          v_mul_f32 v136, v136, v129""")
    keys = f"""v_fma_f32 v130, -v128, v133, v{G+2}
          v_mul_f32 v130, v130, v129
          v_cvt_pk_bf16_f32 v130, v130, v130
          v_ashrrev_i32 v134, 31, v130
          v_bitop3_b32 v130, v130, v134, v{SG} bitop3:0x1e
          v_and_or_b32 v130, v130, v{HM}, v{KIX}
          s_mov_b32 exec_lo, 0x11111111
          s_mov_b32 exec_hi, 0x11111111
          ds_write_b64 v{KAD}, v[130:131] offset:{SY + 128}
          s_mov_b64 exec, 1
          ds_add_u32 {Z}, {ONE} offset:{SY + 20}
          s_mov_b64 exec, -1"""
    if K2:
        a("""s_waitcnt lgkmcnt(0)
             v_readfirstlane_b32 s47, v132
             v_readfirstlane_b32 s78, v133""")
        a(MC); a(keys)
    for h in range(2):
        for k in range(2):
            a(dpp("v_mov_b32", 120 + 4*h + k, 129, f"row_newbcast:{8*k + 4*h}"))
            a(dpp("v_mov_b32", 122 + 4*h + k, 136, f"row_newbcast:{8*k + 4*h}"))
        for e in range(8):
            a(f"v_pk_fma_f32 {p(U+16*h+2*e)}, {p(F+16*h+2*e)}, {p(120+4*h)}, {p(122+4*h)} neg_lo:[1,0,0] neg_hi:[1,0,0]")
        for e in range(8):
            a(f"v_cvt_pk_f16_f32 v{R+8*h+e}, v{U+16*h+2*e}, v{U+16*h+2*e+1}")
        if h == 0 and not K2: a(MR)
        transpose4(a, R + 8*h, R + 8*h + 4)
        if h == 0 and not K2:
            a("""s_waitcnt lgkmcnt(0)
                 v_readfirstlane_b32 s47, v132
                 v_readfirstlane_b32 s78, v133""")
        for r in range(R + 8*h, R + 8*h + 8): a(f"v_or_b32 v{r}, v{TM}, v{r}" if r % 4 in (1, 2) else f"v_and_b32 v{r}, v{TN}, v{r}")
        if h == 0 and not K2: a(MC)
        both_modes(a, f"K_US{h}", "\n".join(f"buffer_store_dwordx4 v[{R+4*n}:{R+4*n+3}], v{XO}, s[20:23], {row(n)} @" for n in (2*h, 2*h + 1)))
        if h == 0 and OPT["kearly"] == 1: a(keys)
    stamp(a, 4)
    iload = "\n".join(f"buffer_load_dwordx4 v[{R+4*n}:{R+4*n+3}], v{INB}, s[20:23], s{(75, 76, 36, 37)[n]} offen {OPT['ifl']}" for n in range(4))
    quarters = [(h, range(4 * q, 4 * q + 4)) for h in range(2) for q in range(2)]
    BI = OPT["bi"]
    def units(rng=range(W0 + BI, 8)):
        for n in rng:
            k, mat = n // 2, n % 2
            a(f"""s_add_u32 m0, s16, {mat * 32768 + k * 8192}
                  s_add_u32 s78, s{12+k}, {16 * 7168}
                  buffer_load_dwordx4 v{WA}, s[{64+4*mat}:{67+4*mat}], s{12+k} offen {OPT['wfl']} lds
                  s_add_u32 m0, s16, {mat * 32768 + k * 8192 + 4096}
                  buffer_load_dwordx4 v{WA}, s[{64+4*mat}:{67+4*mat}], s78 offen {OPT['wfl']} lds""")
    NU = 2 * (8 - W0)
    check = f"""v_or3_b32 v128, v{R}, v{R+3}, v{R+4}
          v_bitop3_b32 v129, v{R+1}, v{R+2}, v{R+5} bitop3:0x80
          v_bitop3_b32 v128, v128, v{R+7}, v{R+6} bitop3:0xfd
          @
          v_or3_b32 v128, v128, v{R+8}, v{R+11}
          v_bitop3_b32 v129, v129, v{R+9}, v{R+10} bitop3:0x80
          v_or3_b32 v128, v128, v{R+12}, v{R+15}
          v_bitop3_b32 v129, v129, v{R+13}, v{R+14} bitop3:0x80"""
    if OPT["igate"]:
        a(keys)
        lds_wait(a, "K_IG", 7, Z, SY + 20, "v_cmp_gt_u32 vcc, 4, v7", 1)
        if OPT["igate"] > 1: a(f"s_sleep {OPT['igate']}")
    KG_ = OPT["kgate"]
    if KG_:
        if not OPT["kearly"]: a(keys)
        a(f"s_setprio {OPT['pprio']}")
        for h, es in quarters[:OPT["pre"]]: operands(a, h, es)
        a(f"s_setprio {OPT['eprio']}")
        lds_wait(a, "K_KG", 7, Z, SY + 52 + 640, "v_cmp_eq_u32 vcc, 0, v7", 1)
        if KG_ > 1: a(f"s_sleep {KG_ - 1}")
    a(iload)
    if not OPT["kearly"] and not OPT["igate"] and not KG_: a(keys)
    WB_ = OPT["wbi"]
    def wdown(rng):
        for i in rng:
            if i == OPT["wd0"] and not WB_:
                a(f"""s_mov_b64 exec, 1
                      s_waitcnt vmcnt({i})
                      ds_add_u32 {Z}, {ONE} offset:{SY + 24}
                      s_mov_b64 exec, -1""")
            a(f"""s_add_u32 m0, s19, {WDN + 4096*i}
                  buffer_load_dwordx4 v{WDA}, s[40:43], s18 offen {OPT['wfl']} lds""")
            if i < 7: a("s_add_u32 s18, s18, 32768")
    if WB_:
        assert W0 == 8
        lds_wait(a, "K_WG", 7, Z, SY + 112, "v_cmp_gt_u32 vcc, 8, v7", 1)
        wdown(range(WB_))
    if BI:
        lds_wait(a, "K_BG", 7, Z, SY + 20, "v_cmp_gt_u32 vcc, 4, v7", 1)
        units(range(W0, W0 + BI))
    a(f"s_setprio {OPT['pprio']}")
    if OPT["pt"] in (2, 3): a("s_waitcnt vmcnt(8)")
    for h, es in quarters[OPT["pre"]:OPT["early"]]: operands(a, h, es)
    if OPT["part"]:
        a(f"""s_setprio {OPT['eprio']}
              s_mov_b32 s38, 15
              s_waitcnt vmcnt({2 * BI + WB_})
              s_branch K_P2A
            K_P2:
              s_waitcnt vmcnt(0)
            K_P2A:
              {"s_add_u32 s81, s81, 1" if OPT["dbg"] else ""}
              s_sub_u32 s83, s83, 1
              s_cselect_b32 s39, 0, {TAGM:#x}""")
        for n in range(4):
            r = R + 4 * n
            a(f"""v_bitop3_b32 v{128+n}, v{r}, v{r+3}, v{r+1} bitop3:0xfd
                  v_bitop3_b32 v{128+n}, v{128+n}, v{r+2}, s39 bitop3:0xa2""")
        for n in range(4): a(f"v_cmp_ne_u32 s[{4+2*n}:{5+2*n}], 0, v{128+n}")
        for n in range(4):
            a(f"""s_cmp_eq_u64 s[{4+2*n}:{5+2*n}], 0
                  s_cbranch_scc1 K_Q{n}
                  {iload.split(chr(10))[n]}
                K_Q{n}:""")
        for n in range(4):
            a(f"""s_cmp_lg_u64 s[{4+2*n}:{5+2*n}], 0
                  s_cbranch_scc1 K_R{n}
                  s_bitcmp0_b32 s38, {n}
                  s_cbranch_scc1 K_R{n}
                  ds_write_b128 v{LDA}, v[{R+4*n}:{R+4*n+3}] offset:{UA + 2*UPAD + 256*n}
                  s_bitset0_b32 s38, {n}
                K_R{n}:""")
        a("""s_cmp_lg_u32 s38, 0
             s_cbranch_scc1 K_P2""")
    else:
        a(f"""s_setprio {OPT['eprio']}
              s_branch K_P2A
            K_P2:
              {"s_sleep " + str(OPT["isl"]) if OPT["isl"] else ""}""")
        a(iload)
        if OPT["hint"]:
            a(f"""s_waitcnt lgkmcnt(0)
                  v_readfirstlane_b32 s78, v130
                  s_andn2_b32 s78, s78, s17
                  s_cbranch_scc0 K_P2A
                  s_mov_b32 s17, 1
                  s_mov_b64 exec, 1
                  ds_add_u32 {Z}, {ONE} offset:{SY + 40}
                  s_mov_b64 exec, -1""")
            lds_wait(a, "K_SG", 7, Z, SY + 40, "v_cmp_gt_u32 vcc, 4, v7", 0)
            units()
            a(f"""s_sub_u32 s83, s83, 1
                  s_waitcnt vmcnt({NU})""")
            a(check.replace("@", ""))
            a("s_branch K_P2B")
        a(f"""K_P2A:
              {"s_add_u32 s81, s81, 1" if OPT["dbg"] else ""}
              s_sub_u32 s83, s83, 1
              s_waitcnt vmcnt(2)
              ds_read_b32 v130, {Z} offset:{SY + 44}""")
        a(check.replace("@", "s_waitcnt vmcnt(0)"))
        a(f"""K_P2B:
              s_cbranch_scc1 K_P2D
              v_bitop3_b32 v128, v128, v129, v{TM} bitop3:0xa2
              v_cmp_ne_u32 vcc, 0, v128
              s_cbranch_vccnz K_P2
            K_P2D:""")
        for n in range(4): a(f"ds_write_b128 v{LDA}, v[{R+4*n}:{R+4*n+3}] offset:{UA + 2*UPAD + 256*n}")
    a(f"""s_max_i32 s83, s83, 0
          s_mov_b64 exec, 1
          ds_add_u32 {Z}, {ONE} offset:{SY + 16}
          s_mov_b64 exec, -1""")
    stamp(a, 5, 0)
    a("""s_cmp_ge_u32 s29, 28
         s_cbranch_scc1 K_NOTL""")
    a(f"""s_cmp_lg_u32 s17, 0
          s_cbranch_scc1 K_UD
          s_mov_b64 exec, 1
          ds_add_u32 {Z}, {ONE} offset:{SY + 40}
          s_mov_b64 exec, -1""")
    lds_wait(a, "K_UG", 7, Z, SY + 40, "v_cmp_gt_u32 vcc, 4, v7", OPT["usl"])
    units()
    a("K_UD:")
    a(f"""s_waitcnt vmcnt({63 if W0 == 8 else OPT['gwait']})
          s_branch K_HGB
        K_HG:
          {"s_sleep " + str(OPT["gsl"]) if OPT["gsl"] else ""}
        K_HGB:
          ds_read2_b32 v[128:129], {Z} offset0:{(SY + 112)//4} offset1:{(SY + 120)//4}
          s_waitcnt lgkmcnt(0)
          v_add_u32 v128, v128, v129
          v_cmp_gt_u32 vcc, 9, v128
          s_cbranch_vccnz K_HG""")
    wdown(range(WB_, 8))
    a(f"""s_branch K_TLD
        K_NOTL:""")
    lds_wait(a, "K_TL", 7, Z, SY + 120, "v_cmp_eq_u32 vcc, 0, v7", 8)
    late = quarters[OPT["early"] + OPT["mid"]:]
    a("""K_TLD:
         s_setprio 0""")
    for h, es in quarters[OPT["early"]:OPT["early"] + OPT["mid"]]: operands(a, h, es, OPT["scal"])
    a(f"""
          ds_read_b128 v[128:131], {Z} offset:{SY + 96}
          s_waitcnt lgkmcnt(0)
          v_readfirstlane_b32 s6, v128
          v_readfirstlane_b32 s7, v130
          s_andn2_b32 s6, 0xffe, s6             ; 2 * row
          s_andn2_b32 s7, 0xffe, s7
          s_lshr_b32 s78, s6, 5
          s_lshr_b32 s79, s7, 5
          s_cmp_eq_u32 s78, s60
          s_cselect_b32 s57, 0x55555555, 0
          s_cmp_eq_u32 s79, s60
          s_cselect_b32 s79, 0xaaaaaaaa, 0
          s_mov_b64 s[48:49], -1
          s_mov_b64 s[50:51], -1
          s_mov_b64 s[52:53], -1
          s_mov_b64 s[54:55], -1
          s_or_b32 s57, s57, s79
          s_cbranch_scc0 K_NOOW1""")
    for n in range(4):
        a(f"""v_add_u32 v7, {16 * (n // 2) + 2 * (n % 2)}, v{RW2}
              v_cmp_ne_u32 s[{48+2*n}:{49+2*n}], s6, v7
              v_cmp_ne_u32 vcc, s7, v7
              s_and_b64 s[{48+2*n}:{49+2*n}], s[{48+2*n}:{49+2*n}], vcc     ; rows that are not routed""")
    for h, es in late: operands(a, h, es, OPT["scal"])
    a(f"""K_NOOW1:
          ; wave v sends tiles v and v + 4 of y; the waits are sparse because every poll costs the conv wave of the SIMD issue slots
          v_and_b32 v7, 3, v1
          v_mul_u32_u24 v7, {UROW - TBS}, v7
          v_sub_u32 v{LDA}, v{LDA}, v7
          s_lshl_b32 s78, s30, 9
          v_subrev_u32 v{LDA}, s78, v{LDA}
          s_lshl_b32 s78, s30, 19
          s_sub_u32 s75, s75, s78
          s_sub_u32 s76, s76, s78
          s_lshl_b32 s78, s30, 2
          s_lshr_b32 s78, 0xc480, s78
          s_and_b32 s78, s78, 15
          v_mov_b32 v{TN}, s78
          s_mov_b32 s78, 4
          s_mov_b64 exec, 1
          s_waitcnt vmcnt(0)
          ds_add_u32 {Z}, {ONE} offset:{SY + 124}
          s_mov_b64 exec, -1""")
    stamp(a, 6, 0)
    lds_wait(a, "K_HW4", 7, f"v{TN}", SY + 48, "v_cmp_gt_u32 vcc, 4, v7", OPT["ywsl"])
    if OPT["csend"] == 2: a("s_branch K_SENT")
    a(f"""s_setprio 3
          s_branch K_YWB
        K_YW:
          {"s_sleep " + str(OPT["ysl"]) if OPT["ysl"] else ""}
        K_YWB:
          ds_read_b128 v[128:131], {Z} offset:{SY + 48}
          ds_read_b128 v[120:123], v{LDA} offset:{TB}
          ds_read_b128 v[124:127], v{LDA} offset:{TB + 256}
          s_waitcnt lgkmcnt(2)
          v_min_u32 v128, v128, v129
          v_min3_u32 v128, v128, v130, v131
          v_cmp_gt_u32 vcc, s78, v128
          s_cbranch_vccnz K_YW
          s_waitcnt lgkmcnt(0)
          v_bitop3_b32 v128, v120, v121, v{TM} bitop3:0xa2
          v_bitop3_b32 v129, v124, v125, v{TM} bitop3:0xa2
          v_cmp_eq_u32 vcc, 0, v128
          v_cmp_eq_u32 s[4:5], 0, v129
          v_addc_co_u32 v120, vcc, 0, v120, vcc ; a granule that looks like u moves one value by one step
          v_addc_co_u32 v124, vcc, 0, v124, s[4:5]""")
    both_modes(a, "K_YS", f"""buffer_store_dwordx4 v[120:123], v{INB}, s[20:23], s75 offen @
                              buffer_store_dwordx4 v[124:127], v{INB}, s[20:23], s76 offen @""")
    a(f"""s_add_u32 s75, s75, 0x200000
          s_add_u32 s76, s76, 0x200000
          v_add_u32 v{LDA}, 2048, v{LDA}
          s_add_u32 s78, s78, 4
          s_cmp_gt_u32 s78, {4 if OPT["csend"] else 8}
          s_cbranch_scc1 K_SENT""")
    if OPT["h8"] == 0: a(f"s_sleep {OPT['lsl']}")
    if OPT["h8"]: lds_wait(a, "K_HW8", 7, f"v{TN}", SY + 48, "v_cmp_gt_u32 vcc, 8, v7", OPT["lsl"])
    a("""s_branch K_YWB
       K_SENT:""")
    stamp(a, 7, 0)
    yload = "\n".join(f"buffer_load_dwordx4 v[{R+4*n}:{R+4*n+3}], v{XO}, s[20:23], {row(n)} sc1" for n in range(4))
    ybits = "\n".join(f"v_bitop3_b32 v{128+n}, v{R+4*n}, v{R+4*n+1}, v{TM} bitop3:0xa2" for n in range(4))
    a(f"""s_cmp_eq_u32 s57, 0
          s_cbranch_scc1 K_NOOWN
          ; the owner of a routed row tells the WGs that finish this row that no granule will land in it any more
          s_setprio 3
        K_PO:""")
    a(yload)
    a(f"""s_sub_u32 s83, s83, 1
          s_waitcnt vmcnt(0)
          s_cbranch_scc1 K_POD""")
    a(ybits)
    for n in range(4): a(f"v_cmp_eq_u32 s[{4+2*n}:{5+2*n}], 0, v{128+n}")
    for n in range(4): a(f"s_andn2_b64 s[{4+2*n}:{5+2*n}], s[{4+2*n}:{5+2*n}], s[{48+2*n}:{49+2*n}]")
    a(f"""s_or_b64 s[4:5], s[4:5], s[6:7]
          s_or_b64 s[8:9], s[8:9], s[10:11]
          s_or_b64 s[4:5], s[4:5], s[8:9]
          s_cbranch_scc1 K_PO
        K_POD:
          s_max_i32 s83, s83, 0
          v_mov_b32 v132, 0
          v_mov_b32 v133, 0
          v_mov_b32 v134, s46
          v_lshlrev_b32 v7, 5, v1
          s_mov_b32 exec_lo, s57
          s_mov_b32 exec_hi, s57
          s_lshl_b32 s78, s28, 16
          s_add_u32 s78, s78, {WS_DP + 28 * 2048:#x}""")
    both_modes(a, "K_OS", "buffer_store_dwordx3 v[132:134], v7, s[32:35], s78 offen @")
    a(f"""s_mov_b64 exec, -1
          s_branch K_PYC
        K_NOOWN:""")
    if OPT["csend"]:
        a("s_setprio 0")
        lds_wait(a, "K_DW", 7, f"v{TN}", SY + 48, "v_cmp_gt_u32 vcc, 8, v7", OPT["dsl"])
    stamp(a, 6, 2)
    a(f"s_setprio {OPT['lprio']}")
    nb = max(len(late) - OPT["ylead"], 0)
    for h, es in late[:nb]: operands(a, h, es)
    a(yload)
    for h, es in late[nb:]: operands(a, h, es)
    a(f"""s_waitcnt vmcnt(0)
          s_branch K_PYC
        K_PY:
          {"s_sleep " + str(OPT["psly"]) if OPT["psly"] else ""}""")
    for n in range(4):
        a(f"""s_mov_b64 exec, s[{4+2*n}:{5+2*n}]
              s_cbranch_execz K_PY{n}
              buffer_load_dwordx4 v[{R+4*n}:{R+4*n+3}], v{XO}, s[20:23], {row(n)} sc1
            K_PY{n}:""")
    a(f"""s_mov_b64 exec, -1
          s_sub_u32 s83, s83, 1
          s_waitcnt vmcnt(0)
          s_cbranch_scc1 K_PYD
        K_PYC:""")
    a(ybits)
    for n in range(4): a(f"v_cmp_eq_u32 s[{4+2*n}:{5+2*n}], 0, v{128+n}")
    a("""s_or_b64 s[12:13], s[4:5], s[6:7]
         s_or_b64 s[14:15], s[8:9], s[10:11]
         s_or_b64 s[12:13], s[12:13], s[14:15]
         s_cbranch_scc1 K_PY
       K_PYD:""")
    stamp(a, 7, 2)
    for h in range(2):
        transpose4(a, R + 8*h, R + 8*h + 4)
        for k in range(2):
            for e in range(8): a(f"v_dot2c_f32_bf16 v{F+16*h+2*e+k}, v{R+8*h+e}, v{U+16*h+2*e+k}")
        for k in range(2):
            n = 2 * h + k
            for q in range(4): a(f"v_cvt_pk_bf16_f32 v{8+4*n+q}, v{F+16*h+4*q+k}, v{F+16*h+4*q+2+k}")
            a(f"""s_mov_b64 exec, s[{48+2*n}:{49+2*n}]
                  buffer_store_dwordx4 v[{8+4*n}:{11+4*n}], v{XO}, s[20:23], {row(n)} {OPT['outfl']}
                  s_mov_b64 exec, -1""")
    stamp_flush(a, 0)
    a(f"""K_RARE:
          s_sleep 1
          ds_read2_b32 v[132:133], {Z} offset0:{(SY + 8)//4} offset1:{(SY + 4)//4}
          s_waitcnt lgkmcnt(0)
          v_readfirstlane_b32 s47, v132
          v_readfirstlane_b32 s78, v133
          s_min_u32 s78, s78, s47
          s_cmp_eq_u32 s78, 0
          s_cbranch_scc1 K_RARE
          s_branch K_RB""")

def c_path(a):
    W0 = OPT["w0"]
    a(f"""s_sub_u32 s30, s30, 4
          s_setprio {OPT['kprio']}""")
    first_channel(a, 3, 55)
    a(f"""s_lshr_b32 s59, s30, 1
          s_lshl_b32 s55, s59, 3
          s_add_u32 s56, s3, s55                ; d
          s_lshl_b32 s57, s56, 1
          s_and_b32 s57, s57, -4
          v_lshlrev_b32 v95, 4, v1
          v_and_b32 v96, 15, v1
          v_lshrrev_b32 v97, 4, v1
          v_mov_b32 v20, 0
          v_mov_b32 v21, 0
          v_mov_b32 v22, 0
          v_mov_b32 v23, 0
          s_mov_b32 s34, {WS_SIZE:#x}
          s_mov_b32 s35, 0x00020000
          s_waitcnt lgkmcnt(0)
          s_load_dword s47, s[12:13], s57
          s_mov_b32 s32, s42
          s_mov_b32 s33, s43
          s_barrier
          s_mov_b32 m0, {JUNK}
          s_cmp_lg_u32 s30, 2
          s_cbranch_scc1 K_NOT
          s_lshl_b32 s60, s28, 16
          s_lshl_b32 s61, s29, 11
          s_add_u32 s60, s60, s61
          s_add_u32 s60, s60, {WS_DP:#x}
          {"" if OPT["dpl"] else "buffer_load_dwordx4 v95, s[32:35], s60 offen sc1 lds"}
          {"" if OPT["dpl"] else "buffer_load_dwordx4 v95, s[32:35], s60 offen offset:1024 sc1 lds"}
          s_lshl_b32 s61, s28, 10
          s_add_u32 s61, s61, {WS_KM:#x}
          buffer_load_dwordx4 v95, s[32:35], s61 offen sc1 lds
          s_add_u32 s61, s61, {(WS_DN - WS_KM) & 0xffffffff:#x}
          {"buffer_load_dwordx4 v95, s[32:35], s61 offen sc1 lds" if OPT["hint"] else ""}
        K_NOT:""")
    a(f"""s_cmp_lg_u32 s30, 1
          s_cbranch_scc1 K_NOSM
          global_load_dwordx4 v[128:131], v95, s[18:19]
          global_load_dwordx4 v[132:135], v95, s[18:19] offset:1024
        K_NOSM:
          s_cmp_lt_u32 s30, 3
          s_cbranch_scc1 K_NOBD
          s_getpc_b64 s[60:61]
        K_PC2:
          s_lshl_b32 s62, s30, 10
          s_add_u32 m0, s62, {BAND - 3072}
          s_add_u32 s62, s62, K_BAND - K_PC2 - 3072
          s_add_u32 s60, s60, s62
          s_addc_u32 s61, s61, 0
          global_load_lds_dwordx4 v95, s[60:61]
        K_NOBD:""")
    unit_setup(a, UC, 97, 96, 18)
    for n in range(W0): unit(a, n, UC)
    if any(u[0] == "t" for _, u in paced()) or OPT["pt"] == 4:
        srd(a, 20, 26, 27, 0x400000)
        a(f"""v_lshlrev_b32 v94, 4, v96
              v_lshl_add_u32 v94, v97, 12, v94
              s_lshl_b32 s38, s29, 3
              s_add_u32 s38, s38, s30
              s_lshl_b32 s38, s38, 14
              s_lshl_b32 s39, s28, 8
              s_add_u32 s38, s38, s39
              s_add_u32 s39, s38, 2048""")
        if OPT["pt"] == 4:
            a(f"""s_mov_b32 m0, {JUNK}
                  buffer_load_dwordx4 v94, s[20:23], s38 offen sc1 lds
                  buffer_load_dwordx4 v94, s[20:23], s39 offen sc1 lds""")
    a(f"""s_mov_b32 s52, s59
          s_lshr_b32 s53, s30, 2
          s_xor_b32 s53, s53, s30
          s_and_b32 s53, s53, 1
          s_mul_i32 s66, s52, {UROW}
          s_add_u32 s66, s66, {UA}
          v_add_u32 v11, s66, v95
          s_mov_b32 exec_hi, 3
          ds_write_b128 v11, v[20:23]
          s_mov_b32 exec_hi, -1""")
    kgen_setup(a)
    a(f"""s_lshl_b32 s60, s52, 8
          s_add_u32 s60, s60, {PRM}
          v_lshl_add_u32 v17, v1, 2, s60
          s_lshl_b32 s61, s53, 7
          s_add_u32 s60, s60, s61
          v_lshl_add_u32 v16, v1, 1, s60
          v_mov_b32 v2, 0
          v_mov_b32 v3, 0
          v_mov_b32 v4, 0
          v_mov_b32 v5, 0
          v_mov_b32 v42, 0x3c00
          s_mov_b32 s37, m0
          s_mov_b32 s72, -1
          s_mov_b32 s73, 0
          s_cmp_eq_u32 s53, 0
          s_cbranch_scc0 K_HA
          v_lshlrev_b32 v124, 8, v97
          v_lshl_add_u32 v124, v96, 4, v124
          v_sub_u32 v124, {2*(537-256)}, v124
          v_add_u32 v124, s68, v124                 ; 2*(537 - p0), p0 = 256 + 128g + 8j
          v_lshrrev_b32 v125, 1, v97
          v_lshlrev_b32 v125, 8, v125
          v_lshl_add_u32 v125, v96, 4, v125
          v_and_b32 v30, 1, v97
          v_lshl_add_u32 v125, v30, 3, v125
          v_sub_u32 v125, 1080, v125
          v_add_u32 v125, s68, v125                 ; 1080 - 2p, p = 128(g>>1) + 8j + 4(g&1)
          v_add_u32 v126, 2, v124
          v_add_u32 v127, {DELTA}, v124
          v_lshlrev_b32 v12, 5, v96
          v_lshl_add_u32 v9, v97, 3, v12
          v_lshl_add_u32 v12, v97, 4, v12
          v_add_u32 v12, s66, v12
          v_add_u32 v9, s68, v9
          v_add_u32 v13, {BAND}, v95
          v_and_b32 v11, 1, v96
          v_xor_b32 v11, 1, v11
          v_mul_u32_u24 v11, {DELTA}, v11
          v_lshlrev_b32 v10, 1, v96
          v_sub_u32 v11, v11, v10
          s_add_u32 s78, s68, 30
          v_add_u32 v11, s78, v11
          v_lshl_add_u32 v10, v97, 4, v11
          v_lshl_add_u32 v14, v97, 3, v11
          v_add_u32 v14, {R2B}, v14
          v_add_u32 v11, 512, v10
          s_lshl_b32 s79, s52, 2
          v_mov_b32 v15, s79
          v_mov_b32 v8, 0
          s_branch K_AD
        K_HA:
          v_and_b32 v28, 1, v96
          v_lshrrev_b32 v29, 1, v96
          v_lshlrev_b32 v124, 8, v28
          v_lshlrev_b32 v30, 1, v29
          v_sub_u32 v124, v124, v30
          v_lshlrev_b32 v125, 5, v97
          v_sub_u32 v124, v124, v125
          v_add_u32 v124, {R2B + 128 + 2*47 + 64 - 16}, v124
          v_add_u32 v124, s68, v124
          v_lshlrev_b32 v125, 1, v28
          v_sub_u32 v125, v124, v125
          v_add_u32 v125, {-128 + 2}, v125
          v_mul_u32_u24 v126, 158, v28
          v_sub_u32 v126, v126, v30
          v_lshlrev_b32 v31, 6, v97
          v_sub_u32 v126, v126, v31
          v_add_u32 v126, {R3B + 128 - 48}, v126
          v_add_u32 v126, s68, v126
          v_lshrrev_b32 v28, 2, v96
          v_lshl_add_u32 v11, v97, 3, v28
          v_lshlrev_b32 v11, 8, v11
          v_and_b32 v29, 1, v97
          v_lshl_or_b32 v28, v29, 2, v28
          v_lshl_or_b32 v11, v28, 5, v11
          v_and_b32 v28, 3, v1
          s_lshl_b32 s78, s52, 6
          v_xor_b32 v11, s78, v11
          v_lshlrev_b32 v9, 4, v28
          v_xor_b32 v9, v9, v11
          v_add_u32 v9, {WDN}, v9
          v_lshl_add_u32 v11, v28, 3, v11
          v_xor_b32 v12, 32, v11
          v_add_u32 v11, {F_W}, v11             ; w_gate / w_up: columns 32q + 16t + 0..15
          v_add_u32 v12, {F_W}, v12
          v_lshlrev_b32 v8, 6, v28
          v_and_b32 v29, 12, v1
          v_lshl_add_u32 v8, v29, 2, v8
          v_mul_u32_u24 v10, 320, v28
          v_lshl_add_u32 v10, v97, 4, v10
          v_add_u32 v10, {XS}, v10
          v_lshrrev_b32 v28, 5, v1
          v_and_b32 v29, 31, v1
          v_lshlrev_b32 v14, 4, v29
          v_lshl_add_u32 v14, v28, 11, v14       ; gate / up gather offset
          v_mul_u32_u24 v13, 320, v28
          v_lshl_add_u32 v13, v29, 1, v13
          s_add_u32 s78, s78, {HB}
          v_add_u32 v13, s78, v13
          v_mov_b32 v15, 0
        K_AD:
          s_waitcnt lgkmcnt(0)
          s_lshl_b32 s60, s47, 16
          s_and_b32 s61, s47, s31
          s_bitcmp1_b32 s56, 0
          s_cselect_b32 s60, s61, s60
          v_mov_b32 v116, s60""")
    exp_acc(a, 117, 116, 118, 119, 58, 67, 71)
    a(f"""v_cvt_pk_bf16_f32 v117, 0, v117       ; dt
          v_mul_f32 v91, s58, v117
          v_mul_f32 v90, 0.15915494, v117
          """)
    stamp(a, 2)
    lds_wait(a, "K_PW", 18, "v20", SY + 12, "v_cmp_gt_u32 vcc, 4, v18")
    stamp(a, 1)
    a(f"""ds_read_u16_d16_hi v2, v16
          ds_read_u16_d16_hi v3, v16 offset:1024
          ds_read_b32 v6, v17 offset:2048
          ds_read_b32 v7, v17 offset:3072
          ds_read_u16_d16_hi v4, v16 offset:2048
          ds_read_u16_d16_hi v5, v16 offset:3072""")
    kgen_main(a)
    stamp(a, 5, 1)
    a("""s_cmp_eq_u32 s53, 0
         s_cbranch_scc0 K_FAR""")
    near_table(a, "K")
    for n in range(nC() - OPT["ku"], nC()): unit(a, n, UC)
    conv(a)
    a.raw(".p2align 6")
    a("K_FAR:")
    far_table(a, "K")
    a(f"""v_or_b32 v127, 0x10000, v89
          s_lshl_b32 s79, s52, 2
          v_mov_b32 v4, s79""")
    a(f"""v_mov_b32 v93, 1
          s_mov_b64 exec, 1
          ds_write_b32 v4, v127 offset:{SY + 640}
          s_mov_b64 exec, -1""")
    for n in range(nC() - OPT["ku"], nC()): unit(a, n, UC)
    a(f"""
          s_mov_b64 exec, 1
          s_waitcnt vmcnt(0)
          ds_add_u32 v15, v93 offset:{SY + 112}
          s_mov_b64 exec, -1
          s_setprio {OPT['hprio']}
          """)
    stamp(a, 3)
    XA = 48
    a(f"""          s_lshl_b32 s62, s29, 14
          s_lshl_b32 s79, s52, 9
          s_add_u32 s62, s62, s79
          s_add_u32 s62, s62, {WS_EX:#x}
          s_add_u32 s63, s62, 4096
          s_add_u32 s64, s62, 8192
          s_add_u32 s65, s62, 12288
          s_lshl_b32 s73, s28, 11
          s_add_u32 s73, s73, s62
          s_lshl_b32 s77, s28, 16
          s_add_u32 s77, s77, {WS_DP:#x}
          s_lshl_b32 s57, s29, 11
          s_add_u32 s57, s57, s79
          s_add_u32 s57, s57, s77
          s_mov_b64 s[54:55], s[14:15]
          s_mov_b32 s12, 0x07060503
          s_mov_b32 s13, 0x07060502
          s_mov_b32 s14, 0x07060501
          s_mov_b32 s15, 0x04000c0c
          s_mov_b32 s16, 0x0706000c
          s_lshl_b32 s18, s28, 8""")
    if OPT["hint"]:
        a("""s_cmp_lg_u32 s30, 3
             s_cbranch_scc1 K_NOH""")
        lds_wait(a, "K_DK", 93, "v15", SY + 20, "v_cmp_gt_u32 vcc, 4, v93", 2)
        a(f"""ds_read_b32 v92, v15 offset:{SY}
              s_lshl_b32 s60, s28, 10
              s_add_u32 s60, s60, {WS_DN:#x}
              s_mov_b32 s61, 16
              s_mov_b64 s[6:7], s[44:45]
              s_waitcnt lgkmcnt(0)
              v_readfirstlane_b32 s4, v92
              s_pack_ll_b32_b16 s4, s4, s4
              s_mov_b32 s5, s4
            K_DN:
              s_sub_u32 s61, s61, 1
              s_cbranch_scc1 K_DNE
              {"s_sleep " + str(OPT["dnsl"]) if OPT["dnsl"] else ""}
              s_load_dwordx16 s[36:51], s[32:33], s60
              s_add_u32 s60, s60, 64
              s_waitcnt lgkmcnt(0)""")
        for k in range(8): a(f"s_xor_b64 s[{36+2*k}:{37+2*k}], s[{36+2*k}:{37+2*k}], s[4:5]")
        for k in range(1, 8): a(f"s_or_b64 s[36:37], s[36:37], s[{36+2*k}:{37+2*k}]")
        a(f"""s_cbranch_scc1 K_DN
              v_mov_b32 v93, 1
              ds_write_b32 v15, v93 offset:{SY + 44}""")
        stamp(a, 4, 0)
        a("""K_DNE:
             s_waitcnt lgkmcnt(0)
             s_mov_b64 s[44:45], s[6:7]
             s_branch K_NOKP
           K_NOH:""")
    a(f"""s_cmp_lg_u32 s30, 1
          s_cbranch_scc1 K_NOKP
          v_mov_b32 v92, 0x3f803f80
          v_mov_b32 v93, v92
          v_lshlrev_b32 v3, 3, v1
          v_add_u32 v3, {XS + 640}, v3
          ds_write_b64 v3, v[92:93]
          ds_write_b64 v3, v[92:93] offset:64
          v_lshlrev_b32 v2, 3, v1
          s_setprio 3
          s_lshl_b32 s60, s28, 10
          s_add_u32 s60, s60, {WS_KM:#x}
          s_mov_b32 s83, {SPIN:#x}
          v_add_u32 v3, s18, v95
          s_mov_b32 m0, {XS}""")
    lds_wait(a, "K_KW", 93, "v15", SY + 20, "v_cmp_gt_u32 vcc, 4, v93", 1)
    a(f"""ds_read_b64 v[72:73], v2 offset:{SY + 128}
          ds_read_b32 v5, v15 offset:{SY + 8}
          ds_read2_b32 v[74:75], v15 offset0:{SY//4} offset1:{SY//4}
          s_lshl_b32 s61, s29, 5
          s_add_u32 s61, s61, s60
          s_waitcnt lgkmcnt(0)
          v_readfirstlane_b32 s46, v74
          v_readfirstlane_b32 s47, v5
          s_sub_u32 s47, s47, 1""")
    top2(a, 72, 80, 78, 79, 66)
    a("""v_cndmask_b32 v80, 0, 16, s[66:67]
         v_cmp_le_u32 vcc, s79, v72
         s_mov_b64 exec, vcc""")
    both_modes(a, "K_KS", "buffer_store_dwordx4 v[72:75], v80, s[32:35], s61 offen @")
    a(f"""s_lshl_b32 s61, s28, 9
          s_add_u32 s61, s61, s29
          s_lshl1_add_u32 s61, s61, {WS_DN:#x}
          s_mov_b64 exec, 0xffff
          v_lshlrev_b32 v80, 6, v1
          {"buffer_store_short v74, v80, s[32:35], s61 offen" if OPT["hint"] else ""}
          s_mov_b64 exec, -1
          buffer_load_dwordx4 v[76:79], v95, s[32:35], s60 offen sc1
          s_mov_b32 exec_lo, 0xfff00000
          v_add_u32 v3, -320, v3
          s_mov_b32 exec_lo, -1
          s_mov_b64 s[70:71], 0
          ; the rows of the two best keys seen so far are requested at once, so that they do not queue behind the tile loads
        K_P3:
          s_waitcnt vmcnt(0)
          v_cmp_eq_u32 s[68:69], s46, v78
          v_mov_b32 v73, v77
          v_cndmask_b32 v72, 0, v76, s[68:69]
          s_cmp_eq_u64 s[68:69], -1
          s_cbranch_scc1 K_P3N
          buffer_load_dwordx4 v[76:79], v95, s[32:35], s60 offen sc1
          s_branch K_P3M
        K_P3N:
          {f"ds_write_b32 v15, v93 offset:{SY + 52 + 640}" if OPT["kpos"] == 0 else ""}
        K_P3M:""")
    top2(a, 72, 80, 78, 79, 66)
    a(f"""s_cmp_eq_u64 s[78:79], s[70:71]
          s_cbranch_scc1 K_P3S
          s_mov_b64 s[70:71], s[78:79]
          s_andn2_b32 s78, 0xffe, s78
          s_andn2_b32 s61, 0xffe, s79
          v_mov_b32 v92, s78
          s_mov_b32 exec_lo, 0xfff00000
          s_mov_b32 exec_hi, 15
          v_mov_b32 v92, s61
          s_mov_b32 exec_lo, 0xfff0ffff
          v_lshl_add_u32 v92, v92, 10, v3
          global_load_lds_dwordx4 v92, s[44:45]
          s_mov_b64 exec, -1
        K_P3S:
          s_sub_u32 s83, s83, 1
          s_cbranch_scc1 K_P3D
          s_cmp_lg_u64 s[68:69], -1
          s_cbranch_scc1 K_P3
        K_P3D:
          ds_write_b32 v15, v93 offset:{SY + 52 + 640}""")
    stamp(a, 4, 0)
    a(f"""v_cndmask_b32 v80, 0, 8, s[66:67]
          v_cmp_le_u32 vcc, s79, v72
          s_mov_b64 exec, vcc
          v_mov_b32 v93, 1
          ds_write_b64 v80, v[72:73] offset:{SY + 96}
          s_waitcnt vmcnt(0)
          ds_write_b32 v15, v93 offset:{SY + 120}
          s_mov_b64 exec, 1
          s_cmp_lg_u32 s2, 0
          s_cbranch_scc1 K_NOZ
          s_mov_b32 s78, {WS_EP:#x}
          buffer_store_dword v74, v15, s[32:35], s78 offen sc1
          s_mov_b32 s78, {WS_EP2:#x}
          v_mov_b32 v75, 0x01000193
          buffer_atomic_add v75, v15, s[32:35], s78 offen sc1
        K_NOZ:
          s_mov_b64 exec, -1
          s_setprio {OPT['hprio']}
        K_NOKP:""")
    stamp(a, 5, 0)
    if OPT["exp"] & 16: a("s_sleep 110")
    lds_wait(a, "K_XW", 92, "v15", SY + 120, "v_cmp_eq_u32 vcc, 0, v92", OPT["xwsl"])
    a(f"""s_mov_b32 m0, {JUNK}
          s_mov_b32 exec_hi, 0
          {"buffer_load_dwordx4 v95, s[32:35], s57 offen sc1 lds" if OPT["dpl"] else ""}
          s_mov_b32 exec_hi, -1
          ds_read_b32 v5, v15 offset:{SY + 8}
          ds_read_b128 v[40:43], v15 offset:{SY + 96}
          ds_read_b32 v90, v15 offset:{SY}""")
    for k in range(4): a(f"ds_read_b128 v[{XA+4*k}:{XA+4*k+3}], v10 offset:{64*k}")
    a(f"""s_waitcnt lgkmcnt(4)
          v_mov_b32 v93, 1
          v_mov_b32 v35, v90
          v_and_b32 v44, 0xffff0000, v41
          v_and_b32 v45, 0xffff0000, v43
          v_lshlrev_b32 v46, 16, v41
          v_lshlrev_b32 v47, 16, v43
          v_rcp_f32 v44, v44
          v_rcp_f32 v45, v45
          v_readfirstlane_b32 s47, v5
          s_sub_u32 s47, s47, 1
          s_cmp_ge_u32 s29, 28
          s_cbranch_scc1 K_NOFFN
          s_setprio 3""")
    stamp(a, 4, 2)
    NE = nC() if OPT["g1split"] else 0
    def gemv1(us):
        P = Pipe(a, maxfly=14)
        for n, (u, t) in enumerate((u, t) for u in us for t in range(2)):
            k, mat = u // 2, u % 2
            b = 64 + 4 * (n % 6)
            P.load(f"ds_read_b64_tr_b16 v[{b}:{b+1}], v{11 + t} offset:{32768*mat + 8192*k}", n - 6)
            lid = P.load(f"ds_read_b64_tr_b16 v[{b+2}:{b+3}], v{11 + t} offset:{32768*mat + 8192*k + 1024}", n - 6)
            d = 16 + 8 * t + 4 * mat
            c = "0" if k == 0 else f"v[{d}:{d+3}]"
            P.step(f"v_mfma_f32_16x16x32_bf16 v[{d}:{d+3}], v[{XA+4*k}:{XA+4*k+3}], v[{b}:{b+3}], {c}", [lid])
        P.run()
    if True:
        lds_wait(a, "K_EW", 92, "v15", SY + 112, "v_cmp_gt_u32 vcc, 8, v92", OPT["gsl"])
        gemv1(range(NE))
    if NE < 8: lds_wait(a, "K_GW", 92, "v15", SY + 24, "v_cmp_gt_u32 vcc, 4, v92", OPT["gsl"])
    stamp(a, 5, 2)
    gemv1(range(NE, 8))
    a("""s_mov_b32 exec_lo, 0xffff0000
         s_mov_b32 exec_hi, 0""")
    for r in (16, 17, 18, 20, 21, 22): a(f"v_mov_b32 v{r}, v{r+8}")
    a(f"""s_mov_b32 exec_lo, -1
          v_fma_f32 v16, -v46, v18, v16
          v_fma_f32 v17, -v47, v18, v17
          v_fma_f32 v18, -v46, v22, v20
          v_fma_f32 v19, -v47, v22, v21
          v_mul_f32 v16, v16, v44
          v_mul_f32 v17, v17, v45
          v_mul_f32 v19, v19, v45
          v_mul_f32 v18, v18, v44
          v_perm_b32 v32, v16, v19, s12
          v_perm_b32 v33, v17, v19, s13
          v_perm_b32 v34, v18, v19, s14
          buffer_store_dwordx4 v[32:35], v95, s[32:35], s73 offen sc1
          s_mov_b32 exec_hi, -1
        K_NOFFN:""")
    stamp(a, 6, 2)
    a(f"""s_cmp_lg_u32 s30, 1
          s_cbranch_scc1 K_NOFP
          s_setprio {OPT['fprio']}
          v_and_b32 v3, 16, v1
          v_lshrrev_b32 v3, 1, v3
          ds_read_b64 v[100:101], v3 offset:{SY + 96}
          v_and_b32 v7, 3, v1
          v_lshl_add_u32 v5, v7, 3, s3
          v_lshlrev_b32 v5, 1, v5               ; 2 * channel
          global_load_ushort v102, v5, s[54:55]
          v_lshrrev_b32 v106, 2, v1
          v_lshlrev_b32 v106, 11, v106
          v_lshl_add_u32 v106, v7, 4, v106
          s_lshl_b32 s61, s29, 6
          s_add_u32 s60, s77, s61
          s_add_u32 s61, s60, 0x8000
          s_waitcnt lgkmcnt(0)
          v_not_b32 v6, v100
          v_and_b32 v6, 0xffe, v6               ; 2 * row
          v_mul_u32_u24 v104, {TBS}, v7
          v_add_u32 v104, v104, v6              ; y address
          v_lshl_add_u32 v107, v6, 10, v5
          global_load_ushort v103, v107, s[44:45]
          v_and_b32 v5, s31, v100
          v_ashrrev_i32 v3, 31, v5
          v_not_b32 v3, v3
          v_or_b32 v3, 0x80000000, v3
          v_xor_b32 v5, v5, v3
          v_and_b32 v5, s31, v5
          v_mul_f32 v105, s58, v5
          v_exp_f32 v105, -v105
          v_and_b32 v108, s31, v101
          v_lshlrev_b32 v101, 16, v101
          v_add_f32 v105, 1.0, v105
          v_rcp_f32 v105, v105
          v_rcp_f32 v109, v108
          v_fma_f32 v108, -v108, v109, 1.0
          v_fmac_f32 v109, v108, v109
          v_cvt_pk_bf16_f32 v105, 0, v105
          s_setprio 3
          s_branch K_FPD
        K_NOFP:
          {"s_sleep " + str(OPT["xsl"]) if OPT["xsl"] else ""}
        K_FPD:
          {"s_endpgm" if OPT["exp"] & 4 else ""}
          s_cmp_ge_u32 s29, 28
          s_cbranch_scc1 K_NOG2
          s_mov_b32 s83, {SPIN:#x}
          """)
    exl = "\n".join(f"buffer_load_dwordx4 v[{64+4*k}:{67+4*k}], v14, s[32:35], s{62+k} offen sc1" for k in range(4))
    WB = lambda n: (40, 44, 80, 84, 112, 116, 120, 124)[n]
    stamp(a, 5, 4)
    a(exl)
    if OPT["wd1"] < 8:
        a(f"""s_mov_b64 exec, 1
              ds_add_u32 v15, v93 offset:{SY + 44}
              s_mov_b64 exec, -1""")
    a("s_waitcnt vmcnt(0)")
    stamp(a, 6, 4)
    a(f"ds_read_b32 v91, v15 offset:{SY + 124}")
    a(f"""{"s_mov_b32 s80, 1" if OPT["dbg"] else ""}
          v_bitop3_b32 v92, v67, v71, v90 bitop3:0x7e
          v_bitop3_b32 v88, v75, v79, v90 bitop3:0x7e
          v_or_b32 v92, v92, v88
          v_cmp_ne_u32 vcc, 0, v92
          s_cbranch_vccnz K_P4
        K_P4D:""")
    stamp(a, 7, 2)
    for k in range(4): a(f"v_perm_b32 v{67+4*k}, v{64+4*k}, v{65+4*k}, s15")
    for k in range(4): a(f"v_perm_b32 v{67+4*k}, v{67+4*k}, v{66+4*k}, s16")
    a("""s_waitcnt lgkmcnt(0)
         v_cmp_gt_u32 vcc, 4, v91
         s_cbranch_vccnz K_WW
       K_WWD:""")
    for r in range(8): a(f"v_add_f32 v{64+r}, v{64+r}, v{72+r}")
    for r in range(4): a(f"v_add_f32 v{64+r}, v{64+r}, v{68+r}")
    tr = [f"ds_read_b64_tr_b16 v[{WB(n)+2*q}:{WB(n)+2*q+1}], v9 offset:{8192*(n//2) + 8*(n%2) + 1024*q}" for n in range(8) for q in range(2)]
    chain = """v_permlane32_swap_b32 v64, v65
               v_permlane32_swap_b32 v66, v67
               v_add_f32 v64, v64, v65
               v_add_f32 v66, v66, v67
               v_cvt_pk_bf16_f32 v64, 0, v64
               v_cvt_pk_bf16_f32 v66, 0, v66
               v_mul_f32 v65, 0xbfb8aa3b, v64
               v_mul_f32 v66, v66, v64
               v_exp_f32 v65, v65
               v_add_f32 v65, 1.0, v65
               v_rcp_f32 v65, v65
               v_mul_f32 v65, v65, v66
               v_cvt_pk_bf16_f32 v65, v65, v65""".split("\n")
    for n, t in enumerate(chain):
        if n <= 11: a(tr.pop(0))
        a(t)
    a(f"""
          ds_write_b16 v13, v65
          s_mov_b64 exec, 1
          ds_add_u32 v15, v93 offset:{SY + 116}
          s_mov_b64 exec, -1
          s_waitcnt lgkmcnt(8)""")
    a("\n".join(tr))
    lds_wait(a, "K_HW", 92, "v15", SY + 116, "v_cmp_gt_u32 vcc, 4, v92", 0)
    stamp(a, 7, 4)
    for k in range(4): a(f"ds_read_b128 v[{XA+4*k}:{XA+4*k+3}], v10 offset:{HB - XS + 64*k}")
    for n in range(8):
        k, t = n // 2, n % 2
        d = 16 + 4 * t
        if t == 0: a(f"s_waitcnt lgkmcnt({3 - k})")
        a(f"v_mfma_f32_16x16x32_bf16 v[{d}:{d+3}], v[{XA+4*k}:{XA+4*k+3}], v[{WB(n)}:{WB(n)+3}], {'0' if k == 0 else f'v[{d}:{d+3}]'}")
    a("""s_mov_b64 exec, 0xffff
         v_mov_b32 v18, v90
         v_mov_b32 v22, v90""")
    both_modes(a, "K_DS", """buffer_store_dwordx3 v[16:18], v8, s[32:35], s57 offen @
                             buffer_store_dwordx3 v[20:22], v8, s[32:35], s57 offen offset:256 @""")
    a("""s_mov_b64 exec, -1
       K_NOG2:""")
    stamp(a, 6, 0)
    dpl = """buffer_load_dwordx3 v[48:50], v106, s[32:35], s60 offen sc1
             s_mov_b32 exec_hi, 0x5ffff
             buffer_load_dwordx3 v[52:54], v106, s[32:35], s61 offen sc1
             s_mov_b32 exec_hi, -1"""
    a(f"""s_cmp_lg_u32 s30, 1
          s_cbranch_scc1 K_CDONE
          s_branch K_YAB
        K_YA:
          s_sleep 2
        K_YAB:
          ds_read_b128 v[32:35], v15 offset:{SY + 48}
          ds_read_u16 v40, v104 offset:{TB}
          s_waitcnt lgkmcnt(1)
          v_and_b32 v92, v32, v33
          v_bitop3_b32 v92, v92, v34, v35 bitop3:0x80
          v_cmp_ne_u32 vcc, 8, v92
          s_cbranch_vccnz K_YA
          v_mov_b32 v52, 0
          v_mov_b32 v53, 0
          v_mov_b32 v54, v90""")
    a(dpl)
    a(f"""s_mov_b32 s83, {SPIN:#x}
          s_waitcnt vmcnt(2) lgkmcnt(0)
          v_lshlrev_b32 v103, 16, v103
          v_lshlrev_b32 v102, 16, v102
          v_lshlrev_b32 v40, 16, v40
          v_sub_f32 v25, v103, v101
          v_cvt_pk_bf16_f32 v25, 0, v25
          v_mul_f32 v25, v25, v109
          v_cvt_pk_bf16_f32 v25, 0, v25         ; u
          v_mul_f32 v26, v25, v102
          v_cvt_pk_bf16_f32 v26, 0, v26
          v_add_f32 v26, v26, v40
          v_cvt_pk_bf16_f32 v26, 0, v26         ; s
          s_waitcnt vmcnt(0)
          s_branch K_DC
        K_DP:""")
    a(dpl)
    a(f"""s_sub_u32 s83, s83, 1
          s_waitcnt vmcnt(0)
          s_cbranch_scc1 K_DD
        K_DC:
          v_bitop3_b32 v92, v50, v54, v90 bitop3:0x7e
          v_cmp_ne_u32 vcc, 0, v92
          s_cbranch_vccnz K_DP
        K_DD:""")
    stamp(a, 7, 0)
    a("""v_pk_add_f32 v[48:49], v[48:49], v[52:53]
         v_permlane16_swap_b32 v48, v49
         v_add_f32 v48, v48, v49
         v_mov_b32 v49, v48
         v_permlane32_swap_b32 v48, v49
         v_add_f32 v48, v48, v49""")
    for mod in ("row_ror:4", "row_ror:8"):
        a(f"v_add_f32_dpp v48, v48, v48 {mod} row_mask:0xf bank_mask:0xf")
    a("""v_fma_f32 v20, v48, v105, v25
         v_mul_f32 v23, 0xbfb8aa3b, v20
         v_mul_f32 v20, v20, v26
         v_exp_f32 v23, v23
         v_add_f32 v23, 1.0, v23
         v_rcp_f32 v23, v23
         v_fma_f32 v23, v23, v20, v103
         v_cvt_pk_bf16_f32 v23, v23, v23
         s_mov_b64 exec, 0x000f000f
         global_store_short v107, v23, s[26:27]
       K_CDONE:""")
    stamp_flush(a, 8)
    a(f"""K_WW:
          ds_read_b32 v91, v15 offset:{SY + 124}
          s_waitcnt lgkmcnt(0)
          v_cmp_gt_u32 vcc, 4, v91
          s_cbranch_vccnz K_WW
          s_branch K_WWD""")
    a(f"""K_P4:
          {"s_sleep " + str(OPT["rsl"]) if OPT["rsl"] else ""}
          {"s_add_u32 s80, s80, 1" if OPT["dbg"] else ""}""")
    for k in range(4):
        a(f"""v_cmp_ne_u32 vcc, v{67+4*k}, v90
              s_cbranch_vccz K_P4_{k}
              s_mov_b64 exec, vcc
              buffer_load_dwordx4 v[{64+4*k}:{67+4*k}], v14, s[32:35], s{62+k} offen sc1
              s_mov_b64 exec, -1
            K_P4_{k}:""")
    a("""s_sub_u32 s83, s83, 1
         s_waitcnt vmcnt(0)
         v_bitop3_b32 v92, v67, v71, v90 bitop3:0x7e
         v_bitop3_b32 v88, v75, v79, v90 bitop3:0x7e
         s_cbranch_scc1 K_P4D
         v_or_b32 v92, v92, v88
         v_cmp_ne_u32 vcc, 0, v92
         s_cbranch_vccnz K_P4
         s_branch K_P4D""")

def sumw(a, younger):
    a(f"""v_mov_b32 v136, 0
          v_mov_b32 v137, 1
          s_waitcnt vmcnt({younger})
          s_mov_b64 exec, 1
          ds_add_u32 v136, v137 offset:{SY + 28}
          s_mov_b64 exec, -1
          s_cmp_lg_u32 s30, 1
          s_cbranch_scc1 K_NOSW
          v_mov_b32 v138, 0""")
    for i in range(8): a(f"v_dot2c_f32_bf16 v138, 0x3f803f80, v{128+i}")
    wave_reduce(a, "v_add_f32", [138])
    a(f"""v_or_b32 v138, 1, v138
          s_mov_b32 exec_lo, 0
          s_mov_b32 exec_hi, 0x80000000
          ds_write_b32 v136, v138 offset:{SY + 4}
          s_mov_b64 exec, -1
        K_NOSW:""")

def k4():
    a = Asm()
    name = "recurrent_scan__ssm_conv_s4d__moe_arch_mod__prompt_kernel"
    a.raw(f".p2align 8\n.globl {name}\n.type {name},@function\n{name}:")
    a("""s_cmp_ge_u32 s2, 256
         s_cbranch_scc1 K_END""")
    if OPT["dbg"]:
        for i in range(80, 102): a(f"s_mov_b32 s{i}, 0")
    stamp(a, 0)
    a(f"""s_load_dwordx2 s[44:45], s[0:1], 0
          s_load_dwordx16 s[4:19], s[0:1], 8
          s_load_dwordx8 s[20:27], s[0:1], 72
          s_load_dwordx4 s[40:43], s[0:1], 104
          v_readfirstlane_b32 s30, v0
          v_and_b32 v1, 63, v0
          s_and_b32 s28, s2, 7
          s_lshr_b32 s29, s2, 3
          s_mov_b32 s31, 0xffff0000
          s_mov_b32 s58, {L2E_HI:#x}
          s_lshr_b32 s30, s30, 6
          s_cmp_ge_u32 s30, 4
          s_cbranch_scc1 K_C""")
    e_path(a)
    a.raw(".p2align 6")
    a("K_C:")
    c_path(a)
    a("""K_END:
         s_endpgm""")
    a.raw(".p2align 4\n.type K_BAND,@object\n.size K_BAND, 5120\nK_BAND:")
    for off, w in ((10, 4), (13, 2), (12, 8), (11, 6), (10, 6)):
        for lane in range(64):
            h = [0x3c00 if 0 <= (lane & 15) - 8 * (lane >> 4) + off - jj <= w else 0 for jj in range(8)]
            a.raw(".long " + ", ".join(f"{h[2*i] | h[2*i+1] << 16:#x}" for i in range(4)))
    return a.finish(), desc(name, 168, 102 if OPT["dbg"] else 96)

if __name__ == "__main__":
    for kv in sys.argv[2:]:
        k, v = kv.split("=")
        assert k in OPT, k
        OPT[k] = int(v) if v.lstrip("-").isdigit() else v.replace("+", " ")
    hdr = open("recurrent_scan__ssm_conv_s4d__moe_arch_mod__prompt.s.ref").read().split("\n")
    out = [l for l in hdr if l.startswith(";") and "@launch" not in l and "Override launch" not in l and "grid=ceil" not in l]
    out.append(f"; @launch grid=(256,1,1) block=(768,1,1) lds={LDS}")
    out.append('.amdgcn_target "amdgcn-amd-amdhsa--gfx950"\n.text')
    b, d = k4()
    out += [b, '.section .rodata,"a"', d]
    open(sys.argv[1], "w").write("\n".join(out))
```

```python
from mblib import *
WB = 1024 * 3584 * 2
def gen(path, nW, gap, dly, w0=1, ack=1, yd=0, yack=1, half=0, ofl=""):
    a = Asm(); head(a); stamp(a, 0)
    a("""s_getpc_b64 s[10:11]
         v_lshlrev_b32 v3, 2, v0
         v_and_b32 v3, 0x7ff, v3
         global_load_dword v9, v3, s[10:11]
         s_load_dwordx2 s[4:5], s[0:1], 0
         s_load_dwordx4 s[8:11], s[0:1], 72
         s_load_dwordx2 s[14:15], s[0:1], 96
         v_lshrrev_b32 v2, 6, v0
         v_and_b32 v1, 63, v0
         v_readfirstlane_b32 s30, v2
         s_and_b32 s28, s2, 7
         s_lshr_b32 s29, s2, 3
         v_mov_b32 v40, 0
         v_mov_b32 v41, 1
         ds_write_b32 v40, v40
         ds_write_b32 v40, v40 offset:4
         s_waitcnt lgkmcnt(0)""")
    srd(a, 36, 4, 5, 0x400000); srd(a, 40, 14, 15, 0x400000)
    srd(a, 44, 8, 9, WB); srd(a, 48, 10, 11, WB)
    a("""s_cmp_ge_u32 s30, 4
         s_cbranch_scc1 CW
         v_lshrrev_b32 v4, 4, v1
         v_lshlrev_b32 v4, 12, v4
         v_and_b32 v5, 15, v1
         v_lshl_add_u32 v4, v5, 4, v4
         s_lshl_b32 s26, s2, 14
         s_lshl_b32 s27, s30, 9
         s_add_u32 s26, s26, s27""")
    offs = (0, 2048, 256, 2304)
    for n in range(4): a(f"buffer_load_dwordx4 v[{8+4*n}:{11+4*n}], v4, s[36:39], s26 offen offset:{offs[n]}")
    a("""s_barrier
         v_and_b32 v6, 3, v1
         v_lshlrev_b32 v6, 4, v6
         v_lshrrev_b32 v5, 2, v1
         v_lshl_add_u32 v6, v5, 14, v6
         s_and_b32 s20, s29, 7
         s_lshl_b32 s20, s20, 11
         s_lshr_b32 s21, s29, 3
         s_lshl_b32 s21, s21, 6
         s_add_u32 s20, s20, s21
         s_lshl_b32 s21, s28, 8
         s_add_u32 s20, s20, s21
         s_lshl_b32 s21, s30, 20
         s_add_u32 s20, s20, s21
         s_add_u32 s21, s20, 0x40000
         s_add_u32 s22, s20, 0x80000
         s_add_u32 s23, s20, 0xc0000
         s_mov_b32 s56, 0
         s_waitcnt vmcnt(0)""")
    stamp(a, 1)
    a("""s_sleep 6
         s_mov_b64 exec, 1
         ds_add_u32 v40, v41
         s_mov_b64 exec, -1
       AW:
         ds_read_b32 v42, v40
         s_waitcnt lgkmcnt(0)
         v_cmp_gt_u32 vcc, 4, v42
         s_cbranch_vccnz AW
         s_sleep 11
         v_mov_b32 v8, 0x12345678""")
    for n in range(4): a(f"buffer_store_dwordx4 v[8:11], v4, s[40:43], s26 offen offset:{offs[n]} sc1")
    stamp(a, 2)
    if ack: a("s_waitcnt vmcnt(0)")
    stamp(a, 3)
    if dly: a(f"s_sleep {dly}")
    for n in range(4): a(f"s_mov_b64 s[{4+2*n}:{5+2*n}], -1")
    a("PL:")
    for n in range(4):
        a(f"""s_mov_b64 exec, s[{4+2*n}:{5+2*n}]
              s_cbranch_execz Q{n}
              buffer_load_dwordx4 v[{24+4*n}:{27+4*n}], v6, s[40:43], s{20+n} offen sc1
            Q{n}:""")
    a("""s_mov_b64 exec, -1
         s_add_u32 s56, s56, 1
         s_waitcnt vmcnt(0)
         s_cmp_gt_u32 s56, 0x400
         s_cbranch_scc1 PD""")
    for n in range(4): a(f"v_cmp_ne_u32 s[{4+2*n}:{5+2*n}], v8, v{24+4*n}")
    a(f"""s_or_b64 s[12:13], s[4:5], s[6:7]
          s_or_b64 s[16:17], s[8:9], s[10:11]
          s_or_b64 s[12:13], s[12:13], s[16:17]
          s_cbranch_scc1 PL
        PD:""")
    stamp(a, 4)
    a("""s_mov_b64 exec, 1
         ds_add_u32 v40, v41 offset:4
         s_mov_b64 exec, -1
       BW:
         ds_read_b32 v42, v40 offset:4
         s_waitcnt lgkmcnt(0)
         v_cmp_gt_u32 vcc, 4, v42
         s_cbranch_vccnz BW
         s_sleep 40
         v_mov_b32 v8, 0x0badcafe
         s_lshl_b32 s24, s30, 19
         s_sub_u32 s20, s20, s24
         s_add_u32 s21, s20, 0x40000
         s_add_u32 s22, s20, 0x200000
         s_add_u32 s23, s20, 0x240000""")
    for n in range(2): a(f"buffer_store_dwordx4 v[8:11], v6, s[40:43], s{20+n} offen sc1")
    if half: a("s_sleep 12")
    stamp(a, 8)
    for n in range(2, 4): a(f"buffer_store_dwordx4 v[8:11], v6, s[40:43], s{20+n} offen sc1")
    if yack: a("s_waitcnt vmcnt(0)")
    stamp(a, 9)
    if yd: a(f"s_sleep {yd}")
    for n in range(4): a(f"s_mov_b64 s[{4+2*n}:{5+2*n}], -1")
    a("s_mov_b32 s57, 0\n YL:")
    for n in range(4):
        a(f"""s_mov_b64 exec, s[{4+2*n}:{5+2*n}]
              s_cbranch_execz Y{n}
              buffer_load_dwordx4 v[{24+4*n}:{27+4*n}], v4, s[40:43], s26 offen offset:{offs[n]} sc1
            Y{n}:""")
    a("""s_mov_b64 exec, -1
         s_add_u32 s57, s57, 1
         s_waitcnt vmcnt(0)
         s_cmp_gt_u32 s57, 0x400
         s_cbranch_scc1 YD""")
    for n in range(4): a(f"v_cmp_ne_u32 s[{4+2*n}:{5+2*n}], v8, v{24+4*n}")
    a(f"""s_or_b64 s[12:13], s[4:5], s[6:7]
          s_or_b64 s[16:17], s[8:9], s[10:11]
          s_or_b64 s[12:13], s[12:13], s[16:17]
          s_cbranch_scc1 YL
        YD:""")
    stamp(a, 10)
    a("s_sleep 5")
    for n in range(4): a(f"buffer_store_dwordx4 v[8:11], v4, s[40:43], s26 offen offset:{offs[n]} {ofl}")
    a("s_waitcnt vmcnt(0)")
    stamp(a, 11)
    a(f"""s_mov_b32 s{ST0+24}, s57
          s_branch FIN
       CW:
         s_barrier
         v_lshlrev_b32 v5, 4, v1
         s_mul_i32 s26, s2, 28672
         s_sub_u32 s27, s30, 4
         s_mul_i32 s27, s27, 3584
         s_add_u32 s26, s26, s27""")
    for k in range(nW):
        if k == w0: a("s_sleep 20")
        if k > w0: a(f"s_sleep {gap}")
        a(f"buffer_load_dwordx4 v[{8+4*k}:{11+4*k}], v5, s[{44+4*(k%2)}:{47+4*(k%2)}], s26 offen nt")
        if k % 2: a("s_add_u32 s26, s26, 896")
    stamp(a, 5)
    a("s_waitcnt vmcnt(0)")
    stamp(a, 6)
    a("""FIN:
         s_waitcnt lgkmcnt(0)""")
    flush(a, 30)
    write(path, a, 768, 160000)
W = "work/"
gen(W + "mb16_a.s", 5, 14, 10)
gen(W + "mb16_b.s", 5, 14, 10, yd=6)
gen(W + "mb16_c.s", 5, 14, 10, yd=12)
gen(W + "mb16_d.s", 5, 14, 10, half=1)
gen(W + "mb16_e.s", 5, 14, 10, half=1, yd=6)
gen(W + "mb16_f.s", 5, 14, 10, half=1, yd=10, yack=0)
gen(W + "mb16_g.s", 5, 14, 10, half=1, yd=6, ofl="sc1")
gen(W + "mb16_h.s", 5, 14, 10, half=1, yd=6, ofl="nt")
```
